```python
import torch

def _softmax(x, axis=-1):
    return torch.softmax(x, dim=axis)
def _gelu(x):
    return torch.nn.functional.gelu(x, approximate="tanh")
def _silu(x):
    return torch.nn.functional.silu(x)
def _sigmoid(x):
    return torch.sigmoid(x)
def _layernorm(x, axis=-1, eps=1e-5):
    m = x.mean(dim=axis, keepdim=True)
    v = x.var(dim=axis, keepdim=True, unbiased=False)
    return (x - m) / torch.sqrt(v + eps)
def _scatter_add(tgt, idx, src, axis=0):
    return tgt.clone().index_add_(axis, idx, src)
def _segment_sum(src, seg, n):
    out = torch.zeros((n,) + src.shape[1:], dtype=src.dtype)
    return out.index_add_(0, seg, src)
def _pad(x, pw):
    flat = tuple(v for pair in reversed(pw) for v in pair)
    return torch.nn.functional.pad(x, flat)

kernel_name = 'gated_mix__sliding_block_cached__sliding_block_cached__decode'

def setup_inputs():

    _w = (lambda a: (lambda t: t.to(torch.bfloat16) if t.is_floating_point() else t)(torch.as_tensor(a)))
    def _A_setup():
        B, Sq, D = 8, 1, 448
        Hq, Hkv, Sk, Dh = 16, 8, 4096, 256
        assert Hq % Hkv == 0, (Hq, Hkv)
        return {
            "x": _w((lambda *s: torch.randn(*s, dtype=torch.bfloat16) * 0.05)(B, Sq, D)),
            "k_cache": _w((lambda *s: torch.randn(*s, dtype=torch.bfloat16) * 3.2)(B, Hkv, Sk, Dh)),
            "v_cache": _w((lambda *s: torch.randn(*s, dtype=torch.bfloat16) * 0.05)(B, Hkv, Sk, Dh)),
            "wq": _w((lambda *s: torch.randn(*s, dtype=torch.bfloat16) * 3.2)(D, Hq * Dh) * (D ** -0.5)),
            "wo": _w((lambda *s: torch.randn(*s, dtype=torch.bfloat16) * 0.05)(Hq * Dh, D) * ((Hq * Dh) ** -0.5)),
        }
    _A_in = _A_setup()

    def _B_setup():
        B, Sq, D = 8, 1, 448
        Hq, Hkv, Sk, Dh = 16, 8, 4096, 256
        assert Hq % Hkv == 0, (Hq, Hkv)
        return {
            "x": _w((lambda *s: torch.randn(*s, dtype=torch.bfloat16) * 0.05)(B, Sq, D)),
            "k_cache": _w((lambda *s: torch.randn(*s, dtype=torch.bfloat16) * 3.2)(B, Hkv, Sk, Dh)),
            "v_cache": _w((lambda *s: torch.randn(*s, dtype=torch.bfloat16) * 0.05)(B, Hkv, Sk, Dh)),
            "wq": _w((lambda *s: torch.randn(*s, dtype=torch.bfloat16) * 3.2)(D, Hq * Dh) * (D ** -0.5)),
            "wo": _w((lambda *s: torch.randn(*s, dtype=torch.bfloat16) * 0.05)(Hq * Dh, D) * ((Hq * Dh) ** -0.5)),
        }
    _B_in = _B_setup()

    return {
        "A_x": _A_in["x"],
        "A_k_cache": _A_in["k_cache"],
        "A_v_cache": _A_in["v_cache"],
        "A_wq": _A_in["wq"],
        "A_wo": _A_in["wo"],
        "B_x": _B_in["x"],
        "B_k_cache": _B_in["k_cache"],
        "B_v_cache": _B_in["v_cache"],
        "B_wq": _B_in["wq"],
        "B_wo": _B_in["wo"],
        "gate_w": _w((lambda *s: torch.randn(*s, dtype=torch.bfloat16) * 0.05)(448) * 16.0),
    }

def reference(A_x, A_k_cache, A_v_cache, A_wq, A_wo, B_x, B_k_cache, B_v_cache, B_wq, B_wo, gate_w):
    def _A_ref(x, k_cache, v_cache, wq, wo):
        B, Sq, D = x.shape
        Hq, Dh = 16, 256
        Hkv, Sk = k_cache.shape[1], k_cache.shape[2]
        W = min(4096, max(256, Sk // 4))
        rep = Hq // Hkv
        q = (lambda x, *d: x.permute(*d))((x @ wq).reshape(B, Sq, Hq, Dh), 0, 2, 1, 3)
        k = (lambda x, n, axis: torch.repeat_interleave(x, n, dim=axis))(k_cache[:, :, Sk - W:, :], rep, axis=1)
        v = (lambda x, n, axis: torch.repeat_interleave(x, n, dim=axis))(v_cache[:, :, Sk - W:, :], rep, axis=1)
        scores = torch.einsum("bhqd,bhkd->bhqk", q, k) * (Dh ** -0.5)
        p = _softmax(scores, axis=-1)
        o = torch.einsum("bhqk,bhkd->bhqd", p, v)
        return (lambda x, *d: x.permute(*d))(o, 0, 2, 1, 3).reshape(B, Sq, Hq * Dh) @ wo

    def _B_ref(x, k_cache, v_cache, wq, wo):
        B, Sq, D = x.shape
        Hq, Dh = 16, 256
        Hkv, Sk = k_cache.shape[1], k_cache.shape[2]
        W = min(4096, max(256, Sk // 4))
        rep = Hq // Hkv
        q = (lambda x, *d: x.permute(*d))((x @ wq).reshape(B, Sq, Hq, Dh), 0, 2, 1, 3)
        k = (lambda x, n, axis: torch.repeat_interleave(x, n, dim=axis))(k_cache[:, :, Sk - W:, :], rep, axis=1)
        v = (lambda x, n, axis: torch.repeat_interleave(x, n, dim=axis))(v_cache[:, :, Sk - W:, :], rep, axis=1)
        scores = torch.einsum("bhqd,bhkd->bhqk", q, k) * (Dh ** -0.5)
        p = _softmax(scores, axis=-1)
        o = torch.einsum("bhqk,bhkd->bhqd", p, v)
        return (lambda x, *d: x.permute(*d))(o, 0, 2, 1, 3).reshape(B, Sq, Hq * Dh) @ wo

    x = A_x
    g = _sigmoid((x * gate_w).sum(-1, keepdims=True))
    a = _A_ref(x, A_k_cache, A_v_cache, A_wq, A_wo)
    b = _B_ref(x, B_k_cache, B_v_cache, B_wq, B_wo)
    return g * a + (1 - g) * b
```

```python
import re
def regs_of(tok):
    tok=tok.strip()
    neg = tok.lstrip('-')
    m=re.fullmatch(r'(?:abs\()?([vsa])(\d+)\)?',neg)
    if m: return [(m.group(1),int(m.group(2)))]
    m=re.fullmatch(r'([vsa])\[(\d+):(\d+)\]',neg)
    if m: return [(m.group(1),i) for i in range(int(m.group(2)),int(m.group(3))+1)]
    if neg=='vcc': return [('s',106),('s',107)]
    if neg=='exec': return [('x',0)]
    if neg=='m0': return [('m',0)]
    return []
TRANS=('v_exp_f32','v_log_f32','v_rcp_f32','v_rsq_f32','v_sqrt_f32','v_sin_f32','v_cos_f32')
def parse(line):
    s=line.split(';')[0].strip()
    if not s or s.endswith(':') or s.startswith('.'): return None
    parts=s.split(None,1); op=parts[0]; rest=parts[1] if len(parts)>1 else ''
    toks=[t.strip() for t in re.split(r',(?![^\[]*\])',rest)] if rest else []
    mods=''
    if toks:
        lt=toks[-1].split(None,1); toks[-1]=lt[0]; mods=lt[1] if len(lt)>1 else ''
    d=dict(op=op,toks=toks,mods=mods,text=s)
    R=[regs_of(t) for t in toks]
    w=[];r=[]
    if op.startswith('v_mfma'):
        kind='mfma'; w=R[0]; r=R[1]+R[2]; d['c']=R[3]; r+=R[3]
    elif op.startswith('v_cmp'):
        kind='valu'; w=R[0]; r=sum(R[1:],[])
    elif op.startswith('v_readfirstlane') or op.startswith('v_readlane'):
        kind='valu'; w=R[0]; r=sum(R[1:],[]); d['rdlane']=True
    elif op.startswith('v_permlane'):
        kind='valu'; w=R[0]+R[1]; r=R[0]+R[1]; d['perml']=True
    elif op.startswith('v_'):
        kind='valu'; w=R[0]; r=sum(R[1:],[])
        if op.startswith('v_add_co') or op.startswith('v_addc_co') or op.startswith('v_sub_co'): w=R[0]+R[1]; r=sum(R[2:],[])
        if op.startswith('v_fmac') or 'pk_fmac' in op: r+=R[0]
        if 'quad_perm' in mods or 'row_' in mods or 'wave_' in mods or '_dpp' in op:
            d['dpp']=True; r+=R[0]
        if op.startswith('v_cndmask') and len(toks)==3: r+=[('s',106),('s',107)]
    elif op.startswith('buffer_') or op.startswith('global_'):
        kind='vmem'
        if '_load' in op and 'lds' not in mods.split() and 'lds' not in op: w=R[0]; r=sum(R[1:],[])
        else: r=sum(R,[])
        if 'lds' in mods.split() or 'lds' in op: r+=[('m',0)]; d['dma']=True
        if 'store' in op: d['store']=True; d['wide']=('x3' in op or 'x4' in op)
    elif op.startswith('ds_'):
        kind='ds'
        if 'read' in op or 'permute' in op or 'swizzle' in op: w=R[0]; r=sum(R[1:],[])
        else: r=sum(R,[])
    elif op.startswith('s_'):
        kind='salu'
        if op in('s_nop','s_waitcnt','s_barrier','s_endpgm','s_sleep','s_setprio') or op.startswith('s_cbranch') or op=='s_branch' or op.startswith('s_cmp'):
            w=[]; r=sum(R,[])
        else:
            w=R[0] if R else []; r=sum(R[1:],[])
    else:
        kind='other'
    d.update(kind=kind,w=set(w),r=set(r))
    d['ws']= (int(toks[0],0)+1) if op=='s_nop' else 1
    return d
def lint(text):
    ins=[]
    for ln,l in enumerate(text.split('\n'),1):
        p=parse(l)
        if p: p['ln']=ln; ins.append(p)
    probs=[]
    for i,c in enumerate(ins):
        dist=0
        for j in range(i-1,max(-1,i-24),-1):
            p=ins[j]
            need=0
            vw={x for x in p['w'] if x[0] in 'va'}; sw={x for x in p['w'] if x[0]=='s'}
            if p['kind']=='valu':
                if c['kind']=='mfma' and vw&c['r']: need=max(need,2)
                if c.get('dpp') and vw&c['r']: need=max(need,2)
                if c.get('perml') and vw&c['r']: need=max(need,2)
                if c.get('rdlane') and vw&c['r']: need=max(need,1)
                if p['op'].replace('_e32','').replace('_e64','') in TRANS and c['kind'] in('valu','mfma') and vw&c['r']: need=max(need,1)
                if sw and c['kind']=='valu' and sw&c['r']: need=max(need,2)
                if sw and c['kind']=='vmem' and sw&c['r']: need=max(need,5)
                if sw and c['kind']=='salu' and sw&c['r']: need=max(need,0)
            if p['kind']=='mfma':
                passes = 8 if '32x32' in p['op'] else 4
                tab={4:(8,6,3),8:(12,10,7)}[passes]
                if c['kind'] in('valu','vmem','ds') and (vw&c['r'] or vw&c['w']): need=max(need,tab[0])
                if c['kind']=='mfma':
                    ab=set(regs_of(c['toks'][1])+regs_of(c['toks'][2]))
                    if vw&ab: need=max(need,tab[0])
                    cc=set(c['c'])
                    if vw&cc and cc!=vw: need=max(need,tab[1])
                if c['kind']=='valu' and set(p['c'])&c['w']: need=max(need,tab[2])
            if p['kind']=='salu' and ('m',0) in p['w'] and c.get('dma'): need=max(need,1)
            if p.get('store') and p.get('wide') and c['kind'] in ('valu','mfma','vmem','ds'):
                data=set(regs_of(p['toks'][0])) if p['op'].startswith('buffer') else set(regs_of(p['toks'][1]))
                if data&c['w']: need=max(need,2)
            if need>dist:
                probs.append(f"line {c['ln']}: '{c['text']}' needs {need} wait states after line {p['ln']} '{p['text']}' (has {dist})")
            dist+=p['ws']
            if dist>=20: break
    return probs
if __name__=="__main__":
    import sys
    for p in lint(open(sys.argv[1]).read()): print(p)
```

```python
import sys, math
sys.path.insert(0, "gen"); sys.path.insert(0, "tools")
KN = "gated_mix__sliding_block_cached__sliding_block_cached__decode_kernel"
HEADER = open("gated_mix__sliding_block_cached__sliding_block_cached__decode.s.ref").read().split("; Override launch")[0]

WS_Q = 0x10000
WS_O = 0x80000
WS_P = 0x200000
WS_TS = 0x400000
WS_SIZE = 0x800000
L_QL = 0
L_SM = 1024
L_SL = 1088
L_G = 1152
L_GW = 2048
L_RR = 4096
L_WQ = 8192
L_X = 36864
L_WO = 44032
L_OR = 72704
LDS_BYTES = 89088

class G:
    def __init__(s, **o):
        s.L = []; s.o = dict(n1=8, round_s=1, ts=0, pol='nt', spin=1<<16, wo_late=0, codepf=1); s.o.update(o); s.nts = 0
    def e(s, t): s.L.append("  " + t)
    def lab(s, t): s.L.append(t + ":")
    def c(s, t): s.L.append("  ; " + t)
    def nop(s, n):
        while n > 0:
            k = min(n, 16); s.e(f"s_nop {k-1}"); n -= k
    def ts(s, name):
        if not s.o['ts']: return
        k = s.nts; s.nts += 1
        assert k < 8
        s.e(f"s_memrealtime s[{84+2*k}:{85+2*k}]")

def vr(a, n=4): return f"v[{a}:{a+n-1}]"
def sr(a, n=4): return f"s[{a}:{a+n-1}]"

def gen(**opts):
    g = G(**opts); e = g.e; o = g.o; POL = o['pol']; N1 = o['n1']
    sK, sV, sWQ, sWO, sX, sGW, sWS, sOUT = 24, 28, 32, 36, 40, 44, 48, 52
    sW = 56; s16k = 57; sT0, sT1, sT2, sT3 = 58, 59, 60, 61
    sKVH, sBR, sMEM, sB, sG = 3, 4, 5, 6, 7
    sMASK = 64
    sM8 = 80
    sSEL0, sSEL1 = 82, 83
    sSPIN = 62; sC = 63
    vL = 1; vKO = 2; vVO = 3; vTAG = 4; vA = 5; vB = 6; vC = 7
    vQB = 8
    vS = 16
    vD = 32
    vV0 = 64
    vK = 128
    vPV = 192
    vACC = 8

    g.L.append(HEADER.rstrip("\n"))
    g.L.append(f"; @launch grid=(256,1,1) block=(512,1,1) lds={LDS_BYTES}")
    g.L.append('.amdgcn_target "amdgcn-amd-amdhsa--gfx950"')
    g.L.append(".text"); g.L.append(f".globl {KN}"); g.L.append(".p2align 8"); g.L.append(f".type {KN},@function"); g.lab(KN)
    e("s_cmp_ge_u32 s2, 256"); e("s_cbranch_scc1 L_end")
    g.ts("start")
    e(f"s_lshr_b32 s{sBR}, s2, 7")
    e(f"s_mul_i32 s{sT0}, s{sBR}, 40")
    e(f"s_add_u32 s{sT2}, s0, s{sT0}"); e(f"s_addc_u32 s{sT3}, s1, 0")
    e(f"s_load_dwordx8 s[8:15], s[{sT2}:{sT3}], 8")
    e("s_load_dwordx2 s[16:17], s[0:1], 0")
    e("s_load_dwordx2 s[18:19], s[0:1], 104")
    e("s_load_dwordx4 s[20:23], s[0:1], 80")
    e(f"v_lshrrev_b32 v{vA}, 6, v0")
    e(f"v_and_b32 v{vL}, 63, v0")
    e(f"v_readfirstlane_b32 s{sW}, v{vA}")
    e(f"s_getpc_b64 s[{sM8}:{sM8+1}]")
    g.lab("L_pc")
    e(f"s_and_b32 s{sKVH}, s2, 7")
    e(f"s_bfe_u32 s{sMEM}, s2, 0x40003")
    e(f"s_lshr_b32 s{sB}, s{sMEM}, 1")
    e(f"s_lshl_b32 s{sG}, s{sBR}, 3"); e(f"s_add_u32 s{sG}, s{sG}, s{sKVH}")
    e(f"s_mov_b32 s{s16k}, 16384")
    e(f"s_lshl_b32 s{sT0}, s{sB}, 24"); e(f"s_lshl_b32 s{sT1}, s{sKVH}, 21"); e(f"s_add_u32 s{sT0}, s{sT0}, s{sT1}")
    e(f"s_and_b32 s{sT1}, s{sMEM}, 1"); e(f"s_lshl_b32 s{sT1}, s{sT1}, 18"); e(f"s_add_u32 s{sT0}, s{sT0}, s{sT1}")
    e(f"s_lshl_b32 s{sT1}, s{sW}, 15"); e(f"s_add_u32 s{sT0}, s{sT0}, s{sT1}")
    e(f"s_add_u32 s{sT0}, s{sT0}, {3072*512}")
    e(f"v_bfe_u32 v{vA}, v{vL}, 2, 2"); e(f"v_lshlrev_b32 v{vA}, 12, v{vA}")
    e(f"v_lshrrev_b32 v{vB}, 4, v{vL}")
    e(f"v_lshl_add_u32 v{vKO}, v{vB}, 6, v{vA}")
    e(f"v_and_b32 v{vA}, 3, v{vL}"); e(f"v_lshl_add_u32 v{vKO}, v{vA}, 4, v{vKO}")
    e(f"v_add_u32 v{vKO}, s{sT0}, v{vKO}")
    e(f"v_and_b32 v{vC}, 15, v{vL}"); e(f"v_lshlrev_b32 v{vC}, 4, v{vC}")
    e(f"v_lshl_add_u32 v{vVO}, v{vB}, 12, v{vC}")
    e(f"v_add_u32 v{vVO}, s{sT0}, v{vVO}")
    e(f"v_lshrrev_b32 v32, 2, v{vL}"); e(f"v_lshlrev_b32 v32, 13, v32"); e(f"v_lshl_add_u32 v32, v{vA}, 4, v32")
    e(f"s_lshl_b32 s{sT0}, s{sKVH}, 10"); e(f"s_lshl_b32 s{sT1}, s{sMEM}, 6"); e(f"s_add_u32 s{sT0}, s{sT0}, s{sT1}")
    e(f"v_add_u32 v32, s{sT0}, v32")
    e(f"v_lshlrev_b32 v33, 4, v{vL}")
    e(f"v_mov_b32 v34, 0")
    if o['codepf']:
        e(f"v_lshlrev_b32 v35, 7, v0")
        e(f"s_mov_b32 s{sT0}, L_codeend-L_pc-4")
        e(f"v_cmp_gt_u32 vcc, s{sT0}, v35")
        e(f"s_and_saveexec_b64 s[{sT2}:{sT3}], vcc")
        e("s_cbranch_execz L_nopf")
        e(f"global_load_dword v36, v35, s[{sM8}:{sM8+1}]")
        g.lab("L_nopf")
        e("s_mov_b64 exec, -1")
    e("s_waitcnt lgkmcnt(0)")
    def srd(d, p, n):
        e(f"s_mov_b32 s{d}, s{p}"); e(f"s_mov_b32 s{d+1}, s{p+1}"); e(f"s_mov_b32 s{d+2}, {n}"); e(f"s_mov_b32 s{d+3}, 0x20000")
    srd(sWQ, 12, 3670016); srd(sX, 16, 7168); srd(sWS, 18, WS_SIZE); srd(sK, 8, 0x8000000)
    e(f"buffer_load_dword v{vTAG}, v34, {sr(sWS)}, 0 offen sc1")
    srd(sGW, 20, 896)
    e(f"s_cmp_eq_u32 s{sW}, 7"); e("s_cbranch_scc1 L_dmax")
    e(f"s_lshl_b32 s{sT0}, s{sW}, 12")
    e(f"s_lshl_b32 s{sT1}, s{sW}, 19")
    for ii in range(4):
        e(f"s_add_u32 m0, s{sT0}, {L_WQ+ii*1024}")
        e(f"s_add_u32 s{sT2}, s{sT1}, {ii*131072}")
        e(f"buffer_load_dwordx4 v32, {sr(sWQ)}, s{sT2} offen {POL} lds")
    e("s_branch L_dmadone")
    g.lab("L_dmax")
    for ii in range(7):
        e(f"s_mov_b32 m0, {L_X+ii*1024}")
        e(f"s_mov_b32 s{sT2}, {ii*1024}")
        e(f"buffer_load_dwordx4 v33, {sr(sX)}, s{sT2} offen lds")
    e(f"s_mov_b32 m0, {L_GW}"); e("s_nop 0")
    e(f"buffer_load_dwordx4 v33, {sr(sGW)}, 0 offen lds")
    g.lab("L_dmadone")
    def kload(n):
        u, hf = n//2, n % 2
        so = f"s{s16k}" if u >= 8 else "0"
        e(f"buffer_load_dwordx4 {vr(vK+4*n)}, v{vKO}, {sr(sK)}, {so} offen offset:{(u&7)*512+hf*256} {POL}")
    def vload(unit, j, base):
        blk, hf = unit//2, unit % 2
        so = f"s{s16k}" if blk else "0"
        e(f"buffer_load_dwordx4 {vr(base+4*j)}, v{vVO}, {sr(sV)}, {so} offen offset:{j*512+hf*256} {POL}")
    for n in range(N1): kload(n)
    srd(sV, 10, 0x8000000); srd(sWO, 14, 3670016); srd(sOUT, 22, 7168)
    for v in range(8):
        pat = (0x11 << (v & 3)) << (8*(v >> 2)); pat |= pat << 16
        e(f"s_mov_b32 s{sMASK+2*v}, 0x{pat:08x}"); e(f"s_mov_b32 s{sMASK+2*v+1}, 0x{pat:08x}")
    e(f"s_mov_b32 s{sSEL0}, 0x05040100"); e(f"s_mov_b32 s{sSEL1}, 0x07060302")
    e(f"s_mov_b32 s{sC}, 0x{f2u(math.log2(math.e)/16):08x}")
    e(f"s_mov_b32 s{sM8}, 0xff00ff00"); e(f"s_mov_b32 s{sM8+1}, 0xff00ff00")
    e(f"s_waitcnt vmcnt({N1})")
    e(f"v_add_u32 v{vTAG}, 1, v{vTAG}")
    e("s_barrier")
    g.ts("B1")
    e(f"s_cmp_gt_u32 s{sW}, 1"); e("s_cbranch_scc1 L_qdone")
    e(f"v_lshrrev_b32 v40, 4, v{vL}")
    e(f"v_bfe_u32 v41, v{vL}, 2, 2")
    e(f"v_lshl_add_u32 v41, v40, 3, v41"); e(f"v_lshlrev_b32 v41, 6, v41")
    e(f"v_and_b32 v42, 3, v{vL}"); e(f"v_lshl_add_u32 v41, v42, 3, v41")
    e(f"s_lshl_b32 s{sT0}, s{sW}, 5"); e(f"v_add_u32 v41, s{sT0}, v41")
    e(f"v_and_b32 v42, 7, v{vL}"); e(f"v_mul_u32_u24 v42, 896, v42"); e(f"v_lshl_add_u32 v42, v40, 4, v42")
    e(f"v_add_u32 v42, {L_X}, v42")
    steps = list(range(14)); first = True
    for ch in (steps[0:5], steps[5:10], steps[10:14]):
        for k, s_ in enumerate(ch):
            a = vV0 + 8*k
            e(f"ds_read_b64_tr_b16 {vr(a,2)}, v41 offset:{L_WQ+s_*2048}")
            e(f"ds_read_b64_tr_b16 {vr(a+2,2)}, v41 offset:{L_WQ+s_*2048+256}")
            e(f"ds_read_b128 {vr(a+4)}, v42 offset:{s_*64}")
        e("s_waitcnt lgkmcnt(0)")
        for k, s_ in enumerate(ch):
            a = vV0 + 8*k
            e(f"v_mfma_f32_16x16x32_bf16 {vr(44)}, {vr(a)}, {vr(a+4)}, {'0' if first else vr(44)}"); first = False
    e(f"s_lshl_b32 s{sT0}, s{sG}, 14"); e(f"s_lshl_b32 s{sT1}, s{sMEM}, 7"); e(f"s_add_u32 s{sT0}, s{sT0}, s{sT1}")
    e(f"s_lshl_b32 s{sT1}, s{sW}, 6"); e(f"s_add_u32 s{sT0}, s{sT0}, s{sT1}"); e(f"s_add_u32 s{sT0}, s{sT0}, {WS_Q}")
    e(f"v_and_b32 v42, 7, v{vL}"); e(f"v_lshlrev_b32 v42, 11, v42"); e(f"v_lshl_add_u32 v42, v40, 4, v42")
    e(f"v_mov_b32 v49, v{vTAG}"); e(f"v_mov_b32 v51, v{vTAG}")
    e(f"v_cvt_pk_bf16_f32 v48, v44, v45"); e(f"v_cvt_pk_bf16_f32 v50, v46, v47")
    e("s_mov_b32 exec_lo, 0x00ff00ff"); e("s_mov_b32 exec_hi, 0x00ff00ff")
    e(f"buffer_store_dwordx4 v[48:51], v42, {sr(sWS)}, s{sT0} offen sc1")
    e("s_mov_b64 exec, -1")
    g.lab("L_qdone")
    for n in range(N1, 32): kload(n)
    e(f"s_lshl_b32 s{sT0}, s{sG}, 3"); e(f"s_add_u32 s{sT0}, s{sT0}, s{sB}"); e(f"s_lshl_b32 s{sT0}, s{sT0}, 11")
    e(f"s_add_u32 s{sT3}, s{sT0}, {WS_Q}")
    e(f"s_cmp_lg_u32 s{sW}, 2"); e("s_cbranch_scc1 L_nog1")
    e(f"buffer_load_dwordx4 v[52:55], v33, {sr(sWS)}, s{sT3} offen sc1")
    e(f"buffer_load_dwordx4 v[56:59], v33, {sr(sWS)}, s{sT3} offen offset:1024 sc1")
    g.lab("L_nog1")
    def wo_dma():
        e(f"s_cmp_eq_u32 s{sW}, 7"); e("s_cbranch_scc1 L_wodone")
        e(f"s_lshr_b32 s{sT0}, s{sMEM}, 2"); e(f"s_lshl_b32 s{sT0}, s{sT0}, 7"); e(f"s_lshl_b32 s{sT1}, s{sKVH}, 9"); e(f"s_add_u32 s{sT0}, s{sT0}, s{sT1}")
        e(f"s_mul_i32 s{sT0}, s{sT0}, 896"); e(f"s_and_b32 s{sT1}, s{sMEM}, 3"); e(f"s_mul_i32 s{sT1}, s{sT1}, 224"); e(f"s_add_u32 s{sT0}, s{sT0}, s{sT1}")
        e(f"s_lshl_b32 s{sT1}, s{sW}, 12")
        for ii in range(4):
            e(f"s_lshl_b32 s{sT2}, s{sW}, 8"); e(f"s_add_u32 s{sT2}, s{sT2}, {64*ii}")
            e(f"v_add_u32 v60, s{sT2}, v{vL}")
            e(f"v_mul_u32_u24 v61, 4682, v60"); e(f"v_lshrrev_b32 v61, 16, v61")
            e(f"v_mul_u32_u24 v61, 672, v61"); e(f"v_lshl_add_u32 v61, v60, 4, v61")
            e(f"s_add_u32 m0, s{sT1}, {L_WO+ii*1024}"); e("s_nop 0")
            e(f"buffer_load_dwordx4 v61, {sr(sWO)}, s{sT0} offen {POL} lds")
        g.lab("L_wodone")
    if not o['wo_late']: wo_dma()
    for unit in range(2):
        for j in range(8): vload(unit, j, vV0 + 32*unit)
    g.ts("issued")
    e("s_cmp_ge_u32 s2, 28"); e("s_cbranch_scc1 L_nogate")
    e(f"s_mul_i32 s{sT0}, s{sW}, 896"); e(f"s_add_u32 s{sT0}, s{sT0}, {L_X}")
    e(f"v_lshlrev_b32 v40, 2, v{vL}"); e(f"v_add_u32 v41, s{sT0}, v40")
    for k in range(4):
        e(f"ds_read_b32 v{16+k}, v41 offset:{k*256}")
        e(f"ds_read_b32 v{20+k}, v40 offset:{L_GW+k*256}")
    e("s_waitcnt lgkmcnt(0)")
    e(f"v_cmp_gt_u32 vcc, 32, v{vL}"); e("v_mov_b32 v24, 0"); e("s_nop 0")
    e("v_cndmask_b32 v19, 0, v19, vcc")
    for k in range(4):
        e(f"v_lshlrev_b32 v25, 16, v{16+k}"); e(f"v_and_b32 v26, 0xffff0000, v{16+k}")
        e(f"v_lshlrev_b32 v27, 16, v{20+k}"); e(f"v_and_b32 v28, 0xffff0000, v{20+k}")
        e("v_mul_f32 v25, v25, v27"); e("v_mul_f32 v26, v26, v28")
        e("v_cvt_pk_bf16_f32 v25, v25, v26")
        e("v_lshlrev_b32 v26, 16, v25"); e("v_and_b32 v25, 0xffff0000, v25")
        e("v_add_f32 v24, v24, v26"); e("v_add_f32 v24, v24, v25")
    for dpp in ("quad_perm:[1,0,3,2]", "quad_perm:[2,3,0,1]", "row_ror:4", "row_ror:8"):
        e("s_nop 1"); e(f"v_add_f32_dpp v24, v24, v24 {dpp} row_mask:0xf bank_mask:0xf")
    for sw in ("16", "32"):
        e("v_mov_b32 v25, v24"); e("s_nop 1"); e(f"v_permlane{sw}_swap_b32 v24, v25"); e("v_add_f32 v24, v24, v25")
    e("v_cvt_pk_bf16_f32 v24, v24, v24"); e("v_and_b32 v24, 0xffff0000, v24")
    e(f"v_mul_f32 v24, 0x{f2u(-math.log2(math.e)):08x}, v24"); e("v_exp_f32 v24, v24"); e("s_nop 0")
    e("v_add_f32 v24, 1.0, v24"); e("v_rcp_f32 v24, v24"); e("s_nop 0")
    e("v_cvt_pk_bf16_f32 v24, v24, v24"); e("v_and_b32 v24, 0xffff0000, v24")
    e("v_sub_f32 v25, 1.0, v24"); e("v_cvt_pk_bf16_f32 v25, v25, v25"); e("v_and_b32 v25, 0xffff0000, v25")
    e(f"s_lshl_b32 s{sT0}, s{sW}, 2"); e(f"v_mov_b32 v26, s{sT0}")
    e(f"v_add_u32 v26, {L_G}, v26")
    e("ds_write2_b32 v26, v24, v25 offset0:0 offset1:8")
    g.lab("L_nogate")
    e(f"s_cmp_lg_u32 s{sW}, 2"); e("s_cbranch_scc1 L_qok")
    e(f"s_mov_b32 s{sSPIN}, {o['spin']}")
    e("s_waitcnt vmcnt(16)")
    g.lab("L_qchk")
    e(f"v_min3_u32 v60, v53, v55, v57"); e(f"v_max3_u32 v61, v53, v55, v57")
    e(f"v_min_u32 v60, v60, v59"); e(f"v_max_u32 v61, v61, v59")
    e(f"v_cmp_ne_u32 vcc, v60, v{vTAG}"); e(f"v_cmp_ne_u32 s[{sT0}:{sT1}], v61, v{vTAG}")
    e(f"s_or_b64 vcc, vcc, s[{sT0}:{sT1}]")
    e("s_cbranch_vccz L_qgot")
    e(f"s_sub_u32 s{sSPIN}, s{sSPIN}, 1"); e("s_cbranch_scc1 L_qgot")
    e(f"buffer_load_dwordx4 v[52:55], v33, {sr(sWS)}, s{sT3} offen sc1")
    e(f"buffer_load_dwordx4 v[56:59], v33, {sr(sWS)}, s{sT3} offen offset:1024 sc1")
    e("s_waitcnt vmcnt(0)")
    e("s_branch L_qchk")
    g.lab("L_qgot")
    e(f"v_lshlrev_b32 v60, 3, v{vL}"); e(f"v_add_u32 v60, {L_QL}, v60")
    e("ds_write2_b32 v60, v52, v54 offset0:0 offset1:1")
    e("ds_write2_b32 v60, v56, v58 offset0:128 offset1:129")
    g.lab("L_qok")
    e("s_waitcnt lgkmcnt(0)")
    e("s_barrier")
    g.ts("B2")
    e(f"v_bfe_u32 v{vA}, v{vL}, 2, 1"); e(f"v_lshlrev_b32 v{vA}, 9, v{vA}")
    e(f"v_lshrrev_b32 v{vB}, 4, v{vL}"); e(f"v_lshl_add_u32 v{vA}, v{vB}, 6, v{vA}")
    e(f"v_and_b32 v{vB}, 3, v{vL}"); e(f"v_lshl_add_u32 v{vA}, v{vB}, 4, v{vA}")
    e(f"ds_read_b128 {vr(vQB)}, v{vA} offset:{L_QL}")
    e(f"ds_read_b128 {vr(vQB+4)}, v{vA} offset:{L_QL+256}")
    def post(u):
        d = vD + 16*((u//4) % 2) + 4*(u % 4); s_ = vS + u
        e(f"v_mov_b32_dpp v{s_}, v{d} quad_perm:[0,0,0,0] row_mask:0xf bank_mask:0xf")
        e(f"v_add_f32_dpp v{s_}, v{d+1}, v{s_} quad_perm:[1,1,1,1] row_mask:0xf bank_mask:0xf")
        e(f"v_add_f32_dpp v{s_}, v{d+2}, v{s_} quad_perm:[2,2,2,2] row_mask:0xf bank_mask:0xf")
        e(f"v_add_f32_dpp v{s_}, v{d+3}, v{s_} quad_perm:[3,3,3,3] row_mask:0xf bank_mask:0xf")
    e("s_waitcnt lgkmcnt(0)")
    out_after = 16
    for bt in range(4):
        lastn = 8*bt + 7
        e(f"s_waitcnt vmcnt({31-lastn+out_after})")
        for u in range(4*bt, 4*bt+4):
            d = vD + 16*(bt % 2) + 4*(u % 4)
            e(f"v_mfma_f32_16x16x32_bf16 {vr(d)}, {vr(vK+8*u)}, {vr(vQB)}, 0")
            e(f"v_mfma_f32_16x16x32_bf16 {vr(d)}, {vr(vK+8*u+4)}, {vr(vQB+4)}, {vr(d)}")
        if bt in (0, 1):
            for j in range(8): vload(2+bt, j, vK + 32*bt)
            out_after += 8
        if bt == 1 and o['wo_late']:
            wo_dma()
        if bt >= 1:
            us = list(range(4*(bt-1), 4*bt))
            postn(g, us, vD, vS)
    g.nop(8)
    postn(g, list(range(12, 16)), vD, vS)
    g.ts("QK")
    if o['round_s']:
        for u in range(0, 16, 2):
            e(f"v_cvt_pk_bf16_f32 v{vD+u}, v{vS+u}, v{vS+u+1}")
        for u in range(0, 16, 2):
            e(f"v_lshlrev_b32 v{vS+u}, 16, v{vD+u}"); e(f"v_and_b32 v{vS+u+1}, 0xffff0000, v{vD+u}")
    e(f"v_max3_f32 v{vA}, v{vS}, v{vS+1}, v{vS+2}")
    for u in range(3, 15, 2): e(f"v_max3_f32 v{vA}, v{vA}, v{vS+u}, v{vS+u+1}")
    e(f"v_max_f32 v{vA}, v{vA}, v{vS+15}")
    for sw in ("16", "32"):
        e(f"v_mov_b32 v{vB}, v{vA}"); e("s_nop 1"); e(f"v_permlane{sw}_swap_b32 v{vA}, v{vB}"); e(f"v_max_f32 v{vA}, v{vA}, v{vB}")
    e(f"v_bfe_u32 v{vC}, v{vL}, 2, 1"); e(f"v_lshlrev_b32 v{vC}, 5, v{vC}")
    e(f"s_lshl_b32 s{sT0}, s{sW}, 2"); e(f"v_add_u32 v{vB}, s{sT0}, v{vC}")
    e(f"ds_write_b32 v{vB}, v{vA} offset:{L_SM}")
    e("s_waitcnt lgkmcnt(0)")
    e("s_barrier")
    e(f"ds_read_b128 {vr(vD)}, v{vC} offset:{L_SM}")
    e(f"ds_read_b128 {vr(vD+4)}, v{vC} offset:{L_SM+16}")
    e("s_waitcnt lgkmcnt(0)")
    e(f"v_max3_f32 v{vA}, v{vD}, v{vD+1}, v{vD+2}")
    e(f"v_max3_f32 v{vA}, v{vA}, v{vD+3}, v{vD+4}")
    e(f"v_max3_f32 v{vA}, v{vA}, v{vD+5}, v{vD+6}")
    e(f"v_max_f32 v{vA}, v{vA}, v{vD+7}")
    e(f"v_mul_f32 v{vA}, s{sC}, v{vA}")
    for u in range(16): e(f"v_fma_f32 v{vS+u}, v{vS+u}, s{sC}, -v{vA}")
    for u in range(16): e(f"v_exp_f32 v{vS+u}, v{vS+u}")
    e("s_nop 0")
    for t in range(8): e(f"v_cvt_pk_bf16_f32 v{vD+t}, v{vS+2*t}, v{vS+2*t+1}")
    for t in range(8): e(f"v_add_f32 v{vS+t}, v{vS+t}, v{vS+t+8}")
    for t in range(4): e(f"v_add_f32 v{vS+t}, v{vS+t}, v{vS+t+4}")
    e(f"v_add_f32 v{vS}, v{vS}, v{vS+2}"); e(f"v_add_f32 v{vS+1}, v{vS+1}, v{vS+3}"); e(f"v_add_f32 v{vS}, v{vS}, v{vS+1}")
    for sw in ("16", "32"):
        e(f"v_mov_b32 v{vS+1}, v{vS}"); e("s_nop 1"); e(f"v_permlane{sw}_swap_b32 v{vS}, v{vS+1}"); e(f"v_add_f32 v{vS}, v{vS}, v{vS+1}")
    e(f"ds_write_b32 v{vB}, v{vS} offset:{L_SL}")
    for blk in range(2):
        for v in range(8):
            for t in range(4):
                e(f"v_cndmask_b32 v{vPV+32*blk+4*v+t}, 0, v{vD+4*blk+t}, s[{sMASK+2*v}:{sMASK+2*v+1}]")
    g.ts("P")
    vT = 40
    wo_extra = 0
    for unit in range(4):
        blk, hf = unit//2, unit % 2
        base = (vV0 + 32*unit) if unit < 2 else (vK + 32*(unit-2))
        rem = 8*(3-unit)
        e(f"s_waitcnt vmcnt({rem})")
        acc = vACC + 4*hf
        def perms(d):
            for t in range(4):
                e(f"v_perm_b32 v{vT+4*(d%3)+t}, v{base+4*(2*t+1)+d//2}, v{base+4*(2*t)+d//2}, s{sSEL1 if d&1 else sSEL0}")
        perms(0)
        for d in range(8):
            if d < 7: perms(d+1)
            else: g.nop(2)
            cin = "0" if (blk == 0 and d == 0) else vr(acc)
            e(f"v_mfma_f32_16x16x32_bf16 {vr(acc)}, {vr(vPV+32*blk+4*d)}, {vr(vT+4*(d%3))}, {cin}")
    e(f"v_bfe_u32 v52, v{vL}, 4, 1"); e(f"v_lshlrev_b32 v52, 10, v52")
    e(f"v_and_b32 v53, 15, v{vL}"); e(f"v_lshl_add_u32 v52, v53, 5, v52")
    e(f"v_lshrrev_b32 v53, 5, v{vL}"); e(f"v_lshl_add_u32 v52, v53, 4, v52")
    e(f"s_lshl_b32 s{sT0}, s{sW}, 11"); e(f"s_add_u32 s{sT0}, s{sT0}, {L_OR}"); e(f"v_add_u32 v52, s{sT0}, v52")
    e(f"ds_write_b128 v52, {vr(vACC)}")
    e(f"ds_write_b128 v52, {vr(vACC+4)} offset:512")
    e("s_waitcnt lgkmcnt(0)")
    e("s_barrier")
    g.ts("B4")
    e(f"s_cmp_lt_u32 s{sW}, 6"); e("s_cbranch_scc1 L_nopub")
    e(f"s_sub_u32 s{sT0}, s{sW}, 6"); e(f"s_lshl_b32 s{sT1}, s{sT0}, 10")
    e(f"s_add_u32 s{sT2}, s{sT1}, {L_OR}"); e(f"v_lshlrev_b32 v53, 4, v{vL}"); e(f"v_add_u32 v52, s{sT2}, v53")
    e(f"s_lshl_b32 s{sT2}, s{sT0}, 5"); e(f"v_mov_b32 v55, s{sT2}")
    for w in range(8): e(f"ds_read_b128 {vr(64+4*w)}, v52 offset:{w*2048}")
    e(f"ds_read_b128 {vr(96)}, v55 offset:{L_SL}"); e(f"ds_read_b128 {vr(100)}, v55 offset:{L_SL+16}")
    e(f"ds_read_b128 {vr(104)}, v55 offset:{L_SM}"); e(f"ds_read_b128 {vr(108)}, v55 offset:{L_SM+16}")
    e(f"s_lshl_b32 s{sT2}, s{sG}, 4"); e(f"s_add_u32 s{sT2}, s{sT2}, s{sMEM}"); e(f"s_lshl_b32 s{sT2}, s{sT2}, 12")
    e(f"s_add_u32 s{sT2}, s{sT2}, {WS_O}"); e(f"s_add_u32 s{sT3}, s{sT2}, s{sT1}")
    e(f"s_lshl_b32 s{sT0}, s{sT0}, 4"); e(f"s_add_u32 s{sT2}, s{sT2}, s{sT0}")
    e("s_waitcnt lgkmcnt(2)")
    for k in range(4): e(f"v_add_f32 v{96+k}, v{96+k}, v{100+k}")
    e("v_add_f32 v96, v96, v97"); e("v_add_f32 v98, v98, v99"); e("v_add_f32 v96, v96, v98")
    e("v_rcp_f32 v97, v96")
    for st in (16, 8, 4):
        for a in range(64, 64+st): e(f"v_add_f32 v{a}, v{a}, v{a+st}")
    for k in range(4): e(f"v_mul_f32 v{64+k}, v{64+k}, v97")
    e(f"v_mov_b32 v69, v{vTAG}"); e(f"v_mov_b32 v71, v{vTAG}")
    e("v_cvt_pk_bf16_f32 v68, v64, v65"); e("v_cvt_pk_bf16_f32 v70, v66, v67")
    e(f"buffer_store_dwordx4 v[68:71], v53, {sr(sWS)}, s{sT3} offen sc1")
    e("s_waitcnt lgkmcnt(0)")
    e("v_max3_f32 v104, v104, v105, v106"); e("v_max3_f32 v104, v104, v107, v108"); e("v_max3_f32 v104, v104, v109, v110"); e("v_max_f32 v104, v104, v111")
    e(f"v_mul_f32 v72, s{sC}, v104"); e(f"v_mov_b32 v73, v{vTAG}"); e("v_mov_b32 v74, v96"); e(f"v_mov_b32 v75, v{vTAG}")
    e("v_mov_b32 v76, 0")
    e("s_mov_b64 exec, 1")
    e(f"buffer_store_dwordx4 v[72:75], v76, {sr(sWS)}, s{sT2} offen offset:2048 sc1")
    e("s_mov_b64 exec, -1")
    g.lab("L_nopub")
    e(f"s_cmp_eq_u32 s{sW}, 7"); e("s_cbranch_scc1 L_s3done")
    e(f"v_and_b32 v52, 7, v{vL}"); e(f"v_lshlrev_b32 v52, 1, v52"); e(f"v_bfe_u32 v53, v{vL}, 3, 1"); e("v_add_u32 v52, v52, v53")
    e("v_lshlrev_b32 v52, 12, v52")
    e(f"s_lshr_b32 s{sT0}, s{sMEM}, 2")
    e(f"s_lshr_b32 s{sT1}, s{sT0}, 1"); e(f"s_lshl_b32 s{sT1}, s{sT1}, 4")
    e(f"v_add_u32 v54, s{sT1}, v52")
    e(f"v_lshrrev_b32 v53, 4, v{vL}"); e("v_lshl_add_u32 v52, v53, 5, v52")
    e(f"s_lshl_b32 s{sT1}, s{sT0}, 9"); e(f"v_add_u32 v52, s{sT1}, v52")
    e(f"s_lshl_b32 s{sT3}, s{sG}, 16"); e(f"s_add_u32 s{sT3}, s{sT3}, {WS_O}")
    def gather1():
        for k in range(4):
            e(f"buffer_load_dwordx4 {vr(128+8*k)}, v52, {sr(sWS)}, s{sT3} offen offset:{k*128} sc1")
            e(f"buffer_load_dwordx4 {vr(132+8*k)}, v52, {sr(sWS)}, s{sT3} offen offset:{k*128+16} sc1")
        e(f"buffer_load_dwordx4 {vr(160)}, v54, {sr(sWS)}, s{sT3} offen offset:2048 sc1")
    gather1()
    e(f"v_bfe_u32 v55, v{vL}, 2, 2"); e("v_lshl_add_u32 v55, v53, 3, v55"); e("v_mul_u32_u24 v55, 224, v55")
    e(f"v_and_b32 v56, 3, v{vL}"); e("v_lshl_add_u32 v55, v56, 3, v55")
    e(f"s_lshl_b32 s{sT1}, s{sW}, 5"); e(f"s_add_u32 s{sT1}, s{sT1}, {L_WO}"); e(f"v_add_u32 v55, s{sT1}, v55")
    for k in range(4):
        e(f"ds_read_b64_tr_b16 {vr(80+4*k,2)}, v55 offset:{k*32*224}")
        e(f"ds_read_b64_tr_b16 {vr(82+4*k,2)}, v55 offset:{k*32*224+4*224}")
    e(f"s_and_b32 s{sT1}, s{sMEM}, 3"); e(f"s_mul_i32 s{sT1}, s{sT1}, 7"); e(f"s_add_u32 s{sT1}, s{sT1}, s{sW}")
    e(f"s_lshl_b32 s{sT1}, s{sT1}, 6"); e(f"s_lshl_b32 s{sT2}, s{sG}, 2"); e(f"s_add_u32 s{sT1}, s{sT1}, s{sT2}"); e(f"s_add_u32 s{sT1}, s{sT1}, s{sT0}")
    e(f"s_lshl_b32 s{sT1}, s{sT1}, 10"); e(f"s_add_u32 s{sT2}, s{sT1}, {WS_P}")
    e(f"v_lshlrev_b32 v57, 4, v{vL}")
    e(f"s_mov_b32 s{sSPIN}, {o['spin']}")
    g.lab("L_g1chk")
    e("s_waitcnt vmcnt(0)")
    tags = [129+2*i for i in range(16)] + [161, 163]
    def tagcheck(tags, a, b_):
        e(f"v_min3_u32 v{a}, v{tags[0]}, v{tags[1]}, v{tags[2]}"); e(f"v_max3_u32 v{b_}, v{tags[0]}, v{tags[1]}, v{tags[2]}")
        i = 3
        while i+1 < len(tags):
            e(f"v_min3_u32 v{a}, v{a}, v{tags[i]}, v{tags[i+1]}"); e(f"v_max3_u32 v{b_}, v{b_}, v{tags[i]}, v{tags[i+1]}"); i += 2
        if i < len(tags):
            e(f"v_min_u32 v{a}, v{a}, v{tags[i]}"); e(f"v_max_u32 v{b_}, v{b_}, v{tags[i]}")
        e(f"v_cmp_ne_u32 vcc, v{a}, v{vTAG}"); e(f"v_cmp_ne_u32 s[{sT0}:{sT1}], v{b_}, v{vTAG}")
        e(f"s_or_b64 vcc, vcc, s[{sT0}:{sT1}]")
    tagcheck(tags, 58, 59)
    e("s_cbranch_vccz L_g1ok")
    e(f"s_sub_u32 s{sSPIN}, s{sSPIN}, 1"); e("s_cbranch_scc1 L_g1ok")
    gather1()
    e("s_branch L_g1chk")
    g.lab("L_g1ok")
    g.ts("G1")
    for k in range(4):
        for t in range(4): e(f"v_mov_b32 v{164+4*k+t}, v{128+8*k+2*t}")
    e("s_waitcnt lgkmcnt(0)")
    for k in range(4):
        e(f"v_mfma_f32_16x16x32_bf16 {vr(96)}, {vr(80+4*k)}, {vr(164+4*k)}, {'0' if k==0 else vr(96)}")
    e("v_mov_b32_dpp v100, v160 row_ror:8 row_mask:0xf bank_mask:0xf")
    e("v_mov_b32_dpp v101, v162 row_ror:8 row_mask:0xf bank_mask:0xf")
    e("v_max_f32 v102, v160, v100")
    e("v_sub_f32 v103, v160, v102"); e("v_sub_f32 v100, v100, v102")
    e("v_exp_f32 v103, v103"); e("v_exp_f32 v100, v100"); e("s_nop 0")
    e("v_mul_f32 v103, v103, v162"); e("v_fma_f32 v100, v100, v101, v103")
    e("v_rcp_f32 v100, v100"); e("s_nop 0"); e("v_mul_f32 v103, v103, v100")
    for k in range(4): e(f"v_mul_f32 v{96+k}, v{96+k}, v103")
    e("s_nop 0")
    for k in range(4): e(f"v_add_f32_dpp v{104+k}, v{96+k}, v{96+k} row_ror:8 row_mask:0xf bank_mask:0xf")
    e(f"v_mov_b32 v109, v{vTAG}"); e(f"v_mov_b32 v111, v{vTAG}")
    e(f"v_cndmask_b32 v108, v104, v106, s[{sM8}:{sM8+1}]"); e(f"v_cndmask_b32 v110, v105, v107, s[{sM8}:{sM8+1}]")
    e(f"buffer_store_dwordx4 v[108:111], v57, {sr(sWS)}, s{sT2} offen sc1")
    g.lab("L_s3done")
    e("s_cmp_ge_u32 s2, 28"); e("s_cbranch_scc1 L_fin")
    e(f"s_lshl_b32 s{sT3}, s2, 16"); e(f"s_lshl_b32 s{sT2}, s{sW}, 13"); e(f"s_add_u32 s{sT3}, s{sT3}, s{sT2}"); e(f"s_add_u32 s{sT3}, s{sT3}, {WS_P}")
    e(f"s_add_u32 s{sT2}, s{sT3}, 4096")
    e(f"v_lshlrev_b32 v57, 4, v{vL}")
    e(f"s_mov_b32 s{sSPIN}, {o['spin']}")
    g.lab("L_g2")
    for i in range(8):
        e(f"buffer_load_dwordx4 {vr(128+4*i)}, v57, {sr(sWS)}, s{sT3 if i<4 else sT2} offen offset:{(i%4)*1024} sc1")
    e("s_waitcnt vmcnt(0)")
    tagcheck([129+2*i for i in range(16)], 58, 59)
    e("s_cbranch_vccz L_g2ok")
    e(f"s_sub_u32 s{sSPIN}, s{sSPIN}, 1"); e("s_cbranch_scc0 L_g2")
    g.lab("L_g2ok")
    g.ts("G2")
    for st in (16, 8, 4):
        for a in range(128, 128+st, 2): e(f"v_add_f32 v{a}, v{a}, v{a+st}")
    e("v_mov_b32 v129, v130")
    e(f"v_lshlrev_b32 v58, 3, v{vL}"); e(f"s_lshl_b32 s{sT0}, s{sW}, 9"); e(f"s_add_u32 s{sT0}, s{sT0}, {L_RR}"); e(f"v_add_u32 v59, s{sT0}, v58")
    e("ds_write_b64 v59, v[128:129]")
    e("s_waitcnt lgkmcnt(0)")
    e("s_barrier")
    e(f"s_cmp_lg_u32 s{sW}, 0"); e("s_cbranch_scc1 L_fin")
    e(f"v_add_u32 v58, {L_RR}, v58")
    for w in range(8): e(f"ds_read_b64 {vr(128+2*w,2)}, v58 offset:{w*512}")
    e(f"v_and_b32 v60, 7, v{vL}"); e(f"v_lshlrev_b32 v61, 2, v60"); e(f"v_add_u32 v61, {L_G}, v61")
    e(f"ds_read2_b32 v[62:63], v61 offset0:0 offset1:8")
    e("v_mul_u32_u24 v60, 896, v60"); e(f"v_lshrrev_b32 v61, 4, v{vL}"); e("v_lshl_add_u32 v60, v61, 3, v60")
    e(f"v_bfe_u32 v61, v{vL}, 3, 1"); e("v_lshl_add_u32 v60, v61, 2, v60"); e(f"s_lshl_b32 s{sT0}, s2, 5")
    e("s_waitcnt lgkmcnt(0)")
    for base in (128, 136):
        e(f"v_add_f32 v{base}, v{base}, v{base+2}"); e(f"v_add_f32 v{base+1}, v{base+1}, v{base+3}")
        e(f"v_add_f32 v{base+4}, v{base+4}, v{base+6}"); e(f"v_add_f32 v{base+5}, v{base+5}, v{base+7}")
        e(f"v_add_f32 v{base}, v{base}, v{base+4}"); e(f"v_add_f32 v{base+1}, v{base+1}, v{base+5}")
    for base, gv in ((128, 62), (136, 63)):
        e(f"v_cvt_pk_bf16_f32 v{base+2}, v{base}, v{base+1}")
        e(f"v_lshlrev_b32 v{base}, 16, v{base+2}"); e(f"v_and_b32 v{base+1}, 0xffff0000, v{base+2}")
        e(f"v_mul_f32 v{base}, v{base}, v{gv}"); e(f"v_mul_f32 v{base+1}, v{base+1}, v{gv}")
        e(f"v_cvt_pk_bf16_f32 v{base+2}, v{base}, v{base+1}")
        e(f"v_lshlrev_b32 v{base}, 16, v{base+2}"); e(f"v_and_b32 v{base+1}, 0xffff0000, v{base+2}")
    e("v_add_f32 v128, v128, v136"); e("v_add_f32 v129, v129, v137")
    e("v_cvt_pk_bf16_f32 v128, v128, v129")
    e(f"buffer_store_dword v128, v60, {sr(sOUT)}, s{sT0} offen")
    e("s_cmp_lg_u32 s2, 0"); e("s_cbranch_scc1 L_fin")
    e("v_mov_b32 v60, 0")
    e("s_mov_b64 exec, 1")
    e(f"buffer_store_dword v{vTAG}, v60, {sr(sWS)}, 0 offen sc1")
    e("s_mov_b64 exec, -1")
    g.lab("L_fin")
    if o['ts']:
        g.ts("end")
        e("s_waitcnt lgkmcnt(0)")
        for k in range(8): e(f"v_mov_b32 v{128+k}, s{84+2*k}" if k < g.nts else f"v_mov_b32 v{128+k}, 0")
        e(f"s_lshl_b32 s{sT0}, s2, 3"); e(f"s_add_u32 s{sT0}, s{sT0}, s{sW}"); e(f"s_lshl_b32 s{sT0}, s{sT0}, 5"); e(f"s_add_u32 s{sT0}, s{sT0}, {WS_TS}")
        e("v_mov_b32 v60, 0"); e("s_mov_b64 exec, 1")
        e(f"buffer_store_dwordx4 v[128:131], v60, {sr(sWS)}, s{sT0} offen")
        e(f"buffer_store_dwordx4 v[132:135], v60, {sr(sWS)}, s{sT0} offen offset:16")
    g.lab("L_end")
    e("s_endpgm")
    g.lab("L_codeend")
    g.L += ['.section .rodata,"a"', ".p2align 6", f".amdhsa_kernel {KN}",
            "  .amdhsa_next_free_vgpr 256", "  .amdhsa_next_free_sgpr 102", "  .amdhsa_accum_offset 256",
            "  .amdhsa_group_segment_fixed_size 0", "  .amdhsa_kernarg_size 112", "  .amdhsa_user_sgpr_count 2",
            "  .amdhsa_user_sgpr_kernarg_segment_ptr 1", "  .amdhsa_system_sgpr_workgroup_id_x 1",
            "  .amdhsa_float_denorm_mode_32 3", ".end_amdhsa_kernel"]
    return "\n".join(g.L) + "\n"

def postn(g, us, vD, vS):
    e = g.e
    for step in range(4):
        for u in us:
            d = vD + 16*((u//4) % 2) + 4*(u % 4); s_ = vS + u
            if step == 0: e(f"v_mov_b32_dpp v{s_}, v{d} quad_perm:[0,0,0,0] row_mask:0xf bank_mask:0xf")
            else: e(f"v_add_f32_dpp v{s_}, v{d+step}, v{s_} quad_perm:[{step},{step},{step},{step}] row_mask:0xf bank_mask:0xf")

def f2u(x):
    import struct
    return struct.unpack("<I", struct.pack("<f", x))[0]

if __name__ == "__main__":
    from lint import lint
    from build import build
    out = sys.argv[1]; opts = eval("dict(" + (sys.argv[2] if len(sys.argv) > 2 else "") + ")")
    s = gen(**opts)
    open(out, "w").write(s)
    for p in lint(s): print("LINT:", p)
    build(out)
```

```python
import sys, math, struct
sys.path.insert(0, "gen"); sys.path.insert(0, "tools")
KN = "gated_mix__sliding_block_cached__sliding_block_cached__decode_kernel"
HEADER = open("gated_mix__sliding_block_cached__sliding_block_cached__decode.s.ref").read().split("; Override launch")[0]

WS_Q = 0x10000
WS_S = 0x60000
WS_H = 0x70000
WS_O = 0x80000
WS_F = 0x100000
WS_P = 0x200000
WS_TS = 0x400000
WS_SIZE = 0x800000
L_QL = 0
L_SM = 1024
L_SL = 1088
L_W = 1152
L_B3 = 4096
L_WQ = 8192
L_X = 36864
L_WO = 44032
L_OR = 76800
LDS_BYTES = 93184
TSREG = [84,86,88,90,92,94,96,98,100,8,10,12,14,16,18,20]

def f2u(x): return struct.unpack("<I", struct.pack("<f", x))[0]
def vr(a, n=4): return f"v[{a}:{a+n-1}]"
def sr(a, n=4): return f"s[{a}:{a+n-1}]"
DPP = "row_mask:0xf bank_mask:0xf"

class G:
    def __init__(s, **o):
        s.L = []; s.o = dict(round_s=1, ts=0, pol='nt', spin=1<<16, wo_late=0, codepf=1, order=0, sleep1=0, sleep2=0, b0=1, pre=0, g2m=1, epol='', hint=1, sleeph=0, xm=0x100, xa=1, xb=0, fast=1, fthr=256, qw=1, diag=0, dsleep=0, dxor=0, drow=13, wqpol=None, xpol='')
        s.o.update(o); s.nts = 0; s.tsn = []
    def e(s, t): s.L.append("  " + t)
    def lab(s, t): s.L.append(t + ":")
    def nop(s, n):
        while n > 0:
            k = min(n, 16); s.e(f"s_nop {k-1}"); n -= k
    def ts(s, name):
        if not s.o['ts']: return
        if name in s.o.get('tsoff', ()): return
        if 'tson' in s.o and name not in s.o['tson']: return
        if 'tson' not in s.o and name[0] in 'KV' and name[1:].isdigit(): return
        k = s.nts; s.nts += 1
        r = TSREG[k]; s.tsn.append(name)
        s.e(f"s_memrealtime s[{r}:{r+1}]")

def gen(**opts):
    g = G(**opts); e = g.e; o = g.o; POL = o['pol']
    sK, sV, sWQ, sWO, sX, sGW, sWS, sOUT = 24, 28, 32, 36, 40, 44, 48, 52
    sW = 56; s16k = 57; sT0, sT1, sT2, sT3 = 58, 59, 60, 61
    sKVH, sBR, sMEM, sB, sG = 3, 4, 5, 6, 7
    sMASK = 64; sM8 = 80; sSEL0, sSEL1 = 82, 83; sSPIN = 62; sC = 63
    vL = 1; vKO = 2; vVO = 3; vTAG = 4; vA = 5; vB = 6; vC = 7
    vQB = 8; vS = 16; vD = 32; vPV = 64; vK = 128; vACC = 8
    vGT = 120

    def tagcheck(tags, a, b_):
        if len(tags) == 2:
            e(f"v_cmp_ne_u32 vcc, v{tags[0]}, v{vTAG}"); e(f"v_cmp_ne_u32 s[{sT0}:{sT1}], v{tags[1]}, v{vTAG}")
        else:
            e(f"v_min3_u32 v{a}, v{tags[0]}, v{tags[1]}, v{tags[2]}"); e(f"v_max3_u32 v{b_}, v{tags[0]}, v{tags[1]}, v{tags[2]}")
            i = 3
            while i+1 < len(tags):
                e(f"v_min3_u32 v{a}, v{a}, v{tags[i]}, v{tags[i+1]}"); e(f"v_max3_u32 v{b_}, v{b_}, v{tags[i]}, v{tags[i+1]}"); i += 2
            if i < len(tags):
                e(f"v_min_u32 v{a}, v{a}, v{tags[i]}"); e(f"v_max_u32 v{b_}, v{b_}, v{tags[i]}")
            e(f"v_cmp_ne_u32 vcc, v{a}, v{vTAG}"); e(f"v_cmp_ne_u32 s[{sT0}:{sT1}], v{b_}, v{vTAG}")
        e(f"s_or_b64 vcc, vcc, s[{sT0}:{sT1}]")
    def poll(name, loads, tags, a, b_, sleep=0, fs=False):
        fs = fs and o['fast']
        e(f"s_mov_b32 s{sSPIN}, {o['spin']}")
        if fs: e(f"s_add_u32 s{sT3}, s{sT3}, {WS_F}")
        g.lab(f"L_{name}")
        loads()
        e("s_waitcnt vmcnt(0)")
        tagcheck(tags, a, b_)
        e(f"s_cbranch_scc0 L_{name}_ok")
        e("s_mov_b64 exec, vcc")
        if sleep: e(f"s_sleep {sleep}")
        if fs:
            e(f"s_cmp_eq_u32 s{sSPIN}, {o['spin']-o['fthr']}"); e(f"s_cselect_b32 s{sT0}, {WS_F}, 0"); e(f"s_sub_u32 s{sT3}, s{sT3}, s{sT0}")
        e(f"s_sub_u32 s{sSPIN}, s{sSPIN}, 1"); e(f"s_cbranch_scc0 L_{name}")
        g.lab(f"L_{name}_ok")
        e("s_mov_b64 exec, -1")

    g.L.append(HEADER.rstrip("\n"))
    g.L.append(f"; @launch grid=(256,1,1) block=(512,1,1) lds={LDS_BYTES}")
    g.L.append('.amdgcn_target "amdgcn-amd-amdhsa--gfx950"')
    g.L.append(".text"); g.L.append(f".globl {KN}"); g.L.append(".p2align 8"); g.L.append(f".type {KN},@function"); g.lab(KN)
    e("s_cmp_ge_u32 s2, 256"); e("s_cbranch_scc1 L_end")
    g.ts("start")
    e(f"s_lshr_b32 s{sBR}, s2, 7")
    e(f"s_mul_i32 s{sT0}, s{sBR}, 40")
    e(f"s_add_u32 s{sT2}, s0, s{sT0}"); e(f"s_addc_u32 s{sT3}, s1, 0")
    e(f"s_load_dwordx8 s[8:15], s[{sT2}:{sT3}], 8")
    e("s_load_dwordx2 s[16:17], s[0:1], 0")
    e("s_load_dwordx2 s[18:19], s[0:1], 104")
    e("s_load_dwordx4 s[20:23], s[0:1], 80")
    e(f"v_lshrrev_b32 v{vA}, 6, v0")
    e(f"v_and_b32 v{vL}, 63, v0")
    e(f"v_readfirstlane_b32 s{sW}, v{vA}")
    e(f"s_getpc_b64 s[{sM8}:{sM8+1}]")
    g.lab("L_pc")
    if o['codepf']:
        e(f"v_lshlrev_b32 v35, 7, v0"); e("v_subrev_u32 v35, 8192, v35")
        e(f"s_mov_b32 s{sT0}, L_codeend-L_pc-4")
        e(f"v_cmp_gt_u32 vcc, s{sT0}, v35")
        e(f"s_and_saveexec_b64 s[{sT2}:{sT3}], vcc")
        e("s_cbranch_execz L_nopf")
        e(f"global_load_dword v36, v35, s[{sM8}:{sM8+1}]")
        g.lab("L_nopf")
        e("s_mov_b64 exec, -1")
    e(f"s_and_b32 s{sKVH}, s2, 7")
    e(f"s_bfe_u32 s{sMEM}, s2, 0x40003")
    e(f"s_lshr_b32 s{sB}, s{sMEM}, 1")
    e(f"s_lshl_b32 s{sG}, s{sBR}, 3"); e(f"s_add_u32 s{sG}, s{sG}, s{sKVH}")
    e(f"s_mul_i32 s{sT0}, s{sW}, {o['xa']}"); e(f"s_lshr_b32 s{sT1}, s2, 3"); e(f"s_mul_i32 s{sT1}, s{sT1}, {o['xb']}"); e(f"s_add_u32 s{sT0}, s{sT0}, s{sT1}")
    e(f"s_lshl_b32 s{sT1}, s{sT0}, 8"); e(f"s_and_b32 s{sT1}, s{sT1}, 0xf00"); e(f"s_lshl_b32 s{sT0}, s{sT0}, 10"); e(f"s_and_b32 s{sT0}, s{sT0}, 0x4000")
    e(f"s_or_b32 s{sT0}, s{sT0}, s{sT1}"); e(f"s_and_b32 s{s16k}, s{sT0}, {o['xm']}")
    e(f"s_lshl_b32 s{sT0}, s{sB}, 24"); e(f"s_lshl_b32 s{sT1}, s{sKVH}, 21"); e(f"s_add_u32 s{sT0}, s{sT0}, s{sT1}")
    e(f"s_and_b32 s{sT1}, s{sMEM}, 1"); e(f"s_lshl_b32 s{sT1}, s{sT1}, 18"); e(f"s_add_u32 s{sT0}, s{sT0}, s{sT1}")
    e(f"s_lshl_b32 s{sT1}, s{sW}, 15"); e(f"s_add_u32 s{sT0}, s{sT0}, s{sT1}")
    e(f"s_add_u32 s{sT0}, s{sT0}, {3072*512}")
    e(f"v_bfe_u32 v{vA}, v{vL}, 2, 2"); e(f"v_lshlrev_b32 v{vA}, 12, v{vA}")
    e(f"v_lshrrev_b32 v{vB}, 4, v{vL}")
    e(f"v_lshl_add_u32 v{vKO}, v{vB}, 6, v{vA}")
    e(f"v_and_b32 v{vA}, 3, v{vL}"); e(f"v_lshl_add_u32 v{vKO}, v{vA}, 4, v{vKO}")
    e(f"v_add_u32 v{vKO}, s{sT0}, v{vKO}")
    e(f"v_and_b32 v{vC}, 15, v{vL}"); e(f"v_lshlrev_b32 v{vC}, 4, v{vC}")
    e(f"v_lshl_add_u32 v{vVO}, v{vB}, 12, v{vC}")
    e(f"v_add_u32 v{vVO}, s{sT0}, v{vVO}")
    e(f"v_lshlrev_b32 v33, 4, v{vL}")
    e(f"v_mov_b32 v34, 0")
    def srd(d, p, n):
        e(f"s_mov_b32 s{d}, s{p}"); e(f"s_mov_b32 s{d+1}, s{p+1}"); e(f"s_mov_b32 s{d+2}, {n}"); e(f"s_mov_b32 s{d+3}, 0x20000")
    def kload(n):
        u, hf = n//2, n % 2
        e(f"s_xor_b32 s47, s{s16k}, {(u&7)*512+hf*256+(u>>3)*16384}")
        e(f"buffer_load_dwordx4 {vr(vK+4*n)}, v{vKO}, {sr(sK)}, s47 offen {POL}")
    def vload(unit, j):
        blk, hf = unit//2, unit % 2
        e(f"s_xor_b32 s47, s{s16k}, {j*512+hf*256+blk*16384}")
        e(f"buffer_load_dwordx4 {vr(vK+32*unit+4*j)}, v{vVO}, {sr(sV)}, s47 offen {POL}")
    e(f"s_mov_b32 s{sK+2}, 0x8000000"); e(f"s_mov_b32 s{sK+3}, 0x20000")
    e(f"s_mov_b32 s{sWS+2}, {WS_SIZE}"); e(f"s_mov_b32 s{sWS+3}, 0x20000")
    e(f"s_mov_b32 s{sX+2}, 7168"); e(f"s_mov_b32 s{sX+3}, 0x20000")
    e(f"s_cmp_eq_u32 s{sW}, 0")
    e("s_waitcnt lgkmcnt(0)")
    e(f"s_mov_b32 s{sK}, s8"); e(f"s_mov_b32 s{sK+1}, s9")
    e(f"s_mov_b32 s{sWS}, s18"); e(f"s_mov_b32 s{sWS+1}, s19")
    e(f"s_mov_b32 s{sX}, s16"); e(f"s_mov_b32 s{sX+1}, s17")
    e("s_cbranch_scc0 L_notw0")
    srd(sWQ, 12, 3670016)
    e(f"v_lshrrev_b32 v32, 2, v{vL}"); e(f"v_lshlrev_b32 v32, 13, v32"); e(f"v_lshl_add_u32 v32, v{vA}, 4, v32")
    e(f"s_lshl_b32 s{sT0}, s{sKVH}, 10"); e(f"s_lshl_b32 s{sT1}, s{sMEM}, 6"); e(f"s_add_u32 s{sT0}, s{sT0}, s{sT1}")
    e(f"v_add_u32 v32, s{sT0}, v32")
    if o['dsleep']:
        e(f"s_sleep {o['dsleep']}"); g.ts("slept")
    if o['dxor']: e(f"v_xor_b32 v32, {o['dxor']}, v32")
    for ii in range(28):
        e(f"s_mov_b32 m0, {L_WQ+ii*1024}")
        e(f"s_mov_b32 s{sT2}, {ii*131072}")
        e(f"buffer_load_dwordx4 v32, {sr(sWQ)}, s{sT2} offen {POL if o['wqpol'] is None else o['wqpol']} lds")
    for ii in range(7):
        e(f"s_mov_b32 m0, {L_X+ii*1024}")
        e(f"s_mov_b32 s{sT2}, {ii*1024}")
        if o['diag'] != 3: e(f"buffer_load_dwordx4 v33, {sr(sX)}, s{sT2} offen {o['xpol']} lds")
    e(f"buffer_load_dword v{vTAG}, v34, {sr(sWS)}, 0 offen {o['epol']}")
    if o['b0']: e("s_barrier")
    e(f"v_bfe_u32 v41, v{vL}, 2, 2")
    e(f"v_lshl_add_u32 v41, v{vB}, 3, v41"); e(f"v_lshlrev_b32 v41, 6, v41")
    e(f"v_lshl_add_u32 v41, v{vA}, 3, v41")
    e(f"v_and_b32 v43, 7, v{vL}"); e(f"v_mul_u32_u24 v42, 896, v43"); e(f"v_lshl_add_u32 v42, v{vB}, 4, v42")
    e(f"v_add_u32 v42, {L_X}, v42")
    e(f"s_lshl_b32 s{sT0}, s{sG}, 14"); e(f"s_lshl_b32 s{sT1}, s{sMEM}, 7"); e(f"s_add_u32 s{sT0}, s{sT0}, s{sT1}")
    e(f"s_add_u32 s{sT0}, s{sT0}, {WS_Q}")
    e(f"v_lshlrev_b32 v43, 11, v43"); e(f"v_lshl_add_u32 v43, v{vB}, 4, v43")
    e("s_waitcnt vmcnt(0)")
    g.ts("wq")
    if o['diag']: e("s_branch L_fin")
    e(f"v_add_u32 v{vTAG}, 1, v{vTAG}")
    steps = list(range(14)); first = True
    for ci in range(0, 14, 3):
        ch = steps[ci:ci+3]
        for k, s_ in enumerate(ch):
            a = 64 + 12*k
            for t in range(2):
                e(f"ds_read_b64_tr_b16 {vr(a+4*t,2)}, v41 offset:{L_WQ+s_*2048+t*32}")
                e(f"ds_read_b64_tr_b16 {vr(a+4*t+2,2)}, v41 offset:{L_WQ+s_*2048+256+t*32}")
            e(f"ds_read_b128 {vr(a+8)}, v42 offset:{s_*64}")
        e("s_waitcnt lgkmcnt(0)")
        for k, s_ in enumerate(ch):
            a = 64 + 12*k
            for t in range(2):
                e(f"v_mfma_f32_16x16x32_bf16 {vr(44+4*t)}, {vr(a+4*t)}, {vr(a+8)}, {'0' if first else vr(44+4*t)}")
            first = False
    for r in (53, 55, 57, 59): e(f"v_mov_b32 v{r}, v{vTAG}")
    g.nop(4)
    e(f"v_cvt_pk_bf16_f32 v52, v44, v45"); e(f"v_cvt_pk_bf16_f32 v54, v46, v47")
    e(f"v_cvt_pk_bf16_f32 v56, v48, v49"); e(f"v_cvt_pk_bf16_f32 v58, v50, v51")
    e("s_mov_b32 exec_lo, 0x00ff00ff"); e("s_mov_b32 exec_hi, 0x00ff00ff")
    if o['fast']:
        e(f"s_add_u32 s{sT1}, s{sT0}, {WS_F}")
        e(f"buffer_store_dwordx4 v[52:55], v43, {sr(sWS)}, s{sT1} offen")
        e(f"buffer_store_dwordx4 v[56:59], v43, {sr(sWS)}, s{sT1} offen offset:64")
    e(f"buffer_store_dwordx4 v[52:55], v43, {sr(sWS)}, s{sT0} offen sc1")
    e(f"buffer_store_dwordx4 v[56:59], v43, {sr(sWS)}, s{sT0} offen offset:64 sc1")
    e("s_mov_b64 exec, -1")
    g.ts("qpub")
    e("s_branch L_kissue")
    g.lab("L_notw0")
    e(f"buffer_load_dword v{vTAG}, v34, {sr(sWS)}, 0 offen {o['epol']}")
    for n in range(o['pre']): kload(n)
    if o['b0']: e("s_barrier")
    if o['diag'] in (1, 3): e("s_branch L_fin")
    if o['diag'] == 2:
        for n in range(32): kload(n)
        e("s_waitcnt vmcnt(0)"); e("s_branch L_fin")
    e(f"s_cmp_lg_u32 s{sW}, 7"); e("s_cbranch_scc1 L_kissue2")
    srd(sGW, 20, 896)
    e(f"s_mul_i32 s{sT0}, s{sKVH}, 896")
    e(f"buffer_load_dwordx4 v[16:19], v33, {sr(sX)}, s{sT0} offen")
    e(f"buffer_load_dwordx4 v[20:23], v33, {sr(sGW)}, 0 offen")
    e("s_branch L_kissue2")
    g.lab("L_kissue")
    for n in range(o['pre']): kload(n)
    g.lab("L_kissue2")
    for n in range(o['pre'], 32): kload(n)
    srd(sV, 10, 0x8000000); srd(sWO, 14, 3670016); srd(sOUT, 22, 7168)
    def wo_dma(va, vb):
        e(f"s_lshr_b32 s{sT0}, s{sMEM}, 2"); e(f"s_lshl_b32 s{sT0}, s{sT0}, 7"); e(f"s_lshl_b32 s{sT1}, s{sKVH}, 9"); e(f"s_add_u32 s{sT0}, s{sT0}, s{sT1}")
        e(f"s_mul_i32 s{sT0}, s{sT0}, 896"); e(f"s_and_b32 s{sT1}, s{sMEM}, 3"); e(f"s_mul_i32 s{sT1}, s{sT1}, 224"); e(f"s_add_u32 s{sT0}, s{sT0}, s{sT1}")
        e(f"s_cmp_eq_u32 s{sW}, 0"); e(f"s_cselect_b32 s{sT0}, 0x4000000, s{sT0}")
        e(f"s_add_u32 s{sT2}, s{sW}, 7"); e(f"s_and_b32 s{sT2}, s{sT2}, 7")
        e(f"s_lshl_b32 s{sT1}, s{sT2}, 12"); e(f"s_lshl_b32 s{sT2}, s{sT2}, 8")
        for ii in range(4):
            e(f"v_add_u32 v{va}, s{sT2}, v{vL}")
            if ii: e(f"v_add_u32 v{va}, {64*ii}, v{va}")
            e(f"v_mul_u32_u24 v{vb}, 4682, v{va}"); e(f"v_lshrrev_b32 v{vb}, 16, v{vb}")
            e(f"v_mul_u32_u24 v{vb}, 672, v{vb}"); e(f"v_lshl_add_u32 v{vb}, v{va}, 4, v{vb}")
            e(f"s_add_u32 m0, s{sT1}, {L_WO+ii*1024}"); e("s_nop 0")
            e(f"buffer_load_dwordx4 v{vb}, {sr(sWO)}, s{sT0} offen {POL} lds")
    g.ts("kiss")
    NWO = 4
    if not o['wo_late']: wo_dma(60, 61)
    for v in range(8):
        pat = (0x11 << (v & 3)) << (8*(v >> 2)); pat |= pat << 16
        e(f"s_mov_b32 s{sMASK+2*v}, 0x{pat:08x}"); e(f"s_mov_b32 s{sMASK+2*v+1}, 0x{pat:08x}")
    e(f"s_mov_b32 s{sSEL0}, 0x05040100"); e(f"s_mov_b32 s{sSEL1}, 0x07060302")
    e(f"s_mov_b32 s{sC}, 0x{f2u(math.log2(math.e)/16):08x}")
    e(f"s_mov_b32 s{sM8}, 0xff00ff00"); e(f"s_mov_b32 s{sM8+1}, 0xff00ff00")
    e(f"s_cmp_eq_u32 s{sW}, 0"); e("s_cbranch_scc1 " + ("L_qgather" if o['qw'] == 0 else "L_b2"))
    nyoung = 32 - o['pre'] + (0 if o['wo_late'] else NWO)
    e(f"s_waitcnt vmcnt({nyoung})")
    e(f"v_add_u32 v{vTAG}, 1, v{vTAG}")
    if o['qw']: e(f"s_cmp_eq_u32 s{sW}, {o['qw']}"); e("s_cbranch_scc1 L_qgather")
    e(f"s_cmp_lg_u32 s{sW}, 7"); e("s_cbranch_scc1 L_b2")
    e(f"v_cmp_gt_u32 vcc, 56, v{vL}"); e("v_mov_b32 v24, 0"); e("s_nop 0")
    for k in range(4): e(f"v_cndmask_b32 v{16+k}, 0, v{16+k}, vcc")
    for k in range(4):
        e(f"v_lshlrev_b32 v25, 16, v{16+k}"); e(f"v_and_b32 v26, 0xffff0000, v{16+k}")
        e(f"v_lshlrev_b32 v27, 16, v{20+k}"); e(f"v_and_b32 v28, 0xffff0000, v{20+k}")
        e("v_mul_f32 v25, v25, v27"); e("v_mul_f32 v26, v26, v28")
        e("v_cvt_pk_bf16_f32 v25, v25, v26")
        e("v_lshlrev_b32 v26, 16, v25"); e("v_and_b32 v25, 0xffff0000, v25")
        e("v_add_f32 v24, v24, v26"); e("v_add_f32 v24, v24, v25")
    for dpp in ("quad_perm:[1,0,3,2]", "quad_perm:[2,3,0,1]", "row_ror:4", "row_ror:8"):
        e("s_nop 1"); e(f"v_add_f32_dpp v24, v24, v24 {dpp} {DPP}")
    for sw in ("16", "32"):
        e("v_mov_b32 v25, v24"); e("s_nop 1"); e(f"v_permlane{sw}_swap_b32 v24, v25"); e("v_add_f32 v24, v24, v25")
    e("v_cvt_pk_bf16_f32 v24, v24, v24"); e("v_and_b32 v24, 0xffff0000, v24")
    e(f"v_mul_f32 v24, 0x{f2u(-math.log2(math.e)):08x}, v24"); e("v_exp_f32 v24, v24"); e("s_nop 0")
    e("v_add_f32 v24, 1.0, v24"); e("v_rcp_f32 v24, v24"); e("s_nop 0")
    e("v_cvt_pk_bf16_f32 v24, v24, v24"); e("v_and_b32 v24, 0xffff0000, v24")
    e("v_sub_f32 v25, 1.0, v24"); e("v_cvt_pk_bf16_f32 v25, v25, v25"); e("v_and_b32 v25, 0xffff0000, v25")
    e("v_readfirstlane_b32 s22, v24"); e("v_readfirstlane_b32 s23, v25")
    e("s_branch L_b2")
    g.lab("L_qgather")
    e(f"s_lshl_b32 s{sT0}, s{sG}, 3"); e(f"s_add_u32 s{sT0}, s{sT0}, s{sB}"); e(f"s_lshl_b32 s{sT0}, s{sT0}, 11")
    e(f"s_add_u32 s{sT3}, s{sT0}, {WS_Q}")
    def ql():
        e(f"buffer_load_dwordx4 v[52:55], v33, {sr(sWS)}, s{sT3} offen sc1")
        e(f"buffer_load_dwordx4 v[56:59], v33, {sr(sWS)}, s{sT3} offen offset:1024 sc1")
    poll("qg", ql, [53, 55, 57, 59], 60, 61, fs=True)
    e(f"v_lshlrev_b32 v60, 3, v{vL}")
    e(f"ds_write2_b32 v60, v52, v54 offset0:{L_QL//4} offset1:{L_QL//4+1}")
    e(f"ds_write2_b32 v60, v56, v58 offset0:{L_QL//4+128} offset1:{L_QL//4+129}")
    g.ts("qgot")
    g.lab("L_b2")
    e(f"v_bfe_u32 v{vC}, v{vL}, 2, 1"); e(f"v_lshlrev_b32 v{vA}, 9, v{vC}")
    e(f"v_lshl_add_u32 v{vA}, v{vB}, 6, v{vA}")
    e(f"v_and_b32 v60, 3, v{vL}"); e(f"v_lshl_add_u32 v{vA}, v60, 4, v{vA}")
    e(f"s_and_b32 s{sT0}, s{s16k}, 0x100"); e(f"v_add_u32 v{vA}, s{sT0}, v{vA}"); e(f"v_xor_b32 v60, 0x100, v{vA}")
    e("s_waitcnt lgkmcnt(0)")
    e("s_barrier")
    g.ts("B2")
    e(f"ds_read_b128 {vr(vQB)}, v{vA} offset:{L_QL}")
    e(f"ds_read_b128 {vr(vQB+4)}, v60 offset:{L_QL}")
    def postn(us):
        for step in range(4):
            for u in us:
                d = vD + 16*((u//4) % 2) + 4*(u % 4); s_ = vS + u
                if step == 0: e(f"v_mov_b32_dpp v{s_}, v{d} quad_perm:[0,0,0,0] {DPP}")
                else: e(f"v_add_f32_dpp v{s_}, v{d+step}, v{s_} quad_perm:[{step},{step},{step},{step}] {DPP}")
    e("s_waitcnt lgkmcnt(0)")
    young = 0 if o['wo_late'] else NWO
    vissued = 0
    order = o['order']
    def vunit(u):
        nonlocal young, vissued
        for j in range(8): vload(u, j)
        young += 8; vissued += 1
    for bt in range(4):
        lastn = 8*bt + 7
        e(f"s_waitcnt vmcnt({31-lastn+young})")
        g.ts(f"K{bt}")
        for u in range(4*bt, 4*bt+4):
            d = vD + 16*(bt % 2) + 4*(u % 4)
            e(f"v_mfma_f32_16x16x32_bf16 {vr(d)}, {vr(vK+8*u)}, {vr(vQB)}, 0")
            e(f"v_mfma_f32_16x16x32_bf16 {vr(d)}, {vr(vK+8*u+4)}, {vr(vQB+4)}, {vr(d)}")
        if order == 0 or (order == 1 and bt == 0): vunit(bt)
        if bt >= 1: postn(list(range(4*(bt-1), 4*bt)))
    g.nop(8)
    postn(list(range(12, 16)))
    if order == 2:
        for u in range(4): vunit(u)
    g.ts("QK")
    if o['round_s']:
        for u in range(0, 16, 2):
            e(f"v_cvt_pk_bf16_f32 v{vD+u}, v{vS+u}, v{vS+u+1}")
        for u in range(0, 16, 2):
            e(f"v_lshlrev_b32 v{vS+u}, 16, v{vD+u}"); e(f"v_and_b32 v{vS+u+1}, 0xffff0000, v{vD+u}")
    e(f"v_max3_f32 v{vA}, v{vS}, v{vS+1}, v{vS+2}")
    for u in range(3, 15, 2): e(f"v_max3_f32 v{vA}, v{vA}, v{vS+u}, v{vS+u+1}")
    e(f"v_max_f32 v{vA}, v{vA}, v{vS+15}")
    for sw in ("16", "32"):
        e(f"v_mov_b32 v{vB}, v{vA}"); e("s_nop 1"); e(f"v_permlane{sw}_swap_b32 v{vA}, v{vB}"); e(f"v_max_f32 v{vA}, v{vA}, v{vB}")
    e(f"v_mul_f32 v{vA}, s{sC}, v{vA}")
    e(f"v_lshlrev_b32 v{vC}, 5, v{vC}")
    e(f"s_lshl_b32 s{sT0}, s{sW}, 2"); e(f"v_add_u32 v{vB}, s{sT0}, v{vC}")
    e(f"ds_write_b32 v{vB}, v{vA} offset:{L_SM}")
    for u in range(16): e(f"v_fma_f32 v{vS+u}, v{vS+u}, s{sC}, -v{vA}")
    for u in range(16): e(f"v_exp_f32 v{vS+u}, v{vS+u}")
    e("s_nop 0")
    for t in range(8): e(f"v_cvt_pk_bf16_f32 v{vD+t}, v{vS+2*t}, v{vS+2*t+1}")
    for t in range(8): e(f"v_add_f32 v{vS+t}, v{vS+t}, v{vS+t+8}")
    for t in range(4): e(f"v_add_f32 v{vS+t}, v{vS+t}, v{vS+t+4}")
    e(f"v_add_f32 v{vS}, v{vS}, v{vS+2}"); e(f"v_add_f32 v{vS+1}, v{vS+1}, v{vS+3}"); e(f"v_add_f32 v{vS}, v{vS}, v{vS+1}")
    for sw in ("16", "32"):
        e(f"v_mov_b32 v{vS+1}, v{vS}"); e("s_nop 1"); e(f"v_permlane{sw}_swap_b32 v{vS}, v{vS+1}"); e(f"v_add_f32 v{vS}, v{vS}, v{vS+1}")
    e(f"ds_write_b32 v{vB}, v{vS} offset:{L_SL}")
    for blk in range(2):
        for v in range(8):
            for t in range(4):
                e(f"v_cndmask_b32 v{vPV+32*blk+4*v+t}, 0, v{vD+4*blk+t}, s[{sMASK+2*v}:{sMASK+2*v+1}]")
    while vissued < 4: vunit(vissued)
    late = 0
    if o['wo_late']:
        wo_dma(60, 61); late = NWO
    e(f"v_bfe_u32 v52, v{vL}, 4, 1"); e(f"v_lshlrev_b32 v52, 10, v52")
    e(f"v_and_b32 v53, 15, v{vL}"); e(f"v_lshl_add_u32 v52, v53, 5, v52")
    e(f"v_lshrrev_b32 v53, 5, v{vL}"); e(f"v_lshl_add_u32 v52, v53, 4, v52")
    e(f"s_and_b32 s{sT1}, s{s16k}, 0x100"); e(f"s_lshl_b32 s{sT1}, s{sT1}, 1"); e(f"v_add_u32 v52, s{sT1}, v52"); e("v_xor_b32 v53, 0x200, v52")
    e(f"s_lshl_b32 s{sT0}, s{sW}, 11"); e(f"s_add_u32 s{sT0}, s{sT0}, {L_OR}"); e(f"v_add_u32 v52, s{sT0}, v52"); e(f"v_add_u32 v53, s{sT0}, v53")
    g.ts("P")
    vT = 40
    for unit in range(4):
        blk, hf = unit//2, unit % 2
        base = vK + 32*unit
        e(f"s_waitcnt vmcnt({8*(3-unit)+late})")
        g.ts(f"V{unit}")
        acc = vACC + 4*hf
        def perms(d):
            for t in range(4):
                e(f"v_perm_b32 v{vT+4*(d%3)+t}, v{base+4*(2*t+1)+d//2}, v{base+4*(2*t)+d//2}, s{sSEL1 if d&1 else sSEL0}")
        perms(0)
        for d in range(8):
            if d < 7: perms(d+1)
            else: g.nop(2)
            cin = "0" if (blk == 0 and d == 0) else vr(acc)
            e(f"v_mfma_f32_16x16x32_bf16 {vr(acc)}, {vr(vPV+32*blk+4*d)}, {vr(vT+4*(d%3))}, {cin}")
        if unit == 3:
            e(f"ds_write_b128 v52, {vr(vACC)}")
            g.nop(7)
            e(f"ds_write_b128 v53, {vr(vACC+4)}")
    e("s_waitcnt lgkmcnt(0)")
    e("s_barrier")
    g.ts("B4")
    e(f"v_lshrrev_b32 v53, 4, v{vL}")
    e(f"s_lshr_b32 s{sT2}, s{sMEM}, 2")
    e(f"s_cmp_lt_u32 s{sW}, 4"); e("s_cbranch_scc1 L_gath")
    e(f"s_cmp_eq_u32 s{sW}, 4"); e("s_cbranch_scc1 L_stat")
    e(f"s_cmp_eq_u32 s{sW}, 7"); e("s_cbranch_scc1 L_b5")
    e(f"s_sub_u32 s{sT0}, s{sW}, 5"); e(f"s_lshl_b32 s{sT1}, s{sT0}, 10")
    e(f"s_add_u32 s{sT1}, s{sT1}, {L_OR}"); e(f"v_lshlrev_b32 v54, 4, v{vL}"); e(f"v_add_u32 v52, s{sT1}, v54")
    e(f"s_lshl_b32 s{sT1}, s{sT0}, 5"); e(f"v_mov_b32 v55, s{sT1}")
    e(f"ds_read_b128 {vr(104)}, v55 offset:{L_SM}"); e(f"ds_read_b128 {vr(108)}, v55 offset:{L_SM+16}")
    e(f"ds_read_b128 {vr(96)}, v55 offset:{L_SL}"); e(f"ds_read_b128 {vr(100)}, v55 offset:{L_SL+16}")
    for w in range(8): e(f"ds_read_b128 {vr(64+4*w)}, v52 offset:{w*2048}")
    e(f"s_and_b32 s{sT1}, s{sMEM}, 1"); e(f"s_lshl_b32 s{sT1}, s{sT1}, 3"); e(f"s_add_u32 s{sT1}, s{sT1}, s{sB}")
    e(f"s_lshl_b32 s{sT2}, s{sG}, 1"); e(f"s_add_u32 s{sT2}, s{sT2}, s{sT0}")
    e(f"s_lshl_b32 s{sT3}, s{sT2}, 14"); e(f"s_lshl_b32 s{sT0}, s{sT1}, 9"); e(f"s_add_u32 s{sT3}, s{sT3}, s{sT0}"); e(f"s_add_u32 s{sT3}, s{sT3}, {WS_O}")
    e(f"s_lshl_b32 s{sT2}, s{sT2}, 8"); e(f"s_lshl_b32 s{sT1}, s{sT1}, 4"); e(f"s_add_u32 s{sT2}, s{sT2}, s{sT1}"); e(f"s_add_u32 s{sT2}, s{sT2}, {WS_S}")
    e(f"v_lshrrev_b32 v56, 5, v{vL}"); e("v_lshlrev_b32 v56, 13, v56"); e(f"v_and_b32 v57, 31, v{vL}"); e("v_lshl_add_u32 v56, v57, 4, v56")
    e(f"s_waitcnt lgkmcnt({0 if o['ts'] else 10})")
    e("v_max3_f32 v112, v104, v105, v106"); e("v_max3_f32 v112, v112, v107, v108"); e("v_max3_f32 v112, v112, v109, v110"); e("v_max_f32 v112, v112, v111")
    for w in range(8): e(f"v_sub_f32 v{104+w}, v{104+w}, v112")
    for w in range(8): e(f"v_exp_f32 v{104+w}, v{104+w}")
    e(f"s_waitcnt lgkmcnt({0 if o['ts'] else 8})")
    e("v_mul_f32 v114, v96, v104")
    for w in range(1, 8): e(f"v_fmac_f32 v114, v{96+w}, v{104+w}")
    e("v_rcp_f32 v116, v114")
    e(f"v_mov_b32 v113, v{vTAG}"); e(f"v_mov_b32 v115, v{vTAG}"); e("v_mov_b32 v117, 0")
    e("s_mov_b64 exec, 1")
    if o['fast']:
        e(f"s_add_u32 s{sT0}, s{sT2}, {WS_F}"); e(f"s_add_u32 s{sT1}, s{sT3}, {WS_F}")
        e(f"buffer_store_dwordx4 v[112:115], v117, {sr(sWS)}, s{sT0} offen")
    else:
        e(f"buffer_store_dwordx4 v[112:115], v117, {sr(sWS)}, s{sT2} offen sc1")
    e("s_mov_b64 exec, -1")
    e("s_waitcnt lgkmcnt(0)")
    for k in range(4): e(f"v_mul_f32 v{64+k}, v{64+k}, v104")
    for w in range(1, 8):
        for k in range(4): e(f"v_fmac_f32 v{64+k}, v{64+4*w+k}, v{104+w}")
    for k in range(4): e(f"v_mul_f32 v{64+k}, v{64+k}, v116")
    e(f"v_mov_b32 v69, v{vTAG}"); e(f"v_mov_b32 v71, v{vTAG}")
    e("v_cvt_pk_bf16_f32 v68, v64, v65"); e("v_cvt_pk_bf16_f32 v70, v66, v67")
    if o['fast']:
        e(f"buffer_store_dwordx4 v[68:71], v56, {sr(sWS)}, s{sT1} offen")
    g.ts("opub")
    e(f"buffer_store_dwordx4 v[68:71], v56, {sr(sWS)}, s{sT3} offen sc1")
    if o['fast']:
        e("s_mov_b64 exec, 1")
        e(f"buffer_store_dwordx4 v[112:115], v117, {sr(sWS)}, s{sT2} offen sc1")
        e("s_mov_b64 exec, -1")
    if o['ts']:
        e("s_waitcnt vmcnt(0)"); g.ts("oack")
    e("s_branch L_wofrag")
    g.lab("L_stat")
    e(f"s_lshr_b32 s{sT2}, s{sT2}, 1"); e(f"s_lshl_b32 s{sT3}, s{sG}, 1"); e(f"s_add_u32 s{sT3}, s{sT3}, s{sT2}")
    e(f"s_lshl_b32 s{sT3}, s{sT3}, 8"); e(f"s_add_u32 s{sT3}, s{sT3}, {WS_S}")
    e(f"v_and_b32 v54, 15, v{vL}"); e("v_lshlrev_b32 v55, 4, v54")
    e("s_mov_b64 exec, 0xffff")
    def sl(): e(f"buffer_load_dwordx4 {vr(160)}, v55, {sr(sWS)}, s{sT3} offen sc1")
    poll("sg", sl, [161, 163], 58, 59, o['sleep1'], fs=True)
    g.ts("SG")
    if o['ts']: e(f"s_sub_u32 s46, {o['spin']}, s{sSPIN}")
    e(f"v_mov_b32_dpp v100, v160 row_ror:8 {DPP}")
    e(f"v_mov_b32_dpp v101, v162 row_ror:8 {DPP}")
    e("v_max_f32 v102, v160, v100")
    e("v_sub_f32 v103, v160, v102"); e("v_sub_f32 v100, v100, v102")
    e("v_exp_f32 v103, v103"); e("v_exp_f32 v100, v100"); e("s_nop 0")
    e("v_mul_f32 v103, v103, v162"); e("v_fma_f32 v100, v100, v101, v103")
    e("v_rcp_f32 v100, v100"); e("v_lshlrev_b32 v54, 2, v54"); e("v_mul_f32 v103, v103, v100")
    e("s_mov_b64 exec, 0xffff")
    e(f"ds_write_b32 v54, v103 offset:{L_W}")
    e("s_mov_b64 exec, -1")
    e("s_branch L_wofrag")
    g.lab("L_gath")
    e(f"v_and_b32 v52, 15, v{vL}"); e("v_lshlrev_b32 v52, 9, v52"); e("v_lshl_add_u32 v52, v53, 5, v52")
    e(f"s_lshl_b32 s{sT3}, s{sG}, 2"); e(f"s_add_u32 s{sT3}, s{sT3}, s{sT2}"); e(f"s_lshl_b32 s{sT3}, s{sT3}, 13")
    e(f"s_lshl_b32 s{sT2}, s{sW}, 7"); e(f"s_add_u32 s{sT3}, s{sT3}, s{sT2}"); e(f"s_add_u32 s{sT3}, s{sT3}, {WS_O}")
    e(f"s_lshl_b32 s{sT2}, s{sW}, 10"); e(f"v_lshlrev_b32 v54, 4, v{vL}"); e(f"v_add_u32 v54, s{sT2}, v54")
    def gl():
        e(f"buffer_load_dwordx4 {vr(128)}, v52, {sr(sWS)}, s{sT3} offen sc1")
        e(f"buffer_load_dwordx4 {vr(132)}, v52, {sr(sWS)}, s{sT3} offen offset:16 sc1")
    g.ts("g1s")
    poll("g1", gl, [129, 131, 133, 135], 58, 59, o['sleep1'], fs=True)
    if o['ts']: e(f"s_sub_u32 s46, {o['spin']}, s{sSPIN}")
    e("v_mov_b32 v129, v130"); e("v_mov_b32 v130, v132"); e("v_mov_b32 v131, v134")
    e(f"ds_write_b128 v54, {vr(128)} offset:{L_B3}")
    if o['hint']:
        e(f"s_or_b32 s{sT0}, s{sW}, s{sMEM}"); e("s_cbranch_scc1 L_nohint")
        e(f"s_lshl_b32 s{sT0}, s{sG}, 2"); e(f"s_add_u32 s{sT0}, s{sT0}, {WS_H}"); e(f"v_lshlrev_b32 v54, 8, v{vL}")
        e("s_mov_b64 exec, 0xffff")
        e(f"buffer_store_dword v{vTAG}, v54, {sr(sWS)}, s{sT0} offen sc1")
        e("s_mov_b64 exec, -1")
        g.lab("L_nohint")
    g.ts("G1")
    g.lab("L_wofrag")
    if o['wo_late']:
        pass
    g.lab("L_b5")
    e(f"v_bfe_u32 v55, v{vL}, 2, 2"); e("v_lshl_add_u32 v55, v53, 3, v55"); e("v_mul_u32_u24 v55, 224, v55")
    e(f"v_and_b32 v56, 3, v{vL}"); e("v_lshl_add_u32 v55, v56, 3, v55")
    e(f"s_lshl_b32 s{sT1}, s{sW}, 5"); e(f"s_add_u32 s{sT1}, s{sT1}, {L_WO}"); e(f"v_add_u32 v55, s{sT1}, v55")
    def wofr():
        for k in range(4):
            e(f"ds_read_b64_tr_b16 {vr(80+4*k,2)}, v55 offset:{k*32*224}")
            e(f"ds_read_b64_tr_b16 {vr(82+4*k,2)}, v55 offset:{k*32*224+4*224}")
    if not o['wo_late']: wofr()
    e(f"s_and_b32 s{sT1}, s{sMEM}, 3"); e(f"s_mul_i32 s{sT1}, s{sT1}, 7"); e(f"s_add_u32 s{sT1}, s{sT1}, s{sW}")
    e(f"s_lshl_b32 s{sT1}, s{sT1}, 16"); e(f"s_lshl_b32 s{sT2}, s{sG}, 2"); e(f"s_lshr_b32 s{sT0}, s{sMEM}, 2"); e(f"s_add_u32 s{sT2}, s{sT2}, s{sT0}")
    e(f"s_lshl_b32 s{sT2}, s{sT2}, 7"); e(f"s_add_u32 s{sT2}, s{sT2}, s{sT1}"); e(f"s_add_u32 s{sT2}, s{sT2}, {WS_P}")
    e(f"v_and_b32 v57, 7, v{vL}"); e("v_lshlrev_b32 v57, 13, v57"); e("v_lshl_add_u32 v57, v53, 5, v57")
    e(f"v_bfe_u32 v56, v{vL}, 3, 1"); e("v_lshl_add_u32 v57, v56, 4, v57")
    e(f"v_lshlrev_b32 v58, 4, v{vL}"); e(f"v_and_b32 v59, 15, v{vL}"); e("v_lshlrev_b32 v59, 2, v59")
    e("s_waitcnt vmcnt(0) lgkmcnt(0)" if o['wo_late'] else "s_waitcnt lgkmcnt(0)")
    e("s_barrier")
    g.ts("B5")
    e(f"s_cmp_eq_u32 s{sW}, 7"); e("s_cbranch_scc1 L_red")
    for k in range(4): e(f"ds_read_b128 {vr(164+4*k)}, v58 offset:{L_B3+k*1024}")
    e(f"ds_read_b32 v103, v59 offset:{L_W}")
    if o['wo_late']: wofr()
    e(f"v_mov_b32 v109, v{vTAG}"); e(f"v_mov_b32 v111, v{vTAG}")
    e("s_waitcnt lgkmcnt(0)")
    for k in range(4):
        e(f"v_mfma_f32_16x16x32_bf16 {vr(96)}, {vr(80+4*k)}, {vr(164+4*k)}, {'0' if k==0 else vr(96)}")
    g.nop(8)
    for k in range(4): e(f"v_mul_f32 v{96+k}, v{96+k}, v103")
    for k in range(4): e(f"v_add_f32_dpp v{104+k}, v{96+k}, v{96+k} row_ror:8 {DPP}")
    e(f"v_cndmask_b32 v108, v104, v106, s[{sM8}:{sM8+1}]"); e(f"v_cndmask_b32 v110, v105, v107, s[{sM8}:{sM8+1}]")
    e(f"buffer_store_dwordx4 v[108:111], v57, {sr(sWS)}, s{sT2} offen sc1")
    g.ts("ppub")
    e("s_branch L_fin")
    g.lab("L_red")
    e("s_cmp_ge_u32 s2, 224"); e("s_cbranch_scc1 L_fin")
    e(f"s_lshl_b32 s{sT3}, s2, 13"); e(f"s_add_u32 s{sT3}, s{sT3}, {WS_P}"); e(f"s_add_u32 s{sT2}, s{sT3}, 4096")
    e(f"v_and_b32 v60, 7, v{vL}"); e("v_lshlrev_b32 v60, 2, v60")
    e(f"s_mul_i32 s21, s{sKVH}, 896"); e("s_lshr_b32 s20, s2, 3"); e("s_lshl_b32 s20, s20, 5"); e("s_add_u32 s21, s21, s20")
    def rl():
        for i in range(8):
            e(f"buffer_load_dwordx4 {vr(128+4*i)}, v58, {sr(sWS)}, s{sT3 if i<4 else sT2} offen offset:{(i%4)*1024} sc1")
    if o['hint']:
        e(f"s_lshl_b32 s20, s{sMEM}, 8"); e(f"s_add_u32 s20, s20, {WS_H}"); e(f"v_lshlrev_b32 v61, 2, v{vL}")
        e(f"s_mov_b32 s{sSPIN}, {o['spin']}")
        e("s_mov_b64 exec, 0xffff")
        g.lab("L_hint")
        e(f"buffer_load_dword v62, v61, {sr(sWS)}, s20 offen sc1")
        e("s_waitcnt vmcnt(0)")
        e(f"v_cmp_ne_u32 vcc, v62, v{vTAG}")
        e("s_cbranch_vccz L_hint_ok")
        if o['sleeph']: e(f"s_sleep {o['sleeph']}")
        e(f"s_sub_u32 s{sSPIN}, s{sSPIN}, 1"); e("s_cbranch_scc0 L_hint")
        g.lab("L_hint_ok")
        e("s_mov_b64 exec, -1")
        g.ts("H")
    if not o['g2m']:
        poll("g2", rl, [129+2*i for i in range(16)], 61, 62, o['sleep2'])
    else:
        for i in range(8): e(f"s_mov_b64 s[{sMASK+2*i}:{sMASK+2*i+1}], -1")
        e(f"s_mov_b32 s{sSPIN}, {o['spin']}")
        g.lab("L_g2")
        for i in range(8):
            e(f"s_mov_b64 exec, s[{sMASK+2*i}:{sMASK+2*i+1}]"); e(f"s_cbranch_execz L_g2s{i}")
            e(f"buffer_load_dwordx4 {vr(128+4*i)}, v58, {sr(sWS)}, s{sT3 if i<4 else sT2} offen offset:{(i%4)*1024} sc1")
            g.lab(f"L_g2s{i}")
        e("s_mov_b64 exec, -1")
        e("s_waitcnt vmcnt(0)")
        for i in range(8):
            e(f"v_cmp_ne_u32 vcc, v{129+4*i}, v{vTAG}"); e(f"v_cmp_ne_u32 s[{sMASK+2*i}:{sMASK+2*i+1}], v{131+4*i}, v{vTAG}")
            e(f"s_or_b64 s[{sMASK+2*i}:{sMASK+2*i+1}], s[{sMASK+2*i}:{sMASK+2*i+1}], vcc")
        for i in range(0, 8, 2): e(f"s_or_b64 s[{sT0}:{sT1}], s[{sMASK+2*i}:{sMASK+2*i+1}], s[{sMASK+2*i+2}:{sMASK+2*i+3}]" if i == 0 else f"s_or_b64 vcc, s[{sMASK+2*i}:{sMASK+2*i+1}], s[{sMASK+2*i+2}:{sMASK+2*i+3}]\n  s_or_b64 s[{sT0}:{sT1}], s[{sT0}:{sT1}], vcc")
        e("s_cbranch_scc0 L_g2_ok")
        if o['sleep2']: e(f"s_sleep {o['sleep2']}")
        e(f"s_sub_u32 s{sSPIN}, s{sSPIN}, 1"); e("s_cbranch_scc0 L_g2")
        g.lab("L_g2_ok")
    g.ts("G2")
    for base in (128, 144):
        e(f"v_add_f32 v{base}, v{base}, v{base+4}"); e(f"v_add_f32 v{base+2}, v{base+2}, v{base+6}")
        e(f"v_add_f32 v{base+8}, v{base+8}, v{base+12}"); e(f"v_add_f32 v{base+10}, v{base+10}, v{base+14}")
    R = [128, 130, 144, 146]
    for r in R: e(f"v_add_f32 v{r}, v{r}, v{r+8}")
    for r in R: e(f"v_add_f32_dpp v{r}, v{r}, v{r} row_ror:8 {DPP}")
    for sw in ("16", "32"):
        for r in R: e(f"v_mov_b32 v{r+1}, v{r}")
        for r in R: e(f"v_permlane{sw}_swap_b32 v{r}, v{r+1}")
        for r in R: e(f"v_add_f32 v{r}, v{r}, v{r+1}")
    for base, gs in ((128, 22), (144, 23)):
        e(f"v_cvt_pk_bf16_f32 v{base+1}, v{base}, v{base+2}")
        e(f"v_lshlrev_b32 v{base}, 16, v{base+1}"); e(f"v_and_b32 v{base+2}, 0xffff0000, v{base+1}")
        e(f"v_mul_f32 v{base}, s{gs}, v{base}"); e(f"v_mul_f32 v{base+2}, s{gs}, v{base+2}")
        e(f"v_cvt_pk_bf16_f32 v{base+1}, v{base}, v{base+2}")
        e(f"v_lshlrev_b32 v{base}, 16, v{base+1}"); e(f"v_and_b32 v{base+2}, 0xffff0000, v{base+1}")
    e("v_add_f32 v128, v128, v144"); e("v_add_f32 v130, v130, v146")
    e("v_cvt_pk_bf16_f32 v128, v128, v130")
    e("s_mov_b64 exec, 0xff")
    e(f"buffer_store_dword v128, v60, {sr(sOUT)}, s21 offen")
    e("s_cmp_lg_u32 s2, 0"); e("s_cbranch_scc1 L_fin")
    e("s_mov_b64 exec, 1")
    e(f"buffer_store_dword v{vTAG}, v60, {sr(sWS)}, 0 offen sc1")
    g.lab("L_fin")
    if o['ts']:
        e("s_mov_b64 exec, -1")
        g.ts("end")
        e("s_waitcnt lgkmcnt(0)")
        for k in range(16): e(f"v_mov_b32 v{128+k}, s{TSREG[k]}" if k < g.nts else f"v_mov_b32 v{128+k}, 0")
        e("s_mul_i32 s46, s46, 100"); e(f"s_add_u32 s46, s46, s{TSREG[0]}"); e("v_mov_b32 v143, s46")
        e(f"s_lshl_b32 s{sT0}, s2, 3"); e(f"s_add_u32 s{sT0}, s{sT0}, s{sW}"); e(f"s_lshl_b32 s{sT0}, s{sT0}, 6"); e(f"s_add_u32 s{sT0}, s{sT0}, {WS_TS}")
        e("v_mov_b32 v60, 0"); e("s_mov_b64 exec, 1")
        for k in range(4): e(f"buffer_store_dwordx4 {vr(128+4*k)}, v60, {sr(sWS)}, s{sT0} offen offset:{16*k}")
        print("TS:", ",".join(g.tsn))
    g.lab("L_end")
    e("s_endpgm")
    g.lab("L_codeend")
    g.L += ['.section .rodata,"a"', ".p2align 6", f".amdhsa_kernel {KN}",
            "  .amdhsa_next_free_vgpr 256", "  .amdhsa_next_free_sgpr 102", "  .amdhsa_accum_offset 256",
            "  .amdhsa_group_segment_fixed_size 0", "  .amdhsa_kernarg_size 112", "  .amdhsa_user_sgpr_count 2",
            "  .amdhsa_user_sgpr_kernarg_segment_ptr 1", "  .amdhsa_system_sgpr_workgroup_id_x 1",
            "  .amdhsa_float_denorm_mode_32 3", ".end_amdhsa_kernel"]
    return "\n".join(g.L) + "\n"

if __name__ == "__main__":
    from lint import lint
    from build import build
    out = sys.argv[1]; opts = eval("dict(" + (sys.argv[2] if len(sys.argv) > 2 else "") + ")")
    s = gen(**opts)
    open(out, "w").write(s)
    for p in lint(s): print("LINT:", p)
    build(out)
```

```python
import sys, math, struct
sys.path.insert(0, "gen"); sys.path.insert(0, "tools")
KN = "gated_mix__sliding_block_cached__sliding_block_cached__decode_kernel"
HEADER = open("gated_mix__sliding_block_cached__sliding_block_cached__decode.s.ref").read().split("; Override launch")[0]

WS_Q = 0x10000
WS_S = 0x60000
WS_H = 0x70000
WS_O = 0x80000
WS_F = 0x100000
WS_P = 0x200000
WS_TS = 0x400000
WS_SIZE = 0x800000
L_QL = 0
L_SM = 1024
L_SL = 1088
L_W = 1152
L_B3 = 4096
L_WQ = 8192
L_X = 36864
L_WO = 44032
L_OR = 76800
LDS_BYTES = 93184
TSREG = [84,86,88,90,92,94,96,98,100,8,10,12,14,16,18,20]

def f2u(x): return struct.unpack("<I", struct.pack("<f", x))[0]
def vr(a, n=4): return f"v[{a}:{a+n-1}]"
def sr(a, n=4): return f"s[{a}:{a+n-1}]"
DPP = "row_mask:0xf bank_mask:0xf"

class G:
    def __init__(s, **o):
        s.L = []; s.o = dict(round_s=1, ts=0, pol='nt', spin=1<<16, wo_late=0, codepf=1, order=0, sleep1=0, sleep2=0, b0=1, pre=0, g2m=1, epol='', hint=1, sleeph=0, xm=0x100, xa=1, xb=0, fast=1, fthr=256, qw=1, diag=0, dsleep=0, dxor=0, drow=13, wqpol=None, xpol='')
        s.o.update(o); s.nts = 0; s.tsn = []
    def e(s, t): s.L.append("  " + t)
    def lab(s, t): s.L.append(t + ":")
    def nop(s, n):
        while n > 0:
            k = min(n, 16); s.e(f"s_nop {k-1}"); n -= k
    def ts(s, name):
        if not s.o['ts']: return
        if name in s.o.get('tsoff', ()): return
        if 'tson' in s.o and name not in s.o['tson']: return
        if 'tson' not in s.o and name[0] in 'KV' and name[1:].isdigit(): return
        k = s.nts; s.nts += 1
        r = TSREG[k]; s.tsn.append(name)
        s.e(f"s_memrealtime s[{r}:{r+1}]")

def gen(**opts):
    g = G(**opts); e = g.e; o = g.o; POL = o['pol']
    sK, sV, sWQ, sWO, sX, sGW, sWS, sOUT = 24, 28, 32, 36, 40, 44, 48, 52
    sW = 56; s16k = 57; sT0, sT1, sT2, sT3 = 58, 59, 60, 61
    sKVH, sBR, sMEM, sB, sG = 3, 4, 5, 6, 7
    sMASK = 64; sM8 = 80; sSEL0, sSEL1 = 82, 83; sSPIN = 62; sC = 63
    vL = 1; vKO = 2; vVO = 3; vTAG = 4; vA = 5; vB = 6; vC = 7
    vQB = 8; vS = 16; vD = 32; vPV = 64; vK = 128; vACC = 8
    vGT = 120

    def tagcheck(tags, a, b_):
        if len(tags) == 2:
            e(f"v_cmp_ne_u32 vcc, v{tags[0]}, v{vTAG}"); e(f"v_cmp_ne_u32 s[{sT0}:{sT1}], v{tags[1]}, v{vTAG}")
        else:
            e(f"v_min3_u32 v{a}, v{tags[0]}, v{tags[1]}, v{tags[2]}"); e(f"v_max3_u32 v{b_}, v{tags[0]}, v{tags[1]}, v{tags[2]}")
            i = 3
            while i+1 < len(tags):
                e(f"v_min3_u32 v{a}, v{a}, v{tags[i]}, v{tags[i+1]}"); e(f"v_max3_u32 v{b_}, v{b_}, v{tags[i]}, v{tags[i+1]}"); i += 2
            if i < len(tags):
                e(f"v_min_u32 v{a}, v{a}, v{tags[i]}"); e(f"v_max_u32 v{b_}, v{b_}, v{tags[i]}")
            e(f"v_cmp_ne_u32 vcc, v{a}, v{vTAG}"); e(f"v_cmp_ne_u32 s[{sT0}:{sT1}], v{b_}, v{vTAG}")
        e(f"s_or_b64 vcc, vcc, s[{sT0}:{sT1}]")
    def poll(name, loads, tags, a, b_, sleep=0, fs=False):
        fs = fs and o['fast']
        e(f"s_mov_b32 s{sSPIN}, {o['spin']}")
        if fs: e(f"s_add_u32 s{sT3}, s{sT3}, {WS_F}")
        g.lab(f"L_{name}")
        loads()
        e("s_waitcnt vmcnt(0)")
        tagcheck(tags, a, b_)
        e(f"s_cbranch_scc0 L_{name}_ok")
        e("s_mov_b64 exec, vcc")
        if sleep: e(f"s_sleep {sleep}")
        if fs:
            e(f"s_cmp_eq_u32 s{sSPIN}, {o['spin']-o['fthr']}"); e(f"s_cselect_b32 s{sT0}, {WS_F}, 0"); e(f"s_sub_u32 s{sT3}, s{sT3}, s{sT0}")
        e(f"s_sub_u32 s{sSPIN}, s{sSPIN}, 1"); e(f"s_cbranch_scc0 L_{name}")
        g.lab(f"L_{name}_ok")
        e("s_mov_b64 exec, -1")

    g.L.append(HEADER.rstrip("\n"))
    g.L.append(f"; @launch grid=(256,1,1) block=(512,1,1) lds={LDS_BYTES}")
    g.L.append('.amdgcn_target "amdgcn-amd-amdhsa--gfx950"')
    g.L.append(".text"); g.L.append(f".globl {KN}"); g.L.append(".p2align 8"); g.L.append(f".type {KN},@function"); g.lab(KN)
    e("s_cmp_ge_u32 s2, 256"); e("s_cbranch_scc1 L_end")
    g.ts("start")
    e(f"s_lshr_b32 s{sBR}, s2, 7")
    e(f"s_mul_i32 s{sT0}, s{sBR}, 40")
    e(f"s_add_u32 s{sT2}, s0, s{sT0}"); e(f"s_addc_u32 s{sT3}, s1, 0")
    e(f"s_load_dwordx8 s[8:15], s[{sT2}:{sT3}], 8")
    e("s_load_dwordx2 s[16:17], s[0:1], 0")
    e("s_load_dwordx2 s[18:19], s[0:1], 104")
    e("s_load_dwordx4 s[20:23], s[0:1], 80")
    e(f"v_lshrrev_b32 v{vA}, 6, v0")
    e(f"v_and_b32 v{vL}, 63, v0")
    e(f"v_readfirstlane_b32 s{sW}, v{vA}")
    e(f"s_getpc_b64 s[{sM8}:{sM8+1}]")
    g.lab("L_pc")
    if o['codepf']:
        e(f"v_lshlrev_b32 v35, 7, v0"); e("v_subrev_u32 v35, 8192, v35")
        e(f"s_mov_b32 s{sT0}, L_codeend-L_pc-4")
        e(f"v_cmp_gt_u32 vcc, s{sT0}, v35")
        e(f"s_and_saveexec_b64 s[{sT2}:{sT3}], vcc")
        e("s_cbranch_execz L_nopf")
        e(f"global_load_dword v36, v35, s[{sM8}:{sM8+1}]")
        g.lab("L_nopf")
        e("s_mov_b64 exec, -1")
    e(f"s_and_b32 s{sKVH}, s2, 7")
    e(f"s_bfe_u32 s{sMEM}, s2, 0x40003")
    e(f"s_lshr_b32 s{sB}, s{sMEM}, 1")
    e(f"s_lshl_b32 s{sG}, s{sBR}, 3"); e(f"s_add_u32 s{sG}, s{sG}, s{sKVH}")
    e(f"s_mul_i32 s{sT0}, s{sW}, {o['xa']}"); e(f"s_lshr_b32 s{sT1}, s2, 3"); e(f"s_mul_i32 s{sT1}, s{sT1}, {o['xb']}"); e(f"s_add_u32 s{sT0}, s{sT0}, s{sT1}")
    e(f"s_lshl_b32 s{sT1}, s{sT0}, 8"); e(f"s_and_b32 s{sT1}, s{sT1}, 0xf00"); e(f"s_lshl_b32 s{sT0}, s{sT0}, 10"); e(f"s_and_b32 s{sT0}, s{sT0}, 0x4000")
    e(f"s_or_b32 s{sT0}, s{sT0}, s{sT1}"); e(f"s_and_b32 s{s16k}, s{sT0}, {o['xm']}")
    e(f"s_lshl_b32 s{sT0}, s{sB}, 24"); e(f"s_lshl_b32 s{sT1}, s{sKVH}, 21"); e(f"s_add_u32 s{sT0}, s{sT0}, s{sT1}")
    e(f"s_and_b32 s{sT1}, s{sMEM}, 1"); e(f"s_lshl_b32 s{sT1}, s{sT1}, 18"); e(f"s_add_u32 s{sT0}, s{sT0}, s{sT1}")
    e(f"s_lshl_b32 s{sT1}, s{sW}, 15"); e(f"s_add_u32 s{sT0}, s{sT0}, s{sT1}")
    e(f"s_add_u32 s{sT0}, s{sT0}, {3072*512}")
    e(f"v_bfe_u32 v{vA}, v{vL}, 2, 2"); e(f"v_lshlrev_b32 v{vA}, 12, v{vA}")
    e(f"v_lshrrev_b32 v{vB}, 4, v{vL}")
    e(f"v_lshl_add_u32 v{vKO}, v{vB}, 6, v{vA}")
    e(f"v_and_b32 v{vA}, 3, v{vL}"); e(f"v_lshl_add_u32 v{vKO}, v{vA}, 4, v{vKO}")
    e(f"v_add_u32 v{vKO}, s{sT0}, v{vKO}")
    e(f"v_and_b32 v{vC}, 15, v{vL}"); e(f"v_lshlrev_b32 v{vC}, 4, v{vC}")
    e(f"v_lshl_add_u32 v{vVO}, v{vB}, 12, v{vC}")
    e(f"v_add_u32 v{vVO}, s{sT0}, v{vVO}")
    e(f"v_lshlrev_b32 v33, 4, v{vL}")
    e(f"v_mov_b32 v34, 0")
    def srd(d, p, n):
        e(f"s_mov_b32 s{d}, s{p}"); e(f"s_mov_b32 s{d+1}, s{p+1}"); e(f"s_mov_b32 s{d+2}, {n}"); e(f"s_mov_b32 s{d+3}, 0x20000")
    def kload(n):
        u, hf = n//2, n % 2
        e(f"s_xor_b32 s47, s{s16k}, {(u&7)*512+hf*256+(u>>3)*16384}")
        e(f"buffer_load_dwordx4 {vr(vK+4*n)}, v{vKO}, {sr(sK)}, s47 offen {POL}")
    def vload(unit, j):
        blk, hf = unit//2, unit % 2
        e(f"s_xor_b32 s47, s{s16k}, {j*512+hf*256+blk*16384}")
        e(f"buffer_load_dwordx4 {vr(vK+32*unit+4*j)}, v{vVO}, {sr(sV)}, s47 offen {POL}")
    e(f"s_mov_b32 s{sK+2}, 0x8000000"); e(f"s_mov_b32 s{sK+3}, 0x20000")
    e(f"s_mov_b32 s{sWS+2}, {WS_SIZE}"); e(f"s_mov_b32 s{sWS+3}, 0x20000")
    e(f"s_mov_b32 s{sX+2}, 7168"); e(f"s_mov_b32 s{sX+3}, 0x20000")
    e(f"s_cmp_eq_u32 s{sW}, 0")
    e("s_waitcnt lgkmcnt(0)")
    e(f"s_mov_b32 s{sK}, s8"); e(f"s_mov_b32 s{sK+1}, s9")
    e(f"s_mov_b32 s{sWS}, s18"); e(f"s_mov_b32 s{sWS+1}, s19")
    e(f"s_mov_b32 s{sX}, s16"); e(f"s_mov_b32 s{sX+1}, s17")
    e("s_cbranch_scc0 L_notw0")
    srd(sWQ, 12, 3670016)
    e(f"v_lshrrev_b32 v32, 2, v{vL}"); e(f"v_lshlrev_b32 v32, 13, v32"); e(f"v_lshl_add_u32 v32, v{vA}, 4, v32")
    e(f"s_lshl_b32 s{sT0}, s{sKVH}, 10"); e(f"s_lshl_b32 s{sT1}, s{sMEM}, 6"); e(f"s_add_u32 s{sT0}, s{sT0}, s{sT1}")
    e(f"v_add_u32 v32, s{sT0}, v32")
    if o['dsleep']:
        e(f"s_sleep {o['dsleep']}"); g.ts("slept")
    if o['dxor']: e(f"v_xor_b32 v32, {o['dxor']}, v32")
    for ii in range(28):
        e(f"s_mov_b32 m0, {L_WQ+ii*1024}")
        e(f"s_mov_b32 s{sT2}, {ii*131072}")
        e(f"buffer_load_dwordx4 v32, {sr(sWQ)}, s{sT2} offen {POL if o['wqpol'] is None else o['wqpol']} lds")
    for ii in range(7):
        e(f"s_mov_b32 m0, {L_X+ii*1024}")
        e(f"s_mov_b32 s{sT2}, {ii*1024}")
        if o['diag'] != 3: e(f"buffer_load_dwordx4 v33, {sr(sX)}, s{sT2} offen {o['xpol']} lds")
    e(f"buffer_load_dword v{vTAG}, v34, {sr(sWS)}, 0 offen {o['epol']}")
    if o['b0']: e("s_barrier")
    e(f"v_bfe_u32 v41, v{vL}, 2, 2")
    e(f"v_lshl_add_u32 v41, v{vB}, 3, v41"); e(f"v_lshlrev_b32 v41, 6, v41")
    e(f"v_lshl_add_u32 v41, v{vA}, 3, v41")
    e(f"v_and_b32 v43, 7, v{vL}"); e(f"v_mul_u32_u24 v42, 896, v43"); e(f"v_lshl_add_u32 v42, v{vB}, 4, v42")
    e(f"v_add_u32 v42, {L_X}, v42")
    e(f"s_lshl_b32 s{sT0}, s{sG}, 14"); e(f"s_lshl_b32 s{sT1}, s{sMEM}, 7"); e(f"s_add_u32 s{sT0}, s{sT0}, s{sT1}")
    e(f"s_add_u32 s{sT0}, s{sT0}, {WS_Q}")
    e(f"v_lshlrev_b32 v43, 11, v43"); e(f"v_lshl_add_u32 v43, v{vB}, 4, v43")
    e("s_waitcnt vmcnt(0)")
    g.ts("wq")
    if o['diag']: e("s_branch L_fin")
    e(f"v_add_u32 v{vTAG}, 1, v{vTAG}")
    steps = list(range(14)); first = True
    for ci in range(0, 14, 3):
        ch = steps[ci:ci+3]
        for k, s_ in enumerate(ch):
            a = 64 + 12*k
            for t in range(2):
                e(f"ds_read_b64_tr_b16 {vr(a+4*t,2)}, v41 offset:{L_WQ+s_*2048+t*32}")
                e(f"ds_read_b64_tr_b16 {vr(a+4*t+2,2)}, v41 offset:{L_WQ+s_*2048+256+t*32}")
            e(f"ds_read_b128 {vr(a+8)}, v42 offset:{s_*64}")
        e("s_waitcnt lgkmcnt(0)")
        for k, s_ in enumerate(ch):
            a = 64 + 12*k
            for t in range(2):
                e(f"v_mfma_f32_16x16x32_bf16 {vr(44+4*t)}, {vr(a+4*t)}, {vr(a+8)}, {'0' if first else vr(44+4*t)}")
            first = False
    for r in (53, 55, 57, 59): e(f"v_mov_b32 v{r}, v{vTAG}")
    g.nop(4)
    e(f"v_cvt_pk_bf16_f32 v52, v44, v45"); e(f"v_cvt_pk_bf16_f32 v54, v46, v47")
    e(f"v_cvt_pk_bf16_f32 v56, v48, v49"); e(f"v_cvt_pk_bf16_f32 v58, v50, v51")
    e("s_mov_b32 exec_lo, 0x00ff00ff"); e("s_mov_b32 exec_hi, 0x00ff00ff")
    if o['fast']:
        e(f"s_add_u32 s{sT1}, s{sT0}, {WS_F}")
        e(f"buffer_store_dwordx4 v[52:55], v43, {sr(sWS)}, s{sT1} offen")
        e(f"buffer_store_dwordx4 v[56:59], v43, {sr(sWS)}, s{sT1} offen offset:64")
    e(f"buffer_store_dwordx4 v[52:55], v43, {sr(sWS)}, s{sT0} offen sc1")
    e(f"buffer_store_dwordx4 v[56:59], v43, {sr(sWS)}, s{sT0} offen offset:64 sc1")
    e("s_mov_b64 exec, -1")
    g.ts("qpub")
    e("s_branch L_kissue")
    g.lab("L_notw0")
    e(f"buffer_load_dword v{vTAG}, v34, {sr(sWS)}, 0 offen {o['epol']}")
    for n in range(o['pre']): kload(n)
    if o['b0']: e("s_barrier")
    if o['diag'] in (1, 3): e("s_branch L_fin")
    if o['diag'] == 2:
        for n in range(32): kload(n)
        e("s_waitcnt vmcnt(0)"); e("s_branch L_fin")
    e(f"s_cmp_lg_u32 s{sW}, 7"); e("s_cbranch_scc1 L_kissue2")
    srd(sGW, 20, 896)
    e(f"s_mul_i32 s{sT0}, s{sKVH}, 896")
    e(f"buffer_load_dwordx4 v[16:19], v33, {sr(sX)}, s{sT0} offen")
    e(f"buffer_load_dwordx4 v[20:23], v33, {sr(sGW)}, 0 offen")
    e("s_branch L_kissue2")
    g.lab("L_kissue")
    for n in range(o['pre']): kload(n)
    g.lab("L_kissue2")
    for n in range(o['pre'], 32): kload(n)
    srd(sV, 10, 0x8000000); srd(sWO, 14, 3670016); srd(sOUT, 22, 7168)
    def wo_dma(va, vb):
        e(f"s_lshr_b32 s{sT0}, s{sMEM}, 2"); e(f"s_lshl_b32 s{sT0}, s{sT0}, 7"); e(f"s_lshl_b32 s{sT1}, s{sKVH}, 9"); e(f"s_add_u32 s{sT0}, s{sT0}, s{sT1}")
        e(f"s_mul_i32 s{sT0}, s{sT0}, 896"); e(f"s_and_b32 s{sT1}, s{sMEM}, 3"); e(f"s_mul_i32 s{sT1}, s{sT1}, 224"); e(f"s_add_u32 s{sT0}, s{sT0}, s{sT1}")
        e(f"s_cmp_eq_u32 s{sW}, 0"); e(f"s_cselect_b32 s{sT0}, 0x4000000, s{sT0}")
        e(f"s_add_u32 s{sT2}, s{sW}, 7"); e(f"s_and_b32 s{sT2}, s{sT2}, 7")
        e(f"s_lshl_b32 s{sT1}, s{sT2}, 12"); e(f"s_lshl_b32 s{sT2}, s{sT2}, 8")
        for ii in range(4):
            e(f"v_add_u32 v{va}, s{sT2}, v{vL}")
            if ii: e(f"v_add_u32 v{va}, {64*ii}, v{va}")
            e(f"v_mul_u32_u24 v{vb}, 4682, v{va}"); e(f"v_lshrrev_b32 v{vb}, 16, v{vb}")
            e(f"v_mul_u32_u24 v{vb}, 672, v{vb}"); e(f"v_lshl_add_u32 v{vb}, v{va}, 4, v{vb}")
            e(f"s_add_u32 m0, s{sT1}, {L_WO+ii*1024}"); e("s_nop 0")
            e(f"buffer_load_dwordx4 v{vb}, {sr(sWO)}, s{sT0} offen {POL} lds")
    g.ts("kiss")
    NWO = 4
    if not o['wo_late']: wo_dma(60, 61)
    for v in range(8):
        pat = (0x11 << (v & 3)) << (8*(v >> 2)); pat |= pat << 16
        e(f"s_mov_b32 s{sMASK+2*v}, 0x{pat:08x}"); e(f"s_mov_b32 s{sMASK+2*v+1}, 0x{pat:08x}")
    e(f"s_mov_b32 s{sSEL0}, 0x05040100"); e(f"s_mov_b32 s{sSEL1}, 0x07060302")
    e(f"s_mov_b32 s{sC}, 0x{f2u(math.log2(math.e)/16):08x}")
    e(f"s_mov_b32 s{sM8}, 0xff00ff00"); e(f"s_mov_b32 s{sM8+1}, 0xff00ff00")
    e(f"s_cmp_eq_u32 s{sW}, 0"); e("s_cbranch_scc1 " + ("L_qgather" if o['qw'] == 0 else "L_b2"))
    nyoung = 32 - o['pre'] + (0 if o['wo_late'] else NWO)
    e(f"s_waitcnt vmcnt({nyoung})")
    e(f"v_add_u32 v{vTAG}, 1, v{vTAG}")
    if o['qw']: e(f"s_cmp_eq_u32 s{sW}, {o['qw']}"); e("s_cbranch_scc1 L_qgather")
    e(f"s_cmp_lg_u32 s{sW}, 7"); e("s_cbranch_scc1 L_b2")
    e(f"v_cmp_gt_u32 vcc, 56, v{vL}"); e("v_mov_b32 v24, 0"); e("s_nop 0")
    for k in range(4): e(f"v_cndmask_b32 v{16+k}, 0, v{16+k}, vcc")
    for k in range(4):
        e(f"v_lshlrev_b32 v25, 16, v{16+k}"); e(f"v_and_b32 v26, 0xffff0000, v{16+k}")
        e(f"v_lshlrev_b32 v27, 16, v{20+k}"); e(f"v_and_b32 v28, 0xffff0000, v{20+k}")
        e("v_mul_f32 v25, v25, v27"); e("v_mul_f32 v26, v26, v28")
        e("v_cvt_pk_bf16_f32 v25, v25, v26")
        e("v_lshlrev_b32 v26, 16, v25"); e("v_and_b32 v25, 0xffff0000, v25")
        e("v_add_f32 v24, v24, v26"); e("v_add_f32 v24, v24, v25")
    for dpp in ("quad_perm:[1,0,3,2]", "quad_perm:[2,3,0,1]", "row_ror:4", "row_ror:8"):
        e("s_nop 1"); e(f"v_add_f32_dpp v24, v24, v24 {dpp} {DPP}")
    for sw in ("16", "32"):
        e("v_mov_b32 v25, v24"); e("s_nop 1"); e(f"v_permlane{sw}_swap_b32 v24, v25"); e("v_add_f32 v24, v24, v25")
    e("v_cvt_pk_bf16_f32 v24, v24, v24"); e("v_and_b32 v24, 0xffff0000, v24")
    e(f"v_mul_f32 v24, 0x{f2u(-math.log2(math.e)):08x}, v24"); e("v_exp_f32 v24, v24"); e("s_nop 0")
    e("v_add_f32 v24, 1.0, v24"); e("v_rcp_f32 v24, v24"); e("s_nop 0")
    e("v_cvt_pk_bf16_f32 v24, v24, v24"); e("v_and_b32 v24, 0xffff0000, v24")
    e("v_sub_f32 v25, 1.0, v24"); e("v_cvt_pk_bf16_f32 v25, v25, v25"); e("v_and_b32 v25, 0xffff0000, v25")
    e("v_readfirstlane_b32 s22, v24"); e("v_readfirstlane_b32 s23, v25")
    e("s_branch L_b2")
    g.lab("L_qgather")
    e(f"s_lshl_b32 s{sT0}, s{sG}, 3"); e(f"s_add_u32 s{sT0}, s{sT0}, s{sB}"); e(f"s_lshl_b32 s{sT0}, s{sT0}, 11")
    e(f"s_add_u32 s{sT3}, s{sT0}, {WS_Q}")
    def ql():
        e(f"buffer_load_dwordx4 v[52:55], v33, {sr(sWS)}, s{sT3} offen sc1")
        e(f"buffer_load_dwordx4 v[56:59], v33, {sr(sWS)}, s{sT3} offen offset:1024 sc1")
    poll("qg", ql, [53, 55, 57, 59], 60, 61, fs=True)
    e(f"v_lshlrev_b32 v60, 3, v{vL}")
    e(f"ds_write2_b32 v60, v52, v54 offset0:{L_QL//4} offset1:{L_QL//4+1}")
    e(f"ds_write2_b32 v60, v56, v58 offset0:{L_QL//4+128} offset1:{L_QL//4+129}")
    g.ts("qgot")
    g.lab("L_b2")
    e(f"v_bfe_u32 v{vC}, v{vL}, 2, 1"); e(f"v_lshlrev_b32 v{vA}, 9, v{vC}")
    e(f"v_lshl_add_u32 v{vA}, v{vB}, 6, v{vA}")
    e(f"v_and_b32 v60, 3, v{vL}"); e(f"v_lshl_add_u32 v{vA}, v60, 4, v{vA}")
    e(f"s_and_b32 s{sT0}, s{s16k}, 0x100"); e(f"v_add_u32 v{vA}, s{sT0}, v{vA}"); e(f"v_xor_b32 v60, 0x100, v{vA}")
    e("s_waitcnt lgkmcnt(0)")
    e("s_barrier")
    g.ts("B2")
    e(f"ds_read_b128 {vr(vQB)}, v{vA} offset:{L_QL}")
    e(f"ds_read_b128 {vr(vQB+4)}, v60 offset:{L_QL}")
    def postn(us):
        for step in range(4):
            for u in us:
                d = vD + 16*((u//4) % 2) + 4*(u % 4); s_ = vS + u
                if step == 0: e(f"v_mov_b32_dpp v{s_}, v{d} quad_perm:[0,0,0,0] {DPP}")
                else: e(f"v_add_f32_dpp v{s_}, v{d+step}, v{s_} quad_perm:[{step},{step},{step},{step}] {DPP}")
    e("s_waitcnt lgkmcnt(0)")
    young = 0 if o['wo_late'] else NWO
    vissued = 0
    order = o['order']
    def vunit(u):
        nonlocal young, vissued
        for j in range(8): vload(u, j)
        young += 8; vissued += 1
    for bt in range(4):
        lastn = 8*bt + 7
        e(f"s_waitcnt vmcnt({31-lastn+young})")
        g.ts(f"K{bt}")
        for u in range(4*bt, 4*bt+4):
            d = vD + 16*(bt % 2) + 4*(u % 4)
            e(f"v_mfma_f32_16x16x32_bf16 {vr(d)}, {vr(vK+8*u)}, {vr(vQB)}, 0")
            e(f"v_mfma_f32_16x16x32_bf16 {vr(d)}, {vr(vK+8*u+4)}, {vr(vQB+4)}, {vr(d)}")
        if order == 0 or (order == 1 and bt == 0): vunit(bt)
        if bt >= 1: postn(list(range(4*(bt-1), 4*bt)))
    g.nop(8)
    postn(list(range(12, 16)))
    if order == 2:
        for u in range(4): vunit(u)
    g.ts("QK")
    if o['round_s']:
        for u in range(0, 16, 2):
            e(f"v_cvt_pk_bf16_f32 v{vD+u}, v{vS+u}, v{vS+u+1}")
        for u in range(0, 16, 2):
            e(f"v_lshlrev_b32 v{vS+u}, 16, v{vD+u}"); e(f"v_and_b32 v{vS+u+1}, 0xffff0000, v{vD+u}")
    e(f"v_max3_f32 v{vA}, v{vS}, v{vS+1}, v{vS+2}")
    for u in range(3, 15, 2): e(f"v_max3_f32 v{vA}, v{vA}, v{vS+u}, v{vS+u+1}")
    e(f"v_max_f32 v{vA}, v{vA}, v{vS+15}")
    for sw in ("16", "32"):
        e(f"v_mov_b32 v{vB}, v{vA}"); e("s_nop 1"); e(f"v_permlane{sw}_swap_b32 v{vA}, v{vB}"); e(f"v_max_f32 v{vA}, v{vA}, v{vB}")
    e(f"v_mul_f32 v{vA}, s{sC}, v{vA}")
    e(f"v_lshlrev_b32 v{vC}, 5, v{vC}")
    e(f"s_lshl_b32 s{sT0}, s{sW}, 2"); e(f"v_add_u32 v{vB}, s{sT0}, v{vC}")
    e(f"ds_write_b32 v{vB}, v{vA} offset:{L_SM}")
    for u in range(16): e(f"v_fma_f32 v{vS+u}, v{vS+u}, s{sC}, -v{vA}")
    for u in range(16): e(f"v_exp_f32 v{vS+u}, v{vS+u}")
    e("s_nop 0")
    for t in range(8): e(f"v_cvt_pk_bf16_f32 v{vD+t}, v{vS+2*t}, v{vS+2*t+1}")
    for t in range(8): e(f"v_add_f32 v{vS+t}, v{vS+t}, v{vS+t+8}")
    for t in range(4): e(f"v_add_f32 v{vS+t}, v{vS+t}, v{vS+t+4}")
    e(f"v_add_f32 v{vS}, v{vS}, v{vS+2}"); e(f"v_add_f32 v{vS+1}, v{vS+1}, v{vS+3}"); e(f"v_add_f32 v{vS}, v{vS}, v{vS+1}")
    for sw in ("16", "32"):
        e(f"v_mov_b32 v{vS+1}, v{vS}"); e("s_nop 1"); e(f"v_permlane{sw}_swap_b32 v{vS}, v{vS+1}"); e(f"v_add_f32 v{vS}, v{vS}, v{vS+1}")
    e(f"ds_write_b32 v{vB}, v{vS} offset:{L_SL}")
    for blk in range(2):
        for v in range(8):
            for t in range(4):
                e(f"v_cndmask_b32 v{vPV+32*blk+4*v+t}, 0, v{vD+4*blk+t}, s[{sMASK+2*v}:{sMASK+2*v+1}]")
    while vissued < 4: vunit(vissued)
    late = 0
    if o['wo_late']:
        wo_dma(60, 61); late = NWO
    e(f"v_bfe_u32 v52, v{vL}, 4, 1"); e(f"v_lshlrev_b32 v52, 10, v52")
    e(f"v_and_b32 v53, 15, v{vL}"); e(f"v_lshl_add_u32 v52, v53, 5, v52")
    e(f"v_lshrrev_b32 v53, 5, v{vL}"); e(f"v_lshl_add_u32 v52, v53, 4, v52")
    e(f"s_and_b32 s{sT1}, s{s16k}, 0x100"); e(f"s_lshl_b32 s{sT1}, s{sT1}, 1"); e(f"v_add_u32 v52, s{sT1}, v52"); e("v_xor_b32 v53, 0x200, v52")
    e(f"s_lshl_b32 s{sT0}, s{sW}, 11"); e(f"s_add_u32 s{sT0}, s{sT0}, {L_OR}"); e(f"v_add_u32 v52, s{sT0}, v52"); e(f"v_add_u32 v53, s{sT0}, v53")
    g.ts("P")
    vT = 40
    for unit in range(4):
        blk, hf = unit//2, unit % 2
        base = vK + 32*unit
        e(f"s_waitcnt vmcnt({8*(3-unit)+late})")
        g.ts(f"V{unit}")
        acc = vACC + 4*hf
        def perms(d):
            for t in range(4):
                e(f"v_perm_b32 v{vT+4*(d%3)+t}, v{base+4*(2*t+1)+d//2}, v{base+4*(2*t)+d//2}, s{sSEL1 if d&1 else sSEL0}")
        perms(0)
        for d in range(8):
            if d < 7: perms(d+1)
            else: g.nop(2)
            cin = "0" if (blk == 0 and d == 0) else vr(acc)
            e(f"v_mfma_f32_16x16x32_bf16 {vr(acc)}, {vr(vPV+32*blk+4*d)}, {vr(vT+4*(d%3))}, {cin}")
        if unit == 3:
            e(f"ds_write_b128 v52, {vr(vACC)}")
            g.nop(7)
            e(f"ds_write_b128 v53, {vr(vACC+4)}")
    e("s_waitcnt lgkmcnt(0)")
    e("s_barrier")
    g.ts("B4")
    e(f"v_lshrrev_b32 v53, 4, v{vL}")
    e(f"s_lshr_b32 s{sT2}, s{sMEM}, 2")
    e(f"s_cmp_lt_u32 s{sW}, 4"); e("s_cbranch_scc1 L_gath")
    e(f"s_cmp_eq_u32 s{sW}, 4"); e("s_cbranch_scc1 L_stat")
    e(f"s_cmp_eq_u32 s{sW}, 7"); e("s_cbranch_scc1 L_b5")
    e(f"s_sub_u32 s{sT0}, s{sW}, 5"); e(f"s_lshl_b32 s{sT1}, s{sT0}, 10")
    e(f"s_add_u32 s{sT1}, s{sT1}, {L_OR}"); e(f"v_lshlrev_b32 v54, 4, v{vL}"); e(f"v_add_u32 v52, s{sT1}, v54")
    e(f"s_lshl_b32 s{sT1}, s{sT0}, 5"); e(f"v_mov_b32 v55, s{sT1}")
    e(f"ds_read_b128 {vr(104)}, v55 offset:{L_SM}"); e(f"ds_read_b128 {vr(108)}, v55 offset:{L_SM+16}")
    e(f"ds_read_b128 {vr(96)}, v55 offset:{L_SL}"); e(f"ds_read_b128 {vr(100)}, v55 offset:{L_SL+16}")
    for w in range(8): e(f"ds_read_b128 {vr(64+4*w)}, v52 offset:{w*2048}")
    e(f"s_and_b32 s{sT1}, s{sMEM}, 1"); e(f"s_lshl_b32 s{sT1}, s{sT1}, 3"); e(f"s_add_u32 s{sT1}, s{sT1}, s{sB}")
    e(f"s_lshl_b32 s{sT2}, s{sG}, 1"); e(f"s_add_u32 s{sT2}, s{sT2}, s{sT0}")
    e(f"s_lshl_b32 s{sT3}, s{sT2}, 14"); e(f"s_lshl_b32 s{sT0}, s{sT1}, 9"); e(f"s_add_u32 s{sT3}, s{sT3}, s{sT0}"); e(f"s_add_u32 s{sT3}, s{sT3}, {WS_O}")
    e(f"s_lshl_b32 s{sT2}, s{sT2}, 8"); e(f"s_lshl_b32 s{sT1}, s{sT1}, 4"); e(f"s_add_u32 s{sT2}, s{sT2}, s{sT1}"); e(f"s_add_u32 s{sT2}, s{sT2}, {WS_S}")
    e(f"v_lshrrev_b32 v56, 5, v{vL}"); e("v_lshlrev_b32 v56, 13, v56"); e(f"v_and_b32 v57, 31, v{vL}"); e("v_lshl_add_u32 v56, v57, 4, v56")
    e(f"s_waitcnt lgkmcnt({0 if o['ts'] else 10})")
    e("v_max3_f32 v112, v104, v105, v106"); e("v_max3_f32 v112, v112, v107, v108"); e("v_max3_f32 v112, v112, v109, v110"); e("v_max_f32 v112, v112, v111")
    for w in range(8): e(f"v_sub_f32 v{104+w}, v{104+w}, v112")
    for w in range(8): e(f"v_exp_f32 v{104+w}, v{104+w}")
    e(f"s_waitcnt lgkmcnt({0 if o['ts'] else 8})")
    e("v_mul_f32 v114, v96, v104")
    for w in range(1, 8): e(f"v_fmac_f32 v114, v{96+w}, v{104+w}")
    e("v_rcp_f32 v116, v114")
    e(f"v_mov_b32 v113, v{vTAG}"); e(f"v_mov_b32 v115, v{vTAG}"); e("v_mov_b32 v117, 0")
    e("s_mov_b64 exec, 1")
    if o['fast']:
        e(f"s_add_u32 s{sT0}, s{sT2}, {WS_F}"); e(f"s_add_u32 s{sT1}, s{sT3}, {WS_F}")
        e(f"buffer_store_dwordx4 v[112:115], v117, {sr(sWS)}, s{sT0} offen")
    else:
        e(f"buffer_store_dwordx4 v[112:115], v117, {sr(sWS)}, s{sT2} offen sc1")
    e("s_mov_b64 exec, -1")
    e("s_waitcnt lgkmcnt(0)")
    for k in range(4): e(f"v_mul_f32 v{64+k}, v{64+k}, v104")
    for w in range(1, 8):
        for k in range(4): e(f"v_fmac_f32 v{64+k}, v{64+4*w+k}, v{104+w}")
    for k in range(4): e(f"v_mul_f32 v{64+k}, v{64+k}, v116")
    e(f"v_mov_b32 v69, v{vTAG}"); e(f"v_mov_b32 v71, v{vTAG}")
    e("v_cvt_pk_bf16_f32 v68, v64, v65"); e("v_cvt_pk_bf16_f32 v70, v66, v67")
    if o['fast']:
        e(f"buffer_store_dwordx4 v[68:71], v56, {sr(sWS)}, s{sT1} offen")
    g.ts("opub")
    e(f"buffer_store_dwordx4 v[68:71], v56, {sr(sWS)}, s{sT3} offen sc1")
    if o['fast']:
        e("s_mov_b64 exec, 1")
        e(f"buffer_store_dwordx4 v[112:115], v117, {sr(sWS)}, s{sT2} offen sc1")
        e("s_mov_b64 exec, -1")
    if o['ts']:
        e("s_waitcnt vmcnt(0)"); g.ts("oack")
    e("s_branch L_wofrag")
    g.lab("L_stat")
    e(f"s_lshr_b32 s{sT2}, s{sT2}, 1"); e(f"s_lshl_b32 s{sT3}, s{sG}, 1"); e(f"s_add_u32 s{sT3}, s{sT3}, s{sT2}")
    e(f"s_lshl_b32 s{sT3}, s{sT3}, 8"); e(f"s_add_u32 s{sT3}, s{sT3}, {WS_S}")
    e(f"v_and_b32 v54, 15, v{vL}"); e("v_lshlrev_b32 v55, 4, v54")
    e("s_mov_b64 exec, 0xffff")
    def sl(): e(f"buffer_load_dwordx4 {vr(160)}, v55, {sr(sWS)}, s{sT3} offen sc1")
    poll("sg", sl, [161, 163], 58, 59, o['sleep1'], fs=True)
    g.ts("SG")
    if o['ts']: e(f"s_sub_u32 s46, {o['spin']}, s{sSPIN}")
    e(f"v_mov_b32_dpp v100, v160 row_ror:8 {DPP}")
    e(f"v_mov_b32_dpp v101, v162 row_ror:8 {DPP}")
    e("v_max_f32 v102, v160, v100")
    e("v_sub_f32 v103, v160, v102"); e("v_sub_f32 v100, v100, v102")
    e("v_exp_f32 v103, v103"); e("v_exp_f32 v100, v100"); e("s_nop 0")
    e("v_mul_f32 v103, v103, v162"); e("v_fma_f32 v100, v100, v101, v103")
    e("v_rcp_f32 v100, v100"); e("v_lshlrev_b32 v54, 2, v54"); e("v_mul_f32 v103, v103, v100")
    e("s_mov_b64 exec, 0xffff")
    e(f"ds_write_b32 v54, v103 offset:{L_W}")
    e("s_mov_b64 exec, -1")
    e("s_branch L_wofrag")
    g.lab("L_gath")
    e(f"v_and_b32 v52, 15, v{vL}"); e("v_lshlrev_b32 v52, 9, v52"); e("v_lshl_add_u32 v52, v53, 5, v52")
    e(f"s_lshl_b32 s{sT3}, s{sG}, 2"); e(f"s_add_u32 s{sT3}, s{sT3}, s{sT2}"); e(f"s_lshl_b32 s{sT3}, s{sT3}, 13")
    e(f"s_lshl_b32 s{sT2}, s{sW}, 7"); e(f"s_add_u32 s{sT3}, s{sT3}, s{sT2}"); e(f"s_add_u32 s{sT3}, s{sT3}, {WS_O}")
    e(f"s_lshl_b32 s{sT2}, s{sW}, 10"); e(f"v_lshlrev_b32 v54, 4, v{vL}"); e(f"v_add_u32 v54, s{sT2}, v54")
    def gl():
        e(f"buffer_load_dwordx4 {vr(128)}, v52, {sr(sWS)}, s{sT3} offen sc1")
        e(f"buffer_load_dwordx4 {vr(132)}, v52, {sr(sWS)}, s{sT3} offen offset:16 sc1")
    g.ts("g1s")
    poll("g1", gl, [129, 131, 133, 135], 58, 59, o['sleep1'], fs=True)
    if o['ts']: e(f"s_sub_u32 s46, {o['spin']}, s{sSPIN}")
    e("v_mov_b32 v129, v130"); e("v_mov_b32 v130, v132"); e("v_mov_b32 v131, v134")
    e(f"ds_write_b128 v54, {vr(128)} offset:{L_B3}")
    if o['hint']:
        e(f"s_or_b32 s{sT0}, s{sW}, s{sMEM}"); e("s_cbranch_scc1 L_nohint")
        e(f"s_lshl_b32 s{sT0}, s{sG}, 2"); e(f"s_add_u32 s{sT0}, s{sT0}, {WS_H}"); e(f"v_lshlrev_b32 v54, 8, v{vL}")
        e("s_mov_b64 exec, 0xffff")
        e(f"buffer_store_dword v{vTAG}, v54, {sr(sWS)}, s{sT0} offen sc1")
        e("s_mov_b64 exec, -1")
        g.lab("L_nohint")
    g.ts("G1")
    g.lab("L_wofrag")
    if o['wo_late']:
        pass
    g.lab("L_b5")
    e(f"v_bfe_u32 v55, v{vL}, 2, 2"); e("v_lshl_add_u32 v55, v53, 3, v55"); e("v_mul_u32_u24 v55, 224, v55")
    e(f"v_and_b32 v56, 3, v{vL}"); e("v_lshl_add_u32 v55, v56, 3, v55")
    e(f"s_lshl_b32 s{sT1}, s{sW}, 5"); e(f"s_add_u32 s{sT1}, s{sT1}, {L_WO}"); e(f"v_add_u32 v55, s{sT1}, v55")
    def wofr():
        for k in range(4):
            e(f"ds_read_b64_tr_b16 {vr(80+4*k,2)}, v55 offset:{k*32*224}")
            e(f"ds_read_b64_tr_b16 {vr(82+4*k,2)}, v55 offset:{k*32*224+4*224}")
    if not o['wo_late']: wofr()
    e(f"s_and_b32 s{sT1}, s{sMEM}, 3"); e(f"s_mul_i32 s{sT1}, s{sT1}, 7"); e(f"s_add_u32 s{sT1}, s{sT1}, s{sW}")
    e(f"s_lshl_b32 s{sT1}, s{sT1}, 16"); e(f"s_lshl_b32 s{sT2}, s{sG}, 2"); e(f"s_lshr_b32 s{sT0}, s{sMEM}, 2"); e(f"s_add_u32 s{sT2}, s{sT2}, s{sT0}")
    e(f"s_lshl_b32 s{sT2}, s{sT2}, 7"); e(f"s_add_u32 s{sT2}, s{sT2}, s{sT1}"); e(f"s_add_u32 s{sT2}, s{sT2}, {WS_P}")
    e(f"v_and_b32 v57, 7, v{vL}"); e("v_lshlrev_b32 v57, 13, v57"); e("v_lshl_add_u32 v57, v53, 5, v57")
    e(f"v_bfe_u32 v56, v{vL}, 3, 1"); e("v_lshl_add_u32 v57, v56, 4, v57")
    e(f"v_lshlrev_b32 v58, 4, v{vL}"); e(f"v_and_b32 v59, 15, v{vL}"); e("v_lshlrev_b32 v59, 2, v59")
    e("s_waitcnt vmcnt(0) lgkmcnt(0)" if o['wo_late'] else "s_waitcnt lgkmcnt(0)")
    e("s_barrier")
    g.ts("B5")
    e(f"s_cmp_eq_u32 s{sW}, 7"); e("s_cbranch_scc1 L_red")
    for k in range(4): e(f"ds_read_b128 {vr(164+4*k)}, v58 offset:{L_B3+k*1024}")
    e(f"ds_read_b32 v103, v59 offset:{L_W}")
    if o['wo_late']: wofr()
    e(f"v_mov_b32 v109, v{vTAG}"); e(f"v_mov_b32 v111, v{vTAG}")
    e("s_waitcnt lgkmcnt(0)")
    for k in range(4):
        e(f"v_mfma_f32_16x16x32_bf16 {vr(96)}, {vr(80+4*k)}, {vr(164+4*k)}, {'0' if k==0 else vr(96)}")
    g.nop(8)
    for k in range(4): e(f"v_mul_f32 v{96+k}, v{96+k}, v103")
    for k in range(4): e(f"v_add_f32_dpp v{104+k}, v{96+k}, v{96+k} row_ror:8 {DPP}")
    e(f"v_cndmask_b32 v108, v104, v106, s[{sM8}:{sM8+1}]"); e(f"v_cndmask_b32 v110, v105, v107, s[{sM8}:{sM8+1}]")
    e(f"buffer_store_dwordx4 v[108:111], v57, {sr(sWS)}, s{sT2} offen sc1")
    g.ts("ppub")
    e("s_branch L_fin")
    g.lab("L_red")
    e("s_cmp_ge_u32 s2, 224"); e("s_cbranch_scc1 L_fin")
    e(f"s_lshl_b32 s{sT3}, s2, 13"); e(f"s_add_u32 s{sT3}, s{sT3}, {WS_P}"); e(f"s_add_u32 s{sT2}, s{sT3}, 4096")
    e(f"v_and_b32 v60, 7, v{vL}"); e("v_lshlrev_b32 v60, 2, v60")
    e(f"s_mul_i32 s21, s{sKVH}, 896"); e("s_lshr_b32 s20, s2, 3"); e("s_lshl_b32 s20, s20, 5"); e("s_add_u32 s21, s21, s20")
    def rl():
        for i in range(8):
            e(f"buffer_load_dwordx4 {vr(128+4*i)}, v58, {sr(sWS)}, s{sT3 if i<4 else sT2} offen offset:{(i%4)*1024} sc1")
    if o['hint']:
        e(f"s_lshl_b32 s20, s{sMEM}, 8"); e(f"s_add_u32 s20, s20, {WS_H}"); e(f"v_lshlrev_b32 v61, 2, v{vL}")
        e(f"s_mov_b32 s{sSPIN}, {o['spin']}")
        e("s_mov_b64 exec, 0xffff")
        g.lab("L_hint")
        e(f"buffer_load_dword v62, v61, {sr(sWS)}, s20 offen sc1")
        e("s_waitcnt vmcnt(0)")
        e(f"v_cmp_ne_u32 vcc, v62, v{vTAG}")
        e("s_cbranch_vccz L_hint_ok")
        if o['sleeph']: e(f"s_sleep {o['sleeph']}")
        e(f"s_sub_u32 s{sSPIN}, s{sSPIN}, 1"); e("s_cbranch_scc0 L_hint")
        g.lab("L_hint_ok")
        e("s_mov_b64 exec, -1")
        g.ts("H")
    if not o['g2m']:
        poll("g2", rl, [129+2*i for i in range(16)], 61, 62, o['sleep2'])
    else:
        for i in range(8): e(f"s_mov_b64 s[{sMASK+2*i}:{sMASK+2*i+1}], -1")
        e(f"s_mov_b32 s{sSPIN}, {o['spin']}")
        g.lab("L_g2")
        for i in range(8):
            e(f"s_mov_b64 exec, s[{sMASK+2*i}:{sMASK+2*i+1}]"); e(f"s_cbranch_execz L_g2s{i}")
            e(f"buffer_load_dwordx4 {vr(128+4*i)}, v58, {sr(sWS)}, s{sT3 if i<4 else sT2} offen offset:{(i%4)*1024} sc1")
            g.lab(f"L_g2s{i}")
        e("s_mov_b64 exec, -1")
        e("s_waitcnt vmcnt(0)")
        for i in range(8):
            e(f"v_cmp_ne_u32 vcc, v{129+4*i}, v{vTAG}"); e(f"v_cmp_ne_u32 s[{sMASK+2*i}:{sMASK+2*i+1}], v{131+4*i}, v{vTAG}")
            e(f"s_or_b64 s[{sMASK+2*i}:{sMASK+2*i+1}], s[{sMASK+2*i}:{sMASK+2*i+1}], vcc")
        for i in range(0, 8, 2): e(f"s_or_b64 s[{sT0}:{sT1}], s[{sMASK+2*i}:{sMASK+2*i+1}], s[{sMASK+2*i+2}:{sMASK+2*i+3}]" if i == 0 else f"s_or_b64 vcc, s[{sMASK+2*i}:{sMASK+2*i+1}], s[{sMASK+2*i+2}:{sMASK+2*i+3}]\n  s_or_b64 s[{sT0}:{sT1}], s[{sT0}:{sT1}], vcc")
        e("s_cbranch_scc0 L_g2_ok")
        if o['sleep2']: e(f"s_sleep {o['sleep2']}")
        e(f"s_sub_u32 s{sSPIN}, s{sSPIN}, 1"); e("s_cbranch_scc0 L_g2")
        g.lab("L_g2_ok")
    g.ts("G2")
    for base in (128, 144):
        e(f"v_add_f32 v{base}, v{base}, v{base+4}"); e(f"v_add_f32 v{base+2}, v{base+2}, v{base+6}")
        e(f"v_add_f32 v{base+8}, v{base+8}, v{base+12}"); e(f"v_add_f32 v{base+10}, v{base+10}, v{base+14}")
    R = [128, 130, 144, 146]
    for r in R: e(f"v_add_f32 v{r}, v{r}, v{r+8}")
    for r in R: e(f"v_add_f32_dpp v{r}, v{r}, v{r} row_ror:8 {DPP}")
    for sw in ("16", "32"):
        for r in R: e(f"v_mov_b32 v{r+1}, v{r}")
        for r in R: e(f"v_permlane{sw}_swap_b32 v{r}, v{r+1}")
        for r in R: e(f"v_add_f32 v{r}, v{r}, v{r+1}")
    for base, gs in ((128, 22), (144, 23)):
        e(f"v_cvt_pk_bf16_f32 v{base+1}, v{base}, v{base+2}")
        e(f"v_lshlrev_b32 v{base}, 16, v{base+1}"); e(f"v_and_b32 v{base+2}, 0xffff0000, v{base+1}")
        e(f"v_mul_f32 v{base}, s{gs}, v{base}"); e(f"v_mul_f32 v{base+2}, s{gs}, v{base+2}")
        e(f"v_cvt_pk_bf16_f32 v{base+1}, v{base}, v{base+2}")
        e(f"v_lshlrev_b32 v{base}, 16, v{base+1}"); e(f"v_and_b32 v{base+2}, 0xffff0000, v{base+1}")
    e("v_add_f32 v128, v128, v144"); e("v_add_f32 v130, v130, v146")
    e("v_cvt_pk_bf16_f32 v128, v128, v130")
    e("s_mov_b64 exec, 0xff")
    e(f"buffer_store_dword v128, v60, {sr(sOUT)}, s21 offen")
    e("s_cmp_lg_u32 s2, 0"); e("s_cbranch_scc1 L_fin")
    e("s_mov_b64 exec, 1")
    e(f"buffer_store_dword v{vTAG}, v60, {sr(sWS)}, 0 offen sc1")
    g.lab("L_fin")
    if o['ts']:
        e("s_mov_b64 exec, -1")
        g.ts("end")
        e("s_waitcnt lgkmcnt(0)")
        for k in range(16): e(f"v_mov_b32 v{128+k}, s{TSREG[k]}" if k < g.nts else f"v_mov_b32 v{128+k}, 0")
        e("s_mul_i32 s46, s46, 100"); e(f"s_add_u32 s46, s46, s{TSREG[0]}"); e("v_mov_b32 v143, s46")
        e(f"s_lshl_b32 s{sT0}, s2, 3"); e(f"s_add_u32 s{sT0}, s{sT0}, s{sW}"); e(f"s_lshl_b32 s{sT0}, s{sT0}, 6"); e(f"s_add_u32 s{sT0}, s{sT0}, {WS_TS}")
        e("v_mov_b32 v60, 0"); e("s_mov_b64 exec, 1")
        for k in range(4): e(f"buffer_store_dwordx4 {vr(128+4*k)}, v60, {sr(sWS)}, s{sT0} offen offset:{16*k}")
        print("TS:", ",".join(g.tsn))
        if o.get('dbg'):
            e(f"s_cmp_lg_u32 s{sW}, 7"); e("s_cbranch_scc1 L_end"); e("s_cmp_ge_u32 s2, 224"); e("s_cbranch_scc1 L_end")
            e("s_sleep 64")
            e("s_load_dwordx2 s[24:25], s[0:1], 96"); e("s_waitcnt lgkmcnt(0)")
            e("s_mov_b32 s26, 256"); e("s_mov_b32 s27, 0x20000")
            for k in range(min(g.nts, 8)):
                e(f"s_sub_u32 s{sT0}, s{TSREG[k]}, s{TSREG[0]}"); e(f"s_cmp_gt_u32 s{sT0}, 100000"); e(f"s_cbranch_scc1 L_dbg{k}")
                e(f"v_mov_b32 v128, s{TSREG[k]}"); e(f"v_sub_u32 v129, 0, v128")
                e(f"buffer_atomic_umax v128, v60, s[24:27], 0 offen offset:{8*k} sc1")
                e(f"buffer_atomic_umax v129, v60, s[24:27], 0 offen offset:{8*k+4} sc1")
                g.lab(f"L_dbg{k}")
    g.lab("L_end")
    e("s_endpgm")
    g.lab("L_codeend")
    g.L += ['.section .rodata,"a"', ".p2align 6", f".amdhsa_kernel {KN}",
            "  .amdhsa_next_free_vgpr 256", "  .amdhsa_next_free_sgpr 102", "  .amdhsa_accum_offset 256",
            "  .amdhsa_group_segment_fixed_size 0", "  .amdhsa_kernarg_size 112", "  .amdhsa_user_sgpr_count 2",
            "  .amdhsa_user_sgpr_kernarg_segment_ptr 1", "  .amdhsa_system_sgpr_workgroup_id_x 1",
            "  .amdhsa_float_denorm_mode_32 3", ".end_amdhsa_kernel"]
    return "\n".join(g.L) + "\n"

if __name__ == "__main__":
    from lint import lint
    from build import build
    out = sys.argv[1]; opts = eval("dict(" + (sys.argv[2] if len(sys.argv) > 2 else "") + ")")
    s = gen(**opts)
    open(out, "w").write(s)
    for p in lint(s): print("LINT:", p)
    build(out)
```

```python
import sys, math, struct
sys.path.insert(0, "gen"); sys.path.insert(0, "tools")
KN = "gated_mix__sliding_block_cached__sliding_block_cached__decode_kernel"
HEADER = open("gated_mix__sliding_block_cached__sliding_block_cached__decode.s.ref").read().split("; Override launch")[0]

WS_Q = 0x10000
WS_S = 0x60000
WS_H = 0x70000
WS_O = 0x80000
WS_F = 0x100000
WS_P = 0x200000
WS_TS = 0x400000
WS_SIZE = 0x800000
L_QL = 0
L_SM = 1024
L_SL = 1088
L_W = 1152
L_F = 1216
L_CNT = 1220
L_B3 = 4096
L_WQ = 8192
L_X = 36864
L_WO = 44032
L_OR = 76800
LDS_BYTES = 93184
TSREG = [84,86,88,90,92,94,96,98,100,8,10,12,14,16,18,20]

def f2u(x): return struct.unpack("<I", struct.pack("<f", x))[0]
def vr(a, n=4): return f"v[{a}:{a+n-1}]"
def sr(a, n=4): return f"s[{a}:{a+n-1}]"
DPP = "row_mask:0xf bank_mask:0xf"

class G:
    def __init__(s, **o):
        s.L = []; s.o = dict(round_s=1, ts=0, pol='nt', spin=1<<16, wo_late=0, codepf=1, order=0, sleep1=0, sleep2=0, b0=1, pre=0, g2m=1, epol='', hint=1, sleeph=0, pret=0, woy=0, hp=0, q0=0, qsl=2, ssl=3, psw=1, onl=1, uni=1, nob2=1, b0at=36, hthr=0, xm=0x100, xa=1, xb=0, fast=1, fthr=256, qw=1, diag=0, dsleep=0, dxor=0, drow=13, wqpol=None, xpol='')
        s.o.update(o); s.nts = 0; s.tsn = []
    def e(s, t): s.L.append("  " + t)
    def lab(s, t): s.L.append(t + ":")
    def nop(s, n):
        while n > 0:
            k = min(n, 16); s.e(f"s_nop {k-1}"); n -= k
    def ts(s, name):
        if not s.o['ts']: return
        if name in s.o.get('tsoff', ()): return
        if 'tson' in s.o and name not in s.o['tson']: return
        if 'tson' not in s.o and name[0] in 'KV' and name[1:].isdigit(): return
        k = s.nts; s.nts += 1
        r = TSREG[k]; s.tsn.append(name)
        s.e(f"s_memrealtime s[{r}:{r+1}]")

def gen(**opts):
    g = G(**opts); e = g.e; o = g.o; POL = o['pol']
    sK, sV, sWQ, sWO, sX, sGW, sWS, sOUT = 24, 28, 32, 36, 40, 44, 48, 52
    sW = 56; s16k = 57; sT0, sT1, sT2, sT3 = 58, 59, 60, 61
    sKVH, sBR, sMEM, sB, sG = 3, 4, 5, 6, 7
    sMASK = 64; sM8 = 80; sSEL0, sSEL1 = 82, 83; sSPIN = 62; sC = 63
    vL = 1; vKO = 2; vVO = 3; vTAG = 4; vA = 5; vB = 6; vC = 7
    vQB = 8; vS = 16; vD = 32; vPV = 64; vK = 128; vACC = 8
    vGT = 120

    def tagcheck(tags, a, b_):
        if len(tags) == 2:
            e(f"v_cmp_ne_u32 vcc, v{tags[0]}, v{vTAG}"); e(f"v_cmp_ne_u32 s[{sT0}:{sT1}], v{tags[1]}, v{vTAG}")
        else:
            e(f"v_min3_u32 v{a}, v{tags[0]}, v{tags[1]}, v{tags[2]}"); e(f"v_max3_u32 v{b_}, v{tags[0]}, v{tags[1]}, v{tags[2]}")
            i = 3
            while i+1 < len(tags):
                e(f"v_min3_u32 v{a}, v{a}, v{tags[i]}, v{tags[i+1]}"); e(f"v_max3_u32 v{b_}, v{b_}, v{tags[i]}, v{tags[i+1]}"); i += 2
            if i < len(tags):
                e(f"v_min_u32 v{a}, v{a}, v{tags[i]}"); e(f"v_max_u32 v{b_}, v{b_}, v{tags[i]}")
            e(f"v_cmp_ne_u32 vcc, v{a}, v{vTAG}"); e(f"v_cmp_ne_u32 s[{sT0}:{sT1}], v{b_}, v{vTAG}")
        e(f"s_or_b64 vcc, vcc, s[{sT0}:{sT1}]")
    def poll(name, loads, tags, a, b_, sleep=0, fs=False):
        fs = fs and o['fast']
        e(f"s_mov_b32 s{sSPIN}, {o['spin']}")
        if fs: e(f"s_add_u32 s{sT3}, s{sT3}, {WS_F}")
        g.lab(f"L_{name}")
        loads()
        e("s_waitcnt vmcnt(0)")
        tagcheck(tags, a, b_)
        e(f"s_cbranch_scc0 L_{name}_ok")
        e("s_mov_b64 exec, vcc")
        if sleep: e(f"s_sleep {sleep}")
        if fs:
            e(f"s_cmp_eq_u32 s{sSPIN}, {o['spin']-o['fthr']}"); e(f"s_cselect_b32 s{sT0}, {WS_F}, 0"); e(f"s_sub_u32 s{sT3}, s{sT3}, s{sT0}")
        e(f"s_sub_u32 s{sSPIN}, s{sSPIN}, 1"); e(f"s_cbranch_scc0 L_{name}")
        g.lab(f"L_{name}_ok")
        e("s_mov_b64 exec, -1")

    g.L.append(HEADER.rstrip("\n"))
    g.L.append(f"; @launch grid=(256,1,1) block=(512,1,1) lds={LDS_BYTES}")
    g.L.append('.amdgcn_target "amdgcn-amd-amdhsa--gfx950"')
    g.L.append(".text"); g.L.append(f".globl {KN}"); g.L.append(".p2align 8"); g.L.append(f".type {KN},@function"); g.lab(KN)
    e("s_cmp_ge_u32 s2, 256"); e("s_cbranch_scc1 L_end")
    g.ts("start")
    if o.get('hold'): e("s_memrealtime s[84:85]")
    e(f"s_lshr_b32 s{sBR}, s2, 7")
    e(f"s_mul_i32 s{sT0}, s{sBR}, 40")
    e(f"s_add_u32 s{sT2}, s0, s{sT0}"); e(f"s_addc_u32 s{sT3}, s1, 0")
    e(f"s_load_dwordx8 s[8:15], s[{sT2}:{sT3}], 8")
    e("s_load_dwordx2 s[16:17], s[0:1], 0")
    e("s_load_dwordx2 s[18:19], s[0:1], 104")
    e("s_load_dwordx4 s[20:23], s[0:1], 80")
    e(f"v_lshrrev_b32 v{vA}, 6, v0")
    e(f"v_and_b32 v{vL}, 63, v0")
    e(f"v_readfirstlane_b32 s{sW}, v{vA}")
    e(f"s_getpc_b64 s[{sM8}:{sM8+1}]")
    g.lab("L_pc")
    if o['codepf']:
        e(f"v_lshlrev_b32 v35, 7, v0"); e("v_subrev_u32 v35, 8192, v35")
        e(f"s_mov_b32 s{sT0}, L_codeend-L_pc-4")
        e(f"v_cmp_gt_u32 vcc, s{sT0}, v35")
        e(f"s_and_saveexec_b64 s[{sT2}:{sT3}], vcc")
        e("s_cbranch_execz L_nopf")
        e(f"global_load_dword v36, v35, s[{sM8}:{sM8+1}]")
        g.lab("L_nopf")
        e("s_mov_b64 exec, -1")
    e(f"s_and_b32 s{sKVH}, s2, 7")
    e(f"s_bfe_u32 s{sMEM}, s2, 0x40003")
    e(f"s_lshr_b32 s{sB}, s{sMEM}, 1")
    e(f"s_lshl_b32 s{sG}, s{sBR}, 3"); e(f"s_add_u32 s{sG}, s{sG}, s{sKVH}")
    e(f"s_mul_i32 s{sT0}, s{sW}, {o['xa']}"); e(f"s_lshr_b32 s{sT1}, s2, {o.get('xs',3)}"); e(f"s_mul_i32 s{sT1}, s{sT1}, {o['xb']}"); e(f"s_add_u32 s{sT0}, s{sT0}, s{sT1}")
    e(f"s_lshl_b32 s{sT1}, s{sT0}, 8"); e(f"s_and_b32 s{sT1}, s{sT1}, 0xf00"); e(f"s_lshl_b32 s{sT0}, s{sT0}, 10"); e(f"s_and_b32 s{sT0}, s{sT0}, 0x4000")
    e(f"s_or_b32 s{sT0}, s{sT0}, s{sT1}"); e(f"s_and_b32 s{s16k}, s{sT0}, {o['xm']}")
    e(f"s_lshl_b32 s{sT0}, s{sB}, 24"); e(f"s_lshl_b32 s{sT1}, s{sKVH}, 21"); e(f"s_add_u32 s{sT0}, s{sT0}, s{sT1}")
    e(f"s_and_b32 s{sT1}, s{sMEM}, 1"); e(f"s_lshl_b32 s{sT1}, s{sT1}, 18"); e(f"s_add_u32 s{sT0}, s{sT0}, s{sT1}")
    if o.get('wxr'):
        e(f"s_lshr_b32 s{sT1}, s2, {o['wxr'][0]}"); e(f"s_mul_i32 s{sT1}, s{sT1}, {o['wxr'][1]}"); e(f"s_xor_b32 s{sT1}, s{sT1}, s{sW}"); e(f"s_and_b32 s{sT1}, s{sT1}, 7"); e(f"s_lshl_b32 s{sT1}, s{sT1}, 15")
    else:
        e(f"s_lshl_b32 s{sT1}, s{sW}, 15")
    e(f"s_add_u32 s{sT0}, s{sT0}, s{sT1}")
    e(f"s_add_u32 s{sT0}, s{sT0}, {3072*512}")
    e(f"v_bfe_u32 v{vA}, v{vL}, 2, 2"); e(f"v_lshlrev_b32 v{vA}, 12, v{vA}")
    e(f"v_lshrrev_b32 v{vB}, 4, v{vL}")
    e(f"v_lshl_add_u32 v{vKO}, v{vB}, 6, v{vA}")
    e(f"v_and_b32 v{vA}, 3, v{vL}"); e(f"v_lshl_add_u32 v{vKO}, v{vA}, 4, v{vKO}")
    e(f"v_add_u32 v{vKO}, s{sT0}, v{vKO}")
    e(f"v_and_b32 v{vC}, 15, v{vL}"); e(f"v_lshlrev_b32 v{vC}, 4, v{vC}")
    e(f"v_lshl_add_u32 v{vVO}, v{vB}, 12, v{vC}")
    e(f"v_add_u32 v{vVO}, s{sT0}, v{vVO}")
    e(f"v_lshlrev_b32 v33, 4, v{vL}")
    e(f"v_mov_b32 v34, 0")
    def srd(d, p, n):
        e(f"s_mov_b32 s{d}, s{p}"); e(f"s_mov_b32 s{d+1}, s{p+1}"); e(f"s_mov_b32 s{d+2}, {n}"); e(f"s_mov_b32 s{d+3}, 0x20000")
    def kload(n):
        u, hf = n//2, n % 2
        if o.get('kd') and n >= o['kd']: e(f"s_waitcnt vmcnt({o['kd']-1})")
        e(f"s_xor_b32 s47, s{s16k}, {(u&7)*512+hf*256+(u>>3)*16384}")
        e(f"buffer_load_dwordx4 {vr(vK+4*n)}, v{vKO}, {sr(sK)}, s47 offen {POL}")
    def vload(unit, j):
        blk, hf = unit//2, unit % 2
        if o.get('vd'): e(f"s_waitcnt vmcnt({o['vd']-1})")
        e(f"s_xor_b32 s47, s{s16k}, {j*512+hf*256+blk*16384}")
        e(f"buffer_load_dwordx4 {vr(vK+32*unit+4*j)}, v{vVO}, {sr(sV)}, s47 offen {POL}")
    e(f"s_mov_b32 s{sK+2}, 0x8000000"); e(f"s_mov_b32 s{sK+3}, 0x20000")
    e(f"s_mov_b32 s{sWS+2}, {WS_SIZE}"); e(f"s_mov_b32 s{sWS+3}, 0x20000")
    e(f"s_mov_b32 s{sX+2}, 7168"); e(f"s_mov_b32 s{sX+3}, 0x20000")
    e(f"s_cmp_eq_u32 s{sW}, 0")
    e("s_waitcnt lgkmcnt(0)")
    e(f"s_mov_b32 s{sK}, s8"); e(f"s_mov_b32 s{sK+1}, s9")
    e(f"s_mov_b32 s{sWS}, s18"); e(f"s_mov_b32 s{sWS+1}, s19")
    e(f"s_mov_b32 s{sX}, s16"); e(f"s_mov_b32 s{sX+1}, s17")
    e("s_cbranch_scc0 L_notw0")
    srd(sWQ, 12, 3670016)
    e(f"v_lshrrev_b32 v32, 2, v{vL}"); e(f"v_lshlrev_b32 v32, 13, v32"); e(f"v_lshl_add_u32 v32, v{vA}, 4, v32")
    e(f"s_lshl_b32 s{sT0}, s{sKVH}, 10"); e(f"s_lshl_b32 s{sT1}, s{sMEM}, 6"); e(f"s_add_u32 s{sT0}, s{sT0}, s{sT1}")
    e(f"v_add_u32 v32, s{sT0}, v32")
    if o['dsleep']:
        e(f"s_sleep {o['dsleep']}"); g.ts("slept")
    if o['dxor']: e(f"v_xor_b32 v32, {o['dxor']}, v32")
    if o.get('wqfull'):
        e(f"v_lshrrev_b32 v32, 3, v{vL}"); e(f"v_lshlrev_b32 v32, 13, v32"); e(f"v_and_b32 v44, 7, v{vL}"); e("v_lshl_add_u32 v32, v44, 4, v32")
        e(f"s_lshl_b32 s{sT0}, s{sKVH}, 10"); e(f"s_lshr_b32 s{sT1}, s{sMEM}, 1"); e(f"s_lshl_b32 s{sT1}, s{sT1}, 7"); e(f"s_add_u32 s{sT0}, s{sT0}, s{sT1}")
        e(f"s_and_b32 s{sT1}, s{sMEM}, 1"); e(f"s_mul_i32 s{sT1}, s{sT1}, {224*8192}"); e(f"s_add_u32 s{sT0}, s{sT0}, s{sT1}"); e(f"v_add_u32 v32, s{sT0}, v32")
    if o['nob2']:
        e(f"ds_write_b32 v34, v34 offset:{L_F}"); e(f"ds_write_b32 v34, v34 offset:{L_CNT}"); e("s_waitcnt lgkmcnt(0)")
    ndma = [0]
    def b0chk():
        if o['b0'] and ndma[0] == o['b0at']: e("s_barrier")
        ndma[0] += 1
    for ii in range(o.get('dn', 28)):
        b0chk()
        if o.get('wqrot'):
            if ii == 0:
                ra, rb = o['wqrot']
                e(f"s_lshr_b32 s44, s{sMEM}, 1"); e(f"s_mul_i32 s44, s44, {ra}"); e(f"s_mul_i32 s45, s{sG}, {rb}"); e("s_add_u32 s44, s44, s45")
                e("s_mul_hi_u32 s45, s44, 0x9249250"); e("s_mul_i32 s45, s45, 28"); e("s_sub_u32 s44, s44, s45")
            e(f"s_lshl_b32 s{sT2}, s44, 10"); e(f"s_add_u32 m0, s{sT2}, {L_WQ}"); e(f"s_lshl_b32 s{sT2}, s44, 17")
            e("s_add_u32 s44, s44, 1"); e("s_cmp_eq_u32 s44, 28"); e("s_cselect_b32 s44, 0, s44")
        else:
            e(f"s_mov_b32 m0, {L_WQ+ii*1024}")
            e(f"s_mov_b32 s{sT2}, {ii*(65536 if o.get('wqfull') else 131072)}")
        if o.get('dgap'): e(f"s_sleep {o['dgap']}")
        e(f"buffer_load_dwordx4 v32, {sr(sWQ)}, s{sT2} offen {POL if o['wqpol'] is None else o['wqpol']} lds")
    for ii in range(7):
        b0chk()
        e(f"s_mov_b32 m0, {L_X+ii*1024}")
        e(f"s_mov_b32 s{sT2}, {ii*1024}")
        if o['diag'] != 3: e(f"buffer_load_dwordx4 v33, {sr(sX)}, s{sT2} offen {o['xpol']} lds")
    e(f"buffer_load_dword v{vTAG}, v34, {sr(sWS)}, 0 offen {o['epol']}")
    if o['b0'] and o['b0at'] >= 35: e("s_barrier")
    e(f"v_bfe_u32 v41, v{vL}, 2, 2")
    e(f"v_lshl_add_u32 v41, v{vB}, 3, v41"); e(f"v_lshlrev_b32 v41, 6, v41")
    e(f"v_lshl_add_u32 v41, v{vA}, 3, v41")
    e(f"v_and_b32 v43, 7, v{vL}"); e(f"v_mul_u32_u24 v42, 896, v43"); e(f"v_lshl_add_u32 v42, v{vB}, 4, v42")
    e(f"v_add_u32 v42, {L_X}, v42")
    e(f"s_lshl_b32 s{sT0}, s{sG}, 14"); e(f"s_lshl_b32 s{sT1}, s{sMEM}, 7"); e(f"s_add_u32 s{sT0}, s{sT0}, s{sT1}")
    e(f"s_add_u32 s{sT0}, s{sT0}, {WS_Q}")
    e(f"v_lshlrev_b32 v43, 11, v43"); e(f"v_lshl_add_u32 v43, v{vB}, 4, v43")
    e("s_waitcnt vmcnt(0)")
    g.ts("wq")
    if o['diag']: e("s_branch L_fin")
    e(f"v_add_u32 v{vTAG}, 1, v{vTAG}")
    steps = list(range(14)); first = True
    for ci in range(0, 14, 3):
        ch = steps[ci:ci+3]
        for k, s_ in enumerate(ch):
            a = 64 + 12*k
            for t in range(2):
                e(f"ds_read_b64_tr_b16 {vr(a+4*t,2)}, v41 offset:{L_WQ+s_*2048+t*32}")
                e(f"ds_read_b64_tr_b16 {vr(a+4*t+2,2)}, v41 offset:{L_WQ+s_*2048+256+t*32}")
            e(f"ds_read_b128 {vr(a+8)}, v42 offset:{s_*64}")
        e("s_waitcnt lgkmcnt(0)")
        for k, s_ in enumerate(ch):
            a = 64 + 12*k
            for t in range(2):
                e(f"v_mfma_f32_16x16x32_bf16 {vr(44+4*t)}, {vr(a+4*t)}, {vr(a+8)}, {'0' if first else vr(44+4*t)}")
            first = False
    for r in (53, 55, 57, 59): e(f"v_mov_b32 v{r}, v{vTAG}")
    g.nop(4)
    e(f"v_cvt_pk_bf16_f32 v52, v44, v45"); e(f"v_cvt_pk_bf16_f32 v54, v46, v47")
    e(f"v_cvt_pk_bf16_f32 v56, v48, v49"); e(f"v_cvt_pk_bf16_f32 v58, v50, v51")
    e("s_mov_b32 exec_lo, 0x00ff00ff"); e("s_mov_b32 exec_hi, 0x00ff00ff")
    if o['fast']:
        e(f"s_add_u32 s{sT1}, s{sT0}, {WS_F}")
        e(f"buffer_store_dwordx4 v[52:55], v43, {sr(sWS)}, s{sT1} offen")
        e(f"buffer_store_dwordx4 v[56:59], v43, {sr(sWS)}, s{sT1} offen offset:64")
    e(f"buffer_store_dwordx4 v[52:55], v43, {sr(sWS)}, s{sT0} offen sc1")
    e(f"buffer_store_dwordx4 v[56:59], v43, {sr(sWS)}, s{sT0} offen offset:64 sc1")
    e("s_mov_b64 exec, -1")
    g.ts("qpub")
    def qgather():
        e(f"s_lshl_b32 s{sT0}, s{sG}, 3"); e(f"s_add_u32 s{sT0}, s{sT0}, s{sB}"); e(f"s_lshl_b32 s{sT0}, s{sT0}, 11")
        e(f"s_add_u32 s{sT3}, s{sT0}, {WS_Q}")
        def ql():
            e(f"buffer_load_dwordx4 v[52:55], v33, {sr(sWS)}, s{sT3} offen sc1")
            e(f"buffer_load_dwordx4 v[56:59], v33, {sr(sWS)}, s{sT3} offen offset:1024 sc1")
        if not o.get('noqw'): poll("qg", ql, [53, 55, 57, 59], 60, 61, fs=True)
        e(f"v_lshlrev_b32 v60, 3, v{vL}")
        e(f"ds_write2_b32 v60, v52, v54 offset0:{L_QL//4} offset1:{L_QL//4+1}")
        e(f"ds_write2_b32 v60, v56, v58 offset0:{L_QL//4+128} offset1:{L_QL//4+129}")
        e("v_mov_b32 v61, 1"); e("v_mov_b32 v62, 0"); e(f"ds_write_b32 v62, v61 offset:{L_F}")
        g.ts("qgot")
    if o['q0']: qgather()
    e("s_branch L_kissue")
    g.lab("L_notw0")
    e(f"buffer_load_dword v{vTAG}, v34, {sr(sWS)}, 0 offen {o['epol']}")
    for n in range(o['pre']): kload(n)
    if o['b0']: e("s_barrier")
    if o['diag'] in (1, 3): e("s_branch L_fin")
    if o['diag'] == 2:
        for n in range(32): kload(n)
        e("s_waitcnt vmcnt(0)"); e("s_branch L_fin")
    e(f"s_cmp_lg_u32 s{sW}, 7"); e("s_cbranch_scc1 L_kissue2")
    srd(sGW, 20, 896)
    e(f"s_mul_i32 s{sT0}, s{sKVH}, 896")
    e(f"buffer_load_dwordx4 v[16:19], v33, {sr(sX)}, s{sT0} offen")
    e(f"buffer_load_dwordx4 v[20:23], v33, {sr(sGW)}, 0 offen")
    e("s_branch L_kissue2")
    g.lab("L_kissue")
    for n in range(o['pre']): kload(n)
    g.lab("L_kissue2")
    for n in range(o['pre'], 32): kload(n)
    srd(sV, 10, 0x8000000); srd(sWO, 14, 3670016); srd(sOUT, 22, 7168)
    def wo_dma(va, vb):
        e(f"s_lshr_b32 s{sT0}, s{sMEM}, 2"); e(f"s_lshl_b32 s{sT0}, s{sT0}, 7"); e(f"s_lshl_b32 s{sT1}, s{sKVH}, 9"); e(f"s_add_u32 s{sT0}, s{sT0}, s{sT1}")
        e(f"s_mul_i32 s{sT0}, s{sT0}, 896"); e(f"s_and_b32 s{sT1}, s{sMEM}, 3"); e(f"s_mul_i32 s{sT1}, s{sT1}, 224"); e(f"s_add_u32 s{sT0}, s{sT0}, s{sT1}")
        e(f"s_cmp_eq_u32 s{sW}, 0"); e(f"s_cselect_b32 s{sT0}, 0x4000000, s{sT0}")
        if o.get('nowo'): e(f"s_mov_b32 s{sT0}, 0x4000000")
        if o.get('woal'): e(f"s_and_b32 s{sT0}, s{sT0}, 0xffffff80")
        e(f"s_add_u32 s{sT2}, s{sW}, 7"); e(f"s_and_b32 s{sT2}, s{sT2}, 7")
        e(f"s_lshl_b32 s{sT1}, s{sT2}, 12"); e(f"s_lshl_b32 s{sT2}, s{sT2}, 8")
        for ii in range(4):
            e(f"v_add_u32 v{va}, s{sT2}, v{vL}")
            if ii: e(f"v_add_u32 v{va}, {64*ii}, v{va}")
            e(f"v_mul_u32_u24 v{vb}, 4682, v{va}"); e(f"v_lshrrev_b32 v{vb}, 16, v{vb}")
            e(f"v_mul_u32_u24 v{vb}, 672, v{vb}"); e(f"v_lshl_add_u32 v{vb}, v{va}, 4, v{vb}")
            e(f"s_add_u32 m0, s{sT1}, {L_WO+ii*1024}"); e("s_nop 0")
            e(f"buffer_load_dwordx4 v{vb}, {sr(sWO)}, s{sT0} offen {POL} lds")
    g.ts("kiss")
    NWO = 4
    if o['woy']: o['wo_late'] = 1
    if not o['wo_late']: wo_dma(60, 61)
    for v in range(8):
        pat = (0x11 << (v & 3)) << (8*(v >> 2)); pat |= pat << 16
        e(f"s_mov_b32 s{sMASK+2*v}, 0x{pat:08x}"); e(f"s_mov_b32 s{sMASK+2*v+1}, 0x{pat:08x}")
    e(f"s_mov_b32 s{sSEL0}, 0x05040100"); e(f"s_mov_b32 s{sSEL1}, 0x07060302")
    e(f"s_mov_b32 s{sC}, 0x{f2u(math.log2(math.e)/16):08x}")
    e(f"s_mov_b32 s{sM8}, 0xff00ff00"); e(f"s_mov_b32 s{sM8+1}, 0xff00ff00")
    e(f"s_cmp_eq_u32 s{sW}, 0"); e("s_cbranch_scc1 " + ("L_qgather" if o['qw'] == 0 else "L_b2"))
    nyoung = 32 - o['pre'] + (0 if o['wo_late'] else NWO)
    e(f"s_waitcnt vmcnt({nyoung})")
    e(f"v_add_u32 v{vTAG}, 1, v{vTAG}")
    if o['qw'] and not o['q0']: e(f"s_cmp_eq_u32 s{sW}, {o['qw']}"); e("s_cbranch_scc1 L_qgather")
    e(f"s_cmp_lg_u32 s{sW}, 7"); e("s_cbranch_scc1 L_b2")
    e(f"v_cmp_gt_u32 vcc, 56, v{vL}"); e("v_mov_b32 v24, 0"); e("s_nop 0")
    for k in range(4): e(f"v_cndmask_b32 v{16+k}, 0, v{16+k}, vcc")
    for k in range(4):
        e(f"v_lshlrev_b32 v25, 16, v{16+k}"); e(f"v_and_b32 v26, 0xffff0000, v{16+k}")
        e(f"v_lshlrev_b32 v27, 16, v{20+k}"); e(f"v_and_b32 v28, 0xffff0000, v{20+k}")
        e("v_mul_f32 v25, v25, v27"); e("v_mul_f32 v26, v26, v28")
        e("v_cvt_pk_bf16_f32 v25, v25, v26")
        e("v_lshlrev_b32 v26, 16, v25"); e("v_and_b32 v25, 0xffff0000, v25")
        e("v_add_f32 v24, v24, v26"); e("v_add_f32 v24, v24, v25")
    for dpp in ("quad_perm:[1,0,3,2]", "quad_perm:[2,3,0,1]", "row_ror:4", "row_ror:8"):
        e("s_nop 1"); e(f"v_add_f32_dpp v24, v24, v24 {dpp} {DPP}")
    for sw in ("16", "32"):
        e("v_mov_b32 v25, v24"); e("s_nop 1"); e(f"v_permlane{sw}_swap_b32 v24, v25"); e("v_add_f32 v24, v24, v25")
    e("v_cvt_pk_bf16_f32 v24, v24, v24"); e("v_and_b32 v24, 0xffff0000, v24")
    e(f"v_mul_f32 v24, 0x{f2u(-math.log2(math.e)):08x}, v24"); e("v_exp_f32 v24, v24"); e("s_nop 0")
    e("v_add_f32 v24, 1.0, v24"); e("v_rcp_f32 v24, v24"); e("s_nop 0")
    e("v_cvt_pk_bf16_f32 v24, v24, v24"); e("v_and_b32 v24, 0xffff0000, v24")
    e("v_sub_f32 v25, 1.0, v24"); e("v_cvt_pk_bf16_f32 v25, v25, v25"); e("v_and_b32 v25, 0xffff0000, v25")
    e("v_readfirstlane_b32 s22, v24"); e("v_readfirstlane_b32 s23, v25")
    e("s_branch L_b2")
    g.lab("L_qgather")
    if not o['q0']: qgather()
    g.lab("L_b2")
    e(f"v_bfe_u32 v{vC}, v{vL}, 2, 1"); e(f"v_lshlrev_b32 v{vA}, 9, v{vC}")
    e(f"v_lshl_add_u32 v{vA}, v{vB}, 6, v{vA}")
    e(f"v_and_b32 v60, 3, v{vL}"); e(f"v_lshl_add_u32 v{vA}, v60, 4, v{vA}")
    e(f"s_and_b32 s{sT0}, s{s16k}, 0x100"); e(f"v_add_u32 v{vA}, s{sT0}, v{vA}"); e(f"v_xor_b32 v60, 0x100, v{vA}")
    if o['nob2']:
        e("v_mov_b32 v62, 0")
        if o.get('noqw'): e("s_branch L_qready")
        g.lab("L_qwait")
        e(f"ds_read_b32 v61, v62 offset:{L_F}"); e("s_waitcnt lgkmcnt(0)"); e("v_readfirstlane_b32 s58, v61"); e("s_cmp_eq_u32 s58, 1"); e("s_cbranch_scc1 L_qready")
        e(f"s_sleep {o['qsl']}"); e("s_branch L_qwait")
        g.lab("L_qready")
    else:
        e("s_waitcnt lgkmcnt(0)")
        e("s_barrier")
    g.ts("B2")
    e(f"ds_read_b128 {vr(vQB)}, v{vA} offset:{L_QL}")
    e(f"ds_read_b128 {vr(vQB+4)}, v60 offset:{L_QL}")
    def postn(us):
        for step in range(4):
            for u in us:
                d = vD + 16*((u//4) % 2) + 4*(u % 4); s_ = vS + u
                if step == 0: e(f"v_mov_b32_dpp v{s_}, v{d} quad_perm:[0,0,0,0] {DPP}")
                else: e(f"v_add_f32_dpp v{s_}, v{d+step}, v{s_} quad_perm:[{step},{step},{step},{step}] {DPP}")
    e("s_waitcnt lgkmcnt(0)")
    young = 0 if o['wo_late'] else NWO
    vT = 40; vM0 = 52; vL0 = 53; vAL = 54; vORA = 56; vORB = 57; vSA = 58; vF = 59
    def qk(bt):
        e(f"s_waitcnt vmcnt({31-(8*bt+7)+young})")
        g.ts(f"K{bt}")
        for u in range(4*bt, 4*bt+4):
            d = vD + 16*(bt % 2) + 4*(u % 4)
            e(f"v_mfma_f32_16x16x32_bf16 {vr(d)}, {vr(vK+8*u)}, {vr(vQB)}, 0")
            e(f"v_mfma_f32_16x16x32_bf16 {vr(d)}, {vr(vK+8*u+4)}, {vr(vQB+4)}, {vr(d)}")
    def vunit(u):
        nonlocal young
        for j in range(8): vload(u, j)
        young += 8
    def xred(r, t, op):
        for sw in ("16", "32"):
            e(f"v_mov_b32 v{t}, v{r}"); e("s_nop 1"); e(f"v_permlane{sw}_swap_b32 v{r}, v{t}"); e(f"{op} v{r}, v{r}, v{t}")
    vACC = 112
    vP8 = 120
    def soft(blk):
        S = vS + 8*blk
        if o['round_s']:
            for u in range(0, 8, 2): e(f"v_cvt_pk_bf16_f32 v{vP8+u//2}, v{S+u}, v{S+u+1}")
            for u in range(0, 8, 2):
                e(f"v_lshlrev_b32 v{S+u}, 16, v{vP8+u//2}"); e(f"v_and_b32 v{S+u+1}, 0xffff0000, v{vP8+u//2}")
        e(f"v_max3_f32 v{vA}, v{S}, v{S+1}, v{S+2}"); e(f"v_max3_f32 v{vB}, v{S+3}, v{S+4}, v{S+5}")
        e(f"v_max3_f32 v{vA}, v{vA}, v{S+6}, v{S+7}"); e(f"v_max_f32 v{vA}, v{vA}, v{vB}")
        xred(vA, vB, "v_max_f32")
        if blk == 0:
            e(f"v_mul_f32 v{vM0}, s{sC}, v{vA}")
        else:
            e(f"v_mul_f32 v{vA}, s{sC}, v{vA}"); e(f"v_max_f32 v{vA}, v{vA}, v{vM0}")
            e(f"v_sub_f32 v{vAL}, v{vM0}, v{vA}"); e(f"v_mov_b32 v{vM0}, v{vA}"); e(f"v_exp_f32 v{vAL}, v{vAL}")
        for u in range(8): e(f"v_fma_f32 v{S+u}, v{S+u}, s{sC}, -v{vM0}")
        for u in range(8): e(f"v_exp_f32 v{S+u}, v{S+u}")
        e("s_nop 0")
        for t in range(4): e(f"v_cvt_pk_bf16_f32 v{vP8+t}, v{S+2*t}, v{S+2*t+1}")
        for t in range(4): e(f"v_add_f32 v{S+t}, v{S+t}, v{S+t+4}")
        e(f"v_add_f32 v{S}, v{S}, v{S+2}"); e(f"v_add_f32 v{S+1}, v{S+1}, v{S+3}")
        if blk == 0:
            e(f"v_add_f32 v{vL0}, v{S}, v{S+1}")
        else:
            e(f"v_add_f32 v{S}, v{S}, v{S+1}"); e(f"v_fmac_f32 v{S}, v{vL0}, v{vAL}")
            xred(S, S+1, "v_add_f32")
            e(f"ds_write_b32 v{vSA}, v{vM0} offset:{L_SM}"); e(f"ds_write_b32 v{vSA}, v{S} offset:{L_SL}")
            e(f"v_mov_b32 v{S+1}, 1"); e(f"v_mov_b32 v{S+2}, 0"); e("s_mov_b64 exec, 1")
            e(f"ds_add_u32 v{S+2}, v{S+1} offset:{L_CNT}"); e("s_mov_b64 exec, -1")
            e(f"v_readlane_b32 s{sT0}, v{vAL}, 0"); e(f"v_readlane_b32 s{sT1}, v{vAL}, 4")
        for v in range(8):
            for t in range(4):
                e(f"v_cndmask_b32 v{vPV+4*v+t}, 0, v{vP8+t}, s[{sMASK+2*v}:{sMASK+2*v+1}]")
    def pv(unit, late=0):
        blk, hf = unit//2, unit % 2
        base = vK + 32*unit
        acc = vACC + 4*hf
        def perms(d):
            for t in range(4):
                e(f"v_perm_b32 v{vT+4*(d%3)+t}, v{base+4*(2*t+1)+d//2}, v{base+4*(2*t)+d//2}, s{sSEL1 if d&1 else sSEL0}")
        perms(0)
        for d in range(8):
            if d < 7: perms(d+1)
            else: g.nop(2)
            cin = "0" if (blk == 0 and d == 0) else vr(acc)
            e(f"v_mfma_f32_16x16x32_bf16 {vr(acc)}, {vr(vPV+4*d)}, {vr(vT+4*(d%3))}, {cin}")
    qk(0); vunit(0); qk(1); vunit(1)
    postn([0,1,2,3]); postn([4,5,6,7])
    e(f"v_lshlrev_b32 v{vC}, 5, v{vC}")
    e(f"s_lshl_b32 s{sT0}, s{sW}, 2"); e(f"v_add_u32 v{vSA}, s{sT0}, v{vC}")
    e(f"v_bfe_u32 v{vC}, v{vL}, 4, 1"); e(f"v_lshlrev_b32 v{vORA}, 10, v{vC}"); e(f"v_lshlrev_b32 v{vC}, 5, v{vC}")
    e(f"v_and_b32 v{vORB}, 15, v{vL}"); e(f"v_lshl_add_u32 v{vORA}, v{vORB}, 5, v{vORA}")
    e(f"v_lshrrev_b32 v{vORB}, 5, v{vL}"); e(f"v_lshl_add_u32 v{vORA}, v{vORB}, 4, v{vORA}")
    e(f"s_and_b32 s{sT1}, s{s16k}, 0x100"); e(f"s_lshl_b32 s{sT1}, s{sT1}, 1"); e(f"v_add_u32 v{vORA}, s{sT1}, v{vORA}"); e(f"v_xor_b32 v{vORB}, 0x200, v{vORA}")
    e(f"s_lshl_b32 s{sT0}, s{sW}, 11"); e(f"s_add_u32 s{sT0}, s{sT0}, {L_OR}"); e(f"v_add_u32 v{vORA}, s{sT0}, v{vORA}"); e(f"v_add_u32 v{vORB}, s{sT0}, v{vORB}")
    soft(0)
    qk(2); vunit(2)
    postn([8,9,10,11])
    if o['woy']:
        e(f"s_lshr_b32 s{sT0}, s{sMEM}, 2"); e(f"s_lshl_b32 s{sT0}, s{sT0}, 7"); e(f"s_lshl_b32 s{sT1}, s{sKVH}, 9"); e(f"s_add_u32 s{sT0}, s{sT0}, s{sT1}")
        e(f"s_mul_i32 s{sT0}, s{sT0}, 896"); e(f"s_and_b32 s{sT1}, s{sMEM}, 3"); e(f"s_mul_i32 s{sT1}, s{sT1}, 224"); e(f"s_add_u32 s44, s{sT0}, s{sT1}")
        e(f"s_and_b32 s{sT2}, s{sW}, 3"); e(f"s_mul_i32 s{sT2}, s{sT2}, 448"); e(f"s_mul_i32 s45, s{sT2}, 16"); e(f"s_add_u32 s45, s45, {L_WO}")
        e(f"s_cmp_lt_u32 s{sW}, 4"); e("s_cselect_b32 s44, 0x4000000, s44"); e(f"s_cselect_b32 s45, {L_WO+28672}, s45"); e("s_cselect_b32 s46, 0, 1024")
        for ii in range(7):
            e(f"v_add_u32 v39, s{sT2}, v{vL}")
            if ii: e(f"v_add_u32 v39, {64*ii}, v39")
            e(f"v_mul_u32_u24 v{32+ii}, 4682, v39"); e(f"v_lshrrev_b32 v{32+ii}, 16, v{32+ii}")
            e(f"v_mul_u32_u24 v{32+ii}, 672, v{32+ii}"); e(f"v_lshl_add_u32 v{32+ii}, v39, 4, v{32+ii}")
    e(f"s_waitcnt vmcnt(16)"); g.ts("V0"); pv(0)
    e(f"s_waitcnt vmcnt({young})")
    g.ts("K3")
    for u in range(12, 16):
        d = 96 + 4*(u % 4)
        e(f"v_mfma_f32_16x16x32_bf16 {vr(d)}, {vr(vK+8*u)}, {vr(vQB)}, 0")
        e(f"v_mfma_f32_16x16x32_bf16 {vr(d)}, {vr(vK+8*u+4)}, {vr(vQB+4)}, {vr(d)}")
    vunit(3)
    late = 0
    if o['woy']:
        for ii in range(7):
            e("s_mov_b32 m0, s45"); e("s_add_u32 s45, s45, s46")
            e(f"buffer_load_dwordx4 v{32+ii}, {sr(sWO)}, s44 offen {POL} lds")
        late = 7
    elif o['wo_late']:
        wo_dma(60, 61); late = NWO
    g.ts("QK")
    e(f"s_waitcnt vmcnt({16+late})"); g.ts("V1"); pv(1)
    for step in range(4):
        for u in range(12, 16):
            d = 96 + 4*(u % 4); s_ = vS + u
            if step == 0: e(f"v_mov_b32_dpp v{s_}, v{d} quad_perm:[0,0,0,0] {DPP}")
            else: e(f"v_add_f32_dpp v{s_}, v{d+step}, v{s_} quad_perm:[{step},{step},{step},{step}] {DPP}")
    soft(1)
    e(f"v_mov_b32 v{vAL}, s{sT0}"); e(f"v_mov_b32 v{vA}, s{sT1}"); e(f"s_mov_b32 vcc_lo, 0xffff0000"); e(f"s_mov_b32 vcc_hi, 0xffff0000")
    e(f"v_cndmask_b32 v{vAL}, v{vAL}, v{vA}, vcc")
    for k in range(8): e(f"v_mul_f32 v{vACC+k}, v{vACC+k}, v{vAL}")
    g.ts("P")
    e(f"s_waitcnt vmcnt({8+late})"); g.ts("V2"); pv(2)
    e(f"s_lshl_b32 s{sT0}, s{sW}, 2"); e(f"v_add_u32 v{vB}, s{sT0}, v{vC}"); e("v_mov_b32 v62, 0")
    if o.get('nosw'): e("s_branch L_sready")
    g.lab("L_swait")
    e(f"ds_read_b32 v61, v62 offset:{L_CNT}"); e("s_waitcnt lgkmcnt(0)"); e(f"v_readfirstlane_b32 s{sT0}, v61"); e(f"s_cmp_eq_u32 s{sT0}, 8"); e("s_cbranch_scc1 L_sready")
    e(f"s_sleep {o['ssl']}"); e("s_branch L_swait")
    g.lab("L_sready")
    e(f"ds_read_b128 {vr(16)}, v{vC} offset:{L_SM}"); e(f"ds_read_b128 {vr(20)}, v{vC} offset:{L_SM+16}")
    e(f"ds_read_b32 v{vF}, v{vB} offset:{L_SM}")
    e(f"ds_read_b128 {vr(24)}, v{vC} offset:{L_SL}"); e(f"ds_read_b128 {vr(28)}, v{vC} offset:{L_SL+16}")
    e("s_waitcnt lgkmcnt(0)")
    e("v_max3_f32 v124, v16, v17, v18"); e("v_max3_f32 v125, v19, v20, v21"); e("v_max3_f32 v124, v124, v22, v23"); e("v_max_f32 v124, v124, v125")
    for w in range(8): e(f"v_sub_f32 v{16+w}, v{16+w}, v124")
    e(f"v_sub_f32 v{vF}, v{vF}, v124")
    for w in range(8): e(f"v_exp_f32 v{16+w}, v{16+w}")
    e(f"v_exp_f32 v{vF}, v{vF}")
    e("v_mul_f32 v126, v24, v16")
    for w in range(1, 8): e(f"v_fmac_f32 v126, v{24+w}, v{16+w}")
    e(f"v_rcp_f32 v16, v126"); e(f"v_mov_b32 v125, v{vTAG}"); e(f"v_mov_b32 v127, v{vTAG}")
    e(f"v_mul_f32 v{vF}, v{vF}, v16")
    e(f"s_sub_u32 s{sT0}, s{sW}, 5"); e(f"s_cmp_gt_u32 s{sT0}, 1"); e("s_cbranch_scc1 L_nostat")
    e(f"s_and_b32 s{sT1}, s{sMEM}, 1"); e(f"s_lshl_b32 s{sT1}, s{sT1}, 3"); e(f"s_add_u32 s{sT1}, s{sT1}, s{sB}")
    e(f"s_lshl_b32 s{sT2}, s{sG}, 1"); e(f"s_add_u32 s{sT2}, s{sT2}, s{sT0}")
    e(f"s_lshl_b32 s44, s{sT2}, 14"); e(f"s_lshl_b32 s45, s{sT1}, 9"); e(f"s_add_u32 s44, s44, s45"); e(f"s_add_u32 s44, s44, {WS_O}"); e(f"s_add_u32 s45, s44, {WS_F}")
    e(f"s_lshl_b32 s{sT2}, s{sT2}, 8"); e(f"s_lshl_b32 s{sT1}, s{sT1}, 4"); e(f"s_add_u32 s{sT2}, s{sT2}, s{sT1}"); e(f"s_add_u32 s{sT2}, s{sT2}, {WS_S}"); e(f"s_add_u32 s{sT3}, s{sT2}, {WS_F}")
    e(f"s_lshl_b32 s{sT1}, s{sT0}, 4"); e(f"s_lshl_b64 exec, 1, s{sT1}")
    e(f"buffer_store_dwordx4 v[124:127], v62, {sr(sWS)}, s{sT3} offen")
    e(f"buffer_store_dwordx4 v[124:127], v62, {sr(sWS)}, s{sT2} offen sc1")
    e("s_mov_b64 exec, -1")
    e(f"s_lshl_b32 s{sT1}, s{sT0}, 10"); e(f"s_add_u32 s{sT1}, s{sT1}, {L_OR}"); e(f"v_lshlrev_b32 v60, 4, v{vL}"); e(f"v_add_u32 v60, s{sT1}, v60")
    e(f"v_lshrrev_b32 v61, 5, v{vL}"); e("v_lshlrev_b32 v61, 13, v61"); e(f"v_and_b32 v63, 31, v{vL}"); e("v_lshl_add_u32 v61, v63, 4, v61")
    if o['pret']:
        e(f"v_add_u32 v16, 1, v{vTAG}"); e("v_mov_b32 v17, v16"); e("v_mov_b32 v18, v16"); e("v_mov_b32 v19, v16")
        e(f"buffer_store_dwordx4 v[16:19], v61, {sr(sWS)}, s45 offen")
    e(f"s_waitcnt vmcnt({2+o['pret']+late})")
    e("s_branch L_v3")
    g.lab("L_nostat")
    e(f"s_waitcnt vmcnt({late})")
    g.lab("L_v3")
    for k in range(4): e(f"v_mul_f32 v{vACC+k}, v{vACC+k}, v{vF}")
    g.ts("V3")
    e(f"ds_write_b128 v{vORA}, {vr(vACC)}")
    pv(3)
    e(f"v_lshrrev_b32 v53, 4, v{vL}")
    e(f"s_lshr_b32 s{sT2}, s{sMEM}, 2")
    g.nop(6)
    for k in range(4): e(f"v_mul_f32 v{vACC+4+k}, v{vACC+4+k}, v{vF}")
    e(f"ds_write_b128 v{vORB}, {vr(vACC+4)}")
    e("s_waitcnt lgkmcnt(0)")
    e("s_barrier")
    g.ts("B4")
    if o.get('stopb4'): e("s_branch L_fin")
    e(f"s_cmp_lt_u32 s{sW}, 4"); e("s_cbranch_scc1 L_gath")
    e(f"s_cmp_eq_u32 s{sW}, 4"); e("s_cbranch_scc1 L_stat")
    e(f"s_cmp_eq_u32 s{sW}, 7"); e("s_cbranch_scc1 L_w7")
    for w in range(8): e(f"ds_read_b128 {vr(64+4*w)}, v60 offset:{w*2048}")
    e(f"v_mov_b32 v97, v{vTAG}"); e(f"v_mov_b32 v99, v{vTAG}")
    for w in range(1, 8):
        if w % 2 == 1: e(f"s_waitcnt lgkmcnt({0 if o['ts'] else 7-w})")
        if w in (1, 3, 5, 7):
            for k in range(4): e(f"v_add_f32 v{64+4*(w-1)+k}, v{64+4*(w-1)+k}, v{64+4*w+k}")
        if w == 3:
            for k in range(4): e(f"v_add_f32 v{64+k}, v{64+k}, v{72+k}")
        if w == 5:
            for k in range(4): e(f"v_add_f32 v{64+k}, v{64+k}, v{80+k}")
    for k in range(4): e(f"v_add_f32 v{64+k}, v{64+k}, v{88+k}")
    e("v_cvt_pk_bf16_f32 v96, v64, v65"); e("v_cvt_pk_bf16_f32 v98, v66, v67")
    e(f"buffer_store_dwordx4 v[96:99], v61, {sr(sWS)}, s45 offen")
    g.ts("opub")
    e(f"buffer_store_dwordx4 v[96:99], v61, {sr(sWS)}, s44 offen sc1")
    if o['woy']: e(f"s_waitcnt vmcnt({4+o['pret']})")
    e("s_branch L_wofrag")
    g.lab("L_stat")
    e(f"s_lshr_b32 s{sT2}, s{sT2}, 1"); e(f"s_lshl_b32 s{sT3}, s{sG}, 1"); e(f"s_add_u32 s{sT3}, s{sT3}, s{sT2}")
    e(f"s_lshl_b32 s{sT3}, s{sT3}, 8"); e(f"s_add_u32 s{sT3}, s{sT3}, {WS_S}")
    e(f"v_and_b32 v54, 15, v{vL}"); e("v_lshlrev_b32 v55, 4, v54")
    e("s_mov_b64 exec, 0xffff")
    def sl(): e(f"buffer_load_dwordx4 {vr(160)}, v55, {sr(sWS)}, s{sT3} offen sc1")
    poll("sg", sl, [161, 163], 58, 59, o['sleep1'], fs=True)
    g.ts("SG")
    if o['ts']: e(f"s_sub_u32 s46, {o['spin']}, s{sSPIN}")
    e(f"v_mov_b32_dpp v100, v160 row_ror:8 {DPP}")
    e(f"v_mov_b32_dpp v101, v162 row_ror:8 {DPP}")
    e("v_max_f32 v102, v160, v100")
    e("v_sub_f32 v103, v160, v102"); e("v_sub_f32 v100, v100, v102")
    e("v_exp_f32 v103, v103"); e("v_exp_f32 v100, v100"); e("s_nop 0")
    e("v_mul_f32 v103, v103, v162"); e("v_fma_f32 v100, v100, v101, v103")
    e("v_rcp_f32 v100, v100"); e("v_lshlrev_b32 v54, 2, v54"); e("v_mul_f32 v103, v103, v100")
    e("s_mov_b64 exec, 0xffff")
    e(f"ds_write_b32 v54, v103 offset:{L_W}")
    e("s_mov_b64 exec, -1")
    e("s_branch L_wofrag")
    g.lab("L_gath")
    e(f"v_and_b32 v52, 15, v{vL}"); e("v_lshlrev_b32 v52, 9, v52"); e("v_lshl_add_u32 v52, v53, 5, v52")
    e(f"s_lshl_b32 s{sT3}, s{sG}, 2"); e(f"s_add_u32 s{sT3}, s{sT3}, s{sT2}"); e(f"s_lshl_b32 s{sT3}, s{sT3}, 13")
    e(f"s_lshl_b32 s{sT2}, s{sW}, 7"); e(f"s_add_u32 s{sT3}, s{sT3}, s{sT2}"); e(f"s_add_u32 s{sT3}, s{sT3}, {WS_O}")
    e(f"s_lshl_b32 s{sT2}, s{sW}, 10"); e(f"v_lshlrev_b32 v54, 4, v{vL}"); e(f"v_add_u32 v54, s{sT2}, v54")
    def gl():
        e(f"buffer_load_dwordx4 {vr(128)}, v52, {sr(sWS)}, s{sT3} offen sc1")
        e(f"buffer_load_dwordx4 {vr(132)}, v52, {sr(sWS)}, s{sT3} offen offset:16 sc1")
    g.ts("g1s")
    poll("g1", gl, [129, 131, 133, 135], 58, 59, o['sleep1'], fs=True)
    if o['ts']: e(f"s_sub_u32 s46, {o['spin']}, s{sSPIN}")
    e("v_mov_b32 v129, v130"); e("v_mov_b32 v130, v132"); e("v_mov_b32 v131, v134")
    e(f"ds_write_b128 v54, {vr(128)} offset:{L_B3}")
    if o['hint']:
        e(f"s_or_b32 s{sT0}, s{sW}, s{sMEM}"); e("s_cbranch_scc1 L_nohint")
        e(f"s_lshl_b32 s{sT0}, s{sG}, 2"); e(f"s_add_u32 s{sT0}, s{sT0}, {WS_H}"); e(f"v_lshlrev_b32 v54, 8, v{vL}")
        if not o['hp']: e("s_mov_b64 exec, 0xffff")
        e(f"buffer_store_dword v{vTAG}, v54, {sr(sWS)}, s{sT0} offen sc1")
        e("s_mov_b64 exec, -1")
        g.lab("L_nohint")
    g.ts("G1")
    e("s_branch L_wofrag")
    g.lab("L_w7")
    e("s_waitcnt vmcnt(0)")
    g.lab("L_wofrag")
    e(f"v_bfe_u32 v55, v{vL}, 2, 2"); e("v_lshl_add_u32 v55, v53, 3, v55"); e("v_mul_u32_u24 v55, 224, v55")
    e(f"v_and_b32 v56, 3, v{vL}"); e("v_lshl_add_u32 v55, v56, 3, v55")
    e(f"s_lshl_b32 s{sT1}, s{sW}, 5"); e(f"s_add_u32 s{sT1}, s{sT1}, {L_WO}"); e(f"v_add_u32 v55, s{sT1}, v55")
    def wofr():
        for k in range(4):
            e(f"ds_read_b64_tr_b16 {vr(80+4*k,2)}, v55 offset:{k*32*224}")
            e(f"ds_read_b64_tr_b16 {vr(82+4*k,2)}, v55 offset:{k*32*224+4*224}")
    if not o['wo_late']: wofr()
    e(f"s_and_b32 s{sT1}, s{sMEM}, 3"); e(f"s_mul_i32 s{sT1}, s{sT1}, 7"); e(f"s_add_u32 s{sT1}, s{sT1}, s{sW}")
    if o['psw']:
        e(f"s_lshl_b32 s{sT2}, s{sG}, 2"); e(f"s_lshr_b32 s{sT0}, s{sMEM}, 2"); e(f"s_add_u32 s{sT2}, s{sT2}, s{sT0}")
        e(f"s_lshl_b32 s{sT0}, s{sT1}, 3"); e(f"s_and_b32 s{sT0}, s{sT0}, 63"); e(f"s_xor_b32 s{sT0}, s{sT0}, s{sT2}")
        e(f"v_and_b32 v57, 7, v{vL}"); e(f"v_xor_b32 v56, s{sT0}, v57"); e("v_lshlrev_b32 v57, 13, v57"); e("v_lshl_add_u32 v57, v56, 7, v57")
        e("v_lshl_add_u32 v57, v53, 5, v57")
        e(f"s_lshl_b32 s{sT2}, s{sT1}, 16"); e(f"s_add_u32 s{sT2}, s{sT2}, {WS_P}")
    else:
        e(f"s_lshl_b32 s{sT1}, s{sT1}, 16"); e(f"s_lshl_b32 s{sT2}, s{sG}, 2"); e(f"s_lshr_b32 s{sT0}, s{sMEM}, 2"); e(f"s_add_u32 s{sT2}, s{sT2}, s{sT0}")
        e(f"s_lshl_b32 s{sT2}, s{sT2}, 7"); e(f"s_add_u32 s{sT2}, s{sT2}, s{sT1}"); e(f"s_add_u32 s{sT2}, s{sT2}, {WS_P}")
        e(f"v_and_b32 v57, 7, v{vL}"); e("v_lshlrev_b32 v57, 13, v57"); e("v_lshl_add_u32 v57, v53, 5, v57")
    e(f"v_bfe_u32 v56, v{vL}, 3, 1"); e("v_lshl_add_u32 v57, v56, 4, v57")
    e(f"v_lshlrev_b32 v58, 4, v{vL}"); e(f"v_and_b32 v59, 15, v{vL}"); e("v_lshlrev_b32 v59, 2, v59")
    e("s_waitcnt vmcnt(0) lgkmcnt(0)" if (o['wo_late'] and not o['woy']) else "s_waitcnt lgkmcnt(0)")
    e("s_barrier")
    g.ts("B5")
    e(f"s_cmp_eq_u32 s{sW}, 7"); e("s_cbranch_scc1 L_red")
    for k in range(4): e(f"ds_read_b128 {vr(164+4*k)}, v58 offset:{L_B3+k*1024}")
    e(f"ds_read_b32 v103, v59 offset:{L_W}")
    if o['wo_late']: wofr()
    e(f"v_mov_b32 v109, v{vTAG}"); e(f"v_mov_b32 v111, v{vTAG}")
    e("s_waitcnt lgkmcnt(0)")
    for k in range(4):
        e(f"v_mfma_f32_16x16x32_bf16 {vr(96)}, {vr(80+4*k)}, {vr(164+4*k)}, {'0' if k==0 else vr(96)}")
    g.nop(8)
    for k in range(4): e(f"v_mul_f32 v{96+k}, v{96+k}, v103")
    for k in range(4): e(f"v_add_f32_dpp v{104+k}, v{96+k}, v{96+k} row_ror:8 {DPP}")
    e(f"v_cndmask_b32 v108, v104, v106, s[{sM8}:{sM8+1}]"); e(f"v_cndmask_b32 v110, v105, v107, s[{sM8}:{sM8+1}]")
    e(f"buffer_store_dwordx4 v[108:111], v57, {sr(sWS)}, s{sT2} offen sc1")
    g.ts("ppub")
    e("s_branch L_fin")
    g.lab("L_red")
    e("s_cmp_ge_u32 s2, 224"); e("s_cbranch_scc1 L_fin")
    e(f"s_lshl_b32 s{sT3}, s2, 13"); e(f"s_add_u32 s{sT3}, s{sT3}, {WS_P}"); e(f"s_add_u32 s{sT2}, s{sT3}, 4096")
    e(f"v_and_b32 v60, 7, v{vL}"); e("v_lshlrev_b32 v60, 2, v60")
    e(f"s_mul_i32 s21, s{sKVH}, 896"); e("s_lshr_b32 s20, s2, 3"); e("s_lshl_b32 s20, s20, 5"); e("s_add_u32 s21, s21, s20")
    def rl():
        for i in range(8):
            e(f"buffer_load_dwordx4 {vr(128+4*i)}, v58, {sr(sWS)}, s{sT3 if i<4 else sT2} offen offset:{(i%4)*1024} sc1")
    if o['hp']: e("s_and_b32 s20, s2, 63"); e("s_lshl_b32 s20, s20, 8")
    else: e(f"s_lshl_b32 s20, s{sMEM}, 8")
    e(f"s_add_u32 s20, s20, {WS_H}")
    if o['psw']:
        e("s_bfe_u32 s44, s2, 0x40002"); e(f"v_xor_b32 v61, s44, v{vL}"); e("v_lshlrev_b32 v61, 2, v61")
        e("s_bitcmp1_b32 s2, 5"); e("s_cselect_b32 s44, s23, s22"); e("s_cselect_b32 s23, s22, s23"); e("s_mov_b32 s22, s44")
    else:
        e(f"v_lshlrev_b32 v61, 2, v{vL}")
    e(f"v_add_u32 v63, 1, v{vTAG}")
    for i in range(16): e(f"v_mov_b32 v{129+2*i}, v63")
    for i in range(8): e(f"s_mov_b64 s[{sMASK+2*i}:{sMASK+2*i+1}], -1")
    e("s_mov_b32 s44, 0")
    e(f"s_mov_b32 s{sSPIN}, {o['spin']}")
    if o['hp']:
        NP = o['hp']
        e("s_mov_b64 exec, 0xffff")
        for k in range(NP):
            e(f"buffer_load_dword v{64+k}, v61, {sr(sWS)}, s20 offen sc1"); e("s_sleep 2")
        g.lab("L_hp")
        for k in range(NP):
            e(f"s_waitcnt vmcnt({NP-1})")
            e(f"v_cmp_ne_u32 vcc, v{64+k}, v{vTAG}")
            e(f"s_bcnt1_i32_b64 s45, vcc"); e(f"s_cmp_le_u32 s45, {o['hthr']}"); e("s_cbranch_scc1 L_hp_ok")
            e(f"buffer_load_dword v{64+k}, v61, {sr(sWS)}, s20 offen sc1")
        e(f"s_sub_u32 s{sSPIN}, s{sSPIN}, 1"); e("s_cbranch_scc0 L_hp")
        g.lab("L_hp_ok")
        e("s_mov_b32 s44, 0xffff")
        g.ts("H")
    g.lab("L_g2")
    for i in range(8):
        e(f"s_bitcmp1_b32 s44, {2*i}"); e(f"s_cselect_b32 exec_lo, s{sMASK+2*i}, 0")
        e(f"s_bitcmp1_b32 s44, {2*i+1}"); e(f"s_cselect_b32 exec_hi, s{sMASK+2*i+1}, 0")
        e(f"buffer_load_dwordx4 {vr(128+4*i)}, v58, {sr(sWS)}, s{sT3 if i<4 else sT2} offen offset:{(i%4)*1024} sc1")
    if not o['hp']:
        e("s_mov_b64 exec, 0xffff")
        e(f"buffer_load_dword v62, v61, {sr(sWS)}, s20 offen sc1")
    e("s_mov_b64 exec, -1")
    e("s_waitcnt vmcnt(0)")
    for i in range(8):
        e(f"v_cmp_ne_u32 vcc, v{129+4*i}, v{vTAG}"); e(f"v_cmp_ne_u32 s[{sMASK+2*i}:{sMASK+2*i+1}], v{131+4*i}, v{vTAG}")
        e(f"s_or_b64 s[{sMASK+2*i}:{sMASK+2*i+1}], s[{sMASK+2*i}:{sMASK+2*i+1}], vcc")
    for i in range(0, 8, 2): e(f"s_or_b64 s[{sT0}:{sT1}], s[{sMASK+2*i}:{sMASK+2*i+1}], s[{sMASK+2*i+2}:{sMASK+2*i+3}]" if i == 0 else f"s_or_b64 vcc, s[{sMASK+2*i}:{sMASK+2*i+1}], s[{sMASK+2*i+2}:{sMASK+2*i+3}]\n  s_or_b64 s[{sT0}:{sT1}], s[{sT0}:{sT1}], vcc")
    e("s_cbranch_scc0 L_g2_ok")
    if not o['hp']:
        e(f"v_cmp_eq_u32 vcc, v62, v{vTAG}")
        e("s_and_b32 s44, vcc_lo, 0xffff"); e(f"s_bcnt1_i32_b32 s45, s44"); e(f"s_cmp_ge_u32 s45, {16-o['hthr']}"); e("s_cselect_b32 s44, 0xffff, s44")
    if o['sleep2']: e(f"s_sleep {o['sleep2']}")
    e(f"s_sub_u32 s{sSPIN}, s{sSPIN}, 1"); e("s_cbranch_scc0 L_g2")
    g.lab("L_g2_ok")
    g.ts("G2")
    for base in (128, 144):
        e(f"v_add_f32 v{base}, v{base}, v{base+4}"); e(f"v_add_f32 v{base+2}, v{base+2}, v{base+6}")
        e(f"v_add_f32 v{base+8}, v{base+8}, v{base+12}"); e(f"v_add_f32 v{base+10}, v{base+10}, v{base+14}")
    R = [128, 130, 144, 146]
    for r in R: e(f"v_add_f32 v{r}, v{r}, v{r+8}")
    for r in R: e(f"v_add_f32_dpp v{r}, v{r}, v{r} row_ror:8 {DPP}")
    for sw in ("16", "32"):
        for r in R: e(f"v_mov_b32 v{r+1}, v{r}")
        for r in R: e(f"v_permlane{sw}_swap_b32 v{r}, v{r+1}")
        for r in R: e(f"v_add_f32 v{r}, v{r}, v{r+1}")
    for base, gs in ((128, 22), (144, 23)):
        e(f"v_cvt_pk_bf16_f32 v{base+1}, v{base}, v{base+2}")
        e(f"v_lshlrev_b32 v{base}, 16, v{base+1}"); e(f"v_and_b32 v{base+2}, 0xffff0000, v{base+1}")
        e(f"v_mul_f32 v{base}, s{gs}, v{base}"); e(f"v_mul_f32 v{base+2}, s{gs}, v{base+2}")
        e(f"v_cvt_pk_bf16_f32 v{base+1}, v{base}, v{base+2}")
        e(f"v_lshlrev_b32 v{base}, 16, v{base+1}"); e(f"v_and_b32 v{base+2}, 0xffff0000, v{base+1}")
    e("v_add_f32 v128, v128, v144"); e("v_add_f32 v130, v130, v146")
    e("v_cvt_pk_bf16_f32 v128, v128, v130")
    e("s_mov_b64 exec, 0xff")
    e(f"buffer_store_dword v128, v60, {sr(sOUT)}, s21 offen")
    e("s_cmp_lg_u32 s2, 0"); e("s_cbranch_scc1 L_fin")
    e("s_mov_b64 exec, 1")
    e(f"buffer_store_dword v{vTAG}, v60, {sr(sWS)}, 0 offen sc1")
    g.lab("L_fin")
    if o.get('hold'):
        g.lab("L_hold")
        e("s_memrealtime s[86:87]"); e("s_waitcnt lgkmcnt(0)"); e("s_sub_u32 s86, s86, s84"); e(f"s_cmp_lt_u32 s86, {o['hold']}"); e("s_cbranch_scc1 L_hold")
    if o['ts']:
        e("s_mov_b64 exec, -1")
        g.ts("end")
        e("s_waitcnt lgkmcnt(0)")
        for k in range(16): e(f"v_mov_b32 v{128+k}, s{TSREG[k]}" if k < g.nts else f"v_mov_b32 v{128+k}, 0")
        e("s_mul_i32 s46, s46, 100"); e(f"s_add_u32 s46, s46, s{TSREG[0]}"); e("v_mov_b32 v143, s46")
        e(f"s_lshl_b32 s{sT0}, s2, 3"); e(f"s_add_u32 s{sT0}, s{sT0}, s{sW}"); e(f"s_lshl_b32 s{sT0}, s{sT0}, 6"); e(f"s_add_u32 s{sT0}, s{sT0}, {WS_TS}")
        e("v_mov_b32 v60, 0"); e("s_mov_b64 exec, 1")
        for k in range(4): e(f"buffer_store_dwordx4 {vr(128+4*k)}, v60, {sr(sWS)}, s{sT0} offen offset:{16*k}")
        print("TS:", ",".join(g.tsn))
        if o.get('dbg'):
            e(f"s_cmp_lg_u32 s{sW}, 7"); e("s_cbranch_scc1 L_end"); e("s_cmp_ge_u32 s2, 224"); e("s_cbranch_scc1 L_end")
            e("s_sleep 64")
            e("s_load_dwordx2 s[24:25], s[0:1], 96"); e("s_waitcnt lgkmcnt(0)")
            e("s_mov_b32 s26, 256"); e("s_mov_b32 s27, 0x20000")
            for k in range(min(g.nts, 8)):
                e(f"s_sub_u32 s{sT0}, s{TSREG[k]}, s{TSREG[0]}"); e(f"s_cmp_gt_u32 s{sT0}, 100000"); e(f"s_cbranch_scc1 L_dbg{k}")
                e(f"v_mov_b32 v128, s{TSREG[k]}"); e(f"v_sub_u32 v129, 0, v128")
                e(f"buffer_atomic_umax v128, v60, s[24:27], 0 offen offset:{8*k} sc1")
                e(f"buffer_atomic_umax v129, v60, s[24:27], 0 offen offset:{8*k+4} sc1")
                g.lab(f"L_dbg{k}")
    g.lab("L_end")
    e("s_endpgm")
    g.lab("L_codeend")
    g.L += ['.section .rodata,"a"', ".p2align 6", f".amdhsa_kernel {KN}",
            "  .amdhsa_next_free_vgpr 256", "  .amdhsa_next_free_sgpr 102", "  .amdhsa_accum_offset 256",
            "  .amdhsa_group_segment_fixed_size 0", "  .amdhsa_kernarg_size 112", "  .amdhsa_user_sgpr_count 2",
            "  .amdhsa_user_sgpr_kernarg_segment_ptr 1", "  .amdhsa_system_sgpr_workgroup_id_x 1",
            "  .amdhsa_float_denorm_mode_32 3", ".end_amdhsa_kernel"]
    return "\n".join(g.L) + "\n"

if __name__ == "__main__":
    from lint import lint
    from build import build
    out = sys.argv[1]; opts = eval("dict(" + (sys.argv[2] if len(sys.argv) > 2 else "") + ")")
    s = gen(**opts)
    open(out, "w").write(s)
    for p in lint(s): print("LINT:", p)
    build(out)
```

```python
import sys, math, struct
sys.path.insert(0, "gen"); sys.path.insert(0, "tools")
KN = "gated_mix__sliding_block_cached__sliding_block_cached__decode_kernel"
HEADER = open("gated_mix__sliding_block_cached__sliding_block_cached__decode.s.ref").read().split("; Override launch")[0]

WS_Q = 0x10000
WS_S = 0x60000
WS_H = 0x70000
WS_O = 0x80000
WS_F = 0x100000
WS_P = 0x200000
WS_TS = 0x400000
WS_SIZE = 0x800000
L_QL = 0
L_SM = 1024
L_SL = 1088
L_W = 1152
L_F = 1216
L_CNT = 1220
L_B3 = 2048
L_WQ = 10240
L_X = 38912
L_WO = 46080
L_OR = 78848
LDS_BYTES = 95232
TSREG = [84,86,88,90,92,94,96,98,100,8,10,12,14,16,18,20]

def f2u(x): return struct.unpack("<I", struct.pack("<f", x))[0]
def vr(a, n=4): return f"v[{a}:{a+n-1}]"
def sr(a, n=4): return f"s[{a}:{a+n-1}]"
DPP = "row_mask:0xf bank_mask:0xf"

class G:
    def __init__(s, **o):
        s.L = []
        s.o = dict(round_s=1, ts=0, pol='nt', spin=1<<16, codepf=1, sleep1=0, sleep2=0, b0at=36, pre=2, fthr=256,
                   xm=0x100, xa=1, xb=0, kv=0, qsl=2, ssl=3, hp=0, hgap=2, skip=(6,7), wosw=1, bx=1, pret=0, g1p=0, wol=0, imm=0, nrep=8, xc=1, spol='', ppol='sc1 nt', qpol='', opol='')
        s.o.update(o); s.nts = 0; s.tsn = []
    def e(s, t): s.L.append("  " + t)
    def c(s, t): s.L.append("  ; " + t)
    def lab(s, t): s.L.append(t + ":")
    def nop(s, n):
        while n > 0:
            k = min(n, 16); s.e(f"s_nop {k-1}"); n -= k
    def ts(s, name):
        if not s.o['ts'] or name not in s.o['tson']: return
        k = s.nts; s.nts += 1
        r = TSREG[k]; s.tsn.append(name)
        s.e(f"s_memrealtime s[{r}:{r+1}]")

def gen(**opts):
    g = G(**opts); e = g.e; o = g.o; POL = o['pol']
    sK, sV, sWQ, sWO, sX, sGW, sWS, sOUT = 24, 28, 32, 36, 40, 44, 48, 52
    sW = 56; sR = 57; sT0, sT1, sT2, sT3 = 58, 59, 60, 61
    sKVH, sBR, sMEM, sB, sG = 3, 4, 5, 6, 7
    sMASK = 64; sM8 = 80; sSEL0, sSEL1 = 82, 83; sSPIN = 62; sC = 63
    sROLE = 32
    sH3 = 33; sNL = 34
    vL = 1; vKO = 2; vVO = 3; vTAG = 4; vA = 5; vB = 6; vC = 7
    vQB = 8; vS = 16; vPV = 64; vK = 128
    vT = 40; vM0 = 52; vL0 = 53; vAL = 54; vORA = 56; vORB = 57; vSA = 58; vF = 59
    vACC = 112; vP8 = 120
    BS = 131072

    def tagcheck(tags, a, b_):
        if len(tags) == 2:
            e(f"v_cmp_ne_u32 vcc, v{tags[0]}, v{vTAG}"); e(f"v_cmp_ne_u32 s[{sT0}:{sT1}], v{tags[1]}, v{vTAG}")
        else:
            e(f"v_min3_u32 v{a}, v{tags[0]}, v{tags[1]}, v{tags[2]}"); e(f"v_max3_u32 v{b_}, v{tags[0]}, v{tags[1]}, v{tags[2]}")
            i = 3
            while i+1 < len(tags):
                e(f"v_min3_u32 v{a}, v{a}, v{tags[i]}, v{tags[i+1]}"); e(f"v_max3_u32 v{b_}, v{b_}, v{tags[i]}, v{tags[i+1]}"); i += 2
            if i < len(tags):
                e(f"v_min_u32 v{a}, v{a}, v{tags[i]}"); e(f"v_max_u32 v{b_}, v{b_}, v{tags[i]}")
            e(f"v_cmp_ne_u32 vcc, v{a}, v{vTAG}"); e(f"v_cmp_ne_u32 s[{sT0}:{sT1}], v{b_}, v{vTAG}")
        e(f"s_or_b64 vcc, vcc, s[{sT0}:{sT1}]")
    def poll(name, loads, tags, a, b_, sleep=0, first=None):
        e(f"s_mov_b32 s{sSPIN}, {o['spin']}")
        if first:
            loads(); first(); e(f"s_branch L_{name}_w")
        g.lab(f"L_{name}")
        loads()
        g.lab(f"L_{name}_w")
        e("s_waitcnt vmcnt(0)")
        tagcheck(tags, a, b_)
        e(f"s_cbranch_scc0 L_{name}_ok")
        e("s_mov_b64 exec, vcc")
        if sleep: e(f"s_sleep {sleep}")
        e(f"s_cmp_le_u32 s{sSPIN}, {o['spin']-o['fthr']}"); e(f"s_cselect_b32 s{sT0}, {WS_F}, 0"); e(f"s_xor_b32 s{sT3}, s{sT3}, s{sT0}")
        e(f"s_sub_u32 s{sSPIN}, s{sSPIN}, 1"); e(f"s_cbranch_scc0 L_{name}")
        g.lab(f"L_{name}_ok")
        e("s_mov_b64 exec, -1")
    def srd(d, p, n):
        e(f"s_mov_b32 s{d}, s{p}"); e(f"s_mov_b32 s{d+1}, s{p+1}"); e(f"s_mov_b32 s{d+2}, {n}"); e(f"s_mov_b32 s{d+3}, 0x20000")
    def kreg(n): return vK + 4*(n % 16) if o['kv'] else vK + 4*n
    def vreg(unit): return vK + 64 + 32*(unit % 2) if o['kv'] else vK + 32*unit
    def kload(n):
        u, hf = n//2, n % 2
        if o['imm']:
            e(f"buffer_load_dwordx4 {vr(kreg(n))}, v{vKO}, {sr(sK)}, s{sR if u < 8 else 43} offen offset:{(u&7)*512+hf*256} {POL}")
            return
        e(f"s_xor_b32 s47, s{sR}, {(u&7)*512+hf*256+(u>>3)*BS}")
        e(f"buffer_load_dwordx4 {vr(kreg(n))}, v{vKO}, {sr(sK)}, s47 offen {POL}")
    def vload(unit, j):
        blk, hf = unit//2, unit % 2
        if o['imm']:
            e(f"buffer_load_dwordx4 {vr(vreg(unit)+4*j)}, v{vVO}, {sr(sV)}, s{sR if blk == 0 else 43} offen offset:{j*512+hf*256} {POL}")
            return
        e(f"s_xor_b32 s47, s{sR}, {j*512+hf*256+blk*BS}")
        e(f"buffer_load_dwordx4 {vr(vreg(unit)+4*j)}, v{vVO}, {sr(sV)}, s47 offen {POL}")

    g.L.append(HEADER.rstrip("\n"))
    g.L.append(f"; @launch grid=(256,1,1) block=(512,1,1) lds={LDS_BYTES}")
    g.L.append('.amdgcn_target "amdgcn-amd-amdhsa--gfx950"')
    g.L.append(".text"); g.L.append(f".globl {KN}"); g.L.append(".p2align 8"); g.L.append(f".type {KN},@function"); g.lab(KN)
    e("s_cmp_ge_u32 s2, 256"); e("s_cbranch_scc1 L_end")
    g.ts("start")
    e(f"s_lshr_b32 s{sBR}, s2, 7")
    e(f"s_mul_i32 s{sT0}, s{sBR}, 40")
    e(f"s_add_u32 s{sT2}, s0, s{sT0}"); e(f"s_addc_u32 s{sT3}, s1, 0")
    e(f"s_load_dwordx8 s[8:15], s[{sT2}:{sT3}], 8")
    e("s_load_dwordx2 s[16:17], s[0:1], 0")
    e("s_load_dwordx2 s[18:19], s[0:1], 104")
    e("s_load_dwordx4 s[20:23], s[0:1], 80")
    e(f"v_lshrrev_b32 v{vA}, 6, v0")
    e(f"v_and_b32 v{vL}, 63, v0")
    e(f"v_readfirstlane_b32 s{sW}, v{vA}")
    e(f"s_getpc_b64 s[{sM8}:{sM8+1}]")
    g.lab("L_pc")
    if o['codepf']:
        g.c("pull the kernel's code into L2: one dword per 128 B line (waves 1,2)")
        e(f"v_lshlrev_b32 v35, 7, v0"); e("v_subrev_u32 v35, 8192, v35")
        e(f"s_mov_b32 s{sT0}, L_codeend-L_pc-4")
        e(f"v_cmp_gt_u32 vcc, s{sT0}, v35")
        e(f"s_and_saveexec_b64 s[{sT2}:{sT3}], vcc")
        e("s_cbranch_execz L_nopf")
        e(f"global_load_dword v36, v35, s[{sM8}:{sM8+1}] {o['spol']}")
        g.lab("L_nopf")
        e("s_mov_b64 exec, -1")
    e(f"s_and_b32 s{sKVH}, s2, 7")
    e(f"s_bfe_u32 s{sMEM}, s2, 0x40003")
    e(f"s_lshr_b32 s{sB}, s{sMEM}, 1")
    e(f"s_lshl_b32 s{sG}, s{sBR}, 3"); e(f"s_add_u32 s{sG}, s{sG}, s{sKVH}")
    e(f"s_mul_i32 s{sT0}, s{sW}, {o['xa']}"); e(f"s_lshr_b32 s{sT1}, s2, 3"); e(f"s_mul_i32 s{sT1}, s{sT1}, {o['xb']}"); e(f"s_add_u32 s{sT0}, s{sT0}, s{sT1}")
    e(f"s_lshl_b32 s{sT0}, s{sT0}, 8"); e(f"s_and_b32 s{sR}, s{sT0}, {o['xm'] & 0xf00}")
    e(f"s_lshl_b32 s{sT0}, s{sB}, 24"); e(f"s_lshl_b32 s{sT1}, s{sKVH}, 21"); e(f"s_add_u32 s{sT0}, s{sT0}, s{sT1}")
    e(f"s_and_b32 s{sT1}, s{sMEM}, 1"); e(f"s_lshl_b32 s{sT1}, s{sT1}, 18"); e(f"s_add_u32 s{sT0}, s{sT0}, s{sT1}")
    if o['bx'] == 1:
        e(f"s_and_b32 s{sT2}, s{sMEM}, 8"); e(f"s_lshl_b32 s{sT2}, s{sT2}, 14"); e(f"s_or_b32 s{sR}, s{sR}, s{sT2}")
        e(f"s_xor_b32 s{sT1}, s{sW}, s{sMEM}"); e(f"s_and_b32 s{sT1}, s{sT1}, 7"); e(f"s_lshl_b32 s{sT1}, s{sT1}, 14")
    elif o['bx'] == 2:
        e(f"s_and_b32 s{sT2}, s{sMEM}, 1"); e(f"s_mul_i32 s{sT1}, s{sT2}, 7"); e(f"s_lshl_b32 s{sT2}, s{sT2}, 17"); e(f"s_or_b32 s{sR}, s{sR}, s{sT2}")
        e(f"s_xor_b32 s{sT1}, s{sW}, s{sT1}"); e(f"s_lshl_b32 s{sT1}, s{sT1}, 14")
    else:
        e(f"s_lshl_b32 s{sT1}, s{sW}, 14")
    e(f"s_add_u32 s{sT0}, s{sT0}, s{sT1}")
    e(f"s_add_u32 s{sT0}, s{sT0}, {3072*512}")
    e(f"v_bfe_u32 v{vA}, v{vL}, 2, 2"); e(f"v_lshlrev_b32 v{vA}, 12, v{vA}")
    e(f"v_lshrrev_b32 v{vB}, 4, v{vL}")
    e(f"v_lshl_add_u32 v{vKO}, v{vB}, 6, v{vA}")
    e(f"v_and_b32 v{vA}, 3, v{vL}"); e(f"v_lshl_add_u32 v{vKO}, v{vA}, 4, v{vKO}")
    e(f"v_add_u32 v{vKO}, s{sT0}, v{vKO}")
    e(f"v_and_b32 v{vC}, 15, v{vL}"); e(f"v_lshlrev_b32 v{vC}, 4, v{vC}")
    e(f"v_lshl_add_u32 v{vVO}, v{vB}, 12, v{vC}")
    e(f"v_add_u32 v{vVO}, s{sT0}, v{vVO}")
    e(f"v_lshlrev_b32 v33, 4, v{vL}")
    e(f"v_mov_b32 v34, 0")
    e(f"s_mov_b32 s{sK+2}, 0x8000000"); e(f"s_mov_b32 s{sK+3}, 0x20000")
    e(f"s_mov_b32 s{sWS+2}, {WS_SIZE}"); e(f"s_mov_b32 s{sWS+3}, 0x20000")
    e(f"s_mov_b32 s{sX+2}, 7168"); e(f"s_mov_b32 s{sX+3}, 0x20000")
    e(f"s_cmp_eq_u32 s{sW}, 0")
    e("s_waitcnt lgkmcnt(0)")
    e(f"s_mov_b32 s{sK}, s8"); e(f"s_mov_b32 s{sK+1}, s9")
    e(f"s_mov_b32 s{sWS}, s18"); e(f"s_mov_b32 s{sWS+1}, s19")
    e(f"s_mov_b32 s{sX}, s16"); e(f"s_mov_b32 s{sX+1}, s17")
    e("s_branch L_notw0" if o.get('now0') else "s_cbranch_scc0 L_notw0")
    srd(sWQ, 12, 3670016)
    e(f"v_lshrrev_b32 v32, 2, v{vL}"); e(f"v_lshlrev_b32 v32, 13, v32"); e(f"v_lshl_add_u32 v32, v{vA}, 4, v32")
    e(f"s_lshl_b32 s{sT0}, s{sKVH}, 10"); e(f"s_lshl_b32 s{sT1}, s{sMEM}, 6"); e(f"s_add_u32 s{sT0}, s{sT0}, s{sT1}")
    e(f"v_add_u32 v32, s{sT0}, v32")
    e(f"ds_write_b32 v34, v34 offset:{L_F}"); e(f"ds_write_b32 v34, v34 offset:{L_CNT}"); e("s_waitcnt lgkmcnt(0)")
    nd = 0
    for ii in range(o.get('dn', 28)):
        if nd == o['b0at']: e("s_barrier")
        nd += 1
        e(f"s_mov_b32 m0, {L_WQ+ii*1024}")
        e(f"s_mov_b32 s{sT2}, {ii*131072}")
        e(f"buffer_load_dwordx4 v32, {sr(sWQ)}, s{sT2} offen {POL} lds")
    for ii in range(0 if o.get('nox') else 7):
        if nd == o['b0at']: e("s_barrier")
        nd += 1
        e(f"s_mov_b32 m0, {L_X+ii*1024}")
        e(f"s_mov_b32 s{sT2}, {ii*1024}")
        e(f"buffer_load_dwordx4 v33, {sr(sX)}, s{sT2} offen {o['spol']} lds")
    e(f"buffer_load_dword v{vTAG}, v34, {sr(sWS)}, 0 offen {o['spol']}")
    if o['b0at'] >= nd: e("s_barrier")
    e(f"v_bfe_u32 v41, v{vL}, 2, 2")
    e(f"v_lshl_add_u32 v41, v{vB}, 3, v41"); e(f"v_lshlrev_b32 v41, 6, v41")
    e(f"v_lshl_add_u32 v41, v{vA}, 3, v41")
    e(f"v_and_b32 v43, 7, v{vL}"); e(f"v_mul_u32_u24 v42, 896, v43"); e(f"v_lshl_add_u32 v42, v{vB}, 4, v42")
    e(f"v_add_u32 v42, {L_X}, v42")
    e(f"s_lshl_b32 s{sT0}, s{sG}, 14"); e(f"s_lshl_b32 s{sT1}, s{sMEM}, 7"); e(f"s_add_u32 s{sT0}, s{sT0}, s{sT1}")
    e(f"s_add_u32 s{sT0}, s{sT0}, {WS_Q}"); e(f"s_add_u32 s{sT1}, s{sT0}, {WS_F}")
    e(f"v_lshlrev_b32 v43, 11, v43"); e(f"v_lshl_add_u32 v43, v{vB}, 4, v43")
    e(f"s_lshl_b32 s{sT3}, s{sG}, 3"); e(f"s_add_u32 s{sT3}, s{sT3}, s{sB}"); e(f"s_lshl_b32 s{sT3}, s{sT3}, 11"); e(f"s_add_u32 s{sT3}, s{sT3}, {WS_Q+WS_F}")
    e("s_waitcnt vmcnt(0)")
    g.ts("wq")
    e(f"v_and_b32 v{vTAG}, -8, v{vTAG}"); e(f"v_add_u32 v{vTAG}, 8, v{vTAG}")
    e("s_getreg_b32 s44, hwreg(HW_REG_XCC_ID, 0, 3)")
    steps = list(range(14)); first = True
    for ci in range(0, 14, 3):
        ch = steps[ci:ci+3]
        for k, s_ in enumerate(ch):
            a = 64 + 12*k
            for t in range(2):
                e(f"ds_read_b64_tr_b16 {vr(a+4*t,2)}, v41 offset:{L_WQ+s_*2048+t*32}")
                e(f"ds_read_b64_tr_b16 {vr(a+4*t+2,2)}, v41 offset:{L_WQ+s_*2048+256+t*32}")
            e(f"ds_read_b128 {vr(a+8)}, v42 offset:{s_*64}")
        e("s_waitcnt lgkmcnt(0)")
        for k, s_ in enumerate(ch):
            a = 64 + 12*k
            for t in range(2):
                e(f"v_mfma_f32_16x16x32_bf16 {vr(44+4*t)}, {vr(a+4*t)}, {vr(a+8)}, {'0' if first else vr(44+4*t)}")
            first = False
    e(f"v_or_b32 v53, s44, v{vTAG}"); e("v_mov_b32 v55, v53"); e(f"v_and_b32 v40, 8, v{vL}"); e("v_lshl_add_u32 v43, v40, 3, v43")
    e("s_mov_b32 vcc_lo, 0xff00ff00"); e("s_mov_b32 vcc_hi, 0xff00ff00"); e(f"s_mov_b32 s45, s{sT0}"); e("s_nop 0")
    for k in range(4): e(f"v_cndmask_b32 v{44+k}, v{44+k}, v{48+k}, vcc")
    e(f"v_cvt_pk_bf16_f32 v52, v44, v45"); e(f"v_cvt_pk_bf16_f32 v54, v46, v47")
    if o.get('noqst', 0) < 2: e(f"buffer_store_dwordx4 v[52:55], v43, {sr(sWS)}, s{sT1} offen {o['qpol']}")
    if not o['xc']: e(f"buffer_store_dwordx4 v[52:55], v43, {sr(sWS)}, s45 offen sc1")
    g.ts("qpub")
    e("s_mov_b32 s46, 1")
    if not o.get('noqw'):
        e(f"s_mov_b32 s{sSPIN}, {o['spin']}")
        g.lab("L_qg")
        e(f"buffer_load_dwordx4 v[64:67], v33, {sr(sWS)}, s{sT3} offen {o['ppol']}")
        e(f"buffer_load_dwordx4 v[68:71], v33, {sr(sWS)}, s{sT3} offen offset:1024 {o['ppol']}")
        e("s_waitcnt vmcnt(0)")
        for r in (65, 67, 69, 71): e(f"v_xor_b32 v{r+11}, v{r}, v{vTAG}")
        e("v_max3_u32 v60, v76, v78, v80"); e("v_max_u32 v60, v60, v82")
        e("v_cmp_lt_u32 vcc, 7, v60")
        e("s_cbranch_vccz L_qg_ok")
        e("s_mov_b64 exec, vcc")
        e(f"s_cmp_le_u32 s{sSPIN}, {o['spin']-o['fthr']}"); e(f"s_cselect_b32 s{sT0}, {WS_F}, 0"); e(f"s_xor_b32 s{sT3}, s{sT3}, s{sT0}")
        e(f"s_cmp_lg_u32 s{sSPIN}, {o['spin']-o['fthr']}"); e("s_cbranch_scc1 L_qg_n")
        g.c("slices missing for a long time: write own slice through; from now on rounds alternate between the two copies")
        e("s_mov_b64 exec, -1")
        e(f"buffer_store_dwordx4 v[52:55], v43, {sr(sWS)}, s45 offen sc1")
        e("s_mov_b64 exec, vcc")
        g.lab("L_qg_n")
        e(f"s_sub_u32 s{sSPIN}, s{sSPIN}, 1"); e("s_cbranch_scc0 L_qg")
        g.lab("L_qg_ok")
        e("s_mov_b64 exec, -1")
        e("v_min3_u32 v60, v65, v67, v69"); e("v_max3_u32 v61, v65, v67, v69"); e("v_min_u32 v60, v60, v71"); e("v_max_u32 v61, v61, v71")
        e("v_cmp_ne_u32 vcc, v60, v53"); e(f"v_cmp_ne_u32 s[{sT0}:{sT1}], v61, v53"); e(f"s_or_b64 vcc, vcc, s[{sT0}:{sT1}]")
        e("s_cbranch_scc0 L_qg_loc")
        g.c("some member runs on another die: its reads need the written-through copies")
        e(f"buffer_store_dwordx4 v[52:55], v43, {sr(sWS)}, s45 offen sc1")
        e("s_mov_b32 s46, 2")
        g.lab("L_qg_loc")
    if not o['xc']: e("s_mov_b32 s46, 2")
    e(f"v_lshlrev_b32 v60, 3, v{vL}")
    e(f"ds_write2_b32 v60, v64, v66 offset0:{L_QL//4} offset1:{L_QL//4+1}")
    e(f"ds_write2_b32 v60, v68, v70 offset0:{L_QL//4+128} offset1:{L_QL//4+129}")
    e("v_mov_b32 v61, s46"); e(f"ds_write_b32 v34, v61 offset:{L_F}")
    g.ts("qgot")
    for n in range(o['pre']): kload(n)
    e("s_branch L_kissue")
    g.lab("L_notw0")
    e(f"buffer_load_dword v{vTAG}, v34, {sr(sWS)}, 0 offen {o['spol']}")
    for n in range(o['pre']): kload(n)
    e("s_barrier")
    e(f"s_cmp_lg_u32 s{sW}, 7"); e("s_cbranch_scc1 L_kissue")
    srd(sGW, 20, 896)
    e(f"s_mul_i32 s{sT0}, s{sKVH}, 896")
    e(f"buffer_load_dwordx4 v[16:19], v33, {sr(sX)}, s{sT0} offen {o['spol']}")
    e(f"buffer_load_dwordx4 v[20:23], v33, {sr(sGW)}, 0 offen {o['spol']}")
    g.lab("L_kissue")
    if o['imm']:
        assert o['xm'] == 0
        e(f"s_xor_b32 s43, s{sR}, {BS}")
    srd(sV, 10, 0x8000000)
    if o['kv']:
        for n in range(o['pre'], 16): kload(n)
        for u in range(2):
            for j in range(8): vload(u, j)
    else:
        for n in range(o['pre'], 32): kload(n)
    g.ts("kiss")
    srd(sWO, 14, 3670016); srd(sOUT, 22, 7168)
    s0, s1 = o['skip']
    e(f"s_mov_b32 s{sROLE}, s{sMEM}")
    e(f"s_cmp_gt_u32 s{sMEM}, {s1}"); e(f"s_cselect_b32 s{sT0}, 2, 0"); e(f"s_sub_u32 s{sROLE}, s{sROLE}, s{sT0}")
    e(f"s_sub_u32 s{sT0}, s{sMEM}, {s0}"); e(f"s_cmp_lt_u32 s{sT0}, 2"); e(f"s_cselect_b32 s{sROLE}, 14, s{sROLE}")
    e(f"s_cmp_ge_u32 s{sROLE}, 7"); e(f"s_cselect_b32 s{sH3}, 1, 0"); e(f"s_mul_i32 s{sT0}, s{sH3}, 7"); e(f"s_sub_u32 s{sNL}, s{sROLE}, s{sT0}")
    def wo_setup(nper, va, vb, vc, vd):
        e(f"s_lshl_b32 s{sT0}, s{sKVH}, 9"); e(f"s_lshl_b32 s{sT1}, s{sH3}, 8"); e(f"s_add_u32 s{sT0}, s{sT0}, s{sT1}"); e(f"s_mul_i32 s{sT1}, s{sW}, {8*nper}"); e(f"s_add_u32 s{sT0}, s{sT0}, s{sT1}")
        e(f"s_mul_i32 s{sT0}, s{sT0}, 896"); e(f"s_lshl_b32 s{sT1}, s{sNL}, 7"); e(f"s_add_u32 s35, s{sT0}, s{sT1}")
        e(f"s_cmp_eq_u32 s{sROLE}, 14"); e(f"s_cselect_b32 s35, 0x4000000, s35")
        if o.get('nowo'): e(f"s_mov_b32 s35, 0x4000000")
        e(f"v_lshrrev_b32 v{va}, 3, v{vL}"); e(f"v_mul_u32_u24 v{vb}, 896, v{va}"); e(f"v_and_b32 v{vc}, 7, v{vL}")
        e(f"v_and_b32 v{va}, 2, v{va}"); e(f"v_xor_b32 v{vc}, v{vc}, v{va}"); e(f"v_xor_b32 v{vd}, 4, v{vc}")
        e(f"v_lshl_add_u32 v{va}, v{vc}, 4, v{vb}"); e(f"v_lshl_add_u32 v{vb}, v{vd}, 4, v{vb}")
    def wo_issue(nper, va, vb):
        e(f"s_mul_i32 s46, s{sW}, {1024*nper}")
        for ii in range(nper):
            e(f"s_add_u32 m0, s46, {L_WO+ii*1024}")
            e(f"s_add_u32 s47, s35, {ii*8*896}")
            e(f"buffer_load_dwordx4 v{vb if ii%2 else va}, {sr(sWO)}, s47 offen {POL} lds")
    NWO = 0 if o['wol'] else 4
    if o.get('nodma'): NWO = 0
    elif not o['wol']:
        wo_setup(4, 60, 61, 62, 63); wo_issue(4, 60, 61)
    for v in range(8):
        pat = (0x11 << (v & 3)) << (8*(v >> 2)); pat |= pat << 16
        e(f"s_mov_b32 s{sMASK+2*v}, 0x{pat:08x}"); e(f"s_mov_b32 s{sMASK+2*v+1}, 0x{pat:08x}")
    e(f"s_mov_b32 s{sSEL0}, 0x05040100"); e(f"s_mov_b32 s{sSEL1}, 0x07060302")
    e(f"s_mov_b32 s{sC}, 0x{f2u(math.log2(math.e)/16):08x}")
    e(f"s_mov_b32 s{sM8}, 0xff00ff00"); e(f"s_mov_b32 s{sM8+1}, 0xff00ff00")
    e(f"s_cmp_eq_u32 s{sW}, 0"); e("s_cbranch_scc1 L_b2")
    e(f"s_waitcnt vmcnt({32 - o['pre'] + NWO})")
    e(f"v_and_b32 v{vTAG}, -8, v{vTAG}"); e(f"v_add_u32 v{vTAG}, 8, v{vTAG}")
    e(f"s_cmp_lg_u32 s{sW}, 7"); e("s_cbranch_scc1 L_b2")
    e(f"v_cmp_gt_u32 vcc, 56, v{vL}"); e("v_mov_b32 v24, 0"); e("s_nop 0")
    for k in range(4): e(f"v_cndmask_b32 v{16+k}, 0, v{16+k}, vcc")
    for k in range(4):
        e(f"v_lshlrev_b32 v25, 16, v{16+k}"); e(f"v_and_b32 v26, 0xffff0000, v{16+k}")
        e(f"v_lshlrev_b32 v27, 16, v{20+k}"); e(f"v_and_b32 v28, 0xffff0000, v{20+k}")
        e("v_mul_f32 v25, v25, v27"); e("v_mul_f32 v26, v26, v28")
        e("v_cvt_pk_bf16_f32 v25, v25, v26")
        e("v_lshlrev_b32 v26, 16, v25"); e("v_and_b32 v25, 0xffff0000, v25")
        e("v_add_f32 v24, v24, v26"); e("v_add_f32 v24, v24, v25")
    for dpp in ("quad_perm:[1,0,3,2]", "quad_perm:[2,3,0,1]", "row_ror:4", "row_ror:8"):
        e("s_nop 1"); e(f"v_add_f32_dpp v24, v24, v24 {dpp} {DPP}")
    for sw in ("16", "32"):
        e("v_mov_b32 v25, v24"); e("s_nop 1"); e(f"v_permlane{sw}_swap_b32 v24, v25"); e("v_add_f32 v24, v24, v25")
    e("v_cvt_pk_bf16_f32 v24, v24, v24"); e("v_and_b32 v24, 0xffff0000, v24")
    e(f"v_mul_f32 v24, 0x{f2u(-math.log2(math.e)):08x}, v24"); e("v_exp_f32 v24, v24"); e("s_nop 0")
    e("v_add_f32 v24, 1.0, v24"); e("v_rcp_f32 v24, v24"); e("s_nop 0")
    e("v_cvt_pk_bf16_f32 v24, v24, v24"); e("v_and_b32 v24, 0xffff0000, v24")
    e("v_sub_f32 v25, 1.0, v24"); e("v_cvt_pk_bf16_f32 v25, v25, v25"); e("v_and_b32 v25, 0xffff0000, v25")
    e("v_readfirstlane_b32 s22, v24"); e("v_readfirstlane_b32 s23, v25")
    g.lab("L_b2")
    e(f"v_bfe_u32 v{vC}, v{vL}, 2, 1"); e(f"v_lshlrev_b32 v{vA}, 9, v{vC}")
    e(f"v_lshl_add_u32 v{vA}, v{vB}, 6, v{vA}")
    e(f"v_and_b32 v60, 3, v{vL}"); e(f"v_lshl_add_u32 v{vA}, v60, 4, v{vA}")
    e(f"s_and_b32 s{sT0}, s{sR}, 0x100"); e(f"v_add_u32 v{vA}, s{sT0}, v{vA}"); e(f"v_xor_b32 v60, 0x100, v{vA}")
    e("v_mov_b32 v62, 0"); e("s_mov_b32 s42, 1")
    if not o.get('noqw'):
        g.lab("L_qwait")
        e(f"ds_read_b32 v61, v62 offset:{L_F}"); e("s_waitcnt lgkmcnt(0)"); e(f"v_readfirstlane_b32 s42, v61"); e(f"s_cmp_lg_u32 s42, 0"); e("s_cbranch_scc1 L_qready")
        e(f"s_sleep {o['qsl']}"); e("s_branch L_qwait")
        g.lab("L_qready")
    g.ts("B2")
    e(f"ds_read_b128 {vr(vQB)}, v{vA} offset:{L_QL}")
    e(f"ds_read_b128 {vr(vQB+4)}, v60 offset:{L_QL}")
    e("s_waitcnt lgkmcnt(0)")
    def xred(r, t, op):
        for sw in ("16", "32"):
            e(f"v_mov_b32 v{t}, v{r}"); e("s_nop 1"); e(f"v_permlane{sw}_swap_b32 v{r}, v{t}"); e(f"{op} v{r}, v{r}, v{t}")
    def soft(blk):
        if o.get('nocomp'): return
        S = vS + 8*blk
        if o['round_s']:
            for u in range(0, 8, 2): e(f"v_cvt_pk_bf16_f32 v{vP8+u//2}, v{S+u}, v{S+u+1}")
            for u in range(0, 8, 2):
                e(f"v_lshlrev_b32 v{S+u}, 16, v{vP8+u//2}"); e(f"v_and_b32 v{S+u+1}, 0xffff0000, v{vP8+u//2}")
        e(f"v_max3_f32 v{vA}, v{S}, v{S+1}, v{S+2}"); e(f"v_max3_f32 v{vB}, v{S+3}, v{S+4}, v{S+5}")
        e(f"v_max3_f32 v{vA}, v{vA}, v{S+6}, v{S+7}"); e(f"v_max_f32 v{vA}, v{vA}, v{vB}")
        xred(vA, vB, "v_max_f32")
        if blk == 0:
            e(f"v_mul_f32 v{vM0}, s{sC}, v{vA}")
        else:
            e(f"v_mul_f32 v{vA}, s{sC}, v{vA}"); e(f"v_max_f32 v{vA}, v{vA}, v{vM0}")
            e(f"v_sub_f32 v{vAL}, v{vM0}, v{vA}"); e(f"v_mov_b32 v{vM0}, v{vA}"); e(f"v_exp_f32 v{vAL}, v{vAL}")
        for u in range(8): e(f"v_fma_f32 v{S+u}, v{S+u}, s{sC}, -v{vM0}")
        for u in range(8): e(f"v_exp_f32 v{S+u}, v{S+u}")
        e("s_nop 0")
        for t in range(4): e(f"v_cvt_pk_bf16_f32 v{vP8+t}, v{S+2*t}, v{S+2*t+1}")
        for t in range(4): e(f"v_add_f32 v{S+t}, v{S+t}, v{S+t+4}")
        e(f"v_add_f32 v{S}, v{S}, v{S+2}"); e(f"v_add_f32 v{S+1}, v{S+1}, v{S+3}")
        if blk == 0:
            e(f"v_add_f32 v{vL0}, v{S}, v{S+1}")
        else:
            e(f"v_add_f32 v{S}, v{S}, v{S+1}"); e(f"v_fmac_f32 v{S}, v{vL0}, v{vAL}")
            xred(S, S+1, "v_add_f32")
            e(f"ds_write_b32 v{vSA}, v{vM0} offset:{L_SM}"); e(f"ds_write_b32 v{vSA}, v{S} offset:{L_SL}")
            e(f"v_mov_b32 v{S+1}, 1"); e(f"v_mov_b32 v{S+2}, 0"); e("s_mov_b64 exec, 1")
            e(f"ds_add_u32 v{S+2}, v{S+1} offset:{L_CNT}"); e("s_mov_b64 exec, -1")
            e(f"v_readlane_b32 s{sT0}, v{vAL}, 0"); e(f"v_readlane_b32 s{sT1}, v{vAL}, 4")
        for v in range(8):
            for t in range(4):
                e(f"v_cndmask_b32 v{vPV+4*v+t}, 0, v{vP8+t}, s[{sMASK+2*v}:{sMASK+2*v+1}]")
    def pv(unit):
        if o.get('nocomp'): return
        blk, hf = unit//2, unit % 2
        base = vreg(unit); acc = vACC + 4*hf
        def perms(d):
            for t in range(4):
                e(f"v_perm_b32 v{vT+4*(d%3)+t}, v{base+4*(2*t+1)+d//2}, v{base+4*(2*t)+d//2}, s{sSEL1 if d&1 else sSEL0}")
        perms(0)
        for d in range(8):
            if d < 7: perms(d+1)
            else: g.nop(2)
            cin = "0" if (blk == 0 and d == 0) else vr(acc)
            e(f"v_mfma_f32_16x16x32_bf16 {vr(acc)}, {vr(vPV+4*d)}, {vr(vT+4*(d%3))}, {cin}")
    def qkm(bt, dbase, wait):
        e(f"s_waitcnt vmcnt({wait})")
        g.ts(f"K{bt}")
        if o.get('nocomp'): return
        for u in range(4*bt, 4*bt+4):
            d = dbase + 4*(u % 4)
            e(f"v_mfma_f32_16x16x32_bf16 {vr(d)}, {vr(kreg(2*u))}, {vr(vQB)}, 0")
            e(f"v_mfma_f32_16x16x32_bf16 {vr(d)}, {vr(kreg(2*u+1))}, {vr(vQB+4)}, {vr(d)}")
    def postb(bt, dbase):
        if o.get('nocomp'): return
        for step in range(4):
            for u in range(4*bt, 4*bt+4):
                d = dbase + 4*(u % 4); s_ = vS + u
                if step == 0: e(f"v_mov_b32_dpp v{s_}, v{d} quad_perm:[0,0,0,0] {DPP}")
                else: e(f"v_add_f32_dpp v{s_}, v{d+step}, v{s_} quad_perm:[{step},{step},{step},{step}] {DPP}")
    def vunit(u):
        for j in range(8): vload(u, j)
    def addrs():
        e(f"v_lshlrev_b32 v{vC}, 5, v{vC}")
        e(f"s_lshl_b32 s{sT0}, s{sW}, 2"); e(f"v_add_u32 v{vSA}, s{sT0}, v{vC}")
        e(f"v_bfe_u32 v{vC}, v{vL}, 4, 1"); e(f"v_lshlrev_b32 v{vORA}, 10, v{vC}"); e(f"v_lshlrev_b32 v{vC}, 5, v{vC}")
        e(f"v_and_b32 v{vORB}, 15, v{vL}"); e(f"v_lshl_add_u32 v{vORA}, v{vORB}, 5, v{vORA}")
        e(f"v_lshrrev_b32 v{vORB}, 5, v{vL}"); e(f"v_lshl_add_u32 v{vORA}, v{vORB}, 4, v{vORA}")
        e(f"s_and_b32 s{sT1}, s{sR}, 0x100"); e(f"s_lshl_b32 s{sT1}, s{sT1}, 1"); e(f"v_add_u32 v{vORA}, s{sT1}, v{vORA}"); e(f"v_xor_b32 v{vORB}, 0x200, v{vORA}")
        e(f"s_lshl_b32 s{sT0}, s{sW}, 11"); e(f"s_add_u32 s{sT0}, s{sT0}, {L_OR}"); e(f"v_add_u32 v{vORA}, s{sT0}, v{vORA}"); e(f"v_add_u32 v{vORB}, s{sT0}, v{vORB}")
        if o['pret']:
            e(f"s_sub_u32 s{sT0}, s{sW}, 1"); e(f"s_cmp_gt_u32 s{sT0}, 1"); e("s_cbranch_scc1 L_nopre")
            e(f"s_and_b32 s{sT1}, s{sMEM}, 1"); e(f"s_lshl_b32 s{sT1}, s{sT1}, 3"); e(f"s_add_u32 s{sT1}, s{sT1}, s{sB}")
            e(f"s_lshl_b32 s{sT2}, s{sG}, 1"); e(f"s_add_u32 s{sT2}, s{sT2}, s{sT0}")
            e(f"s_lshl_b32 s{sT2}, s{sT2}, 14"); e(f"s_lshl_b32 s{sT1}, s{sT1}, 10"); e(f"s_add_u32 s{sT2}, s{sT2}, s{sT1}"); e(f"s_add_u32 s{sT2}, s{sT2}, {WS_O+WS_F}")
            e(f"v_add_u32 v60, 1, v{vTAG}"); e("v_mov_b32 v61, v60"); e("v_mov_b32 v62, v60"); e("v_mov_b32 v63, v60"); e(f"v_lshlrev_b32 v55, 4, v{vL}")
            e(f"buffer_store_dwordx4 v[60:63], v55, {sr(sWS)}, s{sT2} offen")
            g.lab("L_nopre")
            e("s_nop 1")
    W = NWO
    if o['kv'] == 0:
        qkm(0, 32, 24+W); vunit(0); qkm(1, 48, 24+W); vunit(1)
        postb(0, 32); postb(1, 48); addrs(); soft(0)
        qkm(2, 32, 24+W); vunit(2); postb(2, 32)
        e("s_waitcnt vmcnt(16)"); g.ts("V0"); pv(0)
        qkm(3, 96, 24+W); vunit(3)
        g.ts("QK")
        e("s_waitcnt vmcnt(16)"); g.ts("V1"); pv(1)
        postb(3, 96); soft(1)
    else:
        K2 = (o['kv'] == 2)
        qkm(0, 32, 24+W)
        if not K2:
            for n in range(16, 24): kload(n)
        qkm(1, 48, (16 if K2 else 24)+W)
        if not K2:
            for n in range(24, 32): kload(n)
        else: g.nop(4)
        postb(0, 32); postb(1, 48); addrs(); soft(0)
        if K2:
            e(f"s_waitcnt vmcnt({8+W})"); pv(0)
            e(f"s_waitcnt vmcnt({W})"); pv(1)
            for n in range(16, 32): kload(n)
            vunit(2); vunit(3)
        else:
            e(f"s_waitcnt vmcnt({24+W})"); pv(0); vunit(2)
            e(f"s_waitcnt vmcnt({24+W})"); pv(1); vunit(3)
        g.ts("QK")
        qkm(2, 32, 24); qkm(3, 96, 16)
        postb(2, 32); postb(3, 96); soft(1)
    e(f"v_mov_b32 v{vAL}, s{sT0}"); e(f"v_mov_b32 v{vA}, s{sT1}"); e(f"s_mov_b32 vcc_lo, 0xffff0000"); e(f"s_mov_b32 vcc_hi, 0xffff0000")
    e(f"v_cndmask_b32 v{vAL}, v{vAL}, v{vA}, vcc")
    for k in range(8): e(f"v_mul_f32 v{vACC+k}, v{vACC+k}, v{vAL}")
    g.ts("P")
    e(f"s_waitcnt vmcnt(8)"); g.ts("V2"); pv(2)
    e(f"s_lshl_b32 s{sT0}, s{sW}, 2"); e(f"v_add_u32 v{vB}, s{sT0}, v{vC}"); e("v_mov_b32 v62, 0")
    if o.get('nocomp') or o.get('nosw'): e("s_branch L_sready")
    g.lab("L_swait")
    e(f"ds_read_b32 v61, v62 offset:{L_CNT}"); e("s_waitcnt lgkmcnt(0)"); e(f"v_readfirstlane_b32 s{sT0}, v61"); e(f"s_cmp_eq_u32 s{sT0}, 8"); e("s_cbranch_scc1 L_sready")
    e(f"s_sleep {o['ssl']}"); e("s_branch L_swait")
    g.lab("L_sready")
    e(f"ds_read_b128 {vr(16)}, v{vC} offset:{L_SM}"); e(f"ds_read_b128 {vr(20)}, v{vC} offset:{L_SM+16}")
    e(f"ds_read_b32 v{vF}, v{vB} offset:{L_SM}")
    e(f"ds_read_b128 {vr(24)}, v{vC} offset:{L_SL}"); e(f"ds_read_b128 {vr(28)}, v{vC} offset:{L_SL+16}")
    e("s_waitcnt lgkmcnt(0)")
    e("v_max3_f32 v124, v16, v17, v18"); e("v_max3_f32 v125, v19, v20, v21"); e("v_max3_f32 v124, v124, v22, v23"); e("v_max_f32 v124, v124, v125")
    for w in range(8): e(f"v_sub_f32 v{16+w}, v{16+w}, v124")
    e(f"v_sub_f32 v{vF}, v{vF}, v124")
    for w in range(8): e(f"v_exp_f32 v{16+w}, v{16+w}")
    e(f"v_exp_f32 v{vF}, v{vF}")
    e("v_mul_f32 v126, v24, v16")
    for w in range(1, 8): e(f"v_fmac_f32 v126, v{24+w}, v{16+w}")
    e(f"v_rcp_f32 v16, v126"); e(f"v_mov_b32 v125, v{vTAG}"); e(f"v_mov_b32 v127, v{vTAG}")
    e(f"v_mul_f32 v{vF}, v{vF}, v16")
    e(f"v_lshrrev_b32 v53, 4, v{vL}")
    e(f"v_lshlrev_b32 v60, 4, v{vL}")
    e(f"s_lshl_b32 s{sT2}, s{sG}, 1")
    e(f"s_cmp_lt_u32 s{sW}, 4"); e("s_cbranch_scc1 L_a03")
    e(f"s_cmp_eq_u32 s{sW}, 4"); e("s_cbranch_scc1 L_a4")
    e(f"s_cmp_eq_u32 s{sW}, 7"); e("s_cbranch_scc1 L_a7")
    e(f"s_sub_u32 s{sT0}, s{sW}, 5")
    e(f"s_and_b32 s{sT1}, s{sMEM}, 1"); e(f"s_lshl_b32 s{sT1}, s{sT1}, 3"); e(f"s_add_u32 s{sT1}, s{sT1}, s{sB}")
    e(f"s_add_u32 s{sT2}, s{sT2}, s{sT0}")
    e(f"s_lshl_b32 s44, s{sT2}, 14"); e(f"s_lshl_b32 s45, s{sT1}, 10"); e(f"s_add_u32 s44, s44, s45"); e(f"s_add_u32 s44, s44, {WS_O}"); e(f"s_add_u32 s45, s44, {WS_F}")
    e(f"s_lshl_b32 s{sT2}, s{sT2}, 8"); e(f"s_lshl_b32 s{sT1}, s{sT1}, 4"); e(f"s_add_u32 s{sT2}, s{sT2}, s{sT1}"); e(f"s_add_u32 s{sT2}, s{sT2}, {WS_S}"); e(f"s_add_u32 s{sT3}, s{sT2}, {WS_F}")
    e(f"s_lshl_b32 s{sT1}, s{sT0}, 4"); e(f"s_lshl_b64 exec, 1, s{sT1}")
    e(f"s_cmp_eq_u32 s42, 1"); e(f"s_cselect_b32 s{sT2}, 0x4000000, s{sT2}"); e("s_cselect_b32 s44, 0x4000000, s44")
    e(f"buffer_store_dwordx4 v[124:127], v62, {sr(sWS)}, s{sT3} offen")
    e(f"buffer_store_dwordx4 v[124:127], v62, {sr(sWS)}, s{sT2} offen sc1")
    e("s_mov_b64 exec, -1")
    e(f"s_lshl_b32 s{sT1}, s{sT0}, 10"); e(f"s_add_u32 s{sT1}, s{sT1}, {L_OR}"); e(f"v_add_u32 v61, s{sT1}, v60")
    e(f"v_mov_b32 v97, v{vTAG}"); e(f"v_mov_b32 v99, v{vTAG}")
    e("s_waitcnt vmcnt(2)")
    e("s_branch L_v3")
    g.lab("L_a03")
    e(f"s_add_u32 s{sT2}, s{sT2}, s{sH3}")
    e(f"v_and_b32 v54, 15, v{vL}"); e("v_lshlrev_b32 v52, 10, v54"); e("v_lshl_add_u32 v52, v53, 5, v52"); e("v_lshlrev_b32 v54, 2, v54")
    e(f"s_lshl_b32 s{sT3}, s{sT2}, 14"); e(f"s_lshl_b32 s{sT0}, s{sW}, 8"); e(f"s_add_u32 s{sT3}, s{sT3}, s{sT0}"); e(f"s_add_u32 s{sT3}, s{sT3}, {WS_O+WS_F}")
    e(f"s_lshl_b32 s{sT0}, s{sW}, 11"); e(f"v_add_u32 v61, s{sT0}, v60")
    e(f"v_bfe_u32 v55, v{vL}, 2, 2"); e("v_lshl_add_u32 v63, v53, 3, v55"); e("v_lshlrev_b32 v63, 7, v63")
    e(f"v_bfe_u32 v16, v{vL}, 1, 1"); e(f"s_lshl_b32 s{sT0}, s{sW}, 1"); e(f"v_add_u32 v16, s{sT0}, v16")
    if o['wosw']:
        e("v_and_b32 v55, 2, v55"); e("v_xor_b32 v16, v16, v55"); e("v_and_b32 v55, 1, v53"); e("v_lshlrev_b32 v55, 2, v55"); e("v_xor_b32 v16, v16, v55")
    e("v_lshl_add_u32 v63, v16, 4, v63"); e(f"v_and_b32 v16, 1, v{vL}"); e("v_lshl_add_u32 v63, v16, 3, v63"); e(f"v_add_u32 v63, {L_WO}, v63")
    e(f"s_lshl_b32 s{sT0}, s{sNL}, 2"); e(f"s_add_u32 s{sT0}, s{sT0}, s{sW}"); e(f"s_lshl_b32 s{sT0}, s{sT0}, 15"); e(f"s_lshl_b32 s44, s{sT2}, 7")
    e(f"s_add_u32 s44, s44, s{sT0}"); e(f"s_add_u32 s44, s44, {WS_P}")
    e(f"v_and_b32 v55, 7, v{vL}"); e("v_lshlrev_b32 v55, 12, v55"); e("v_lshl_add_u32 v55, v53, 5, v55")
    e(f"v_bfe_u32 v16, v{vL}, 3, 1"); e("v_lshl_add_u32 v55, v16, 4, v55")
    e(f"v_mov_b32 v109, v{vTAG}"); e(f"v_mov_b32 v111, v{vTAG}")
    e(f"s_lshl_b32 s45, s{sG}, 2"); e(f"s_add_u32 s45, s45, {WS_H}"); e(f"v_lshlrev_b32 v17, 8, v{vL}")
    if o['wol']: wo_setup(8, 18, 19, 20, 21)
    e("s_branch L_nostat")
    g.lab("L_a4")
    e(f"s_add_u32 s{sT2}, s{sT2}, s{sH3}"); e(f"s_lshl_b32 s{sT3}, s{sT2}, 8"); e(f"s_add_u32 s{sT3}, s{sT3}, {WS_S+WS_F}")
    e(f"v_and_b32 v54, 15, v{vL}"); e("v_lshlrev_b32 v55, 4, v54"); e("v_lshlrev_b32 v54, 2, v54")
    e("s_branch L_nostat")
    g.lab("L_a7")
    e(f"s_lshl_b32 s{sT3}, s2, 12"); e(f"s_add_u32 s{sT3}, s{sT3}, {WS_P}")
    e(f"v_and_b32 v54, 7, v{vL}"); e("v_lshlrev_b32 v54, 2, v54"); e(f"v_lshlrev_b32 v55, 2, v{vL}")
    e(f"s_mul_i32 s21, s{sKVH}, 896"); e("s_lshr_b32 s20, s2, 3"); e("s_lshl_b32 s20, s20, 5"); e("s_add_u32 s21, s21, s20")
    e(f"s_and_b32 s20, s2, {o['nrep']-1}"); e("s_lshl_b32 s20, s20, 8"); e(f"s_add_u32 s20, s20, {WS_H}")
    g.lab("L_nostat")
    e("s_waitcnt vmcnt(0)")
    g.lab("L_v3")
    for k in range(4): e(f"v_mul_f32 v{vACC+k}, v{vACC+k}, v{vF}")
    g.ts("V3")
    e(f"ds_write_b128 v{vORA}, {vr(vACC)}")
    pv(3)
    e(f"s_cmp_lt_u32 s{sW}, 5")
    g.nop(7)
    for k in range(4): e(f"v_mul_f32 v{vACC+4+k}, v{vACC+4+k}, v{vF}")
    e(f"ds_write_b128 v{vORB}, {vr(vACC+4)}")
    if o['wol']:
        e(f"s_cmp_gt_u32 s{sW}, 3"); e("s_cbranch_scc1 L_nowo")
        wo_issue(8, 18, 19)
        g.lab("L_nowo")
        e(f"s_cmp_lt_u32 s{sW}, 5")
    e("s_waitcnt lgkmcnt(0)")
    e("s_barrier")
    g.ts("B4")
    if o.get('stopb4'): e("s_branch L_fin")
    e("s_cbranch_scc1 L_cons")
    e(f"s_cmp_eq_u32 s{sW}, 7"); e("s_cbranch_scc1 L_w7")
    for w in range(8): e(f"ds_read_b128 {vr(64+4*w)}, v61 offset:{w*2048}")
    for w in range(1, 8, 2):
        e(f"s_waitcnt lgkmcnt({0 if o['ts'] else 7-w})")
        for k in range(4): e(f"v_add_f32 v{64+4*(w-1)+k}, v{64+4*(w-1)+k}, v{64+4*w+k}")
        if w > 1:
            for k in range(4): e(f"v_add_f32 v{64+k}, v{64+k}, v{64+4*(w-1)+k}")
    e("v_cvt_pk_bf16_f32 v96, v64, v65"); e("v_cvt_pk_bf16_f32 v98, v66, v67")
    e(f"buffer_store_dwordx4 v[96:99], v60, {sr(sWS)}, s45 offen {o['opol']}")
    g.ts("opub")
    e(f"buffer_store_dwordx4 v[96:99], v60, {sr(sWS)}, s44 offen sc1")
    e(f"s_cmp_eq_u32 s{sROLE}, 14"); e("s_cbranch_scc1 L_fin")
    e("s_barrier")
    e("s_branch L_fin")
    g.lab("L_cons")
    e(f"s_cmp_eq_u32 s{sROLE}, 14"); e("s_cbranch_scc1 L_fin")
    e(f"s_cmp_lt_u32 s{sW}, 4"); e("s_cbranch_scc1 L_gath")
    e("s_mov_b64 exec, 0xffff")
    def sl(): e(f"buffer_load_dwordx4 {vr(160)}, v55, {sr(sWS)}, s{sT3} offen {o.get('ppol2', o['ppol'])}")
    poll("sg", sl, [161, 163], 58, 59, o['sleep1'])
    e(f"v_mov_b32_dpp v100, v160 row_ror:8 {DPP}")
    e(f"v_mov_b32_dpp v101, v162 row_ror:8 {DPP}")
    e("v_max_f32 v102, v160, v100")
    e("v_sub_f32 v103, v160, v102"); e("v_sub_f32 v100, v100, v102")
    e("v_exp_f32 v103, v103"); e("v_exp_f32 v100, v100"); e("s_nop 0")
    e("v_mul_f32 v103, v103, v162"); e("v_fma_f32 v100, v100, v101, v103")
    e("v_rcp_f32 v100, v100"); e("s_nop 0"); e("v_mul_f32 v103, v103, v100")
    e("s_mov_b64 exec, 0xffff")
    e(f"ds_write_b32 v54, v103 offset:{L_W}")
    e("s_waitcnt lgkmcnt(0)")
    e("s_barrier")
    e("s_branch L_fin")
    g.lab("L_gath")
    def gl():
        for k in range(2):
            e(f"buffer_load_dwordx4 {vr(128+8*k)}, v52, {sr(sWS)}, s{sT3} offen offset:{128*k} {o.get('ppol2', o['ppol'])}")
            e(f"buffer_load_dwordx4 {vr(132+8*k)}, v52, {sr(sWS)}, s{sT3} offen offset:{128*k+16} {o.get('ppol2', o['ppol'])}")
    def wofr():
        for k in range(8):
            e(f"ds_read_b64_tr_b16 {vr(64+4*k,2)}, v63 offset:{k*4096}")
            e(f"ds_read_b64_tr_b16 {vr(66+4*k,2)}, v63 offset:{k*4096+512}")
            if k == 6: e("s_waitcnt lgkmcnt(4)")
    if not o['g1p']:
        poll("g1", gl, [129+2*i for i in range(8)], 58, 59, o['sleep1'], first=None if o['wol'] else wofr)
        for k in range(2):
            e(f"v_mov_b32 v{129+8*k}, v{130+8*k}"); e(f"v_mov_b32 v{130+8*k}, v{132+8*k}"); e(f"v_mov_b32 v{131+8*k}, v{134+8*k}")
            e(f"ds_write_b128 v61, {vr(128+8*k)} offset:{L_B3+1024*k}")
    else:
        def gl2(b):
            for k in range(2):
                e(f"buffer_load_dwordx4 {vr(b+8*k)}, v52, {sr(sWS)}, s{sT3} offen offset:{128*k} sc1")
                e(f"buffer_load_dwordx4 {vr(b+4+8*k)}, v52, {sr(sWS)}, s{sT3} offen offset:{128*k+16} sc1")
        e(f"s_mov_b32 s{sSPIN}, {o['spin']}"); e("s_mov_b64 s[66:67], 0")
        gl2(128); wofr(); e(f"s_sleep {o['g1p']}"); gl2(144)
        g.lab("L_g1")
        e("s_waitcnt vmcnt(4)")
        tagcheck([129+2*i for i in range(8)], 58, 59)
        e("s_cbranch_scc0 L_g1_ok")
        e("s_mov_b64 exec, vcc")
        gl2(128)
        e("s_waitcnt vmcnt(4)")
        tagcheck([145+2*i for i in range(8)], 58, 59)
        e("s_andn2_b64 s[64:65], exec, vcc"); e("s_or_b64 s[66:67], s[66:67], s[64:65]")
        e("s_cmp_eq_u64 vcc, 0"); e("s_cbranch_scc1 L_g1_ok")
        e("s_mov_b64 exec, vcc")
        e(f"s_cmp_eq_u32 s{sSPIN}, {o['spin']-o['fthr']}"); e(f"s_cselect_b32 s{sT0}, {WS_F}, 0"); e(f"s_sub_u32 s{sT3}, s{sT3}, s{sT0}")
        gl2(144)
        e(f"s_sub_u32 s{sSPIN}, s{sSPIN}, 1"); e("s_cbranch_scc0 L_g1")
        g.lab("L_g1_ok")
        e("s_mov_b64 exec, -1")
        for k in range(2):
            for t in range(4): e(f"v_cndmask_b32 v{192+4*k+t}, v{128+8*k+2*t}, v{144+8*k+2*t}, s[66:67]")
            e(f"ds_write_b128 v61, {vr(192+4*k)} offset:{L_B3+1024*k}")
    e(f"s_or_b32 s{sT0}, s{sW}, s{sMEM}"); e("s_cbranch_scc1 L_nohint")
    if o['nrep'] < 64: e(f"s_mov_b64 exec, {hex((1<<o['nrep'])-1)}")
    e(f"buffer_store_dword v{vTAG}, v17, {sr(sWS)}, s45 offen sc1")
    e("s_mov_b64 exec, -1")
    g.lab("L_nohint")
    g.ts("G1")
    e("s_waitcnt lgkmcnt(0)")
    e("s_barrier")
    g.ts("B5")
    if o['wol']:
        e(f"ds_read_b32 v103, v54 offset:{L_W}")
        def rd(k):
            e(f"ds_read_b64_tr_b16 {vr(64+4*k,2)}, v63 offset:{k*4096}")
            e(f"ds_read_b64_tr_b16 {vr(66+4*k,2)}, v63 offset:{k*4096+512}")
            e(f"ds_read_b128 {vr(160+4*k)}, v60 offset:{L_B3+k*1024}")
        for k in range(4): rd(k)
        for k in range(8):
            e(f"s_waitcnt lgkmcnt({0 if 'B5' in o.get('tson',()) else 3*min(3, 7-k)})")
            e(f"v_mfma_f32_16x16x32_bf16 {vr(96)}, {vr(64+4*k)}, {vr(160+4*k)}, {'0' if k==0 else vr(96)}")
            if k+4 < 8: rd(k+4)
    else:
        for k in range(8): e(f"ds_read_b128 {vr(160+4*k)}, v60 offset:{L_B3+k*1024}")
        e(f"ds_read_b32 v103, v54 offset:{L_W}")
        for k in range(8):
            e(f"s_waitcnt lgkmcnt({0 if 'B5' in o.get('tson',()) else 8-k})")
            e(f"v_mfma_f32_16x16x32_bf16 {vr(96)}, {vr(64+4*k)}, {vr(160+4*k)}, {'0' if k==0 else vr(96)}")
    e("s_waitcnt lgkmcnt(0)")
    g.nop(7)
    for k in range(4): e(f"v_mul_f32 v{96+k}, v{96+k}, v103")
    for k in range(4): e(f"v_add_f32_dpp v{104+k}, v{96+k}, v{96+k} row_ror:8 {DPP}")
    e(f"v_cndmask_b32 v108, v104, v106, s[{sM8}:{sM8+1}]"); e(f"v_cndmask_b32 v110, v105, v107, s[{sM8}:{sM8+1}]")
    e(f"buffer_store_dwordx4 v[108:111], v55, {sr(sWS)}, s44 offen sc1")
    g.ts("ppub")
    e("s_branch L_fin")
    g.lab("L_w7")
    for i in range(4): e(f"s_mov_b64 s[{sMASK+2*i}:{sMASK+2*i+1}], -1")
    e(f"s_mov_b32 s{sSPIN}, {o['spin']}")
    e(f"s_cmp_eq_u32 s{sROLE}, 14"); e("s_cbranch_scc1 L_nob5")
    e("s_barrier")
    g.lab("L_nob5")
    e("s_cmp_ge_u32 s2, 224"); e("s_cbranch_scc1 L_fin")
    e("s_mov_b64 exec, 0xffff")
    NP = max(1, o['hp'])
    for k in range(NP):
        e(f"buffer_load_dword v{64+k}, v55, {sr(sWS)}, s20 offen sc1")
        if NP > 1: e(f"s_sleep {o['hgap']}")
    g.lab("L_hp")
    for k in range(NP):
        e(f"s_waitcnt vmcnt({NP-1})")
        e(f"v_cmp_ne_u32 vcc, v{64+k}, v{vTAG}")
        e("s_cbranch_vccz L_hp_ok")
        if o['sleep2']: e(f"s_sleep {o['sleep2']}")
        e(f"buffer_load_dword v{64+k}, v55, {sr(sWS)}, s20 offen sc1")
    e(f"s_sub_u32 s{sSPIN}, s{sSPIN}, 1"); e("s_cbranch_scc0 L_hp")
    g.lab("L_hp_ok")
    g.ts("H")
    g.lab("L_g2")
    for i in range(4):
        e(f"s_mov_b64 exec, s[{sMASK+2*i}:{sMASK+2*i+1}]")
        e(f"buffer_load_dwordx4 {vr(128+4*i)}, v60, {sr(sWS)}, s{sT3} offen offset:{i*1024} sc1")
    e("s_mov_b64 exec, -1")
    e("s_waitcnt vmcnt(0)")
    for i in range(4):
        e(f"v_cmp_ne_u32 vcc, v{129+4*i}, v{vTAG}"); e(f"v_cmp_ne_u32 s[{sMASK+2*i}:{sMASK+2*i+1}], v{131+4*i}, v{vTAG}")
        e(f"s_or_b64 s[{sMASK+2*i}:{sMASK+2*i+1}], s[{sMASK+2*i}:{sMASK+2*i+1}], vcc")
    e(f"s_or_b64 s[{sT0}:{sT1}], s[{sMASK}:{sMASK+1}], s[{sMASK+2}:{sMASK+3}]"); e(f"s_or_b64 vcc, s[{sMASK+4}:{sMASK+5}], s[{sMASK+6}:{sMASK+7}]")
    e(f"s_or_b64 vcc, vcc, s[{sT0}:{sT1}]")
    e("s_cbranch_scc0 L_g2_ok")
    e(f"s_sub_u32 s{sSPIN}, s{sSPIN}, 1"); e("s_cbranch_scc0 L_g2")
    g.lab("L_g2_ok")
    g.ts("G2")
    R = [128, 130, 136, 138]
    for r in R: e(f"v_add_f32 v{r}, v{r}, v{r+4}")
    for r in R: e(f"v_add_f32_dpp v{r}, v{r}, v{r} row_ror:8 {DPP}")
    for sw in ("16", "32"):
        for r in R: e(f"v_mov_b32 v{r+1}, v{r}")
        for r in R: e(f"v_permlane{sw}_swap_b32 v{r}, v{r+1}")
        for r in R: e(f"v_add_f32 v{r}, v{r}, v{r+1}")
    e("v_cvt_pk_bf16_f32 v129, v128, v130"); e("v_cvt_pk_bf16_f32 v137, v136, v138")
    for base in (128, 136): e(f"v_lshlrev_b32 v{base}, 16, v{base+1}"); e(f"v_and_b32 v{base+2}, 0xffff0000, v{base+1}")
    for base, gs in ((128, 22), (136, 23)): e(f"v_mul_f32 v{base}, s{gs}, v{base}"); e(f"v_mul_f32 v{base+2}, s{gs}, v{base+2}")
    e("v_cvt_pk_bf16_f32 v129, v128, v130"); e("v_cvt_pk_bf16_f32 v137, v136, v138")
    for base in (128, 136): e(f"v_lshlrev_b32 v{base}, 16, v{base+1}"); e(f"v_and_b32 v{base+2}, 0xffff0000, v{base+1}")
    e("v_add_f32 v128, v128, v136"); e("v_add_f32 v130, v130, v138")
    e("v_cvt_pk_bf16_f32 v128, v128, v130")
    e("s_mov_b64 exec, 0xff")
    e(f"buffer_store_dword v128, v54, {sr(sOUT)}, s21 offen")
    e("s_cmp_lg_u32 s2, 0"); e("s_cbranch_scc1 L_fin")
    e("s_mov_b64 exec, 1")
    e(f"buffer_store_dword v{vTAG}, v54, {sr(sWS)}, 0 offen sc1")
    g.lab("L_fin")
    if o['ts']:
        e("s_mov_b64 exec, -1")
        g.ts("end")
        e("s_waitcnt lgkmcnt(0)")
        for k in range(16): e(f"v_mov_b32 v{128+k}, s{TSREG[k]}" if k < g.nts else f"v_mov_b32 v{128+k}, 0")
        e(f"s_lshl_b32 s{sT0}, s2, 3"); e(f"s_add_u32 s{sT0}, s{sT0}, s{sW}"); e(f"s_lshl_b32 s{sT0}, s{sT0}, 6"); e(f"s_add_u32 s{sT0}, s{sT0}, {WS_TS}")
        e("v_mov_b32 v60, 0"); e("s_mov_b64 exec, 1")
        for k in range(4): e(f"buffer_store_dwordx4 {vr(128+4*k)}, v60, {sr(sWS)}, s{sT0} offen offset:{16*k}")
        print("TS:", ",".join(g.tsn))
    g.lab("L_end")
    e("s_endpgm")
    g.lab("L_codeend")
    g.L += ['.section .rodata,"a"', ".p2align 6", f".amdhsa_kernel {KN}",
            "  .amdhsa_next_free_vgpr 256", "  .amdhsa_next_free_sgpr 102", "  .amdhsa_accum_offset 256",
            "  .amdhsa_group_segment_fixed_size 0", "  .amdhsa_kernarg_size 112", "  .amdhsa_user_sgpr_count 2",
            "  .amdhsa_user_sgpr_kernarg_segment_ptr 1", "  .amdhsa_system_sgpr_workgroup_id_x 1",
            "  .amdhsa_float_denorm_mode_32 3", ".end_amdhsa_kernel"]
    return "\n".join(g.L) + "\n"

if __name__ == "__main__":
    from lint import lint
    from build import build
    out = sys.argv[1]; opts = eval("dict(" + (sys.argv[2] if len(sys.argv) > 2 else "") + ")")
    s = gen(**opts)
    open(out, "w").write(s)
    for p in lint(s): print("LINT:", p)
    build(out)
```

```python
import sys, math, struct
sys.path.insert(0, "gen"); sys.path.insert(0, "tools")
KN = "gated_mix__sliding_block_cached__sliding_block_cached__decode_kernel"
HEADER = open("gated_mix__sliding_block_cached__sliding_block_cached__decode.s.ref").read().split("; Override launch")[0]

WS_Q = 0x10000
WS_S = 0x60000
WS_H = 0x70000
WS_O = 0x80000
WS_F = 0x100000
WS_P = 0x200000
WS_TS = 0x400000
WS_SIZE = 0x800000
L_QL = 0
L_SM = 1024
L_SL = 1088
L_W = 1152
L_F = 1216
L_CNT = 1220
L_B3 = 2048
L_WQ = 10240
L_X = 38912
L_WO = 46080
L_OR = 78848
LDS_BYTES = 95232
TSREG = [84,86,88,90,92,94,96,98,100,8,10,12,14,16,18,20]

DOC = '''; ---------------------------------------------------------------------------------------------
; Workgroup id -> kv head = id&7, member = (id>>3)&15 (batch = member>>1, key half = member&1),
; branch = id>>7. The 16 members of a (branch, kv head) group exchange data through d_ws.
;     then gathers the 512 q columns of its own batch into LDS. All waves stream K meanwhile.
;     merged with their softmax weights, f32 partials published.
; Hand-offs: 8-byte {data, tag} granules, tag = f(word 0 of d_ws at entry); word 0 moves on at the
; ---------------------------------------------------------------------------------------------'''

def f2u(x): return struct.unpack("<I", struct.pack("<f", x))[0]
def vr(a, n=4): return f"v[{a}:{a+n-1}]"
def sr(a, n=4): return f"s[{a}:{a+n-1}]"
DPP = "row_mask:0xf bank_mask:0xf"

class G:
    def __init__(s, **o):
        s.L = []
        s.o = dict(round_s=1, ts=0, pol='nt', spin=1<<16, codepf=1, sleep1=0, sleep2=0, b0at=36, pre=2, fthr=256,
                   xm=0x100, xa=1, xb=0, kv=0, qsl=2, ssl=3, hp=0, hgap=2, skip=(6,7), wosw=1, bx=1, pret=0, g1p=0, wol=1, imm=0, nrep=8, xc=1, tlb=0, cpf2=0, q0k=32, pk=1, gate1=0, vpf=0, spf=0, sdel=0, e1=1, b45=1, lst=0, spol='', ppol='sc1 nt', qpol='', opol='')
        s.o.update(o); s.nts = 0; s.tsn = []
    def e(s, t): s.L.append("  " + t)
    def c(s, t): s.L.append("  ; " + t)
    def lab(s, t): s.L.append(t + ":")
    def nop(s, n):
        while n > 0:
            k = min(n, 16); s.e(f"s_nop {k-1}"); n -= k
    def ts(s, name):
        if not s.o['ts'] or name not in s.o['tson']: return
        k = s.nts; s.nts += 1
        r = TSREG[k]; s.tsn.append(name)
        s.e(f"s_memrealtime s[{r}:{r+1}]   ; ts {name}")

def gen(**opts):
    g = G(**opts); e = g.e; o = g.o; POL = o['pol']
    sK, sV, sWQ, sWO, sX, sGW, sWS, sOUT = 24, 28, 32, 36, 40, 44, 48, 52
    sW = 56; sR = 57; sT0, sT1, sT2, sT3 = 58, 59, 60, 61
    sKVH, sBR, sMEM, sB, sG = 3, 4, 5, 6, 7
    sMASK = 64; sM8 = 80; sSEL0, sSEL1 = 82, 83; sSPIN = 62; sC = 63
    sROLE = 32
    sH3 = 33; sNL = 34
    vL = 1; vKO = 2; vVO = 3; vTAG = 4; vA = 5; vB = 6; vC = 7
    vQB = 8; vS = 16; vPV = 64; vK = 128
    vT = 40; vM0 = 52; vL0 = 53; vAL = 54; vORA = 56; vORB = 57; vSA = 58; vF = 59
    vACC = 112; vP8 = 120
    BS = 131072
    B45 = o['b45'] and o['wol']

    def tagcheck(tags, a, b_):
        if len(tags) == 2:
            e(f"v_cmp_ne_u32 vcc, v{tags[0]}, v{vTAG}"); e(f"v_cmp_ne_u32 s[{sT0}:{sT1}], v{tags[1]}, v{vTAG}")
        else:
            e(f"v_min3_u32 v{a}, v{tags[0]}, v{tags[1]}, v{tags[2]}"); e(f"v_max3_u32 v{b_}, v{tags[0]}, v{tags[1]}, v{tags[2]}")
            i = 3
            while i+1 < len(tags):
                e(f"v_min3_u32 v{a}, v{a}, v{tags[i]}, v{tags[i+1]}"); e(f"v_max3_u32 v{b_}, v{b_}, v{tags[i]}, v{tags[i+1]}"); i += 2
            if i < len(tags):
                e(f"v_min_u32 v{a}, v{a}, v{tags[i]}"); e(f"v_max_u32 v{b_}, v{b_}, v{tags[i]}")
            e(f"v_cmp_ne_u32 vcc, v{a}, v{vTAG}"); e(f"v_cmp_ne_u32 s[{sT0}:{sT1}], v{b_}, v{vTAG}")
        e(f"s_or_b64 vcc, vcc, s[{sT0}:{sT1}]")
    def poll(name, loads, tags, a, b_, sleep=0, first=None, gate=False):
        e(f"s_mov_b32 s{sSPIN}, {o['spin']}")
        if first:
            loads(); first(); e(f"s_branch L_{name}_w")
        g.lab(f"L_{name}")
        loads()
        g.lab(f"L_{name}_w")
        e("s_waitcnt vmcnt(0)")
        tagcheck(tags, a, b_)
        e(f"s_cbranch_scc0 L_{name}_ok")
        e("s_mov_b64 exec, vcc")
        if gate:
            g.lab(f"L_{name}_g")
            e(f"ds_read_b32 v{a}, v62 offset:{L_CNT}"); e("s_waitcnt lgkmcnt(0)"); e(f"v_readfirstlane_b32 s{sT0}, v{a}")
            e(f"s_cmp_eq_u32 s{sT0}, 8"); e(f"s_cbranch_scc1 L_{name}_g")
        if sleep: e(f"s_sleep {sleep}")
        e(f"s_cmp_le_u32 s{sSPIN}, {o['spin']-o['fthr']}"); e(f"s_cselect_b32 s{sT0}, {WS_F}, 0"); e(f"s_xor_b32 s{sT3}, s{sT3}, s{sT0}")
        e(f"s_sub_u32 s{sSPIN}, s{sSPIN}, 1"); e(f"s_cbranch_scc0 L_{name}")
        g.lab(f"L_{name}_ok")
        e("s_mov_b64 exec, -1")
    def srd(d, p, n):
        e(f"s_mov_b32 s{d}, s{p}"); e(f"s_mov_b32 s{d+1}, s{p+1}"); e(f"s_mov_b32 s{d+2}, {n}"); e(f"s_mov_b32 s{d+3}, 0x20000")
    def kreg(n): return vK + 4*(n % 16) if o['kv'] else vK + 4*n
    def vreg(unit): return vK + 64 + 32*(unit % 2) if o['kv'] else vK + 32*unit
    def kload(n):
        u, hf = n//2, n % 2
        if o['imm']:
            e(f"buffer_load_dwordx4 {vr(kreg(n))}, v{vKO}, {sr(sK)}, s{sR if u < 8 else 43} offen offset:{(u&7)*512+hf*256} {POL}")
            return
        e(f"s_xor_b32 s47, s{sR}, {(u&7)*512+hf*256+(u>>3)*BS}")
        e(f"buffer_load_dwordx4 {vr(kreg(n))}, v{vKO}, {sr(sK)}, s47 offen {POL}")
    def vload(unit, j):
        blk, hf = unit//2, unit % 2
        if o['imm']:
            e(f"buffer_load_dwordx4 {vr(vreg(unit)+4*j)}, v{vVO}, {sr(sV)}, s{sR if blk == 0 else 43} offen offset:{j*512+hf*256} {POL}")
            return
        e(f"s_xor_b32 s47, s{sR}, {j*512+hf*256+blk*BS}")
        e(f"buffer_load_dwordx4 {vr(vreg(unit)+4*j)}, v{vVO}, {sr(sV)}, s47 offen {POL}")

    g.L.append(HEADER.rstrip("\n"))
    g.L.append(f"; @launch grid=(256,1,1) block=(512,1,1) lds={LDS_BYTES}")
    g.L.append('.amdgcn_target "amdgcn-amd-amdhsa--gfx950"')
    g.L.append(DOC)
    g.L.append(".text"); g.L.append(f".globl {KN}"); g.L.append(".p2align 8"); g.L.append(f".type {KN},@function"); g.lab(KN)
    e("s_cmp_ge_u32 s2, 256"); e("s_cbranch_scc1 L_end")
    g.ts("start")
    e(f"s_lshr_b32 s{sBR}, s2, 7")
    e(f"s_mul_i32 s{sT0}, s{sBR}, 40")
    e(f"s_add_u32 s{sT2}, s0, s{sT0}"); e(f"s_addc_u32 s{sT3}, s1, 0")
    e(f"s_load_dwordx8 s[8:15], s[{sT2}:{sT3}], 8")
    e("s_load_dwordx2 s[16:17], s[0:1], 0")
    e("s_load_dwordx2 s[18:19], s[0:1], 104")
    e("s_load_dwordx4 s[20:23], s[0:1], 80")
    e(f"v_lshrrev_b32 v{vA}, 6, v0")
    e(f"v_and_b32 v{vL}, 63, v0")
    e(f"v_readfirstlane_b32 s{sW}, v{vA}")
    e(f"s_getpc_b64 s[{sM8}:{sM8+1}]")
    g.lab("L_pc")
    if o['codepf']:
        g.c("pull the kernel's code into L2: one dword per 128 B line (waves 1,2)")
        e(f"v_lshlrev_b32 v35, 7, v0"); e("v_subrev_u32 v35, 8192, v35")
        e(f"s_mov_b32 s{sT0}, L_codeend-L_pc-4")
        e(f"v_cmp_gt_u32 vcc, s{sT0}, v35")
        e(f"s_and_saveexec_b64 s[{sT2}:{sT3}], vcc")
        e("s_cbranch_execz L_nopf")
        e(f"global_load_dword v36, v35, s[{sM8}:{sM8+1}] {o['spol']}")
        g.lab("L_nopf")
        e("s_mov_b64 exec, -1")
    e(f"s_and_b32 s{sKVH}, s2, 7")
    e(f"s_bfe_u32 s{sMEM}, s2, 0x40003")
    e(f"s_lshr_b32 s{sB}, s{sMEM}, 1")
    e(f"s_lshl_b32 s{sG}, s{sBR}, 3"); e(f"s_add_u32 s{sG}, s{sG}, s{sKVH}")
    if o['xa'] == 1 and o['xb'] == 0:
        e(f"s_lshl_b32 s{sT0}, s{sW}, 8")
    else:
        e(f"s_mul_i32 s{sT0}, s{sW}, {o['xa']}"); e(f"s_lshr_b32 s{sT1}, s2, 3"); e(f"s_mul_i32 s{sT1}, s{sT1}, {o['xb']}"); e(f"s_add_u32 s{sT0}, s{sT0}, s{sT1}")
        e(f"s_lshl_b32 s{sT0}, s{sT0}, 8")
    e(f"s_and_b32 s{sR}, s{sT0}, {o['xm'] & 0xf00}")
    e(f"s_lshl_b32 s{sT0}, s{sB}, 24"); e(f"s_lshl_b32 s{sT1}, s{sKVH}, 21"); e(f"s_add_u32 s{sT0}, s{sT0}, s{sT1}")
    e(f"s_and_b32 s{sT1}, s{sMEM}, 1"); e(f"s_lshl_b32 s{sT1}, s{sT1}, 18"); e(f"s_add_u32 s{sT0}, s{sT0}, s{sT1}")
    if o['bx'] == 1:
        e(f"s_and_b32 s{sT2}, s{sMEM}, 8"); e(f"s_lshl_b32 s{sT2}, s{sT2}, 14"); e(f"s_or_b32 s{sR}, s{sR}, s{sT2}")
        e(f"s_xor_b32 s{sT1}, s{sW}, s{sMEM}"); e(f"s_and_b32 s{sT1}, s{sT1}, 7"); e(f"s_lshl_b32 s{sT1}, s{sT1}, 14")
    elif o['bx'] == 2:
        e(f"s_and_b32 s{sT2}, s{sMEM}, 1"); e(f"s_mul_i32 s{sT1}, s{sT2}, 7"); e(f"s_lshl_b32 s{sT2}, s{sT2}, 17"); e(f"s_or_b32 s{sR}, s{sR}, s{sT2}")
        e(f"s_xor_b32 s{sT1}, s{sW}, s{sT1}"); e(f"s_lshl_b32 s{sT1}, s{sT1}, 14")
    else:
        e(f"s_lshl_b32 s{sT1}, s{sW}, 14")
    e(f"s_add_u32 s{sT0}, s{sT0}, s{sT1}")
    e(f"s_add_u32 s{sT0}, s{sT0}, {3072*512}")
    e(f"v_bfe_u32 v{vA}, v{vL}, 2, 2"); e(f"v_lshlrev_b32 v{vA}, 12, v{vA}")
    e(f"v_lshrrev_b32 v{vB}, 4, v{vL}")
    e(f"v_lshl_add_u32 v{vKO}, v{vB}, 6, v{vA}")
    e(f"v_and_b32 v{vA}, 3, v{vL}"); e(f"v_lshl_add_u32 v{vKO}, v{vA}, 4, v{vKO}")
    e(f"v_add_u32 v{vKO}, s{sT0}, v{vKO}")
    e(f"v_and_b32 v{vC}, 15, v{vL}"); e(f"v_lshlrev_b32 v{vC}, 4, v{vC}")
    e(f"v_lshl_add_u32 v{vVO}, v{vB}, 12, v{vC}")
    e(f"v_add_u32 v{vVO}, s{sT0}, v{vVO}")
    e(f"v_lshlrev_b32 v33, 4, v{vL}")
    e(f"v_mov_b32 v34, 0")
    e(f"ds_write_b64 v34, v[34:35] offset:{L_F}") if False else None
    e(f"ds_write_b32 v34, v34 offset:{L_F}"); e(f"ds_write_b32 v34, v34 offset:{L_CNT}")
    e(f"s_mov_b32 s{sK+2}, 0x8000000"); e(f"s_mov_b32 s{sK+3}, 0x20000")
    e(f"s_mov_b32 s{sWS+2}, {WS_SIZE}"); e(f"s_mov_b32 s{sWS+3}, 0x20000")
    e(f"s_mov_b32 s{sX+2}, 7168"); e(f"s_mov_b32 s{sX+3}, 0x20000")
    e(f"s_cmp_eq_u32 s{sW}, 0")
    e("s_waitcnt lgkmcnt(0)")
    e(f"s_mov_b32 s{sK}, s8"); e(f"s_mov_b32 s{sK+1}, s9")
    e(f"s_mov_b32 s{sWS}, s18"); e(f"s_mov_b32 s{sWS+1}, s19")
    e(f"s_mov_b32 s{sX}, s16"); e(f"s_mov_b32 s{sX+1}, s17")
    if o['spf']:
        e(f"s_lshl_b32 s{sT0}, s{sMEM}, 3"); e(f"s_add_u32 s{sT0}, s{sT0}, s{sW}"); e(f"s_min_u32 s{sT0}, s{sT0}, 111"); e(f"s_lshl_b32 s{sT0}, s{sT0}, 15")
        e(f"s_lshl_b32 s{sT1}, s{sKVH}, 10"); e(f"s_add_u32 s{sT0}, s{sT0}, s{sT1}"); e(f"s_add_u32 s{sT0}, s{sT0}, 384")
        e(f"s_add_u32 s{sT2}, s12, s{sT0}"); e(f"s_addc_u32 s{sT3}, s13, 0")
        for r in range(4):
            e(f"s_load_dword s{64+2*r}, s[{sT2}:{sT3}], {r*8192}")
            if o['spf'] == 2: e(f"s_load_dword s{65+2*r}, s[{sT2}:{sT3}], {r*8192+64}")
        e(f"s_cmp_eq_u32 s{sW}, 0")
    e("s_branch L_notw0" if o.get('now0') else "s_cbranch_scc0 L_notw0")
    g.c("wave 0: wq slice and x into LDS, q slice, publish, gather")
    srd(sWQ, 12, 3670016)
    e(f"v_lshrrev_b32 v32, 2, v{vL}"); e(f"v_lshlrev_b32 v32, 13, v32"); e(f"v_lshl_add_u32 v32, v{vA}, 4, v32")
    e(f"s_lshl_b32 s{sT0}, s{sKVH}, 10"); e(f"s_lshl_b32 s{sT1}, s{sMEM}, 6"); e(f"s_add_u32 s{sT0}, s{sT0}, s{sT1}")
    e(f"v_add_u32 v32, s{sT0}, v32")
    SD = o['sdel']
    if SD:
        e(f"s_sub_u32 s{sT0}, s{sMEM}, 6"); e(f"s_cmp_lt_u32 s{sT0}, 2"); e("s_cselect_b32 s83, 1, 0"); e("s_cbranch_scc0 L_w0n")
        e("s_barrier")
        for n in range(SD): kload(n)
        e("s_waitcnt vmcnt(0)")
        g.lab("L_w0n")
    nd = 0
    for ii in range(o.get('dn', 28)):
        if nd == o['b0at']: e("s_barrier")
        nd += 1
        e(f"s_mov_b32 m0, {L_WQ+ii*1024}")
        e(f"s_mov_b32 s{sT2}, {ii*131072}")
        e(f"buffer_load_dwordx4 v32, {sr(sWQ)}, s{sT2} offen {POL} lds")
    for ii in range(0 if o.get('nox') else 7):
        if nd == o['b0at']: e("s_barrier")
        nd += 1
        e(f"s_mov_b32 m0, {L_X+ii*1024}")
        e(f"s_mov_b32 s{sT2}, {ii*1024}")
        e(f"buffer_load_dwordx4 v33, {sr(sX)}, s{sT2} offen {o['spol']} lds")
    e(f"buffer_load_dword v{vTAG}, v34, {sr(sWS)}, 0 offen {'sc1' if o['e1'] else o['spol']}")
    if SD:
        e("s_cmp_eq_u32 s83, 1"); e("s_cbranch_scc1 L_w0nb"); e("s_barrier"); g.lab("L_w0nb")
    elif o['b0at'] >= nd: e("s_barrier")
    e(f"v_bfe_u32 v41, v{vL}, 2, 2")
    e(f"v_lshl_add_u32 v41, v{vB}, 3, v41"); e(f"v_lshlrev_b32 v41, 6, v41")
    e(f"v_lshl_add_u32 v41, v{vA}, 3, v41")
    e(f"v_and_b32 v43, 7, v{vL}"); e(f"v_mul_u32_u24 v42, 896, v43"); e(f"v_lshl_add_u32 v42, v{vB}, 4, v42")
    e(f"v_add_u32 v42, {L_X}, v42")
    e(f"s_lshl_b32 s{sT0}, s{sG}, 14"); e(f"s_lshl_b32 s{sT1}, s{sMEM}, 7"); e(f"s_add_u32 s{sT0}, s{sT0}, s{sT1}")
    e(f"s_add_u32 s{sT0}, s{sT0}, {WS_Q}"); e(f"s_add_u32 s{sT1}, s{sT0}, {WS_F}")
    e(f"v_lshlrev_b32 v43, 11, v43"); e(f"v_lshl_add_u32 v43, v{vB}, 4, v43")
    e(f"s_lshl_b32 s{sT3}, s{sG}, 3"); e(f"s_add_u32 s{sT3}, s{sT3}, s{sB}"); e(f"s_lshl_b32 s{sT3}, s{sT3}, 11"); e(f"s_add_u32 s{sT3}, s{sT3}, {WS_Q+WS_F}")
    e("s_waitcnt vmcnt(0)")
    g.ts("wq")
    e(f"v_and_b32 v{vTAG}, -8, v{vTAG}"); e(f"v_add_u32 v{vTAG}, 8, v{vTAG}")
    e("s_getreg_b32 s44, hwreg(HW_REG_XCC_ID, 0, 3)")
    steps = list(range(14)); first = True
    for ci in range(0, 14, 3):
        ch = steps[ci:ci+3]
        for k, s_ in enumerate(ch):
            a = 64 + 12*k
            for t in range(2):
                e(f"ds_read_b64_tr_b16 {vr(a+4*t,2)}, v41 offset:{L_WQ+s_*2048+t*32}")
                e(f"ds_read_b64_tr_b16 {vr(a+4*t+2,2)}, v41 offset:{L_WQ+s_*2048+256+t*32}")
            e(f"ds_read_b128 {vr(a+8)}, v42 offset:{s_*64}")
        e("s_waitcnt lgkmcnt(0)")
        for k, s_ in enumerate(ch):
            a = 64 + 12*k
            for t in range(2):
                e(f"v_mfma_f32_16x16x32_bf16 {vr(44+4*t)}, {vr(a+4*t)}, {vr(a+8)}, {'0' if first else vr(44+4*t)}")
            first = False
    e(f"v_or_b32 v53, s44, v{vTAG}"); e("v_mov_b32 v55, v53"); e(f"v_and_b32 v40, 8, v{vL}"); e("v_lshl_add_u32 v43, v40, 3, v43")
    e("s_mov_b32 vcc_lo, 0xff00ff00"); e("s_mov_b32 vcc_hi, 0xff00ff00"); e(f"s_mov_b32 s45, s{sT0}"); e("s_nop 0")
    for k in range(4): e(f"v_cndmask_b32 v{44+k}, v{44+k}, v{48+k}, vcc")
    e(f"v_cvt_pk_bf16_f32 v52, v44, v45"); e(f"v_cvt_pk_bf16_f32 v54, v46, v47")
    if o.get('noqst', 0) < 2: e(f"buffer_store_dwordx4 v[52:55], v43, {sr(sWS)}, s{sT1} offen {o['qpol']}")
    if not o['xc']: e(f"buffer_store_dwordx4 v[52:55], v43, {sr(sWS)}, s45 offen sc1")
    g.ts("qpub")
    for n in range(o['q0k']): kload(n)
    e("s_mov_b32 s46, 1")
    if not o.get('noqw'):
        e(f"s_mov_b32 s{sSPIN}, {o['spin']}")
        g.lab("L_qg")
        e(f"buffer_load_dwordx4 v[64:67], v33, {sr(sWS)}, s{sT3} offen {o['ppol']}")
        e(f"buffer_load_dwordx4 v[68:71], v33, {sr(sWS)}, s{sT3} offen offset:1024 {o['ppol']}")
        e("s_waitcnt vmcnt(0)")
        for r in (65, 67, 69, 71): e(f"v_xor_b32 v{r+11}, v{r}, v{vTAG}")
        e("v_max3_u32 v60, v76, v78, v80"); e("v_max_u32 v60, v60, v82")
        e("v_cmp_lt_u32 vcc, 7, v60")
        e("s_cbranch_vccz L_qg_ok")
        e("s_mov_b64 exec, vcc")
        e(f"s_cmp_le_u32 s{sSPIN}, {o['spin']-o['fthr']}"); e(f"s_cselect_b32 s{sT0}, {WS_F}, 0"); e(f"s_xor_b32 s{sT3}, s{sT3}, s{sT0}")
        e(f"s_cmp_lg_u32 s{sSPIN}, {o['spin']-o['fthr']}"); e("s_cbranch_scc1 L_qg_n")
        g.c("slices missing for a long time: write own slice through; from now on rounds alternate between the two copies")
        e("s_mov_b64 exec, -1")
        e(f"buffer_store_dwordx4 v[52:55], v43, {sr(sWS)}, s45 offen sc1")
        e("s_mov_b64 exec, vcc")
        g.lab("L_qg_n")
        e(f"s_sub_u32 s{sSPIN}, s{sSPIN}, 1"); e("s_cbranch_scc0 L_qg")
        g.lab("L_qg_ok")
        e("s_mov_b64 exec, -1")
        e("v_min3_u32 v60, v65, v67, v69"); e("v_max3_u32 v61, v65, v67, v69"); e("v_min_u32 v60, v60, v71"); e("v_max_u32 v61, v61, v71")
        e("v_cmp_ne_u32 vcc, v60, v53"); e(f"v_cmp_ne_u32 s[{sT0}:{sT1}], v61, v53"); e(f"s_or_b64 vcc, vcc, s[{sT0}:{sT1}]")
        e("s_cbranch_scc0 L_qg_loc")
        g.c("some member runs on another die: its reads need the written-through copies")
        e(f"buffer_store_dwordx4 v[52:55], v43, {sr(sWS)}, s45 offen sc1")
        e("s_mov_b32 s46, 2")
        g.lab("L_qg_loc")
    if not o['xc']: e("s_mov_b32 s46, 2")
    e(f"v_lshlrev_b32 v60, 3, v{vL}")
    e(f"ds_write2_b32 v60, v64, v66 offset0:{L_QL//4} offset1:{L_QL//4+1}")
    e(f"ds_write2_b32 v60, v68, v70 offset0:{L_QL//4+128} offset1:{L_QL//4+129}")
    e(f"v_or_b32 v61, s46, v{vTAG}" if o['e1'] else "v_mov_b32 v61, s46"); e(f"ds_write_b32 v34, v61 offset:{L_F}")
    g.ts("qgot")
    if o['q0k']:
        srd(sV, 10, 0x8000000); e("s_branch L_kq0")
    if SD:
        srd(sV, 10, 0x8000000)
        e("s_cmp_eq_u32 s83, 1"); e("s_cbranch_scc1 L_ksd")
    if not o['q0k']:
        for n in range(o['pre']): kload(n)
        e("s_branch L_kissue")
    g.lab("L_notw0")
    if o['tlb']:
        g.c("wave 2: touch the pages used later (V window, second half of the K window, wo rows, hand-off areas)")
        e(f"s_cmp_lg_u32 s{sW}, 2"); e("s_cbranch_scc1 L_notlb")
        srd(sV, 10, 0x8000000); srd(sWO, 14, 3670016)
        e(f"v_readfirstlane_b32 s{sT0}, v{vVO}"); e(f"v_lshlrev_b32 v37, {o['tlb']}, v{vL}"); e(f"s_and_b32 s{sT0}, s{sT0}, 0xfffc0000")
        e(f"s_mul_i32 s{sT1}, s{sKVH}, {512*896}")
        e(f"s_mov_b64 exec, {hex((1 << (262144 >> o['tlb'])) - 1)}")
        e(f"buffer_load_dword v38, v37, {sr(sV)}, s{sT0} offen {POL}")
        e(f"buffer_load_dword v39, v37, {sr(sK)}, s{sT0} offen {POL}")
        e(f"s_mov_b64 exec, {hex((1 << min(63, (524288 >> o['tlb']))) - 1)}")
        e(f"buffer_load_dword v40, v37, {sr(sWO)}, s{sT1} offen {POL}")
        e("s_mov_b64 exec, -1")
        g.lab("L_notlb")
    if o['vpf']:
        g.c("wave 1: touch this member's 28 rows of column block 3 (the block whose owners would otherwise queue 448 requests on one path)")
        e(f"s_cmp_lg_u32 s{sW}, 1"); e("s_cbranch_scc1 L_novpf")
        srd(sWQ, 12, 3670016)
        e(f"s_mul_i32 s{sT0}, s{sMEM}, {28*8192}"); e(f"s_lshl_b32 s{sT1}, s{sKVH}, 10"); e(f"s_add_u32 s{sT0}, s{sT0}, s{sT1}"); e(f"s_add_u32 s{sT0}, s{sT0}, 384")
        if o['vpf'] == 2:
            e(f"v_lshrrev_b32 v37, 1, v{vL}"); e("v_lshlrev_b32 v37, 13, v37"); e(f"v_and_b32 v38, 1, v{vL}"); e("v_lshl_add_u32 v37, v38, 6, v37")
            e("s_mov_b32 exec_hi, 0xffffff")
        else:
            e(f"v_lshlrev_b32 v37, 13, v{vL}"); e("s_mov_b64 exec, 0xfffffff")
        e(f"buffer_load_dword v38, v37, {sr(sWQ)}, s{sT0} offen {POL}")
        e("s_mov_b64 exec, -1")
        g.lab("L_novpf")
    if not o['e1']: e(f"buffer_load_dword v{vTAG}, v34, {sr(sWS)}, 0 offen {o['spol']}")
    for n in range(o['pre']): kload(n)
    e("s_barrier")
    e(f"s_cmp_lg_u32 s{sW}, 7"); e("s_cbranch_scc1 L_kissue")
    srd(sGW, 20, 896)
    e(f"s_mul_i32 s{sT0}, s{sKVH}, 896")
    e(f"buffer_load_dwordx4 v[16:19], v33, {sr(sX)}, s{sT0} offen {o['spol']}")
    e(f"buffer_load_dwordx4 v[20:23], v33, {sr(sGW)}, 0 offen {o['spol']}")
    g.lab("L_kissue")
    if o['imm']:
        assert o['xm'] == 0
        e(f"s_xor_b32 s43, s{sR}, {BS}")
    srd(sV, 10, 0x8000000)
    if o['kv']:
        for n in range(o['pre'], 16): kload(n)
        for u in range(2):
            for j in range(8): vload(u, j)
    else:
        for n in range(o['pre'], 32):
            if o['sdel'] and n == o['sdel']: g.lab("L_ksd")
            if o['q0k'] and n == o['q0k']: g.lab("L_kq0")
            kload(n)
        if o['q0k'] == 32: g.lab("L_kq0")
    g.ts("kiss")
    srd(sWO, 14, 3670016); srd(sOUT, 22, 7168)
    g.c("output-projection role of this member (14 = none), constants")
    s0, s1 = o['skip']
    e(f"s_mov_b32 s{sROLE}, s{sMEM}")
    e(f"s_cmp_gt_u32 s{sMEM}, {s1}"); e(f"s_cselect_b32 s{sT0}, 2, 0"); e(f"s_sub_u32 s{sROLE}, s{sROLE}, s{sT0}")
    e(f"s_sub_u32 s{sT0}, s{sMEM}, {s0}"); e(f"s_cmp_lt_u32 s{sT0}, 2"); e(f"s_cselect_b32 s{sROLE}, 14, s{sROLE}")
    e(f"s_cmp_ge_u32 s{sROLE}, 7"); e(f"s_cselect_b32 s{sH3}, 1, 0"); e(f"s_mul_i32 s{sT0}, s{sH3}, 7"); e(f"s_sub_u32 s{sNL}, s{sROLE}, s{sT0}")
    def wo_setup(nper, va, vb, vc, vd, p0=0):
        e(f"s_lshl_b32 s{sT0}, s{sKVH}, 9"); e(f"s_lshl_b32 s{sT1}, s{sH3}, 8"); e(f"s_add_u32 s{sT0}, s{sT0}, s{sT1}"); e(f"s_mul_i32 s{sT1}, s{sW}, {8*nper}"); e(f"s_add_u32 s{sT0}, s{sT0}, s{sT1}")
        if p0: e(f"s_add_u32 s{sT0}, s{sT0}, {8*p0}")
        e(f"s_mul_i32 s{sT0}, s{sT0}, 896"); e(f"s_lshl_b32 s{sT1}, s{sNL}, 7"); e(f"s_add_u32 s35, s{sT0}, s{sT1}")
        e(f"s_cmp_eq_u32 s{sROLE}, 14"); e(f"s_cselect_b32 s35, 0x4000000, s35")
        if o.get('nowo'): e(f"s_mov_b32 s35, 0x4000000")
        e(f"v_lshrrev_b32 v{va}, 3, v{vL}"); e(f"v_mul_u32_u24 v{vb}, 896, v{va}"); e(f"v_and_b32 v{vc}, 7, v{vL}")
        e(f"v_and_b32 v{va}, 2, v{va}"); e(f"v_xor_b32 v{vc}, v{vc}, v{va}"); e(f"v_xor_b32 v{vd}, 4, v{vc}")
        e(f"v_lshl_add_u32 v{va}, v{vc}, 4, v{vb}"); e(f"v_lshl_add_u32 v{vb}, v{vd}, 4, v{vb}")
    def wo_issue(nper, va, vb, p0=0):
        e(f"s_mul_i32 s46, s{sW}, {1024*nper}")
        for ii in range(nper):
            e(f"s_add_u32 m0, s46, {L_WO+(p0+ii)*1024}")
            e(f"s_add_u32 s47, s35, {ii*8*896}")
            e(f"buffer_load_dwordx4 v{vb if ii%2 else va}, {sr(sWO)}, s47 offen {POL} lds")
    WE = {0: 4, 1: 0, 2: 2}[o['wol']]
    WLATE = (32 - 8*WE)//4
    NWO = WE
    if o.get('nodma'): NWO = 0
    elif WE:
        wo_setup(WE, 60, 61, 62, 63); wo_issue(WE, 60, 61)
    for v in range(8):
        pat = (0x11 << (v & 3)) << (8*(v >> 2)); pat |= pat << 16
        e(f"s_mov_b32 s{sMASK+2*v}, 0x{pat:08x}"); e(f"s_mov_b32 s{sMASK+2*v+1}, 0x{pat:08x}")
    e(f"s_mov_b32 s{sSEL0}, 0x05040100"); e(f"s_mov_b32 s{sSEL1}, 0x07060302")
    e(f"s_mov_b32 s{sC}, 0x{f2u(math.log2(math.e)/16):08x}")
    e(f"s_mov_b32 s{sM8}, 0xff00ff00"); e(f"s_mov_b32 s{sM8+1}, 0xff00ff00")
    if o['e1']:
        e(f"s_cmp_lg_u32 s{sW}, 7"); e("s_cbranch_scc1 L_b2")
        e(f"s_waitcnt vmcnt({32 - o['pre'] + NWO})")
    else:
        e(f"s_cmp_eq_u32 s{sW}, 0"); e("s_cbranch_scc1 L_b2")
        e(f"s_waitcnt vmcnt({32 - o['pre'] + NWO})")
        e(f"v_and_b32 v{vTAG}, -8, v{vTAG}"); e(f"v_add_u32 v{vTAG}, 8, v{vTAG}")
        e(f"s_cmp_lg_u32 s{sW}, 7"); e("s_cbranch_scc1 L_b2")
    g.c("wave 7: gate g -> s22, 1-g -> s23 (bf16-rounded like the reference)")
    e(f"v_cmp_gt_u32 vcc, 56, v{vL}"); e("v_mov_b32 v24, 0"); e("s_nop 0")
    for k in range(4): e(f"v_cndmask_b32 v{16+k}, 0, v{16+k}, vcc")
    for k in range(4):
        e(f"v_lshlrev_b32 v25, 16, v{16+k}"); e(f"v_and_b32 v26, 0xffff0000, v{16+k}")
        e(f"v_lshlrev_b32 v27, 16, v{20+k}"); e(f"v_and_b32 v28, 0xffff0000, v{20+k}")
        e("v_mul_f32 v25, v25, v27"); e("v_mul_f32 v26, v26, v28")
        e("v_cvt_pk_bf16_f32 v25, v25, v26")
        e("v_lshlrev_b32 v26, 16, v25"); e("v_and_b32 v25, 0xffff0000, v25")
        e("v_add_f32 v24, v24, v26"); e("v_add_f32 v24, v24, v25")
    for dpp in ("quad_perm:[1,0,3,2]", "quad_perm:[2,3,0,1]", "row_ror:4", "row_ror:8"):
        e("s_nop 1"); e(f"v_add_f32_dpp v24, v24, v24 {dpp} {DPP}")
    for sw in ("16", "32"):
        e("v_mov_b32 v25, v24"); e("s_nop 1"); e(f"v_permlane{sw}_swap_b32 v24, v25"); e("v_add_f32 v24, v24, v25")
    e("v_cvt_pk_bf16_f32 v24, v24, v24"); e("v_and_b32 v24, 0xffff0000, v24")
    e(f"v_mul_f32 v24, 0x{f2u(-math.log2(math.e)):08x}, v24"); e("v_exp_f32 v24, v24"); e("s_nop 0")
    e("v_add_f32 v24, 1.0, v24"); e("v_rcp_f32 v24, v24"); e("s_nop 0")
    e("v_cvt_pk_bf16_f32 v24, v24, v24"); e("v_and_b32 v24, 0xffff0000, v24")
    e("v_sub_f32 v25, 1.0, v24"); e("v_cvt_pk_bf16_f32 v25, v25, v25"); e("v_and_b32 v25, 0xffff0000, v25")
    e("v_readfirstlane_b32 s22, v24"); e("v_readfirstlane_b32 s23, v25")
    g.lab("L_b2")
    e(f"v_bfe_u32 v{vC}, v{vL}, 2, 1"); e(f"v_lshlrev_b32 v{vA}, 9, v{vC}")
    e(f"v_lshl_add_u32 v{vA}, v{vB}, 6, v{vA}")
    e(f"v_and_b32 v60, 3, v{vL}"); e(f"v_lshl_add_u32 v{vA}, v60, 4, v{vA}")
    e(f"s_and_b32 s{sT0}, s{sR}, 0x100"); e(f"v_add_u32 v{vA}, s{sT0}, v{vA}"); e(f"v_xor_b32 v60, 0x100, v{vA}")
    e("v_mov_b32 v62, 0"); e("s_mov_b32 s42, 1")
    if not o.get('noqw'):
        g.lab("L_qwait")
        e(f"ds_read_b32 v61, v62 offset:{L_F}"); e("s_waitcnt lgkmcnt(0)"); e(f"v_readfirstlane_b32 s42, v61"); e(f"s_cmp_lg_u32 s42, 0"); e("s_cbranch_scc1 L_qready")
        e(f"s_sleep {o['qsl']}"); e("s_branch L_qwait")
        g.lab("L_qready")
        if o['e1']: e(f"v_and_b32 v{vTAG}, -8, v61"); e("s_and_b32 s42, s42, 7")
    g.ts("B2")
    g.c("q fragments; QK^T, softmax, P.V")
    e(f"ds_read_b128 {vr(vQB)}, v{vA} offset:{L_QL}")
    e(f"ds_read_b128 {vr(vQB+4)}, v60 offset:{L_QL}")
    e("s_waitcnt lgkmcnt(0)")
    def xred(r, t, op):
        for sw in ("16", "32"):
            e(f"v_mov_b32 v{t}, v{r}"); e("s_nop 1"); e(f"v_permlane{sw}_swap_b32 v{r}, v{t}"); e(f"{op} v{r}, v{r}, v{t}")
    def soft(blk):
        if o.get('nocomp'): return
        S = vS + 8*blk
        if o['round_s']:
            for u in range(0, 8, 2): e(f"v_cvt_pk_bf16_f32 v{vP8+u//2}, v{S+u}, v{S+u+1}")
            for u in range(0, 8, 2):
                e(f"v_lshlrev_b32 v{S+u}, 16, v{vP8+u//2}"); e(f"v_and_b32 v{S+u+1}, 0xffff0000, v{vP8+u//2}")
        e(f"v_max3_f32 v{vA}, v{S}, v{S+1}, v{S+2}"); e(f"v_max3_f32 v{vB}, v{S+3}, v{S+4}, v{S+5}")
        e(f"v_max3_f32 v{vA}, v{vA}, v{S+6}, v{S+7}"); e(f"v_max_f32 v{vA}, v{vA}, v{vB}")
        xred(vA, vB, "v_max_f32")
        if blk == 0:
            e(f"v_mul_f32 v{vM0}, s{sC}, v{vA}")
        else:
            e(f"v_mul_f32 v{vA}, s{sC}, v{vA}"); e(f"v_max_f32 v{vA}, v{vA}, v{vM0}")
            e(f"v_sub_f32 v{vAL}, v{vM0}, v{vA}"); e(f"v_mov_b32 v{vM0}, v{vA}"); e(f"v_exp_f32 v{vAL}, v{vAL}")
        for u in range(8): e(f"v_fma_f32 v{S+u}, v{S+u}, s{sC}, -v{vM0}")
        for u in range(8): e(f"v_exp_f32 v{S+u}, v{S+u}")
        e("s_nop 0")
        for t in range(4): e(f"v_cvt_pk_bf16_f32 v{vP8+t}, v{S+2*t}, v{S+2*t+1}")
        for t in range(4): e(f"v_add_f32 v{S+t}, v{S+t}, v{S+t+4}")
        e(f"v_add_f32 v{S}, v{S}, v{S+2}"); e(f"v_add_f32 v{S+1}, v{S+1}, v{S+3}")
        if blk == 0:
            e(f"v_add_f32 v{vL0}, v{S}, v{S+1}")
        else:
            e(f"v_add_f32 v{S}, v{S}, v{S+1}"); e(f"v_fmac_f32 v{S}, v{vL0}, v{vAL}")
            xred(S, S+1, "v_add_f32")
            e(f"ds_write_b32 v{vSA}, v{vM0} offset:{L_SM}"); e(f"ds_write_b32 v{vSA}, v{S} offset:{L_SL}")
            e(f"v_mov_b32 v{S+1}, 1"); e(f"v_mov_b32 v{S+2}, 0"); e("s_mov_b64 exec, 1")
            e(f"ds_add_u32 v{S+2}, v{S+1} offset:{L_CNT}"); e("s_mov_b64 exec, -1")
            e(f"v_readlane_b32 s{sT0}, v{vAL}, 0"); e(f"v_readlane_b32 s{sT1}, v{vAL}, 4")
        for v in range(8):
            for t in range(4):
                e(f"v_cndmask_b32 v{vPV+4*v+t}, 0, v{vP8+t}, s[{sMASK+2*v}:{sMASK+2*v+1}]")
    def pv(unit):
        if o.get('nocomp'): return
        blk, hf = unit//2, unit % 2
        base = vreg(unit); acc = vACC + 4*hf
        def perms(d):
            for t in range(4):
                e(f"v_perm_b32 v{vT+4*(d%3)+t}, v{base+4*(2*t+1)+d//2}, v{base+4*(2*t)+d//2}, s{sSEL1 if d&1 else sSEL0}")
        perms(0)
        for d in range(8):
            if d < 7: perms(d+1)
            else: g.nop(2)
            cin = "0" if (blk == 0 and d == 0) else vr(acc)
            e(f"v_mfma_f32_16x16x32_bf16 {vr(acc)}, {vr(vPV+4*d)}, {vr(vT+4*(d%3))}, {cin}")
    def qkm(bt, dbase, wait):
        e(f"s_waitcnt vmcnt({wait})")
        g.ts(f"K{bt}")
        if o.get('nocomp'): return
        for u in range(4*bt, 4*bt+4):
            d = dbase + 4*(u % 4)
            e(f"v_mfma_f32_16x16x32_bf16 {vr(d)}, {vr(kreg(2*u))}, {vr(vQB)}, 0")
            e(f"v_mfma_f32_16x16x32_bf16 {vr(d)}, {vr(kreg(2*u+1))}, {vr(vQB+4)}, {vr(d)}")
    def postb(bt, dbase):
        if o.get('nocomp'): return
        for step in range(4):
            for u in range(4*bt, 4*bt+4):
                d = dbase + 4*(u % 4); s_ = vS + u
                if step == 0: e(f"v_mov_b32_dpp v{s_}, v{d} quad_perm:[0,0,0,0] {DPP}")
                else: e(f"v_add_f32_dpp v{s_}, v{d+step}, v{s_} quad_perm:[{step},{step},{step},{step}] {DPP}")
    def vunit(u):
        for j in range(8): vload(u, j)
    def addrs():
        e(f"v_lshlrev_b32 v{vC}, 5, v{vC}")
        e(f"s_lshl_b32 s{sT0}, s{sW}, 2"); e(f"v_add_u32 v{vSA}, s{sT0}, v{vC}")
        e(f"v_bfe_u32 v{vC}, v{vL}, 4, 1"); e(f"v_lshlrev_b32 v{vORA}, 10, v{vC}"); e(f"v_lshlrev_b32 v{vC}, 5, v{vC}")
        e(f"v_and_b32 v{vORB}, 15, v{vL}"); e(f"v_lshl_add_u32 v{vORA}, v{vORB}, 5, v{vORA}")
        e(f"v_lshrrev_b32 v{vORB}, 5, v{vL}"); e(f"v_lshl_add_u32 v{vORA}, v{vORB}, 4, v{vORA}")
        e(f"s_and_b32 s{sT1}, s{sR}, 0x100"); e(f"s_lshl_b32 s{sT1}, s{sT1}, 1"); e(f"v_add_u32 v{vORA}, s{sT1}, v{vORA}"); e(f"v_xor_b32 v{vORB}, 0x200, v{vORA}")
        e(f"s_lshl_b32 s{sT0}, s{sW}, 11"); e(f"s_add_u32 s{sT0}, s{sT0}, {L_OR}"); e(f"v_add_u32 v{vORA}, s{sT0}, v{vORA}"); e(f"v_add_u32 v{vORB}, s{sT0}, v{vORB}")
        if o['pret']:
            e(f"s_sub_u32 s{sT0}, s{sW}, 1"); e(f"s_cmp_gt_u32 s{sT0}, 1"); e("s_cbranch_scc1 L_nopre")
            e(f"s_and_b32 s{sT1}, s{sMEM}, 1"); e(f"s_lshl_b32 s{sT1}, s{sT1}, 3"); e(f"s_add_u32 s{sT1}, s{sT1}, s{sB}")
            e(f"s_lshl_b32 s{sT2}, s{sG}, 1"); e(f"s_add_u32 s{sT2}, s{sT2}, s{sT0}")
            e(f"s_lshl_b32 s{sT2}, s{sT2}, 14"); e(f"s_lshl_b32 s{sT1}, s{sT1}, 10"); e(f"s_add_u32 s{sT2}, s{sT2}, s{sT1}"); e(f"s_add_u32 s{sT2}, s{sT2}, {WS_O+WS_F}")
            e(f"v_add_u32 v60, 1, v{vTAG}"); e("v_mov_b32 v61, v60"); e("v_mov_b32 v62, v60"); e("v_mov_b32 v63, v60"); e(f"v_lshlrev_b32 v55, 4, v{vL}")
            e(f"buffer_store_dwordx4 v[60:63], v55, {sr(sWS)}, s{sT2} offen")
            g.lab("L_nopre")
            e("s_nop 1")
    W = NWO
    if o['kv'] == 0:
        qkm(0, 32, 24+W); vunit(0); qkm(1, 48, 24+W); vunit(1)
        postb(0, 32); postb(1, 48); addrs(); soft(0)
        qkm(2, 32, 24+W); vunit(2); postb(2, 32)
        e("s_waitcnt vmcnt(16)"); g.ts("V0"); pv(0)
        qkm(3, 96, 24+W); vunit(3)
        g.ts("QK")
        e("s_waitcnt vmcnt(16)"); g.ts("V1"); pv(1)
        postb(3, 96); soft(1)
    else:
        K2 = (o['kv'] == 2)
        qkm(0, 32, 24+W)
        if not K2:
            for n in range(16, 24): kload(n)
        qkm(1, 48, (16 if K2 else 24)+W)
        if not K2:
            for n in range(24, 32): kload(n)
        else: g.nop(4)
        postb(0, 32); postb(1, 48); addrs(); soft(0)
        if K2:
            e(f"s_waitcnt vmcnt({8+W})"); pv(0)
            e(f"s_waitcnt vmcnt({W})"); pv(1)
            for n in range(16, 32): kload(n)
            vunit(2); vunit(3)
        else:
            e(f"s_waitcnt vmcnt({24+W})"); pv(0); vunit(2)
            e(f"s_waitcnt vmcnt({24+W})"); pv(1); vunit(3)
        g.ts("QK")
        qkm(2, 32, 24); qkm(3, 96, 16)
        postb(2, 32); postb(3, 96); soft(1)
    e(f"v_mov_b32 v{vAL}, s{sT0}"); e(f"v_mov_b32 v{vA}, s{sT1}"); e(f"s_mov_b32 vcc_lo, 0xffff0000"); e(f"s_mov_b32 vcc_hi, 0xffff0000")
    e(f"v_cndmask_b32 v{vAL}, v{vAL}, v{vA}, vcc")
    for k in range(8): e(f"v_mul_f32 v{vACC+k}, v{vACC+k}, v{vAL}")
    g.ts("P")
    e(f"s_waitcnt vmcnt(8)"); g.ts("V2"); pv(2)
    if o['cpf2']:
        e(f"s_cmp_lg_u32 s{sW}, 3"); e("s_cbranch_scc1 L_nopf2")
        e(f"s_getpc_b64 s[{sT2}:{sT3}]")
        g.lab("L_pc2")
        e(f"v_lshlrev_b32 v60, 7, v{vL}"); e(f"s_mov_b32 s{sT0}, L_codeend-L_pc2-4"); e(f"v_min_u32 v60, s{sT0}, v60")
        e(f"global_load_dword v61, v60, s[{sT2}:{sT3}]")
        e("s_waitcnt vmcnt(0)")
        g.lab("L_nopf2")
    g.c("workgroup-level softmax factor from the 8 waves (max, sum)")
    e(f"s_lshl_b32 s{sT0}, s{sW}, 2"); e(f"v_add_u32 v{vB}, s{sT0}, v{vC}"); e("v_mov_b32 v62, 0")
    if o.get('nocomp') or o.get('nosw'): e("s_branch L_sready")
    g.lab("L_swait")
    e(f"ds_read_b32 v61, v62 offset:{L_CNT}"); e("s_waitcnt lgkmcnt(0)"); e(f"v_readfirstlane_b32 s{sT0}, v61"); e(f"s_cmp_eq_u32 s{sT0}, 8"); e("s_cbranch_scc1 L_sready")
    e(f"s_sleep {o['ssl']}"); e("s_branch L_swait")
    g.lab("L_sready")
    e(f"ds_read_b128 {vr(16)}, v{vC} offset:{L_SM}"); e(f"ds_read_b128 {vr(20)}, v{vC} offset:{L_SM+16}")
    e(f"ds_read_b32 v{vF}, v{vB} offset:{L_SM}")
    e(f"ds_read_b128 {vr(24)}, v{vC} offset:{L_SL}"); e(f"ds_read_b128 {vr(28)}, v{vC} offset:{L_SL+16}")
    e("s_waitcnt lgkmcnt(0)")
    e("v_max3_f32 v124, v16, v17, v18"); e("v_max3_f32 v125, v19, v20, v21"); e("v_max3_f32 v124, v124, v22, v23"); e("v_max_f32 v124, v124, v125")
    for w in range(8): e(f"v_sub_f32 v{16+w}, v{16+w}, v124")
    e(f"v_sub_f32 v{vF}, v{vF}, v124")
    for w in range(8): e(f"v_exp_f32 v{16+w}, v{16+w}")
    e(f"v_exp_f32 v{vF}, v{vF}")
    e("v_mul_f32 v126, v24, v16")
    for w in range(1, 8): e(f"v_fmac_f32 v126, v{24+w}, v{16+w}")
    e(f"v_rcp_f32 v16, v126"); e(f"v_mov_b32 v125, v{vTAG}"); e(f"v_mov_b32 v127, v{vTAG}")
    e(f"v_mul_f32 v{vF}, v{vF}, v16")
    e(f"v_lshrrev_b32 v53, 4, v{vL}")
    e(f"v_lshlrev_b32 v60, 4, v{vL}")
    e(f"s_lshl_b32 s{sT2}, s{sG}, 1")
    e(f"s_cmp_lt_u32 s{sW}, 4"); e("s_cbranch_scc1 L_a03")
    e(f"s_cmp_eq_u32 s{sW}, 4"); e("s_cbranch_scc1 L_a4")
    e(f"s_cmp_eq_u32 s{sW}, 7"); e("s_cbranch_scc1 L_a7")
    e(f"s_sub_u32 s{sT0}, s{sW}, 5")
    e(f"s_and_b32 s{sT1}, s{sMEM}, 1"); e(f"s_lshl_b32 s{sT1}, s{sT1}, 3"); e(f"s_add_u32 s{sT1}, s{sT1}, s{sB}")
    e(f"s_add_u32 s{sT2}, s{sT2}, s{sT0}")
    e(f"s_lshl_b32 s44, s{sT2}, 14"); e(f"s_lshl_b32 s45, s{sT1}, 10"); e(f"s_add_u32 s44, s44, s45"); e(f"s_add_u32 s44, s44, {WS_O}"); e(f"s_add_u32 s45, s44, {WS_F}")
    e(f"s_lshl_b32 s{sT2}, s{sT2}, 8"); e(f"s_lshl_b32 s{sT1}, s{sT1}, 4"); e(f"s_add_u32 s{sT2}, s{sT2}, s{sT1}"); e(f"s_add_u32 s{sT2}, s{sT2}, {WS_S}"); e(f"s_add_u32 s{sT3}, s{sT2}, {WS_F}")
    e(f"s_lshl_b32 s{sT1}, s{sT0}, 4"); e(f"s_lshl_b64 exec, 1, s{sT1}")
    e(f"s_cmp_eq_u32 s42, 1"); e(f"s_cselect_b32 s{sT2}, 0x4000000, s{sT2}"); e("s_cselect_b32 s44, 0x4000000, s44")
    if o['lst']:
        e("s_mov_b64 s[64:65], exec")
    else:
        e(f"buffer_store_dwordx4 v[124:127], v62, {sr(sWS)}, s{sT3} offen")
        e(f"buffer_store_dwordx4 v[124:127], v62, {sr(sWS)}, s{sT2} offen sc1")
    e("s_mov_b64 exec, -1")
    e(f"s_lshl_b32 s{sT1}, s{sT0}, 10"); e(f"s_add_u32 s{sT1}, s{sT1}, {L_OR}"); e(f"v_add_u32 v61, s{sT1}, v60")
    e(f"v_mov_b32 v97, v{vTAG}"); e(f"v_mov_b32 v99, v{vTAG}")
    e(f"s_waitcnt vmcnt({0 if o['lst'] else 2})")
    e("s_branch L_v3")
    g.lab("L_a03")
    e(f"s_add_u32 s{sT2}, s{sT2}, s{sH3}")
    e(f"v_and_b32 v54, 15, v{vL}"); e("v_lshlrev_b32 v52, 10, v54"); e("v_lshl_add_u32 v52, v53, 5, v52"); e("v_lshlrev_b32 v54, 2, v54")
    e(f"s_lshl_b32 s{sT3}, s{sT2}, 14"); e(f"s_lshl_b32 s{sT0}, s{sW}, 8"); e(f"s_add_u32 s{sT3}, s{sT3}, s{sT0}"); e(f"s_add_u32 s{sT3}, s{sT3}, {WS_O+WS_F}")
    e(f"s_lshl_b32 s{sT0}, s{sW}, 11"); e(f"v_add_u32 v61, s{sT0}, v60")
    e(f"v_bfe_u32 v55, v{vL}, 2, 2"); e("v_lshl_add_u32 v63, v53, 3, v55"); e("v_lshlrev_b32 v63, 7, v63")
    e(f"v_bfe_u32 v16, v{vL}, 1, 1"); e(f"s_lshl_b32 s{sT0}, s{sW}, 1"); e(f"v_add_u32 v16, s{sT0}, v16")
    if o['wosw']:
        e("v_and_b32 v55, 2, v55"); e("v_xor_b32 v16, v16, v55"); e("v_and_b32 v55, 1, v53"); e("v_lshlrev_b32 v55, 2, v55"); e("v_xor_b32 v16, v16, v55")
    e("v_lshl_add_u32 v63, v16, 4, v63"); e(f"v_and_b32 v16, 1, v{vL}"); e("v_lshl_add_u32 v63, v16, 3, v63"); e(f"v_add_u32 v63, {L_WO}, v63")
    e(f"s_lshl_b32 s{sT0}, s{sNL}, 2"); e(f"s_add_u32 s{sT0}, s{sT0}, s{sW}"); e(f"s_lshl_b32 s{sT0}, s{sT0}, 15"); e(f"s_lshl_b32 s44, s{sT2}, 7")
    e(f"s_add_u32 s44, s44, s{sT0}"); e(f"s_add_u32 s44, s44, {WS_P}")
    e(f"v_and_b32 v55, 7, v{vL}"); e("v_lshlrev_b32 v55, 12, v55"); e("v_lshl_add_u32 v55, v53, 5, v55")
    e(f"v_bfe_u32 v16, v{vL}, 3, 1"); e("v_lshl_add_u32 v55, v16, 4, v55")
    e(f"v_mov_b32 v109, v{vTAG}"); e(f"v_mov_b32 v111, v{vTAG}")
    e(f"s_lshl_b32 s45, s{sG}, 2"); e(f"s_add_u32 s45, s45, {WS_H}"); e(f"v_lshlrev_b32 v17, 8, v{vL}")
    if o['wol']: wo_setup(WLATE, 18, 19, 20, 21, 8*WE)
    e("s_branch L_nostat")
    g.lab("L_a4")
    e(f"s_add_u32 s{sT2}, s{sT2}, s{sH3}"); e(f"s_lshl_b32 s{sT3}, s{sT2}, 8"); e(f"s_add_u32 s{sT3}, s{sT3}, {WS_S+WS_F}")
    e(f"v_and_b32 v54, 15, v{vL}"); e("v_lshlrev_b32 v55, 4, v54"); e("v_lshlrev_b32 v54, 2, v54")
    e("s_branch L_nostat")
    g.lab("L_a7")
    e(f"s_lshl_b32 s{sT3}, s2, 12"); e(f"s_add_u32 s{sT3}, s{sT3}, {WS_P}")
    e(f"v_and_b32 v54, 7, v{vL}"); e("v_lshlrev_b32 v54, 2, v54"); e(f"v_lshlrev_b32 v55, 2, v{vL}")
    e(f"s_mul_i32 s21, s{sKVH}, 896"); e("s_lshr_b32 s20, s2, 3"); e("s_lshl_b32 s20, s20, 5"); e("s_add_u32 s21, s21, s20")
    e(f"s_and_b32 s20, s2, {o['nrep']-1}"); e("s_lshl_b32 s20, s20, 8"); e(f"s_add_u32 s20, s20, {WS_H}")
    g.lab("L_nostat")
    e("s_waitcnt vmcnt(0)")
    g.lab("L_v3")
    for k in range(4): e(f"v_mul_f32 v{vACC+k}, v{vACC+k}, v{vF}")
    g.ts("V3")
    e(f"ds_write_b128 v{vORA}, {vr(vACC)}")
    pv(3)
    e(f"s_cmp_lt_u32 s{sW}, 5")
    g.nop(7)
    for k in range(4): e(f"v_mul_f32 v{vACC+4+k}, v{vACC+4+k}, v{vF}")
    e(f"ds_write_b128 v{vORB}, {vr(vACC+4)}")
    if o['wol']:
        e(f"s_cmp_gt_u32 s{sW}, 3"); e("s_cbranch_scc1 L_nowo")
        if o.get('sk14', 1): e(f"s_cmp_eq_u32 s{sROLE}, 14"); e("s_cbranch_scc1 L_nowo")
        wo_issue(WLATE, 18, 19, 8*WE)
        g.lab("L_nowo")
        e(f"s_cmp_lt_u32 s{sW}, 5")
    e("s_waitcnt lgkmcnt(0)")
    e("s_barrier")
    g.ts("B4")
    if o.get('stopb4'): e("s_branch L_fin")
    e("s_cbranch_scc1 L_cons")
    e(f"s_cmp_eq_u32 s{sW}, 7"); e("s_cbranch_scc1 L_w7")
    g.c("waves 5,6: sum the 8 partial o, publish")
    for w in range(8): e(f"ds_read_b128 {vr(64+4*w)}, v61 offset:{w*2048}")
    if o['lst']:
        e("s_mov_b64 exec, s[64:65]")
        e(f"buffer_store_dwordx4 v[124:127], v62, {sr(sWS)}, s{sT3} offen")
        e(f"buffer_store_dwordx4 v[124:127], v62, {sr(sWS)}, s{sT2} offen sc1")
        e("s_mov_b64 exec, -1")
    for w in range(1, 8, 2):
        e(f"s_waitcnt lgkmcnt({0 if o['ts'] else 7-w})")
        if o['pk']:
            for k in (0, 2): e(f"v_pk_add_f32 {vr(64+4*(w-1)+k,2)}, {vr(64+4*(w-1)+k,2)}, {vr(64+4*w+k,2)}")
            if w > 1:
                for k in (0, 2): e(f"v_pk_add_f32 {vr(64+k,2)}, {vr(64+k,2)}, {vr(64+4*(w-1)+k,2)}")
            continue
        for k in range(4): e(f"v_add_f32 v{64+4*(w-1)+k}, v{64+4*(w-1)+k}, v{64+4*w+k}")
        if w > 1:
            for k in range(4): e(f"v_add_f32 v{64+k}, v{64+k}, v{64+4*(w-1)+k}")
    e("v_cvt_pk_bf16_f32 v96, v64, v65"); e("v_cvt_pk_bf16_f32 v98, v66, v67")
    e(f"buffer_store_dwordx4 v[96:99], v60, {sr(sWS)}, s45 offen {o['opol']}")
    g.ts("opub")
    e(f"buffer_store_dwordx4 v[96:99], v60, {sr(sWS)}, s44 offen sc1")
    e(f"s_cmp_eq_u32 s{sROLE}, 14"); e("s_cbranch_scc1 L_fin")
    if B45: e("s_barrier")
    e("s_barrier")
    e("s_branch L_fin")
    g.lab("L_cons")
    g.c("wave 4: merge weights of the two key halves; waves 0..3: gather o, project, publish partials")
    e(f"s_cmp_eq_u32 s{sROLE}, 14"); e("s_cbranch_scc1 L_fin")
    e(f"s_cmp_lt_u32 s{sW}, 4"); e("s_cbranch_scc1 L_gath")
    if B45: e("s_barrier")
    e("s_mov_b64 exec, 0xffff")
    def sl(): e(f"buffer_load_dwordx4 {vr(160)}, v55, {sr(sWS)}, s{sT3} offen {o.get('ppol2', o['ppol'])}")
    poll("sg", sl, [161, 163], 58, 59, o['sleep1'])
    if o['gate1']: e(f"v_mov_b32 v61, 9"); e(f"ds_write_b32 v62, v61 offset:{L_CNT}")
    e(f"v_mov_b32_dpp v100, v160 row_ror:8 {DPP}")
    e(f"v_mov_b32_dpp v101, v162 row_ror:8 {DPP}")
    e("v_max_f32 v102, v160, v100")
    e("v_sub_f32 v103, v160, v102"); e("v_sub_f32 v100, v100, v102")
    e("v_exp_f32 v103, v103"); e("v_exp_f32 v100, v100"); e("s_nop 0")
    e("v_mul_f32 v103, v103, v162"); e("v_fma_f32 v100, v100, v101, v103")
    e("v_rcp_f32 v100, v100"); e("s_nop 0"); e("v_mul_f32 v103, v103, v100")
    e("s_mov_b64 exec, 0xffff")
    e(f"ds_write_b32 v54, v103 offset:{L_W}")
    e("s_waitcnt lgkmcnt(0)")
    e("s_barrier")
    e("s_branch L_fin")
    g.lab("L_gath")
    def gl():
        for k in range(2):
            e(f"buffer_load_dwordx4 {vr(128+8*k)}, v52, {sr(sWS)}, s{sT3} offen offset:{128*k} {o.get('ppol2', o['ppol'])}")
            e(f"buffer_load_dwordx4 {vr(132+8*k)}, v52, {sr(sWS)}, s{sT3} offen offset:{128*k+16} {o.get('ppol2', o['ppol'])}")
    def wofr():
        for k in range(8):
            e(f"ds_read_b64_tr_b16 {vr(64+4*k,2)}, v63 offset:{k*4096}")
            e(f"ds_read_b64_tr_b16 {vr(66+4*k,2)}, v63 offset:{k*4096+512}")
            if k == 6: e("s_waitcnt lgkmcnt(4)")
    def wofr45():
        e("s_waitcnt vmcnt(4)"); e("s_barrier"); wofr()
    if not o['g1p']:
        poll("g1", gl, [129+2*i for i in range(8)], 58, 59, o['sleep1'], first=(wofr45 if B45 else None) if o['wol'] else wofr, gate=o['gate1'])
        for k in range(2):
            e(f"v_mov_b32 v{129+8*k}, v{130+8*k}"); e(f"v_mov_b32 v{130+8*k}, v{132+8*k}"); e(f"v_mov_b32 v{131+8*k}, v{134+8*k}")
            e(f"ds_write_b128 v61, {vr(128+8*k)} offset:{L_B3+1024*k}")
    else:
        def gl2(b):
            for k in range(2):
                e(f"buffer_load_dwordx4 {vr(b+8*k)}, v52, {sr(sWS)}, s{sT3} offen offset:{128*k} sc1")
                e(f"buffer_load_dwordx4 {vr(b+4+8*k)}, v52, {sr(sWS)}, s{sT3} offen offset:{128*k+16} sc1")
        e(f"s_mov_b32 s{sSPIN}, {o['spin']}"); e("s_mov_b64 s[66:67], 0")
        gl2(128); wofr(); e(f"s_sleep {o['g1p']}"); gl2(144)
        g.lab("L_g1")
        e("s_waitcnt vmcnt(4)")
        tagcheck([129+2*i for i in range(8)], 58, 59)
        e("s_cbranch_scc0 L_g1_ok")
        e("s_mov_b64 exec, vcc")
        gl2(128)
        e("s_waitcnt vmcnt(4)")
        tagcheck([145+2*i for i in range(8)], 58, 59)
        e("s_andn2_b64 s[64:65], exec, vcc"); e("s_or_b64 s[66:67], s[66:67], s[64:65]")
        e("s_cmp_eq_u64 vcc, 0"); e("s_cbranch_scc1 L_g1_ok")
        e("s_mov_b64 exec, vcc")
        e(f"s_cmp_eq_u32 s{sSPIN}, {o['spin']-o['fthr']}"); e(f"s_cselect_b32 s{sT0}, {WS_F}, 0"); e(f"s_sub_u32 s{sT3}, s{sT3}, s{sT0}")
        gl2(144)
        e(f"s_sub_u32 s{sSPIN}, s{sSPIN}, 1"); e("s_cbranch_scc0 L_g1")
        g.lab("L_g1_ok")
        e("s_mov_b64 exec, -1")
        for k in range(2):
            for t in range(4): e(f"v_cndmask_b32 v{192+4*k+t}, v{128+8*k+2*t}, v{144+8*k+2*t}, s[66:67]")
            e(f"ds_write_b128 v61, {vr(192+4*k)} offset:{L_B3+1024*k}")
    e(f"s_or_b32 s{sT0}, s{sW}, s{sMEM}"); e("s_cbranch_scc1 L_nohint")
    if o['nrep'] < 64: e(f"s_mov_b64 exec, {hex((1<<o['nrep'])-1)}")
    e(f"buffer_store_dword v{vTAG}, v17, {sr(sWS)}, s45 offen sc1")
    e("s_mov_b64 exec, -1")
    g.lab("L_nohint")
    g.ts("G1")
    e("s_waitcnt lgkmcnt(0)")
    e("s_barrier")
    g.ts("B5")
    if o['wol'] and not B45:
        e(f"ds_read_b32 v103, v54 offset:{L_W}")
        def rd(k):
            e(f"ds_read_b64_tr_b16 {vr(64+4*k,2)}, v63 offset:{k*4096}")
            e(f"ds_read_b64_tr_b16 {vr(66+4*k,2)}, v63 offset:{k*4096+512}")
            e(f"ds_read_b128 {vr(160+4*k)}, v60 offset:{L_B3+k*1024}")
        for k in range(4): rd(k)
        for k in range(8):
            e(f"s_waitcnt lgkmcnt({0 if 'B5' in o.get('tson',()) else 3*min(3, 7-k)})")
            e(f"v_mfma_f32_16x16x32_bf16 {vr(96)}, {vr(64+4*k)}, {vr(160+4*k)}, {'0' if k==0 else vr(96)}")
            if k+4 < 8: rd(k+4)
    else:
        for k in range(8): e(f"ds_read_b128 {vr(160+4*k)}, v60 offset:{L_B3+k*1024}")
        e(f"ds_read_b32 v103, v54 offset:{L_W}")
        for k in range(8):
            e(f"s_waitcnt lgkmcnt({0 if 'B5' in o.get('tson',()) else 8-k})")
            e(f"v_mfma_f32_16x16x32_bf16 {vr(96)}, {vr(64+4*k)}, {vr(160+4*k)}, {'0' if k==0 else vr(96)}")
    e("s_waitcnt lgkmcnt(0)")
    g.nop(7)
    for k in range(4): e(f"v_mul_f32 v{96+k}, v{96+k}, v103")
    for k in range(4): e(f"v_add_f32_dpp v{104+k}, v{96+k}, v{96+k} row_ror:8 {DPP}")
    e(f"v_cndmask_b32 v108, v104, v106, s[{sM8}:{sM8+1}]"); e(f"v_cndmask_b32 v110, v105, v107, s[{sM8}:{sM8+1}]")
    if o.get('nop'): e("s_mov_b32 s44, 0x4000000")
    e(f"buffer_store_dwordx4 v[108:111], v55, {sr(sWS)}, s44 offen {o.get('pst','sc1')}")
    g.ts("ppub")
    e("s_branch L_fin")
    g.lab("L_w7")
    g.c("wave 7: final sum, gate, store")
    for i in range(4): e(f"s_mov_b64 s[{sMASK+2*i}:{sMASK+2*i+1}], -1")
    e(f"s_mov_b32 s{sSPIN}, {o['spin']}")
    e(f"s_cmp_eq_u32 s{sROLE}, 14"); e("s_cbranch_scc1 L_nob5")
    if B45: e("s_barrier")
    e("s_barrier")
    g.lab("L_nob5")
    e("s_cmp_ge_u32 s2, 224"); e("s_cbranch_scc1 L_fin")
    e("s_mov_b64 exec, 0xffff")
    NP = max(1, o['hp'])
    for k in range(NP):
        e(f"buffer_load_dword v{64+k}, v55, {sr(sWS)}, s20 offen sc1")
        if NP > 1: e(f"s_sleep {o['hgap']}")
    g.lab("L_hp")
    for k in range(NP):
        e(f"s_waitcnt vmcnt({NP-1})")
        e(f"v_cmp_ne_u32 vcc, v{64+k}, v{vTAG}")
        e("s_cbranch_vccz L_hp_ok")
        if o['sleep2']: e(f"s_sleep {o['sleep2']}")
        e(f"buffer_load_dword v{64+k}, v55, {sr(sWS)}, s20 offen sc1")
    e(f"s_sub_u32 s{sSPIN}, s{sSPIN}, 1"); e("s_cbranch_scc0 L_hp")
    g.lab("L_hp_ok")
    g.ts("H")
    g.lab("L_g2")
    for i in range(4):
        e(f"s_mov_b64 exec, s[{sMASK+2*i}:{sMASK+2*i+1}]")
        e(f"buffer_load_dwordx4 {vr(128+4*i)}, v60, {sr(sWS)}, s{sT3} offen offset:{i*1024} sc1")
    e("s_mov_b64 exec, -1")
    e("s_waitcnt vmcnt(0)")
    for i in range(4):
        e(f"v_cmp_ne_u32 vcc, v{129+4*i}, v{vTAG}"); e(f"v_cmp_ne_u32 s[{sMASK+2*i}:{sMASK+2*i+1}], v{131+4*i}, v{vTAG}")
        e(f"s_or_b64 s[{sMASK+2*i}:{sMASK+2*i+1}], s[{sMASK+2*i}:{sMASK+2*i+1}], vcc")
    e(f"s_or_b64 s[{sT0}:{sT1}], s[{sMASK}:{sMASK+1}], s[{sMASK+2}:{sMASK+3}]"); e(f"s_or_b64 vcc, s[{sMASK+4}:{sMASK+5}], s[{sMASK+6}:{sMASK+7}]")
    e(f"s_or_b64 vcc, vcc, s[{sT0}:{sT1}]")
    e("s_cbranch_scc0 L_g2_ok")
    e(f"s_sub_u32 s{sSPIN}, s{sSPIN}, 1"); e("s_cbranch_scc0 L_g2")
    g.lab("L_g2_ok")
    g.ts("G2")
    R = [128, 130, 136, 138]
    for r in R: e(f"v_add_f32 v{r}, v{r}, v{r+4}")
    for r in R: e(f"v_add_f32_dpp v{r}, v{r}, v{r} row_ror:8 {DPP}")
    for sw in ("16", "32"):
        for r in R: e(f"v_mov_b32 v{r+1}, v{r}")
        for r in R: e(f"v_permlane{sw}_swap_b32 v{r}, v{r+1}")
        for r in R: e(f"v_add_f32 v{r}, v{r}, v{r+1}")
    e("v_cvt_pk_bf16_f32 v129, v128, v130"); e("v_cvt_pk_bf16_f32 v137, v136, v138")
    for base in (128, 136): e(f"v_lshlrev_b32 v{base}, 16, v{base+1}"); e(f"v_and_b32 v{base+2}, 0xffff0000, v{base+1}")
    for base, gs in ((128, 22), (136, 23)): e(f"v_mul_f32 v{base}, s{gs}, v{base}"); e(f"v_mul_f32 v{base+2}, s{gs}, v{base+2}")
    e("v_cvt_pk_bf16_f32 v129, v128, v130"); e("v_cvt_pk_bf16_f32 v137, v136, v138")
    for base in (128, 136): e(f"v_lshlrev_b32 v{base}, 16, v{base+1}"); e(f"v_and_b32 v{base+2}, 0xffff0000, v{base+1}")
    e("v_add_f32 v128, v128, v136"); e("v_add_f32 v130, v130, v138")
    e("v_cvt_pk_bf16_f32 v128, v128, v130")
    e("s_mov_b64 exec, 0xff")
    e(f"buffer_store_dword v128, v54, {sr(sOUT)}, s21 offen {o.get('outpol','')}")
    e("s_cmp_lg_u32 s2, 0"); e("s_cbranch_scc1 L_fin")
    e("s_mov_b64 exec, 1")
    e(f"buffer_store_dword v{vTAG}, v54, {sr(sWS)}, 0 offen sc1")
    g.lab("L_fin")
    if o['ts']:
        if o['ts'] == 2: e(f"s_cmp_lg_u32 s{sW}, 7"); e("s_cbranch_scc1 L_end")
        e("s_mov_b64 exec, -1")
        g.ts("end")
        e("s_waitcnt lgkmcnt(0)")
        for k in range(16): e(f"v_mov_b32 v{128+k}, s{TSREG[k]}" if k < g.nts else f"v_mov_b32 v{128+k}, 0")
        e(f"s_lshl_b32 s{sT0}, s2, 3"); e(f"s_add_u32 s{sT0}, s{sT0}, s{sW}"); e(f"s_lshl_b32 s{sT0}, s{sT0}, 6"); e(f"s_add_u32 s{sT0}, s{sT0}, {WS_TS}")
        e("v_mov_b32 v60, 0"); e("s_mov_b64 exec, 1")
        for k in range(1 if o['ts'] == 2 else 4): e(f"buffer_store_dwordx4 {vr(128+4*k)}, v60, {sr(sWS)}, s{sT0} offen offset:{16*k}")
        print("TS:", ",".join(g.tsn))
    g.lab("L_end")
    e("s_endpgm")
    g.lab("L_codeend")
    g.L += ['.section .rodata,"a"', ".p2align 6", f".amdhsa_kernel {KN}",
            "  .amdhsa_next_free_vgpr 256", "  .amdhsa_next_free_sgpr 102", "  .amdhsa_accum_offset 256",
            "  .amdhsa_group_segment_fixed_size 0", "  .amdhsa_kernarg_size 112", "  .amdhsa_user_sgpr_count 2",
            "  .amdhsa_user_sgpr_kernarg_segment_ptr 1", "  .amdhsa_system_sgpr_workgroup_id_x 1",
            "  .amdhsa_float_denorm_mode_32 3", ".end_amdhsa_kernel"]
    return "\n".join(g.L) + "\n"

if __name__ == "__main__":
    from lint import lint
    from build import build
    out = sys.argv[1]; opts = eval("dict(" + (sys.argv[2] if len(sys.argv) > 2 else "") + ")")
    s = gen(**opts)
    open(out, "w").write(s)
    for p in lint(s): print("LINT:", p)
    build(out)
```

```python
import sys, math, struct
sys.path.insert(0, "gen"); sys.path.insert(0, "tools")
KN = "gated_mix__sliding_block_cached__sliding_block_cached__decode_kernel"
HEADER = open("gated_mix__sliding_block_cached__sliding_block_cached__decode.s.ref").read().split("; Override launch")[0]

WS_Q = 0x10000
WS_S = 0x60000
WS_H = 0x70000
WS_O = 0x80000
WS_F = 0x100000
WS_P = 0x200000
WS_TS = 0x400000
WS_SIZE = 0x800000
L_QL = 0
L_SM = 1024
L_SL = 1088
L_W = 1152
L_F = 1216
L_CNT = 1220
L_CN2 = 1224
L_B3 = 2048
L_WQ = 10240
L_X = 38912
L_WO = 46080
L_OR = 78848
LDS_BYTES = 95232
TSREG = [84,86,88,90,92,94,96,98,100,8,10,12,14,16,18,20]

DOC = '''; ---------------------------------------------------------------------------------------------
; Workgroup id -> kv head = id&7, member = (id>>3)&15 (batch = member>>1, key half = member&1),
; branch = id>>7. The 16 members of a (branch, kv head) group exchange data through d_ws.
;     then gathers the 512 q columns of its own batch into LDS. All waves stream K meanwhile.
;     merged with their softmax weights, f32 partials published.
; Hand-offs: 8-byte {data, tag} granules, tag = f(word 0 of d_ws at entry); word 0 moves on at the
; ---------------------------------------------------------------------------------------------'''

def f2u(x): return struct.unpack("<I", struct.pack("<f", x))[0]
def vr(a, n=4): return f"v[{a}:{a+n-1}]"
def sr(a, n=4): return f"s[{a}:{a+n-1}]"
DPP = "row_mask:0xf bank_mask:0xf"

class G:
    def __init__(s, **o):
        s.L = []
        s.o = dict(round_s=1, ts=0, pol='nt', spin=1<<16, codepf=1, sleep1=0, sleep2=0, b0at=36, pre=2, fthr=256,
                   xm=0x100, xa=1, xb=0, kv=0, qsl=2, ssl=1, hp=0, hgap=2, skip=(6,7), wosw=1, bx=1, pret=0, g1p=0, wol=1, imm=0, nrep=8, xc=1, wt=1, tlb=0, cpf2=0, q0k=32, pk=1, gate1=0, vpf=1, spf=0, sdel=0, e1=1, b45=1, lst=0, spol='', ppol='sc1 nt', qpol='', opol='')
        s.o.update(o); s.nts = 0; s.tsn = []
    def e(s, t): s.L.append("  " + t)
    def c(s, t): s.L.append("  ; " + t)
    def lab(s, t): s.L.append(t + ":")
    def nop(s, n):
        while n > 0:
            k = min(n, 16); s.e(f"s_nop {k-1}"); n -= k
    def ts(s, name):
        if not s.o['ts'] or name not in s.o['tson']: return
        k = s.nts; s.nts += 1
        r = TSREG[k]; s.tsn.append(name)
        s.e(f"s_memrealtime s[{r}:{r+1}]   ; ts {name}")

def gen(**opts):
    g = G(**opts); e = g.e; o = g.o; POL = o['pol']
    sK, sV, sWQ, sWO, sX, sGW, sWS, sOUT = 24, 28, 32, 36, 40, 44, 48, 52
    sW = 56; sR = 57; sT0, sT1, sT2, sT3 = 58, 59, 60, 61
    sKVH, sBR, sMEM, sB, sG = 3, 4, 5, 6, 7
    sMASK = 64; sM8 = 80; sSEL0, sSEL1 = 82, 83; sSPIN = 62; sC = 63
    sROLE = 32
    sH3 = 33; sNL = 34
    vL = 1; vKO = 2; vVO = 3; vTAG = 4; vA = 5; vB = 6; vC = 7
    vQB = 8; vS = 16; vPV = 64; vK = 128
    vT = 40; vM0 = 52; vL0 = 53; vAL = 54; vORA = 56; vORB = 57; vSA = 58; vF = 59
    vACC = 112; vP8 = 120
    BS = 131072
    B45 = o['b45'] and o['wol']

    def tagcheck(tags, a, b_):
        if len(tags) == 2:
            e(f"v_cmp_ne_u32 vcc, v{tags[0]}, v{vTAG}"); e(f"v_cmp_ne_u32 s[{sT0}:{sT1}], v{tags[1]}, v{vTAG}")
        else:
            e(f"v_min3_u32 v{a}, v{tags[0]}, v{tags[1]}, v{tags[2]}"); e(f"v_max3_u32 v{b_}, v{tags[0]}, v{tags[1]}, v{tags[2]}")
            i = 3
            while i+1 < len(tags):
                e(f"v_min3_u32 v{a}, v{a}, v{tags[i]}, v{tags[i+1]}"); e(f"v_max3_u32 v{b_}, v{b_}, v{tags[i]}, v{tags[i+1]}"); i += 2
            if i < len(tags):
                e(f"v_min_u32 v{a}, v{a}, v{tags[i]}"); e(f"v_max_u32 v{b_}, v{b_}, v{tags[i]}")
            e(f"v_cmp_ne_u32 vcc, v{a}, v{vTAG}"); e(f"v_cmp_ne_u32 s[{sT0}:{sT1}], v{b_}, v{vTAG}")
        e(f"s_or_b64 vcc, vcc, s[{sT0}:{sT1}]")
    def poll(name, loads, tags, a, b_, sleep=0, first=None, gate=False):
        e(f"s_mov_b32 s{sSPIN}, {o['spin']}")
        if first:
            loads(); first(); e(f"s_branch L_{name}_w")
        g.lab(f"L_{name}")
        loads()
        g.lab(f"L_{name}_w")
        e("s_waitcnt vmcnt(0)")
        tagcheck(tags, a, b_)
        e(f"s_cbranch_scc0 L_{name}_ok")
        e("s_mov_b64 exec, vcc")
        if gate:
            g.lab(f"L_{name}_g")
            e(f"ds_read_b32 v{a}, v62 offset:{L_CNT}"); e("s_waitcnt lgkmcnt(0)"); e(f"v_readfirstlane_b32 s{sT0}, v{a}")
            e(f"s_cmp_eq_u32 s{sT0}, 8"); e(f"s_cbranch_scc1 L_{name}_g")
        if sleep: e(f"s_sleep {sleep}")
        e(f"s_cmp_le_u32 s{sSPIN}, {o['spin']-o['fthr']}"); e(f"s_cselect_b32 s{sT0}, {WS_F}, 0"); e(f"s_xor_b32 s{sT3}, s{sT3}, s{sT0}")
        e(f"s_sub_u32 s{sSPIN}, s{sSPIN}, 1"); e(f"s_cbranch_scc0 L_{name}")
        g.lab(f"L_{name}_ok")
        e("s_mov_b64 exec, -1")
    def srd(d, p, n):
        e(f"s_mov_b32 s{d}, s{p}"); e(f"s_mov_b32 s{d+1}, s{p+1}"); e(f"s_mov_b32 s{d+2}, {n}"); e(f"s_mov_b32 s{d+3}, 0x20000")
    def kreg(n): return vK + 4*(n % 16) if o['kv'] else vK + 4*n
    def vreg(unit): return vK + 64 + 32*(unit % 2) if o['kv'] else vK + 32*unit
    def kload(n):
        u, hf = n//2, n % 2
        if o['imm']:
            e(f"buffer_load_dwordx4 {vr(kreg(n))}, v{vKO}, {sr(sK)}, s{sR if u < 8 else 43} offen offset:{(u&7)*512+hf*256} {POL}")
            return
        e(f"s_xor_b32 s47, s{sR}, {(u&7)*512+hf*256+(u>>3)*BS}")
        e(f"buffer_load_dwordx4 {vr(kreg(n))}, v{vKO}, {sr(sK)}, s47 offen {POL}")
    def vload(unit, j):
        blk, hf = unit//2, unit % 2
        if o['imm']:
            e(f"buffer_load_dwordx4 {vr(vreg(unit)+4*j)}, v{vVO}, {sr(sV)}, s{sR if blk == 0 else 43} offen offset:{j*512+hf*256} {POL}")
            return
        e(f"s_xor_b32 s47, s{sR}, {j*512+hf*256+blk*BS}")
        e(f"buffer_load_dwordx4 {vr(vreg(unit)+4*j)}, v{vVO}, {sr(sV)}, s47 offen {POL}")

    g.L.append(HEADER.rstrip("\n"))
    g.L.append(f"; @launch grid=(256,1,1) block=(512,1,1) lds={LDS_BYTES}")
    g.L.append('.amdgcn_target "amdgcn-amd-amdhsa--gfx950"')
    g.L.append(DOC)
    g.L.append(".text"); g.L.append(f".globl {KN}"); g.L.append(".p2align 8"); g.L.append(f".type {KN},@function"); g.lab(KN)
    e("s_cmp_ge_u32 s2, 256"); e("s_cbranch_scc1 L_end")
    g.ts("start")
    e(f"s_lshr_b32 s{sBR}, s2, 7")
    e(f"s_mul_i32 s{sT0}, s{sBR}, 40")
    e(f"s_add_u32 s{sT2}, s0, s{sT0}"); e(f"s_addc_u32 s{sT3}, s1, 0")
    e(f"s_load_dwordx8 s[8:15], s[{sT2}:{sT3}], 8")
    e("s_load_dwordx2 s[16:17], s[0:1], 0")
    e("s_load_dwordx2 s[18:19], s[0:1], 104")
    e("s_load_dwordx4 s[20:23], s[0:1], 80")
    e(f"v_lshrrev_b32 v{vA}, 6, v0")
    e(f"v_and_b32 v{vL}, 63, v0")
    e(f"v_readfirstlane_b32 s{sW}, v{vA}")
    e(f"s_getpc_b64 s[{sM8}:{sM8+1}]")
    g.lab("L_pc")
    if o['codepf']:
        g.c("pull the kernel's code into L2: one dword per 128 B line (waves 1,2)")
        e(f"v_lshlrev_b32 v35, 7, v0"); e("v_subrev_u32 v35, 8192, v35")
        e(f"s_mov_b32 s{sT0}, L_codeend-L_pc-4")
        e(f"v_cmp_gt_u32 vcc, s{sT0}, v35")
        e(f"s_and_saveexec_b64 s[{sT2}:{sT3}], vcc")
        e("s_cbranch_execz L_nopf")
        e(f"global_load_dword v36, v35, s[{sM8}:{sM8+1}] {o['spol']}")
        g.lab("L_nopf")
        e("s_mov_b64 exec, -1")
    e(f"s_and_b32 s{sKVH}, s2, 7")
    e(f"s_bfe_u32 s{sMEM}, s2, 0x40003")
    e(f"s_lshr_b32 s{sB}, s{sMEM}, 1")
    e(f"s_lshl_b32 s{sG}, s{sBR}, 3"); e(f"s_add_u32 s{sG}, s{sG}, s{sKVH}")
    if o['xa'] == 1 and o['xb'] == 0:
        e(f"s_lshl_b32 s{sT0}, s{sW}, 8")
    else:
        e(f"s_mul_i32 s{sT0}, s{sW}, {o['xa']}"); e(f"s_lshr_b32 s{sT1}, s2, 3"); e(f"s_mul_i32 s{sT1}, s{sT1}, {o['xb']}"); e(f"s_add_u32 s{sT0}, s{sT0}, s{sT1}")
        e(f"s_lshl_b32 s{sT0}, s{sT0}, 8")
    e(f"s_and_b32 s{sR}, s{sT0}, {o['xm'] & 0xf00}")
    e(f"s_lshl_b32 s{sT0}, s{sB}, 24"); e(f"s_lshl_b32 s{sT1}, s{sKVH}, 21"); e(f"s_add_u32 s{sT0}, s{sT0}, s{sT1}")
    e(f"s_and_b32 s{sT1}, s{sMEM}, 1"); e(f"s_lshl_b32 s{sT1}, s{sT1}, 18"); e(f"s_add_u32 s{sT0}, s{sT0}, s{sT1}")
    if o['bx'] == 1:
        e(f"s_and_b32 s{sT2}, s{sMEM}, 8"); e(f"s_lshl_b32 s{sT2}, s{sT2}, 14"); e(f"s_or_b32 s{sR}, s{sR}, s{sT2}")
        e(f"s_xor_b32 s{sT1}, s{sW}, s{sMEM}"); e(f"s_and_b32 s{sT1}, s{sT1}, 7"); e(f"s_lshl_b32 s{sT1}, s{sT1}, 14")
    elif o['bx'] == 2:
        e(f"s_and_b32 s{sT2}, s{sMEM}, 1"); e(f"s_mul_i32 s{sT1}, s{sT2}, 7"); e(f"s_lshl_b32 s{sT2}, s{sT2}, 17"); e(f"s_or_b32 s{sR}, s{sR}, s{sT2}")
        e(f"s_xor_b32 s{sT1}, s{sW}, s{sT1}"); e(f"s_lshl_b32 s{sT1}, s{sT1}, 14")
    else:
        e(f"s_lshl_b32 s{sT1}, s{sW}, 14")
    e(f"s_add_u32 s{sT0}, s{sT0}, s{sT1}")
    e(f"s_add_u32 s{sT0}, s{sT0}, {3072*512}")
    e(f"v_bfe_u32 v{vA}, v{vL}, 2, 2"); e(f"v_lshlrev_b32 v{vA}, 12, v{vA}")
    e(f"v_lshrrev_b32 v{vB}, 4, v{vL}")
    e(f"v_lshl_add_u32 v{vKO}, v{vB}, 6, v{vA}")
    e(f"v_and_b32 v{vA}, 3, v{vL}"); e(f"v_lshl_add_u32 v{vKO}, v{vA}, 4, v{vKO}")
    e(f"v_add_u32 v{vKO}, s{sT0}, v{vKO}")
    e(f"v_and_b32 v{vC}, 15, v{vL}"); e(f"v_lshlrev_b32 v{vC}, 4, v{vC}")
    e(f"v_lshl_add_u32 v{vVO}, v{vB}, 12, v{vC}")
    e(f"v_add_u32 v{vVO}, s{sT0}, v{vVO}")
    e(f"v_lshlrev_b32 v33, 4, v{vL}")
    e(f"v_mov_b32 v34, 0")
    e(f"ds_write_b64 v34, v[34:35] offset:{L_F}") if False else None
    e(f"ds_write_b32 v34, v34 offset:{L_F}"); e(f"ds_write_b32 v34, v34 offset:{L_CNT}")
    if o['wt']: e(f"ds_write_b32 v34, v34 offset:{L_CN2}")
    e(f"s_mov_b32 s{sK+2}, 0x8000000"); e(f"s_mov_b32 s{sK+3}, 0x20000")
    e(f"s_mov_b32 s{sWS+2}, {WS_SIZE}"); e(f"s_mov_b32 s{sWS+3}, 0x20000")
    e(f"s_mov_b32 s{sX+2}, 7168"); e(f"s_mov_b32 s{sX+3}, 0x20000")
    e(f"s_cmp_eq_u32 s{sW}, 0")
    e("s_waitcnt lgkmcnt(0)")
    e(f"s_mov_b32 s{sK}, s8"); e(f"s_mov_b32 s{sK+1}, s9")
    e(f"s_mov_b32 s{sWS}, s18"); e(f"s_mov_b32 s{sWS+1}, s19")
    e(f"s_mov_b32 s{sX}, s16"); e(f"s_mov_b32 s{sX+1}, s17")
    if o['spf']:
        e(f"s_lshl_b32 s{sT0}, s{sMEM}, 3"); e(f"s_add_u32 s{sT0}, s{sT0}, s{sW}"); e(f"s_min_u32 s{sT0}, s{sT0}, 111"); e(f"s_lshl_b32 s{sT0}, s{sT0}, 15")
        e(f"s_lshl_b32 s{sT1}, s{sKVH}, 10"); e(f"s_add_u32 s{sT0}, s{sT0}, s{sT1}"); e(f"s_add_u32 s{sT0}, s{sT0}, 384")
        e(f"s_add_u32 s{sT2}, s12, s{sT0}"); e(f"s_addc_u32 s{sT3}, s13, 0")
        for r in range(4):
            e(f"s_load_dword s{64+2*r}, s[{sT2}:{sT3}], {r*8192}")
            if o['spf'] == 2: e(f"s_load_dword s{65+2*r}, s[{sT2}:{sT3}], {r*8192+64}")
        e(f"s_cmp_eq_u32 s{sW}, 0")
    e("s_branch L_notw0" if o.get('now0') else "s_cbranch_scc0 L_notw0")
    g.c("wave 0: wq slice and x into LDS, q slice, publish, gather")
    srd(sWQ, 12, 3670016)
    e(f"v_lshrrev_b32 v32, 2, v{vL}"); e(f"v_lshlrev_b32 v32, 13, v32"); e(f"v_lshl_add_u32 v32, v{vA}, 4, v32")
    e(f"s_lshl_b32 s{sT0}, s{sKVH}, 10"); e(f"s_lshl_b32 s{sT1}, s{sMEM}, 6"); e(f"s_add_u32 s{sT0}, s{sT0}, s{sT1}")
    e(f"v_add_u32 v32, s{sT0}, v32")
    SD = o['sdel']
    if SD:
        e(f"s_sub_u32 s{sT0}, s{sMEM}, 6"); e(f"s_cmp_lt_u32 s{sT0}, 2"); e("s_cselect_b32 s83, 1, 0"); e("s_cbranch_scc0 L_w0n")
        e("s_barrier")
        for n in range(SD): kload(n)
        e("s_waitcnt vmcnt(0)")
        g.lab("L_w0n")
    nd = 0
    for ii in range(o.get('dn', 28)):
        if nd == o['b0at']: e("s_barrier")
        nd += 1
        e(f"s_mov_b32 m0, {L_WQ+ii*1024}")
        e(f"s_mov_b32 s{sT2}, {ii*131072}")
        e(f"buffer_load_dwordx4 v32, {sr(sWQ)}, s{sT2} offen {POL} lds")
    for ii in range(0 if o.get('nox') else 7):
        if nd == o['b0at']: e("s_barrier")
        nd += 1
        e(f"s_mov_b32 m0, {L_X+ii*1024}")
        e(f"s_mov_b32 s{sT2}, {ii*1024}")
        e(f"buffer_load_dwordx4 v33, {sr(sX)}, s{sT2} offen {o['spol']} lds")
    e(f"buffer_load_dword v{vTAG}, v34, {sr(sWS)}, 0 offen {'sc1' if o['e1'] else o['spol']}")
    if SD:
        e("s_cmp_eq_u32 s83, 1"); e("s_cbranch_scc1 L_w0nb"); e("s_barrier"); g.lab("L_w0nb")
    elif o['b0at'] >= nd: e("s_barrier")
    e(f"v_bfe_u32 v41, v{vL}, 2, 2")
    e(f"v_lshl_add_u32 v41, v{vB}, 3, v41"); e(f"v_lshlrev_b32 v41, 6, v41")
    e(f"v_lshl_add_u32 v41, v{vA}, 3, v41")
    e(f"v_and_b32 v43, 7, v{vL}"); e(f"v_mul_u32_u24 v42, 896, v43"); e(f"v_lshl_add_u32 v42, v{vB}, 4, v42")
    e(f"v_add_u32 v42, {L_X}, v42")
    e(f"s_lshl_b32 s{sT0}, s{sG}, 14"); e(f"s_lshl_b32 s{sT1}, s{sMEM}, 7"); e(f"s_add_u32 s{sT0}, s{sT0}, s{sT1}")
    e(f"s_add_u32 s{sT0}, s{sT0}, {WS_Q}"); e(f"s_add_u32 s{sT1}, s{sT0}, {WS_F}")
    e(f"v_lshlrev_b32 v43, 11, v43"); e(f"v_lshl_add_u32 v43, v{vB}, 4, v43")
    e(f"s_lshl_b32 s{sT3}, s{sG}, 3"); e(f"s_add_u32 s{sT3}, s{sT3}, s{sB}"); e(f"s_lshl_b32 s{sT3}, s{sT3}, 11"); e(f"s_add_u32 s{sT3}, s{sT3}, {WS_Q+WS_F}")
    e("s_waitcnt vmcnt(0)")
    g.ts("wq")
    e(f"v_and_b32 v{vTAG}, -8, v{vTAG}"); e(f"v_add_u32 v{vTAG}, 8, v{vTAG}")
    e("s_getreg_b32 s44, hwreg(HW_REG_XCC_ID, 0, 3)")
    steps = list(range(14)); first = True
    for ci in range(0, 14, 3):
        ch = steps[ci:ci+3]
        for k, s_ in enumerate(ch):
            a = 64 + 12*k
            for t in range(2):
                e(f"ds_read_b64_tr_b16 {vr(a+4*t,2)}, v41 offset:{L_WQ+s_*2048+t*32}")
                e(f"ds_read_b64_tr_b16 {vr(a+4*t+2,2)}, v41 offset:{L_WQ+s_*2048+256+t*32}")
            e(f"ds_read_b128 {vr(a+8)}, v42 offset:{s_*64}")
        e("s_waitcnt lgkmcnt(0)")
        for k, s_ in enumerate(ch):
            a = 64 + 12*k
            for t in range(2):
                e(f"v_mfma_f32_16x16x32_bf16 {vr(44+4*t)}, {vr(a+4*t)}, {vr(a+8)}, {'0' if first else vr(44+4*t)}")
            first = False
    e(f"v_or_b32 v53, s44, v{vTAG}"); e("v_mov_b32 v55, v53"); e(f"v_and_b32 v40, 8, v{vL}"); e("v_lshl_add_u32 v43, v40, 3, v43")
    e("s_mov_b32 vcc_lo, 0xff00ff00"); e("s_mov_b32 vcc_hi, 0xff00ff00"); e(f"s_mov_b32 s45, s{sT0}"); e("s_nop 0")
    for k in range(4): e(f"v_cndmask_b32 v{44+k}, v{44+k}, v{48+k}, vcc")
    e(f"v_cvt_pk_bf16_f32 v52, v44, v45"); e(f"v_cvt_pk_bf16_f32 v54, v46, v47")
    if o.get('noqst', 0) < 2: e(f"buffer_store_dwordx4 v[52:55], v43, {sr(sWS)}, s{sT1} offen {o['qpol']}")
    if not o['xc']: e(f"buffer_store_dwordx4 v[52:55], v43, {sr(sWS)}, s45 offen sc1")
    g.ts("qpub")
    for n in range(o['q0k']): kload(n)
    e("s_mov_b32 s46, 1")
    if not o.get('noqw'):
        e(f"s_mov_b32 s{sSPIN}, {o['spin']}")
        g.lab("L_qg")
        e(f"buffer_load_dwordx4 v[64:67], v33, {sr(sWS)}, s{sT3} offen {o['ppol']}")
        e(f"buffer_load_dwordx4 v[68:71], v33, {sr(sWS)}, s{sT3} offen offset:1024 {o['ppol']}")
        e("s_waitcnt vmcnt(0)")
        for r in (65, 67, 69, 71): e(f"v_xor_b32 v{r+11}, v{r}, v{vTAG}")
        e("v_max3_u32 v60, v76, v78, v80"); e("v_max_u32 v60, v60, v82")
        e("v_cmp_lt_u32 vcc, 7, v60")
        e("s_cbranch_vccz L_qg_ok")
        e("s_mov_b64 exec, vcc")
        e(f"s_cmp_le_u32 s{sSPIN}, {o['spin']-o['fthr']}"); e(f"s_cselect_b32 s{sT0}, {WS_F}, 0"); e(f"s_xor_b32 s{sT3}, s{sT3}, s{sT0}")
        e(f"s_cmp_lg_u32 s{sSPIN}, {o['spin']-o['fthr']}"); e("s_cbranch_scc1 L_qg_n")
        g.c("slices missing for a long time: write own slice through; from now on rounds alternate between the two copies")
        e("s_mov_b64 exec, -1")
        e(f"buffer_store_dwordx4 v[52:55], v43, {sr(sWS)}, s45 offen sc1")
        e("s_mov_b64 exec, vcc")
        g.lab("L_qg_n")
        e(f"s_sub_u32 s{sSPIN}, s{sSPIN}, 1"); e("s_cbranch_scc0 L_qg")
        g.lab("L_qg_ok")
        e("s_mov_b64 exec, -1")
        e("v_min3_u32 v60, v65, v67, v69"); e("v_max3_u32 v61, v65, v67, v69"); e("v_min_u32 v60, v60, v71"); e("v_max_u32 v61, v61, v71")
        e("v_cmp_ne_u32 vcc, v60, v53"); e(f"v_cmp_ne_u32 s[{sT0}:{sT1}], v61, v53"); e(f"s_or_b64 vcc, vcc, s[{sT0}:{sT1}]")
        e("s_cbranch_scc0 L_qg_loc")
        g.c("some member runs on another die: its reads need the written-through copies")
        e(f"buffer_store_dwordx4 v[52:55], v43, {sr(sWS)}, s45 offen sc1")
        e("s_mov_b32 s46, 2")
        g.lab("L_qg_loc")
    if not o['xc']: e("s_mov_b32 s46, 2")
    e(f"v_lshlrev_b32 v60, 3, v{vL}")
    e(f"ds_write2_b32 v60, v64, v66 offset0:{L_QL//4} offset1:{L_QL//4+1}")
    e(f"ds_write2_b32 v60, v68, v70 offset0:{L_QL//4+128} offset1:{L_QL//4+129}")
    e(f"v_or_b32 v61, s46, v{vTAG}" if o['e1'] else "v_mov_b32 v61, s46"); e(f"ds_write_b32 v34, v61 offset:{L_F}")
    g.ts("qgot")
    if o['q0k']:
        srd(sV, 10, 0x8000000); e("s_branch L_kq0")
    if SD:
        srd(sV, 10, 0x8000000)
        e("s_cmp_eq_u32 s83, 1"); e("s_cbranch_scc1 L_ksd")
    if not o['q0k']:
        for n in range(o['pre']): kload(n)
        e("s_branch L_kissue")
    g.lab("L_notw0")
    if o['tlb']:
        g.c("wave 2: touch the pages used later (V window, second half of the K window, wo rows, hand-off areas)")
        e(f"s_cmp_lg_u32 s{sW}, 2"); e("s_cbranch_scc1 L_notlb")
        srd(sV, 10, 0x8000000); srd(sWO, 14, 3670016)
        e(f"v_readfirstlane_b32 s{sT0}, v{vVO}"); e(f"v_lshlrev_b32 v37, {o['tlb']}, v{vL}"); e(f"s_and_b32 s{sT0}, s{sT0}, 0xfffc0000")
        e(f"s_mul_i32 s{sT1}, s{sKVH}, {512*896}")
        e(f"s_mov_b64 exec, {hex((1 << (262144 >> o['tlb'])) - 1)}")
        e(f"buffer_load_dword v38, v37, {sr(sV)}, s{sT0} offen {POL}")
        e(f"buffer_load_dword v39, v37, {sr(sK)}, s{sT0} offen {POL}")
        e(f"s_mov_b64 exec, {hex((1 << min(63, (524288 >> o['tlb']))) - 1)}")
        e(f"buffer_load_dword v40, v37, {sr(sWO)}, s{sT1} offen {POL}")
        e("s_mov_b64 exec, -1")
        g.lab("L_notlb")
    if o['vpf']:
        g.c("wave 1: touch this member's 28 rows of column block 3 (the block whose owners would otherwise queue 448 requests on one path)")
        e(f"s_cmp_lg_u32 s{sW}, 1"); e("s_cbranch_scc1 L_novpf")
        srd(sWQ, 12, 3670016)
        e(f"s_mul_i32 s{sT0}, s{sMEM}, {28*8192}"); e(f"s_lshl_b32 s{sT1}, s{sKVH}, 10"); e(f"s_add_u32 s{sT0}, s{sT0}, s{sT1}"); e(f"s_add_u32 s{sT0}, s{sT0}, 384")
        if o['vpf'] == 2:
            e(f"v_lshrrev_b32 v37, 1, v{vL}"); e("v_lshlrev_b32 v37, 13, v37"); e(f"v_and_b32 v38, 1, v{vL}"); e("v_lshl_add_u32 v37, v38, 6, v37")
            e("s_mov_b32 exec_hi, 0xffffff")
        else:
            e(f"v_lshlrev_b32 v37, 13, v{vL}"); e("s_mov_b64 exec, 0xfffffff")
        e(f"buffer_load_dword v38, v37, {sr(sWQ)}, s{sT0} offen {POL}")
        e("s_mov_b64 exec, -1")
        g.lab("L_novpf")
    if not o['e1']: e(f"buffer_load_dword v{vTAG}, v34, {sr(sWS)}, 0 offen {o['spol']}")
    for n in range(o['pre']): kload(n)
    e("s_barrier")
    e(f"s_cmp_lg_u32 s{sW}, 7"); e("s_cbranch_scc1 L_kissue")
    srd(sGW, 20, 896)
    e(f"s_mul_i32 s{sT0}, s{sKVH}, 896")
    e(f"buffer_load_dwordx4 v[16:19], v33, {sr(sX)}, s{sT0} offen {o['spol']}")
    e(f"buffer_load_dwordx4 v[20:23], v33, {sr(sGW)}, 0 offen {o['spol']}")
    g.lab("L_kissue")
    if o['imm']:
        assert o['xm'] == 0
        e(f"s_xor_b32 s43, s{sR}, {BS}")
    srd(sV, 10, 0x8000000)
    if o['kv']:
        for n in range(o['pre'], 16): kload(n)
        for u in range(2):
            for j in range(8): vload(u, j)
    else:
        for n in range(o['pre'], 32):
            if o['sdel'] and n == o['sdel']: g.lab("L_ksd")
            if o['q0k'] and n == o['q0k']: g.lab("L_kq0")
            kload(n)
        if o['q0k'] == 32: g.lab("L_kq0")
    g.ts("kiss")
    srd(sWO, 14, 3670016); srd(sOUT, 22, 7168)
    g.c("output-projection role of this member (14 = none), constants")
    s0, s1 = o['skip']
    e(f"s_mov_b32 s{sROLE}, s{sMEM}")
    e(f"s_cmp_gt_u32 s{sMEM}, {s1}"); e(f"s_cselect_b32 s{sT0}, 2, 0"); e(f"s_sub_u32 s{sROLE}, s{sROLE}, s{sT0}")
    e(f"s_sub_u32 s{sT0}, s{sMEM}, {s0}"); e(f"s_cmp_lt_u32 s{sT0}, 2"); e(f"s_cselect_b32 s{sROLE}, 14, s{sROLE}")
    e(f"s_cmp_ge_u32 s{sROLE}, 7"); e(f"s_cselect_b32 s{sH3}, 1, 0"); e(f"s_mul_i32 s{sT0}, s{sH3}, 7"); e(f"s_sub_u32 s{sNL}, s{sROLE}, s{sT0}")
    def wo_setup(nper, va, vb, vc, vd, p0=0):
        e(f"s_lshl_b32 s{sT0}, s{sKVH}, 9"); e(f"s_lshl_b32 s{sT1}, s{sH3}, 8"); e(f"s_add_u32 s{sT0}, s{sT0}, s{sT1}"); e(f"s_mul_i32 s{sT1}, s{sW}, {8*nper}"); e(f"s_add_u32 s{sT0}, s{sT0}, s{sT1}")
        if p0: e(f"s_add_u32 s{sT0}, s{sT0}, {8*p0}")
        e(f"s_mul_i32 s{sT0}, s{sT0}, 896"); e(f"s_lshl_b32 s{sT1}, s{sNL}, 7"); e(f"s_add_u32 s35, s{sT0}, s{sT1}")
        e(f"s_cmp_eq_u32 s{sROLE}, 14"); e(f"s_cselect_b32 s35, 0x4000000, s35")
        if o.get('nowo'): e(f"s_mov_b32 s35, 0x4000000")
        e(f"v_lshrrev_b32 v{va}, 3, v{vL}"); e(f"v_mul_u32_u24 v{vb}, 896, v{va}"); e(f"v_and_b32 v{vc}, 7, v{vL}")
        e(f"v_and_b32 v{va}, 2, v{va}"); e(f"v_xor_b32 v{vc}, v{vc}, v{va}"); e(f"v_xor_b32 v{vd}, 4, v{vc}")
        e(f"v_lshl_add_u32 v{va}, v{vc}, 4, v{vb}"); e(f"v_lshl_add_u32 v{vb}, v{vd}, 4, v{vb}")
    def wo_issue(nper, va, vb, p0=0):
        e(f"s_mul_i32 s46, s{sW}, {1024*nper}")
        for ii in range(nper):
            e(f"s_add_u32 m0, s46, {L_WO+(p0+ii)*1024}")
            e(f"s_add_u32 s47, s35, {ii*8*896}")
            e(f"buffer_load_dwordx4 v{vb if ii%2 else va}, {sr(sWO)}, s47 offen {POL} lds")
    WE = {0: 4, 1: 0, 2: 2}[o['wol']]
    WLATE = (32 - 8*WE)//4
    NWO = WE
    if o.get('nodma'): NWO = 0
    elif WE:
        wo_setup(WE, 60, 61, 62, 63); wo_issue(WE, 60, 61)
    for v in range(8):
        pat = (0x11 << (v & 3)) << (8*(v >> 2)); pat |= pat << 16
        e(f"s_mov_b32 s{sMASK+2*v}, 0x{pat:08x}"); e(f"s_mov_b32 s{sMASK+2*v+1}, 0x{pat:08x}")
    e(f"s_mov_b32 s{sSEL0}, 0x05040100"); e(f"s_mov_b32 s{sSEL1}, 0x07060302")
    e(f"s_mov_b32 s{sC}, 0x{f2u(math.log2(math.e)/16):08x}")
    e(f"s_mov_b32 s{sM8}, 0xff00ff00"); e(f"s_mov_b32 s{sM8+1}, 0xff00ff00")
    if o['e1']:
        e(f"s_cmp_lg_u32 s{sW}, 7"); e("s_cbranch_scc1 L_b2")
        e(f"s_waitcnt vmcnt({32 - o['pre'] + NWO})")
    else:
        e(f"s_cmp_eq_u32 s{sW}, 0"); e("s_cbranch_scc1 L_b2")
        e(f"s_waitcnt vmcnt({32 - o['pre'] + NWO})")
        e(f"v_and_b32 v{vTAG}, -8, v{vTAG}"); e(f"v_add_u32 v{vTAG}, 8, v{vTAG}")
        e(f"s_cmp_lg_u32 s{sW}, 7"); e("s_cbranch_scc1 L_b2")
    g.c("wave 7: gate g -> s22, 1-g -> s23 (bf16-rounded like the reference)")
    e(f"v_cmp_gt_u32 vcc, 56, v{vL}"); e("v_mov_b32 v24, 0"); e("s_nop 0")
    for k in range(4): e(f"v_cndmask_b32 v{16+k}, 0, v{16+k}, vcc")
    for k in range(4):
        e(f"v_lshlrev_b32 v25, 16, v{16+k}"); e(f"v_and_b32 v26, 0xffff0000, v{16+k}")
        e(f"v_lshlrev_b32 v27, 16, v{20+k}"); e(f"v_and_b32 v28, 0xffff0000, v{20+k}")
        e("v_mul_f32 v25, v25, v27"); e("v_mul_f32 v26, v26, v28")
        e("v_cvt_pk_bf16_f32 v25, v25, v26")
        e("v_lshlrev_b32 v26, 16, v25"); e("v_and_b32 v25, 0xffff0000, v25")
        e("v_add_f32 v24, v24, v26"); e("v_add_f32 v24, v24, v25")
    for dpp in ("quad_perm:[1,0,3,2]", "quad_perm:[2,3,0,1]", "row_ror:4", "row_ror:8"):
        e("s_nop 1"); e(f"v_add_f32_dpp v24, v24, v24 {dpp} {DPP}")
    for sw in ("16", "32"):
        e("v_mov_b32 v25, v24"); e("s_nop 1"); e(f"v_permlane{sw}_swap_b32 v24, v25"); e("v_add_f32 v24, v24, v25")
    e("v_cvt_pk_bf16_f32 v24, v24, v24"); e("v_and_b32 v24, 0xffff0000, v24")
    e(f"v_mul_f32 v24, 0x{f2u(-math.log2(math.e)):08x}, v24"); e("v_exp_f32 v24, v24"); e("s_nop 0")
    e("v_add_f32 v24, 1.0, v24"); e("v_rcp_f32 v24, v24"); e("s_nop 0")
    e("v_cvt_pk_bf16_f32 v24, v24, v24"); e("v_and_b32 v24, 0xffff0000, v24")
    e("v_sub_f32 v25, 1.0, v24"); e("v_cvt_pk_bf16_f32 v25, v25, v25"); e("v_and_b32 v25, 0xffff0000, v25")
    e("v_readfirstlane_b32 s22, v24"); e("v_readfirstlane_b32 s23, v25")
    g.lab("L_b2")
    e(f"v_bfe_u32 v{vC}, v{vL}, 2, 1"); e(f"v_lshlrev_b32 v{vA}, 9, v{vC}")
    e(f"v_lshl_add_u32 v{vA}, v{vB}, 6, v{vA}")
    e(f"v_and_b32 v60, 3, v{vL}"); e(f"v_lshl_add_u32 v{vA}, v60, 4, v{vA}")
    e(f"s_and_b32 s{sT0}, s{sR}, 0x100"); e(f"v_add_u32 v{vA}, s{sT0}, v{vA}"); e(f"v_xor_b32 v60, 0x100, v{vA}")
    e("v_mov_b32 v62, 0"); e("s_mov_b32 s42, 1")
    if not o.get('noqw'):
        g.lab("L_qwait")
        e(f"ds_read_b32 v61, v62 offset:{L_F}"); e("s_waitcnt lgkmcnt(0)"); e(f"v_readfirstlane_b32 s42, v61"); e(f"s_cmp_lg_u32 s42, 0"); e("s_cbranch_scc1 L_qready")
        e(f"s_sleep {o['qsl']}"); e("s_branch L_qwait")
        g.lab("L_qready")
        if o['e1']: e(f"v_and_b32 v{vTAG}, -8, v61"); e("s_and_b32 s42, s42, 7")
    g.ts("B2")
    g.c("q fragments; QK^T, softmax, P.V")
    e(f"ds_read_b128 {vr(vQB)}, v{vA} offset:{L_QL}")
    e(f"ds_read_b128 {vr(vQB+4)}, v60 offset:{L_QL}")
    e("s_waitcnt lgkmcnt(0)")
    def xred(r, t, op):
        for sw in ("16", "32"):
            e(f"v_mov_b32 v{t}, v{r}"); e("s_nop 1"); e(f"v_permlane{sw}_swap_b32 v{r}, v{t}"); e(f"{op} v{r}, v{r}, v{t}")
    def soft(blk):
        if o.get('nocomp'): return
        S = vS + 8*blk
        if o['round_s']:
            for u in range(0, 8, 2): e(f"v_cvt_pk_bf16_f32 v{vP8+u//2}, v{S+u}, v{S+u+1}")
            for u in range(0, 8, 2):
                e(f"v_lshlrev_b32 v{S+u}, 16, v{vP8+u//2}"); e(f"v_and_b32 v{S+u+1}, 0xffff0000, v{vP8+u//2}")
        e(f"v_max3_f32 v{vA}, v{S}, v{S+1}, v{S+2}"); e(f"v_max3_f32 v{vB}, v{S+3}, v{S+4}, v{S+5}")
        e(f"v_max3_f32 v{vA}, v{vA}, v{S+6}, v{S+7}"); e(f"v_max_f32 v{vA}, v{vA}, v{vB}")
        xred(vA, vB, "v_max_f32")
        if blk == 0:
            e(f"v_mul_f32 v{vM0}, s{sC}, v{vA}")
        else:
            e(f"v_mul_f32 v{vA}, s{sC}, v{vA}"); e(f"v_max_f32 v{vA}, v{vA}, v{vM0}")
            e(f"v_sub_f32 v{vAL}, v{vM0}, v{vA}"); e(f"v_mov_b32 v{vM0}, v{vA}"); e(f"v_exp_f32 v{vAL}, v{vAL}")
        for u in range(8): e(f"v_fma_f32 v{S+u}, v{S+u}, s{sC}, -v{vM0}")
        for u in range(8): e(f"v_exp_f32 v{S+u}, v{S+u}")
        e("s_nop 0")
        for t in range(4): e(f"v_cvt_pk_bf16_f32 v{vP8+t}, v{S+2*t}, v{S+2*t+1}")
        for t in range(4): e(f"v_add_f32 v{S+t}, v{S+t}, v{S+t+4}")
        e(f"v_add_f32 v{S}, v{S}, v{S+2}"); e(f"v_add_f32 v{S+1}, v{S+1}, v{S+3}")
        if blk == 0:
            e(f"v_add_f32 v{vL0}, v{S}, v{S+1}")
        else:
            e(f"v_add_f32 v{S}, v{S}, v{S+1}"); e(f"v_fmac_f32 v{S}, v{vL0}, v{vAL}")
            xred(S, S+1, "v_add_f32")
            e(f"ds_write_b32 v{vSA}, v{vM0} offset:{L_SM}"); e(f"ds_write_b32 v{vSA}, v{S} offset:{L_SL}")
            e(f"v_mov_b32 v{S+1}, 1"); e(f"v_mov_b32 v{S+2}, 0"); e("s_mov_b64 exec, 1")
            e(f"ds_add_u32 v{S+2}, v{S+1} offset:{L_CNT}"); e("s_mov_b64 exec, -1")
            e(f"v_readlane_b32 s{sT0}, v{vAL}, 0"); e(f"v_readlane_b32 s{sT1}, v{vAL}, 4")
        for v in range(8):
            for t in range(4):
                e(f"v_cndmask_b32 v{vPV+4*v+t}, 0, v{vP8+t}, s[{sMASK+2*v}:{sMASK+2*v+1}]")
    def pv(unit):
        if o.get('nocomp'): return
        blk, hf = unit//2, unit % 2
        base = vreg(unit); acc = vACC + 4*hf
        def perms(d):
            for t in range(4):
                e(f"v_perm_b32 v{vT+4*(d%3)+t}, v{base+4*(2*t+1)+d//2}, v{base+4*(2*t)+d//2}, s{sSEL1 if d&1 else sSEL0}")
        perms(0)
        for d in range(8):
            if d < 7: perms(d+1)
            else: g.nop(2)
            cin = "0" if (blk == 0 and d == 0) else vr(acc)
            e(f"v_mfma_f32_16x16x32_bf16 {vr(acc)}, {vr(vPV+4*d)}, {vr(vT+4*(d%3))}, {cin}")
    def qkm(bt, dbase, wait):
        e(f"s_waitcnt vmcnt({wait})")
        g.ts(f"K{bt}")
        if o.get('nocomp'): return
        for u in range(4*bt, 4*bt+4):
            d = dbase + 4*(u % 4)
            e(f"v_mfma_f32_16x16x32_bf16 {vr(d)}, {vr(kreg(2*u))}, {vr(vQB)}, 0")
            e(f"v_mfma_f32_16x16x32_bf16 {vr(d)}, {vr(kreg(2*u+1))}, {vr(vQB+4)}, {vr(d)}")
    def postb(bt, dbase):
        if o.get('nocomp'): return
        for step in range(4):
            for u in range(4*bt, 4*bt+4):
                d = dbase + 4*(u % 4); s_ = vS + u
                if step == 0: e(f"v_mov_b32_dpp v{s_}, v{d} quad_perm:[0,0,0,0] {DPP}")
                else: e(f"v_add_f32_dpp v{s_}, v{d+step}, v{s_} quad_perm:[{step},{step},{step},{step}] {DPP}")
    def vunit(u):
        for j in range(8): vload(u, j)
    def addrs():
        e(f"v_lshlrev_b32 v{vC}, 5, v{vC}")
        e(f"s_lshl_b32 s{sT0}, s{sW}, 2"); e(f"v_add_u32 v{vSA}, s{sT0}, v{vC}")
        e(f"v_bfe_u32 v{vC}, v{vL}, 4, 1"); e(f"v_lshlrev_b32 v{vORA}, 10, v{vC}"); e(f"v_lshlrev_b32 v{vC}, 5, v{vC}")
        e(f"v_and_b32 v{vORB}, 15, v{vL}"); e(f"v_lshl_add_u32 v{vORA}, v{vORB}, 5, v{vORA}")
        e(f"v_lshrrev_b32 v{vORB}, 5, v{vL}"); e(f"v_lshl_add_u32 v{vORA}, v{vORB}, 4, v{vORA}")
        e(f"s_and_b32 s{sT1}, s{sR}, 0x100"); e(f"s_lshl_b32 s{sT1}, s{sT1}, 1"); e(f"v_add_u32 v{vORA}, s{sT1}, v{vORA}"); e(f"v_xor_b32 v{vORB}, 0x200, v{vORA}")
        e(f"s_lshl_b32 s{sT0}, s{sW}, 11"); e(f"s_add_u32 s{sT0}, s{sT0}, {L_OR}"); e(f"v_add_u32 v{vORA}, s{sT0}, v{vORA}"); e(f"v_add_u32 v{vORB}, s{sT0}, v{vORB}")
        if o['pret']:
            e(f"s_sub_u32 s{sT0}, s{sW}, 1"); e(f"s_cmp_gt_u32 s{sT0}, 1"); e("s_cbranch_scc1 L_nopre")
            e(f"s_and_b32 s{sT1}, s{sMEM}, 1"); e(f"s_lshl_b32 s{sT1}, s{sT1}, 3"); e(f"s_add_u32 s{sT1}, s{sT1}, s{sB}")
            e(f"s_lshl_b32 s{sT2}, s{sG}, 1"); e(f"s_add_u32 s{sT2}, s{sT2}, s{sT0}")
            e(f"s_lshl_b32 s{sT2}, s{sT2}, 14"); e(f"s_lshl_b32 s{sT1}, s{sT1}, 10"); e(f"s_add_u32 s{sT2}, s{sT2}, s{sT1}"); e(f"s_add_u32 s{sT2}, s{sT2}, {WS_O+WS_F}")
            e(f"v_add_u32 v60, 1, v{vTAG}"); e("v_mov_b32 v61, v60"); e("v_mov_b32 v62, v60"); e("v_mov_b32 v63, v60"); e(f"v_lshlrev_b32 v55, 4, v{vL}")
            e(f"buffer_store_dwordx4 v[60:63], v55, {sr(sWS)}, s{sT2} offen")
            g.lab("L_nopre")
            e("s_nop 1")
    W = NWO
    if o['kv'] == 0:
        qkm(0, 32, 24+W); vunit(0); qkm(1, 48, 24+W); vunit(1)
        postb(0, 32); postb(1, 48); addrs(); soft(0)
        qkm(2, 32, 24+W); vunit(2)
        if o['wt'] == 2:
            e("v_mov_b32 v60, 1"); e("v_mov_b32 v61, 0"); e("s_mov_b64 exec, 1"); e(f"ds_add_u32 v61, v60 offset:{L_CN2}"); e("s_mov_b64 exec, -1")
        postb(2, 32)
        e("s_waitcnt vmcnt(16)"); g.ts("V0"); pv(0)
        qkm(3, 96, 24+W); vunit(3)
        if o['wt'] == 1:
            e("v_mov_b32 v60, 1"); e("v_mov_b32 v61, 0"); e("s_mov_b64 exec, 1"); e(f"ds_add_u32 v61, v60 offset:{L_CN2}"); e("s_mov_b64 exec, -1")
        g.ts("QK")
        e("s_waitcnt vmcnt(16)"); g.ts("V1"); pv(1)
        postb(3, 96); soft(1)
    else:
        K2 = (o['kv'] == 2)
        qkm(0, 32, 24+W)
        if not K2:
            for n in range(16, 24): kload(n)
        qkm(1, 48, (16 if K2 else 24)+W)
        if not K2:
            for n in range(24, 32): kload(n)
        else: g.nop(4)
        postb(0, 32); postb(1, 48); addrs(); soft(0)
        if K2:
            e(f"s_waitcnt vmcnt({8+W})"); pv(0)
            e(f"s_waitcnt vmcnt({W})"); pv(1)
            for n in range(16, 32): kload(n)
            vunit(2); vunit(3)
        else:
            e(f"s_waitcnt vmcnt({24+W})"); pv(0); vunit(2)
            e(f"s_waitcnt vmcnt({24+W})"); pv(1); vunit(3)
        g.ts("QK")
        qkm(2, 32, 24); qkm(3, 96, 16)
        postb(2, 32); postb(3, 96); soft(1)
    e(f"v_mov_b32 v{vAL}, s{sT0}"); e(f"v_mov_b32 v{vA}, s{sT1}"); e(f"s_mov_b32 vcc_lo, 0xffff0000"); e(f"s_mov_b32 vcc_hi, 0xffff0000")
    e(f"v_cndmask_b32 v{vAL}, v{vAL}, v{vA}, vcc")
    for k in range(8): e(f"v_mul_f32 v{vACC+k}, v{vACC+k}, v{vAL}")
    g.ts("P")
    e(f"s_waitcnt vmcnt(8)"); g.ts("V2"); pv(2)
    if o['cpf2']:
        e(f"s_cmp_lg_u32 s{sW}, 3"); e("s_cbranch_scc1 L_nopf2")
        e(f"s_getpc_b64 s[{sT2}:{sT3}]")
        g.lab("L_pc2")
        e(f"v_lshlrev_b32 v60, 7, v{vL}"); e(f"s_mov_b32 s{sT0}, L_codeend-L_pc2-4"); e(f"v_min_u32 v60, s{sT0}, v60")
        e(f"global_load_dword v61, v60, s[{sT2}:{sT3}]")
        e("s_waitcnt vmcnt(0)")
        g.lab("L_nopf2")
    if o['wt']:
        e(f"s_cmp_gt_u32 s{sW}, 3"); e("s_cbranch_scc1 L_nowt")
        e(f"s_cmp_eq_u32 s{sROLE}, 14"); e("s_cbranch_scc1 L_nowt")
        wo_setup(WLATE, 60, 61, 62, 63, 8*WE)
        e("v_mov_b32 v62, 0")
        e("s_waitcnt vmcnt(0)")
        g.lab("L_wtw")
        e(f"ds_read_b32 v63, v62 offset:{L_CN2}"); e("s_waitcnt lgkmcnt(0)"); e(f"v_readfirstlane_b32 s{sT0}, v63"); e(f"s_cmp_ge_u32 s{sT0}, {o.get('wtn', 8)}"); e("s_cbranch_scc1 L_wtg")
        e(f"s_sleep {o['ssl']}"); e("s_branch L_wtw")
        g.lab("L_wtg")
        wo_issue(WLATE, 60, 61, 8*WE)
        g.lab("L_nowt")
    g.c("workgroup-level softmax factor from the 8 waves (max, sum)")
    e(f"s_lshl_b32 s{sT0}, s{sW}, 2"); e(f"v_add_u32 v{vB}, s{sT0}, v{vC}"); e("v_mov_b32 v62, 0")
    if o.get('nocomp') or o.get('nosw'): e("s_branch L_sready")
    g.lab("L_swait")
    e(f"ds_read_b32 v61, v62 offset:{L_CNT}"); e("s_waitcnt lgkmcnt(0)"); e(f"v_readfirstlane_b32 s{sT0}, v61"); e(f"s_cmp_eq_u32 s{sT0}, 8"); e("s_cbranch_scc1 L_sready")
    e(f"s_sleep {o['ssl']}"); e("s_branch L_swait")
    g.lab("L_sready")
    e(f"ds_read_b128 {vr(16)}, v{vC} offset:{L_SM}"); e(f"ds_read_b128 {vr(20)}, v{vC} offset:{L_SM+16}")
    e(f"ds_read_b32 v{vF}, v{vB} offset:{L_SM}")
    e(f"ds_read_b128 {vr(24)}, v{vC} offset:{L_SL}"); e(f"ds_read_b128 {vr(28)}, v{vC} offset:{L_SL+16}")
    e("s_waitcnt lgkmcnt(0)")
    e("v_max3_f32 v124, v16, v17, v18"); e("v_max3_f32 v125, v19, v20, v21"); e("v_max3_f32 v124, v124, v22, v23"); e("v_max_f32 v124, v124, v125")
    for w in range(8): e(f"v_sub_f32 v{16+w}, v{16+w}, v124")
    e(f"v_sub_f32 v{vF}, v{vF}, v124")
    for w in range(8): e(f"v_exp_f32 v{16+w}, v{16+w}")
    e(f"v_exp_f32 v{vF}, v{vF}")
    e("v_mul_f32 v126, v24, v16")
    for w in range(1, 8): e(f"v_fmac_f32 v126, v{24+w}, v{16+w}")
    e(f"v_rcp_f32 v16, v126"); e(f"v_mov_b32 v125, v{vTAG}"); e(f"v_mov_b32 v127, v{vTAG}")
    e(f"v_mul_f32 v{vF}, v{vF}, v16")
    e(f"v_lshrrev_b32 v53, 4, v{vL}")
    e(f"v_lshlrev_b32 v60, 4, v{vL}")
    e(f"s_lshl_b32 s{sT2}, s{sG}, 1")
    e(f"s_cmp_lt_u32 s{sW}, 4"); e("s_cbranch_scc1 L_a03")
    e(f"s_cmp_eq_u32 s{sW}, 4"); e("s_cbranch_scc1 L_a4")
    e(f"s_cmp_eq_u32 s{sW}, 7"); e("s_cbranch_scc1 L_a7")
    e(f"s_sub_u32 s{sT0}, s{sW}, 5")
    e(f"s_and_b32 s{sT1}, s{sMEM}, 1"); e(f"s_lshl_b32 s{sT1}, s{sT1}, 3"); e(f"s_add_u32 s{sT1}, s{sT1}, s{sB}")
    e(f"s_add_u32 s{sT2}, s{sT2}, s{sT0}")
    e(f"s_lshl_b32 s44, s{sT2}, 14"); e(f"s_lshl_b32 s45, s{sT1}, 10"); e(f"s_add_u32 s44, s44, s45"); e(f"s_add_u32 s44, s44, {WS_O}"); e(f"s_add_u32 s45, s44, {WS_F}")
    e(f"s_lshl_b32 s{sT2}, s{sT2}, 8"); e(f"s_lshl_b32 s{sT1}, s{sT1}, 4"); e(f"s_add_u32 s{sT2}, s{sT2}, s{sT1}"); e(f"s_add_u32 s{sT2}, s{sT2}, {WS_S}"); e(f"s_add_u32 s{sT3}, s{sT2}, {WS_F}")
    e(f"s_lshl_b32 s{sT1}, s{sT0}, 4"); e(f"s_lshl_b64 exec, 1, s{sT1}")
    e(f"s_cmp_eq_u32 s42, 1"); e(f"s_cselect_b32 s{sT2}, 0x4000000, s{sT2}"); e("s_cselect_b32 s44, 0x4000000, s44")
    if o['lst']:
        e("s_mov_b64 s[64:65], exec")
    else:
        e(f"buffer_store_dwordx4 v[124:127], v62, {sr(sWS)}, s{sT3} offen")
        e(f"buffer_store_dwordx4 v[124:127], v62, {sr(sWS)}, s{sT2} offen sc1")
    e("s_mov_b64 exec, -1")
    e(f"s_lshl_b32 s{sT1}, s{sT0}, 10"); e(f"s_add_u32 s{sT1}, s{sT1}, {L_OR}"); e(f"v_add_u32 v61, s{sT1}, v60")
    e(f"v_mov_b32 v97, v{vTAG}"); e(f"v_mov_b32 v99, v{vTAG}")
    e(f"s_waitcnt vmcnt({0 if o['lst'] else 2})")
    e("s_branch L_v3")
    g.lab("L_a03")
    e(f"s_add_u32 s{sT2}, s{sT2}, s{sH3}")
    e(f"v_and_b32 v54, 15, v{vL}"); e("v_lshlrev_b32 v52, 10, v54"); e("v_lshl_add_u32 v52, v53, 5, v52"); e("v_lshlrev_b32 v54, 2, v54")
    e(f"s_lshl_b32 s{sT3}, s{sT2}, 14"); e(f"s_lshl_b32 s{sT0}, s{sW}, 8"); e(f"s_add_u32 s{sT3}, s{sT3}, s{sT0}"); e(f"s_add_u32 s{sT3}, s{sT3}, {WS_O+WS_F}")
    e(f"s_lshl_b32 s{sT0}, s{sW}, 11"); e(f"v_add_u32 v61, s{sT0}, v60")
    e(f"v_bfe_u32 v55, v{vL}, 2, 2"); e("v_lshl_add_u32 v63, v53, 3, v55"); e("v_lshlrev_b32 v63, 7, v63")
    e(f"v_bfe_u32 v16, v{vL}, 1, 1"); e(f"s_lshl_b32 s{sT0}, s{sW}, 1"); e(f"v_add_u32 v16, s{sT0}, v16")
    if o['wosw']:
        e("v_and_b32 v55, 2, v55"); e("v_xor_b32 v16, v16, v55"); e("v_and_b32 v55, 1, v53"); e("v_lshlrev_b32 v55, 2, v55"); e("v_xor_b32 v16, v16, v55")
    e("v_lshl_add_u32 v63, v16, 4, v63"); e(f"v_and_b32 v16, 1, v{vL}"); e("v_lshl_add_u32 v63, v16, 3, v63"); e(f"v_add_u32 v63, {L_WO}, v63")
    e(f"s_lshl_b32 s{sT0}, s{sNL}, 2"); e(f"s_add_u32 s{sT0}, s{sT0}, s{sW}"); e(f"s_lshl_b32 s{sT0}, s{sT0}, 15"); e(f"s_lshl_b32 s44, s{sT2}, 7")
    e(f"s_add_u32 s44, s44, s{sT0}"); e(f"s_add_u32 s44, s44, {WS_P}")
    e(f"v_and_b32 v55, 7, v{vL}"); e("v_lshlrev_b32 v55, 12, v55"); e("v_lshl_add_u32 v55, v53, 5, v55")
    e(f"v_bfe_u32 v16, v{vL}, 3, 1"); e("v_lshl_add_u32 v55, v16, 4, v55")
    e(f"v_mov_b32 v109, v{vTAG}"); e(f"v_mov_b32 v111, v{vTAG}")
    e(f"s_lshl_b32 s45, s{sG}, 2"); e(f"s_add_u32 s45, s45, {WS_H}"); e(f"v_lshlrev_b32 v17, 8, v{vL}")
    if o['wt']:
        e(f"s_cmp_eq_u32 s{sROLE}, 14"); e("s_cbranch_scc0 L_v3")
    elif o['wol']: wo_setup(WLATE, 18, 19, 20, 21, 8*WE)
    e("s_branch L_nostat")
    g.lab("L_a4")
    e(f"s_add_u32 s{sT2}, s{sT2}, s{sH3}"); e(f"s_lshl_b32 s{sT3}, s{sT2}, 8"); e(f"s_add_u32 s{sT3}, s{sT3}, {WS_S+WS_F}")
    e(f"v_and_b32 v54, 15, v{vL}"); e("v_lshlrev_b32 v55, 4, v54"); e("v_lshlrev_b32 v54, 2, v54")
    e("s_branch L_nostat")
    g.lab("L_a7")
    e(f"s_lshl_b32 s{sT3}, s2, 12"); e(f"s_add_u32 s{sT3}, s{sT3}, {WS_P}")
    e(f"v_and_b32 v54, 7, v{vL}"); e("v_lshlrev_b32 v54, 2, v54"); e(f"v_lshlrev_b32 v55, 2, v{vL}")
    e(f"s_mul_i32 s21, s{sKVH}, 896"); e("s_lshr_b32 s20, s2, 3"); e("s_lshl_b32 s20, s20, 5"); e("s_add_u32 s21, s21, s20")
    e(f"s_and_b32 s20, s2, {o['nrep']-1}"); e("s_lshl_b32 s20, s20, 8"); e(f"s_add_u32 s20, s20, {WS_H}")
    g.lab("L_nostat")
    e("s_waitcnt vmcnt(0)")
    g.lab("L_v3")
    for k in range(4): e(f"v_mul_f32 v{vACC+k}, v{vACC+k}, v{vF}")
    g.ts("V3")
    e(f"ds_write_b128 v{vORA}, {vr(vACC)}")
    pv(3)
    e(f"s_cmp_lt_u32 s{sW}, 5")
    g.nop(7)
    for k in range(4): e(f"v_mul_f32 v{vACC+4+k}, v{vACC+4+k}, v{vF}")
    e(f"ds_write_b128 v{vORB}, {vr(vACC+4)}")
    if o['wol'] and not o['wt']:
        e(f"s_cmp_gt_u32 s{sW}, 3"); e("s_cbranch_scc1 L_nowo")
        if o.get('sk14', 1): e(f"s_cmp_eq_u32 s{sROLE}, 14"); e("s_cbranch_scc1 L_nowo")
        wo_issue(WLATE, 18, 19, 8*WE)
        g.lab("L_nowo")
        e(f"s_cmp_lt_u32 s{sW}, 5")
    e("s_waitcnt lgkmcnt(0)")
    e("s_barrier")
    g.ts("B4")
    if o.get('stopb4'): e("s_branch L_fin")
    e("s_cbranch_scc1 L_cons")
    e(f"s_cmp_eq_u32 s{sW}, 7"); e("s_cbranch_scc1 L_w7")
    g.c("waves 5,6: sum the 8 partial o, publish")
    for w in range(8): e(f"ds_read_b128 {vr(64+4*w)}, v61 offset:{w*2048}")
    if o['lst']:
        e("s_mov_b64 exec, s[64:65]")
        e(f"buffer_store_dwordx4 v[124:127], v62, {sr(sWS)}, s{sT3} offen")
        e(f"buffer_store_dwordx4 v[124:127], v62, {sr(sWS)}, s{sT2} offen sc1")
        e("s_mov_b64 exec, -1")
    for w in range(1, 8, 2):
        e(f"s_waitcnt lgkmcnt({0 if o['ts'] else 7-w})")
        if o['pk']:
            for k in (0, 2): e(f"v_pk_add_f32 {vr(64+4*(w-1)+k,2)}, {vr(64+4*(w-1)+k,2)}, {vr(64+4*w+k,2)}")
            if w > 1:
                for k in (0, 2): e(f"v_pk_add_f32 {vr(64+k,2)}, {vr(64+k,2)}, {vr(64+4*(w-1)+k,2)}")
            continue
        for k in range(4): e(f"v_add_f32 v{64+4*(w-1)+k}, v{64+4*(w-1)+k}, v{64+4*w+k}")
        if w > 1:
            for k in range(4): e(f"v_add_f32 v{64+k}, v{64+k}, v{64+4*(w-1)+k}")
    e("v_cvt_pk_bf16_f32 v96, v64, v65"); e("v_cvt_pk_bf16_f32 v98, v66, v67")
    e(f"buffer_store_dwordx4 v[96:99], v60, {sr(sWS)}, s45 offen {o['opol']}")
    g.ts("opub")
    e(f"buffer_store_dwordx4 v[96:99], v60, {sr(sWS)}, s44 offen sc1")
    e(f"s_cmp_eq_u32 s{sROLE}, 14"); e("s_cbranch_scc1 L_fin")
    if B45: e("s_barrier")
    e("s_barrier")
    e("s_branch L_fin")
    g.lab("L_cons")
    g.c("wave 4: merge weights of the two key halves; waves 0..3: gather o, project, publish partials")
    e(f"s_cmp_eq_u32 s{sROLE}, 14"); e("s_cbranch_scc1 L_fin")
    e(f"s_cmp_lt_u32 s{sW}, 4"); e("s_cbranch_scc1 L_gath")
    if B45: e("s_barrier")
    e("s_mov_b64 exec, 0xffff")
    def sl(): e(f"buffer_load_dwordx4 {vr(160)}, v55, {sr(sWS)}, s{sT3} offen {o.get('ppol2', o['ppol'])}")
    poll("sg", sl, [161, 163], 58, 59, o['sleep1'])
    if o['gate1']: e(f"v_mov_b32 v61, 9"); e(f"ds_write_b32 v62, v61 offset:{L_CNT}")
    e(f"v_mov_b32_dpp v100, v160 row_ror:8 {DPP}")
    e(f"v_mov_b32_dpp v101, v162 row_ror:8 {DPP}")
    e("v_max_f32 v102, v160, v100")
    e("v_sub_f32 v103, v160, v102"); e("v_sub_f32 v100, v100, v102")
    e("v_exp_f32 v103, v103"); e("v_exp_f32 v100, v100"); e("s_nop 0")
    e("v_mul_f32 v103, v103, v162"); e("v_fma_f32 v100, v100, v101, v103")
    e("v_rcp_f32 v100, v100"); e("s_nop 0"); e("v_mul_f32 v103, v103, v100")
    e("s_mov_b64 exec, 0xffff")
    e(f"ds_write_b32 v54, v103 offset:{L_W}")
    e("s_waitcnt lgkmcnt(0)")
    e("s_barrier")
    e("s_branch L_fin")
    g.lab("L_gath")
    def gl():
        for k in range(2):
            e(f"buffer_load_dwordx4 {vr(128+8*k)}, v52, {sr(sWS)}, s{sT3} offen offset:{128*k} {o.get('ppol2', o['ppol'])}")
            e(f"buffer_load_dwordx4 {vr(132+8*k)}, v52, {sr(sWS)}, s{sT3} offen offset:{128*k+16} {o.get('ppol2', o['ppol'])}")
    def wofr():
        for k in range(8):
            e(f"ds_read_b64_tr_b16 {vr(64+4*k,2)}, v63 offset:{k*4096}")
            e(f"ds_read_b64_tr_b16 {vr(66+4*k,2)}, v63 offset:{k*4096+512}")
            if k == 6: e("s_waitcnt lgkmcnt(4)")
    def wofr45():
        e("s_waitcnt vmcnt(4)"); e("s_barrier"); wofr()
    if not o['g1p']:
        poll("g1", gl, [129+2*i for i in range(8)], 58, 59, o['sleep1'], first=(wofr45 if B45 else None) if o['wol'] else wofr, gate=o['gate1'])
        for k in range(2):
            e(f"v_mov_b32 v{129+8*k}, v{130+8*k}"); e(f"v_mov_b32 v{130+8*k}, v{132+8*k}"); e(f"v_mov_b32 v{131+8*k}, v{134+8*k}")
            e(f"ds_write_b128 v61, {vr(128+8*k)} offset:{L_B3+1024*k}")
    else:
        def gl2(b):
            for k in range(2):
                e(f"buffer_load_dwordx4 {vr(b+8*k)}, v52, {sr(sWS)}, s{sT3} offen offset:{128*k} sc1")
                e(f"buffer_load_dwordx4 {vr(b+4+8*k)}, v52, {sr(sWS)}, s{sT3} offen offset:{128*k+16} sc1")
        e(f"s_mov_b32 s{sSPIN}, {o['spin']}"); e("s_mov_b64 s[66:67], 0")
        gl2(128); wofr(); e(f"s_sleep {o['g1p']}"); gl2(144)
        g.lab("L_g1")
        e("s_waitcnt vmcnt(4)")
        tagcheck([129+2*i for i in range(8)], 58, 59)
        e("s_cbranch_scc0 L_g1_ok")
        e("s_mov_b64 exec, vcc")
        gl2(128)
        e("s_waitcnt vmcnt(4)")
        tagcheck([145+2*i for i in range(8)], 58, 59)
        e("s_andn2_b64 s[64:65], exec, vcc"); e("s_or_b64 s[66:67], s[66:67], s[64:65]")
        e("s_cmp_eq_u64 vcc, 0"); e("s_cbranch_scc1 L_g1_ok")
        e("s_mov_b64 exec, vcc")
        e(f"s_cmp_eq_u32 s{sSPIN}, {o['spin']-o['fthr']}"); e(f"s_cselect_b32 s{sT0}, {WS_F}, 0"); e(f"s_sub_u32 s{sT3}, s{sT3}, s{sT0}")
        gl2(144)
        e(f"s_sub_u32 s{sSPIN}, s{sSPIN}, 1"); e("s_cbranch_scc0 L_g1")
        g.lab("L_g1_ok")
        e("s_mov_b64 exec, -1")
        for k in range(2):
            for t in range(4): e(f"v_cndmask_b32 v{192+4*k+t}, v{128+8*k+2*t}, v{144+8*k+2*t}, s[66:67]")
            e(f"ds_write_b128 v61, {vr(192+4*k)} offset:{L_B3+1024*k}")
    e(f"s_or_b32 s{sT0}, s{sW}, s{sMEM}"); e("s_cbranch_scc1 L_nohint")
    if o['nrep'] < 64: e(f"s_mov_b64 exec, {hex((1<<o['nrep'])-1)}")
    e(f"buffer_store_dword v{vTAG}, v17, {sr(sWS)}, s45 offen sc1")
    e("s_mov_b64 exec, -1")
    g.lab("L_nohint")
    g.ts("G1")
    e("s_waitcnt lgkmcnt(0)")
    e("s_barrier")
    g.ts("B5")
    if o['wol'] and not B45:
        e(f"ds_read_b32 v103, v54 offset:{L_W}")
        def rd(k):
            e(f"ds_read_b64_tr_b16 {vr(64+4*k,2)}, v63 offset:{k*4096}")
            e(f"ds_read_b64_tr_b16 {vr(66+4*k,2)}, v63 offset:{k*4096+512}")
            e(f"ds_read_b128 {vr(160+4*k)}, v60 offset:{L_B3+k*1024}")
        for k in range(4): rd(k)
        for k in range(8):
            e(f"s_waitcnt lgkmcnt({0 if 'B5' in o.get('tson',()) else 3*min(3, 7-k)})")
            e(f"v_mfma_f32_16x16x32_bf16 {vr(96)}, {vr(64+4*k)}, {vr(160+4*k)}, {'0' if k==0 else vr(96)}")
            if k+4 < 8: rd(k+4)
    else:
        for k in range(8): e(f"ds_read_b128 {vr(160+4*k)}, v60 offset:{L_B3+k*1024}")
        e(f"ds_read_b32 v103, v54 offset:{L_W}")
        for k in range(8):
            e(f"s_waitcnt lgkmcnt({0 if 'B5' in o.get('tson',()) else 8-k})")
            e(f"v_mfma_f32_16x16x32_bf16 {vr(96)}, {vr(64+4*k)}, {vr(160+4*k)}, {'0' if k==0 else vr(96)}")
    e("s_waitcnt lgkmcnt(0)")
    g.nop(7)
    for k in range(4): e(f"v_mul_f32 v{96+k}, v{96+k}, v103")
    for k in range(4): e(f"v_add_f32_dpp v{104+k}, v{96+k}, v{96+k} row_ror:8 {DPP}")
    e(f"v_cndmask_b32 v108, v104, v106, s[{sM8}:{sM8+1}]"); e(f"v_cndmask_b32 v110, v105, v107, s[{sM8}:{sM8+1}]")
    if o.get('nop'): e("s_mov_b32 s44, 0x4000000")
    e(f"buffer_store_dwordx4 v[108:111], v55, {sr(sWS)}, s44 offen {o.get('pst','sc1')}")
    g.ts("ppub")
    e("s_branch L_fin")
    g.lab("L_w7")
    g.c("wave 7: final sum, gate, store")
    for i in range(4): e(f"s_mov_b64 s[{sMASK+2*i}:{sMASK+2*i+1}], -1")
    e(f"s_mov_b32 s{sSPIN}, {o['spin']}")
    e(f"s_cmp_eq_u32 s{sROLE}, 14"); e("s_cbranch_scc1 L_nob5")
    if B45: e("s_barrier")
    e("s_barrier")
    g.lab("L_nob5")
    e("s_cmp_ge_u32 s2, 224"); e("s_cbranch_scc1 L_fin")
    e("s_mov_b64 exec, 0xffff")
    NP = max(1, o['hp'])
    for k in range(NP):
        e(f"buffer_load_dword v{64+k}, v55, {sr(sWS)}, s20 offen sc1")
        if NP > 1: e(f"s_sleep {o['hgap']}")
    g.lab("L_hp")
    for k in range(NP):
        e(f"s_waitcnt vmcnt({NP-1})")
        e(f"v_cmp_ne_u32 vcc, v{64+k}, v{vTAG}")
        e("s_cbranch_vccz L_hp_ok")
        if o['sleep2']: e(f"s_sleep {o['sleep2']}")
        e(f"buffer_load_dword v{64+k}, v55, {sr(sWS)}, s20 offen sc1")
    e(f"s_sub_u32 s{sSPIN}, s{sSPIN}, 1"); e("s_cbranch_scc0 L_hp")
    g.lab("L_hp_ok")
    g.ts("H")
    g.lab("L_g2")
    for i in range(4):
        e(f"s_mov_b64 exec, s[{sMASK+2*i}:{sMASK+2*i+1}]")
        e(f"buffer_load_dwordx4 {vr(128+4*i)}, v60, {sr(sWS)}, s{sT3} offen offset:{i*1024} sc1")
    e("s_mov_b64 exec, -1")
    e("s_waitcnt vmcnt(0)")
    for i in range(4):
        e(f"v_cmp_ne_u32 vcc, v{129+4*i}, v{vTAG}"); e(f"v_cmp_ne_u32 s[{sMASK+2*i}:{sMASK+2*i+1}], v{131+4*i}, v{vTAG}")
        e(f"s_or_b64 s[{sMASK+2*i}:{sMASK+2*i+1}], s[{sMASK+2*i}:{sMASK+2*i+1}], vcc")
    e(f"s_or_b64 s[{sT0}:{sT1}], s[{sMASK}:{sMASK+1}], s[{sMASK+2}:{sMASK+3}]"); e(f"s_or_b64 vcc, s[{sMASK+4}:{sMASK+5}], s[{sMASK+6}:{sMASK+7}]")
    e(f"s_or_b64 vcc, vcc, s[{sT0}:{sT1}]")
    e("s_cbranch_scc0 L_g2_ok")
    e(f"s_sub_u32 s{sSPIN}, s{sSPIN}, 1"); e("s_cbranch_scc0 L_g2")
    g.lab("L_g2_ok")
    g.ts("G2")
    R = [128, 130, 136, 138]
    for r in R: e(f"v_add_f32 v{r}, v{r}, v{r+4}")
    for r in R: e(f"v_add_f32_dpp v{r}, v{r}, v{r} row_ror:8 {DPP}")
    for sw in ("16", "32"):
        for r in R: e(f"v_mov_b32 v{r+1}, v{r}")
        for r in R: e(f"v_permlane{sw}_swap_b32 v{r}, v{r+1}")
        for r in R: e(f"v_add_f32 v{r}, v{r}, v{r+1}")
    e("v_cvt_pk_bf16_f32 v129, v128, v130"); e("v_cvt_pk_bf16_f32 v137, v136, v138")
    for base in (128, 136): e(f"v_lshlrev_b32 v{base}, 16, v{base+1}"); e(f"v_and_b32 v{base+2}, 0xffff0000, v{base+1}")
    for base, gs in ((128, 22), (136, 23)): e(f"v_mul_f32 v{base}, s{gs}, v{base}"); e(f"v_mul_f32 v{base+2}, s{gs}, v{base+2}")
    e("v_cvt_pk_bf16_f32 v129, v128, v130"); e("v_cvt_pk_bf16_f32 v137, v136, v138")
    for base in (128, 136): e(f"v_lshlrev_b32 v{base}, 16, v{base+1}"); e(f"v_and_b32 v{base+2}, 0xffff0000, v{base+1}")
    e("v_add_f32 v128, v128, v136"); e("v_add_f32 v130, v130, v138")
    e("v_cvt_pk_bf16_f32 v128, v128, v130")
    e("s_mov_b64 exec, 0xff")
    e(f"buffer_store_dword v128, v54, {sr(sOUT)}, s21 offen {o.get('outpol','')}")
    e("s_cmp_lg_u32 s2, 0"); e("s_cbranch_scc1 L_fin")
    e("s_mov_b64 exec, 1")
    e(f"buffer_store_dword v{vTAG}, v54, {sr(sWS)}, 0 offen sc1")
    g.lab("L_fin")
    if o['ts']:
        if o['ts'] == 2: e(f"s_cmp_lg_u32 s{sW}, 7"); e("s_cbranch_scc1 L_end")
        e("s_mov_b64 exec, -1")
        g.ts("end")
        e("s_waitcnt lgkmcnt(0)")
        for k in range(16): e(f"v_mov_b32 v{128+k}, s{TSREG[k]}" if k < g.nts else f"v_mov_b32 v{128+k}, 0")
        e(f"s_lshl_b32 s{sT0}, s2, 3"); e(f"s_add_u32 s{sT0}, s{sT0}, s{sW}"); e(f"s_lshl_b32 s{sT0}, s{sT0}, 6"); e(f"s_add_u32 s{sT0}, s{sT0}, {WS_TS}")
        e("v_mov_b32 v60, 0"); e("s_mov_b64 exec, 1")
        for k in range(1 if o['ts'] == 2 else 4): e(f"buffer_store_dwordx4 {vr(128+4*k)}, v60, {sr(sWS)}, s{sT0} offen offset:{16*k}")
        print("TS:", ",".join(g.tsn))
    g.lab("L_end")
    e("s_endpgm")
    g.lab("L_codeend")
    g.L += ['.section .rodata,"a"', ".p2align 6", f".amdhsa_kernel {KN}",
            "  .amdhsa_next_free_vgpr 256", "  .amdhsa_next_free_sgpr 102", "  .amdhsa_accum_offset 256",
            "  .amdhsa_group_segment_fixed_size 0", "  .amdhsa_kernarg_size 112", "  .amdhsa_user_sgpr_count 2",
            "  .amdhsa_user_sgpr_kernarg_segment_ptr 1", "  .amdhsa_system_sgpr_workgroup_id_x 1",
            "  .amdhsa_float_denorm_mode_32 3", ".end_amdhsa_kernel"]
    return "\n".join(g.L) + "\n"

if __name__ == "__main__":
    from lint import lint
    from build import build
    out = sys.argv[1]; opts = eval("dict(" + (sys.argv[2] if len(sys.argv) > 2 else "") + ")")
    s = gen(**opts)
    open(out, "w").write(s)
    for p in lint(s): print("LINT:", p)
    build(out)
```

```python
import sys, math, struct
sys.path.insert(0, "gen"); sys.path.insert(0, "tools")
KN = "gated_mix__sliding_block_cached__sliding_block_cached__decode_kernel"
HEADER = open("gated_mix__sliding_block_cached__sliding_block_cached__decode.s.ref").read().split("; Override launch")[0]

WS_Q = 0x10000
WS_S = 0x60000
WS_H = 0x70000
WS_O = 0x80000
WS_F = 0x100000
WS_P = 0x200000
WS_TS = 0x400000
WS_SIZE = 0x800000
L_QL = 0
L_SM = 1024
L_SL = 1088
L_W = 1152
L_F = 1216
L_CNT = 1220
L_CN2 = 1224
L_B3 = 2048
L_WQ = 10240
L_X = 38912
L_WO = 46080
L_OR = 78848
LDS_BYTES = 95232
TSREG = [84,86,88,90,92,94,96,98,100,8,10,12,14,16,18,20]

DOC = '''; ---------------------------------------------------------------------------------------------
; Workgroup id -> kv head = id&7, member = (id>>3)&15 (batch = member>>1, key half = member&1),
; branch = id>>7. The 16 members of a (branch, kv head) group exchange data through d_ws.
;     then gathers the 512 q columns of its own batch into LDS. All waves stream K meanwhile.
;     merged with their softmax weights, f32 partials published.
; Hand-offs: 8-byte {data, tag} granules, tag = f(word 0 of d_ws at entry); word 0 moves on at the
; ---------------------------------------------------------------------------------------------'''

def f2u(x): return struct.unpack("<I", struct.pack("<f", x))[0]
def vr(a, n=4): return f"v[{a}:{a+n-1}]"
def sr(a, n=4): return f"s[{a}:{a+n-1}]"
DPP = "row_mask:0xf bank_mask:0xf"

class G:
    def __init__(s, **o):
        s.L = []
        s.o = dict(round_s=1, ts=0, pol='nt', spin=1<<16, codepf=1, sleep1=0, sleep2=0, b0at=14, pre=2, fthr=256,
                   xm=0x100, xa=1, xb=0, kv=0, qsl=2, ssl=1, hp=0, hgap=2, skip=(6,7), wosw=1, bx=1, pret=0, g1p=0, wol=1, imm=0, nrep=8, xc=1, pw=1, wt=1, tlb=0, cpf2=0, q0k=32, pk=1, gate1=0, vpf=3, spf=0, sdel=0, e1=1, b45=1, lst=1, spol='', ppol='sc1 nt', qpol='', opol='')
        s.o.update(o); s.nts = 0; s.tsn = []
    def e(s, t): s.L.append("  " + t)
    def c(s, t): s.L.append("  ; " + t)
    def lab(s, t): s.L.append(t + ":")
    def nop(s, n):
        while n > 0:
            k = min(n, 16); s.e(f"s_nop {k-1}"); n -= k
    def ts(s, name):
        if not s.o['ts'] or name not in s.o['tson']: return
        k = s.nts; s.nts += 1
        r = TSREG[k]; s.tsn.append(name)
        s.e(f"s_memrealtime s[{r}:{r+1}]   ; ts {name}")

def gen(**opts):
    g = G(**opts); e = g.e; o = g.o; POL = o['pol']
    sK, sV, sWQ, sWO, sX, sGW, sWS, sOUT = 24, 28, 32, 36, 40, 44, 48, 52
    sW = 56; sR = 57; sT0, sT1, sT2, sT3 = 58, 59, 60, 61
    sKVH, sBR, sMEM, sB, sG = 3, 4, 5, 6, 7
    sMASK = 64; sM8 = 80; sSEL0, sSEL1 = 82, 83; sSPIN = 62; sC = 63
    sROLE = 32
    sH3 = 33; sNL = 34
    vL = 1; vKO = 2; vVO = 3; vTAG = 4; vA = 5; vB = 6; vC = 7
    vQB = 8; vS = 16; vPV = 64; vK = 128
    vT = 40; vM0 = 52; vL0 = 53; vAL = 54; vORA = 56; vORB = 57; vSA = 58; vF = 59
    vACC = 112; vP8 = 120
    BS = 131072
    assert not (o['kv'] and o['wt']), "wt needs kv=0"
    B45 = o['b45'] and o['wol']

    def tagcheck(tags, a, b_):
        if len(tags) == 2:
            e(f"v_cmp_ne_u32 vcc, v{tags[0]}, v{vTAG}"); e(f"v_cmp_ne_u32 s[{sT0}:{sT1}], v{tags[1]}, v{vTAG}")
        else:
            e(f"v_min3_u32 v{a}, v{tags[0]}, v{tags[1]}, v{tags[2]}"); e(f"v_max3_u32 v{b_}, v{tags[0]}, v{tags[1]}, v{tags[2]}")
            i = 3
            while i+1 < len(tags):
                e(f"v_min3_u32 v{a}, v{a}, v{tags[i]}, v{tags[i+1]}"); e(f"v_max3_u32 v{b_}, v{b_}, v{tags[i]}, v{tags[i+1]}"); i += 2
            if i < len(tags):
                e(f"v_min_u32 v{a}, v{a}, v{tags[i]}"); e(f"v_max_u32 v{b_}, v{b_}, v{tags[i]}")
            e(f"v_cmp_ne_u32 vcc, v{a}, v{vTAG}"); e(f"v_cmp_ne_u32 s[{sT0}:{sT1}], v{b_}, v{vTAG}")
        e(f"s_or_b64 vcc, vcc, s[{sT0}:{sT1}]")
    def poll(name, loads, tags, a, b_, sleep=0, first=None, gate=False):
        e(f"s_mov_b32 s{sSPIN}, {o['spin']}")
        if first:
            loads(); first(); e(f"s_branch L_{name}_w")
        g.lab(f"L_{name}")
        loads()
        g.lab(f"L_{name}_w")
        e("s_waitcnt vmcnt(0)")
        tagcheck(tags, a, b_)
        e(f"s_cbranch_scc0 L_{name}_ok")
        e("s_mov_b64 exec, vcc")
        if gate:
            g.lab(f"L_{name}_g")
            e(f"ds_read_b32 v{a}, v62 offset:{L_CNT}"); e("s_waitcnt lgkmcnt(0)"); e(f"v_readfirstlane_b32 s{sT0}, v{a}")
            e(f"s_cmp_eq_u32 s{sT0}, 8"); e(f"s_cbranch_scc1 L_{name}_g")
        if sleep: e(f"s_sleep {sleep}")
        e(f"s_cmp_le_u32 s{sSPIN}, {o['spin']-o['fthr']}"); e(f"s_cselect_b32 s{sT0}, {WS_F}, 0"); e(f"s_xor_b32 s{sT3}, s{sT3}, s{sT0}")
        e(f"s_sub_u32 s{sSPIN}, s{sSPIN}, 1"); e(f"s_cbranch_scc0 L_{name}")
        g.lab(f"L_{name}_ok")
        e("s_mov_b64 exec, -1")
    def srd(d, p, n):
        e(f"s_mov_b32 s{d}, s{p}"); e(f"s_mov_b32 s{d+1}, s{p+1}"); e(f"s_mov_b32 s{d+2}, {n}"); e(f"s_mov_b32 s{d+3}, 0x20000")
    def kreg(n): return vK + 4*(n % 16) if o['kv'] else vK + 4*n
    def vreg(unit): return vK + 64 + 32*(unit % 2) if o['kv'] else vK + 32*unit
    def kload(n):
        u, hf = n//2, n % 2
        if o['imm']:
            e(f"buffer_load_dwordx4 {vr(kreg(n))}, v{vKO}, {sr(sK)}, s{sR if u < 8 else 43} offen offset:{(u&7)*512+hf*256} {POL}")
            return
        e(f"s_xor_b32 s47, s{sR}, {(u&7)*512+hf*256+(u>>3)*BS}")
        e(f"buffer_load_dwordx4 {vr(kreg(n))}, v{vKO}, {sr(sK)}, s47 offen {o.get('kvpol', POL)}")
    def vload(unit, j):
        blk, hf = unit//2, unit % 2
        if o['imm']:
            e(f"buffer_load_dwordx4 {vr(vreg(unit)+4*j)}, v{vVO}, {sr(sV)}, s{sR if blk == 0 else 43} offen offset:{j*512+hf*256} {POL}")
            return
        e(f"s_xor_b32 s47, s{sR}, {j*512+hf*256+blk*BS}")
        e(f"buffer_load_dwordx4 {vr(vreg(unit)+4*j)}, v{vVO}, {sr(sV)}, s47 offen {o.get('kvpol', POL)}")

    g.L.append(HEADER.rstrip("\n"))
    g.L.append(f"; @launch grid=(256,1,1) block=(512,1,1) lds={LDS_BYTES}")
    g.L.append('.amdgcn_target "amdgcn-amd-amdhsa--gfx950"')
    g.L.append(DOC)
    g.L.append(".text"); g.L.append(f".globl {KN}"); g.L.append(".p2align 8"); g.L.append(f".type {KN},@function"); g.lab(KN)
    e("s_cmp_ge_u32 s2, 256"); e("s_cbranch_scc1 L_end")
    g.ts("start")
    e(f"s_lshr_b32 s{sBR}, s2, 7")
    e(f"s_mul_i32 s{sT0}, s{sBR}, 40")
    e(f"s_add_u32 s{sT2}, s0, s{sT0}"); e(f"s_addc_u32 s{sT3}, s1, 0")
    e(f"s_load_dwordx8 s[8:15], s[{sT2}:{sT3}], 8")
    e("s_load_dwordx2 s[16:17], s[0:1], 0")
    e("s_load_dwordx2 s[18:19], s[0:1], 104")
    e("s_load_dwordx4 s[20:23], s[0:1], 80")
    e(f"v_lshrrev_b32 v{vA}, 6, v0")
    e(f"v_and_b32 v{vL}, 63, v0")
    e(f"v_readfirstlane_b32 s{sW}, v{vA}")
    e(f"s_getpc_b64 s[{sM8}:{sM8+1}]")
    g.lab("L_pc")
    if o['codepf']:
        g.c("pull the kernel's code into L2: one dword per 128 B line (waves 1,2)")
        e(f"v_lshlrev_b32 v35, 7, v0"); e("v_subrev_u32 v35, 8192, v35")
        e(f"s_mov_b32 s{sT0}, L_codeend-L_pc-4")
        e(f"v_cmp_gt_u32 vcc, s{sT0}, v35")
        e(f"s_and_saveexec_b64 s[{sT2}:{sT3}], vcc")
        e("s_cbranch_execz L_nopf")
        e(f"global_load_dword v36, v35, s[{sM8}:{sM8+1}] {o['spol']}")
        g.lab("L_nopf")
        e("s_mov_b64 exec, -1")
    e(f"s_and_b32 s{sKVH}, s2, 7")
    e(f"s_bfe_u32 s{sMEM}, s2, 0x40003")
    e(f"s_lshr_b32 s{sB}, s{sMEM}, 1")
    e(f"s_lshl_b32 s{sG}, s{sBR}, 3"); e(f"s_add_u32 s{sG}, s{sG}, s{sKVH}")
    if o['xa'] == 1 and o['xb'] == 0:
        e(f"s_lshl_b32 s{sT0}, s{sW}, 8")
    else:
        e(f"s_mul_i32 s{sT0}, s{sW}, {o['xa']}"); e(f"s_lshr_b32 s{sT1}, s2, 3"); e(f"s_mul_i32 s{sT1}, s{sT1}, {o['xb']}"); e(f"s_add_u32 s{sT0}, s{sT0}, s{sT1}")
        e(f"s_lshl_b32 s{sT0}, s{sT0}, 8")
    e(f"s_and_b32 s{sR}, s{sT0}, {o['xm'] & 0xf00}")
    e(f"s_lshl_b32 s{sT0}, s{sB}, 24"); e(f"s_lshl_b32 s{sT1}, s{sKVH}, 21"); e(f"s_add_u32 s{sT0}, s{sT0}, s{sT1}")
    e(f"s_and_b32 s{sT1}, s{sMEM}, 1"); e(f"s_lshl_b32 s{sT1}, s{sT1}, 18"); e(f"s_add_u32 s{sT0}, s{sT0}, s{sT1}")
    if o['bx'] == 1:
        e(f"s_and_b32 s{sT2}, s{sMEM}, 8"); e(f"s_lshl_b32 s{sT2}, s{sT2}, 14"); e(f"s_or_b32 s{sR}, s{sR}, s{sT2}")
        e(f"s_xor_b32 s{sT1}, s{sW}, s{sMEM}"); e(f"s_and_b32 s{sT1}, s{sT1}, 7"); e(f"s_lshl_b32 s{sT1}, s{sT1}, 14")
    elif o['bx'] == 2:
        e(f"s_and_b32 s{sT2}, s{sMEM}, 1"); e(f"s_mul_i32 s{sT1}, s{sT2}, 7"); e(f"s_lshl_b32 s{sT2}, s{sT2}, 17"); e(f"s_or_b32 s{sR}, s{sR}, s{sT2}")
        e(f"s_xor_b32 s{sT1}, s{sW}, s{sT1}"); e(f"s_lshl_b32 s{sT1}, s{sT1}, 14")
    else:
        e(f"s_lshl_b32 s{sT1}, s{sW}, 14")
    e(f"s_add_u32 s{sT0}, s{sT0}, s{sT1}")
    e(f"s_add_u32 s{sT0}, s{sT0}, {3072*512}")
    e(f"v_bfe_u32 v{vA}, v{vL}, 2, 2"); e(f"v_lshlrev_b32 v{vA}, 12, v{vA}")
    e(f"v_lshrrev_b32 v{vB}, 4, v{vL}")
    e(f"v_lshl_add_u32 v{vKO}, v{vB}, 6, v{vA}")
    e(f"v_and_b32 v{vA}, 3, v{vL}"); e(f"v_lshl_add_u32 v{vKO}, v{vA}, 4, v{vKO}")
    e(f"v_add_u32 v{vKO}, s{sT0}, v{vKO}")
    e(f"v_and_b32 v{vC}, 15, v{vL}"); e(f"v_lshlrev_b32 v{vC}, 4, v{vC}")
    e(f"v_lshl_add_u32 v{vVO}, v{vB}, 12, v{vC}")
    e(f"v_add_u32 v{vVO}, s{sT0}, v{vVO}")
    e(f"v_lshlrev_b32 v33, 4, v{vL}")
    e(f"v_mov_b32 v34, 0")
    e(f"ds_write_b64 v34, v[34:35] offset:{L_F}") if False else None
    e(f"ds_write_b32 v34, v34 offset:{L_F}"); e(f"ds_write_b32 v34, v34 offset:{L_CNT}")
    if o['wt']: e(f"ds_write_b32 v34, v34 offset:{L_CN2}")
    e(f"s_mov_b32 s{sK+2}, 0x8000000"); e(f"s_mov_b32 s{sK+3}, 0x20000")
    e(f"s_mov_b32 s{sWS+2}, {WS_SIZE}"); e(f"s_mov_b32 s{sWS+3}, 0x20000")
    e(f"s_mov_b32 s{sX+2}, 7168"); e(f"s_mov_b32 s{sX+3}, 0x20000")
    e(f"s_cmp_eq_u32 s{sW}, 0")
    e("s_waitcnt lgkmcnt(0)")
    e(f"s_mov_b32 s{sK}, s8"); e(f"s_mov_b32 s{sK+1}, s9")
    e(f"s_mov_b32 s{sWS}, s18"); e(f"s_mov_b32 s{sWS+1}, s19")
    e(f"s_mov_b32 s{sX}, s16"); e(f"s_mov_b32 s{sX+1}, s17")
    if o['spf']:
        e(f"s_lshl_b32 s{sT0}, s{sMEM}, 3"); e(f"s_add_u32 s{sT0}, s{sT0}, s{sW}"); e(f"s_min_u32 s{sT0}, s{sT0}, 111"); e(f"s_lshl_b32 s{sT0}, s{sT0}, 15")
        e(f"s_lshl_b32 s{sT1}, s{sKVH}, 10"); e(f"s_add_u32 s{sT0}, s{sT0}, s{sT1}"); e(f"s_add_u32 s{sT0}, s{sT0}, 384")
        e(f"s_add_u32 s{sT2}, s12, s{sT0}"); e(f"s_addc_u32 s{sT3}, s13, 0")
        for r in range(4):
            e(f"s_load_dword s{64+2*r}, s[{sT2}:{sT3}], {r*8192}")
            if o['spf'] == 2: e(f"s_load_dword s{65+2*r}, s[{sT2}:{sT3}], {r*8192+64}")
        e(f"s_cmp_eq_u32 s{sW}, 0")
    e("s_branch L_notw0" if o.get('now0') else "s_cbranch_scc0 L_notw0")
    g.c("wave 0: wq slice and x into LDS, q slice, publish, gather")
    srd(sWQ, 12, 3670016)
    e(f"v_lshrrev_b32 v32, 2, v{vL}"); e(f"v_lshlrev_b32 v32, 13, v32"); e(f"v_lshl_add_u32 v32, v{vA}, 4, v32")
    e(f"s_lshl_b32 s{sT0}, s{sKVH}, 10"); e(f"s_lshl_b32 s{sT1}, s{sMEM}, 6"); e(f"s_add_u32 s{sT0}, s{sT0}, s{sT1}")
    e(f"v_add_u32 v32, s{sT0}, v32")
    SD = o['sdel']
    if SD:
        e(f"s_sub_u32 s{sT0}, s{sMEM}, 6"); e(f"s_cmp_lt_u32 s{sT0}, 2"); e("s_cselect_b32 s83, 1, 0"); e("s_cbranch_scc0 L_w0n")
        e("s_barrier")
        for n in range(SD): kload(n)
        e("s_waitcnt vmcnt(0)")
        g.lab("L_w0n")
    nd = 0
    for ii in range(o.get('dn', 28)):
        if nd == o['b0at']: e("s_barrier")
        nd += 1
        e(f"s_mov_b32 m0, {L_WQ+ii*1024}")
        e(f"s_mov_b32 s{sT2}, {ii*131072}")
        e(f"buffer_load_dwordx4 v32, {sr(sWQ)}, s{sT2} offen {POL} lds")
    for ii in range(0 if o.get('nox') else 7):
        if nd == o['b0at']: e("s_barrier")
        nd += 1
        e(f"s_mov_b32 m0, {L_X+ii*1024}")
        e(f"s_mov_b32 s{sT2}, {ii*1024}")
        e(f"buffer_load_dwordx4 v33, {sr(sX)}, s{sT2} offen {o['spol']} lds")
    e(f"buffer_load_dword v{vTAG}, v34, {sr(sWS)}, 0 offen {'sc1' if o['e1'] else o['spol']}")
    if SD:
        e("s_cmp_eq_u32 s83, 1"); e("s_cbranch_scc1 L_w0nb"); e("s_barrier"); g.lab("L_w0nb")
    elif o['b0at'] >= nd: e("s_barrier")
    e(f"v_bfe_u32 v41, v{vL}, 2, 2")
    e(f"v_lshl_add_u32 v41, v{vB}, 3, v41"); e(f"v_lshlrev_b32 v41, 6, v41")
    e(f"v_lshl_add_u32 v41, v{vA}, 3, v41")
    e(f"v_and_b32 v43, 7, v{vL}"); e(f"v_mul_u32_u24 v42, 896, v43"); e(f"v_lshl_add_u32 v42, v{vB}, 4, v42")
    e(f"v_add_u32 v42, {L_X}, v42")
    e(f"s_lshl_b32 s{sT0}, s{sG}, 14"); e(f"s_lshl_b32 s{sT1}, s{sMEM}, 7"); e(f"s_add_u32 s{sT0}, s{sT0}, s{sT1}")
    e(f"s_add_u32 s{sT0}, s{sT0}, {WS_Q}"); e(f"s_add_u32 s{sT1}, s{sT0}, {WS_F}")
    e(f"v_lshlrev_b32 v43, 11, v43"); e(f"v_lshl_add_u32 v43, v{vB}, 4, v43")
    e(f"s_lshl_b32 s{sT3}, s{sG}, 3"); e(f"s_add_u32 s{sT3}, s{sT3}, s{sB}"); e(f"s_lshl_b32 s{sT3}, s{sT3}, 11"); e(f"s_add_u32 s{sT3}, s{sT3}, {WS_Q+WS_F}")
    e("s_waitcnt vmcnt(0)")
    g.ts("wq")
    e(f"v_and_b32 v{vTAG}, -8, v{vTAG}"); e(f"v_add_u32 v{vTAG}, 8, v{vTAG}")
    e("s_getreg_b32 s44, hwreg(HW_REG_XCC_ID, 0, 3)")
    steps = list(range(14)); first = True
    for ci in range(0, 14, 3):
        ch = steps[ci:ci+3]
        for k, s_ in enumerate(ch):
            a = 64 + 12*k
            for t in range(2):
                e(f"ds_read_b64_tr_b16 {vr(a+4*t,2)}, v41 offset:{L_WQ+s_*2048+t*32}")
                e(f"ds_read_b64_tr_b16 {vr(a+4*t+2,2)}, v41 offset:{L_WQ+s_*2048+256+t*32}")
            e(f"ds_read_b128 {vr(a+8)}, v42 offset:{s_*64}")
        e("s_waitcnt lgkmcnt(0)")
        for k, s_ in enumerate(ch):
            a = 64 + 12*k
            for t in range(2):
                e(f"v_mfma_f32_16x16x32_bf16 {vr(44+4*t)}, {vr(a+4*t)}, {vr(a+8)}, {'0' if first else vr(44+4*t)}")
            first = False
    e(f"v_or_b32 v53, s44, v{vTAG}"); e("v_mov_b32 v55, v53"); e(f"v_and_b32 v40, 8, v{vL}"); e("v_lshl_add_u32 v43, v40, 3, v43")
    e("s_mov_b32 vcc_lo, 0xff00ff00"); e("s_mov_b32 vcc_hi, 0xff00ff00"); e(f"s_mov_b32 s45, s{sT0}"); e("s_nop 0")
    for k in range(4): e(f"v_cndmask_b32 v{44+k}, v{44+k}, v{48+k}, vcc")
    e(f"v_cvt_pk_bf16_f32 v52, v44, v45"); e(f"v_cvt_pk_bf16_f32 v54, v46, v47")
    if o.get('noqst', 0) < 2: e(f"buffer_store_dwordx4 v[52:55], v43, {sr(sWS)}, s{sT1} offen {o['qpol']}")
    if not o['xc']: e(f"buffer_store_dwordx4 v[52:55], v43, {sr(sWS)}, s45 offen sc1")
    g.ts("qpub")
    for n in range(o['q0k']): kload(n)
    e("s_mov_b32 s46, 1")
    if not o.get('noqw'):
        e(f"s_mov_b32 s{sSPIN}, {o['spin']}")
        g.lab("L_qg")
        e(f"buffer_load_dwordx4 v[64:67], v33, {sr(sWS)}, s{sT3} offen {o['ppol']}")
        e(f"buffer_load_dwordx4 v[68:71], v33, {sr(sWS)}, s{sT3} offen offset:1024 {o['ppol']}")
        e("s_waitcnt vmcnt(0)")
        for r in (65, 67, 69, 71): e(f"v_xor_b32 v{r+11}, v{r}, v{vTAG}")
        e("v_max3_u32 v60, v76, v78, v80"); e("v_max_u32 v60, v60, v82")
        e("v_cmp_lt_u32 vcc, 7, v60")
        e("s_cbranch_vccz L_qg_ok")
        e("s_mov_b64 exec, vcc")
        e(f"s_cmp_le_u32 s{sSPIN}, {o['spin']-o['fthr']}"); e(f"s_cselect_b32 s{sT0}, {WS_F}, 0"); e(f"s_xor_b32 s{sT3}, s{sT3}, s{sT0}")
        e(f"s_cmp_lg_u32 s{sSPIN}, {o['spin']-o['fthr']}"); e("s_cbranch_scc1 L_qg_n")
        g.c("slices missing for a long time: write own slice through; from now on rounds alternate between the two copies")
        e("s_mov_b64 exec, -1")
        e(f"buffer_store_dwordx4 v[52:55], v43, {sr(sWS)}, s45 offen sc1")
        e("s_mov_b64 exec, vcc")
        g.lab("L_qg_n")
        e(f"s_sub_u32 s{sSPIN}, s{sSPIN}, 1"); e("s_cbranch_scc0 L_qg")
        g.lab("L_qg_ok")
        e("s_mov_b64 exec, -1")
        e("v_min3_u32 v60, v65, v67, v69"); e("v_max3_u32 v61, v65, v67, v69"); e("v_min_u32 v60, v60, v71"); e("v_max_u32 v61, v61, v71")
        e("v_cmp_ne_u32 vcc, v60, v53"); e(f"v_cmp_ne_u32 s[{sT0}:{sT1}], v61, v53"); e(f"s_or_b64 vcc, vcc, s[{sT0}:{sT1}]")
        e("s_cbranch_scc0 L_qg_loc")
        g.c("some member runs on another die: its reads need the written-through copies")
        e(f"buffer_store_dwordx4 v[52:55], v43, {sr(sWS)}, s45 offen sc1")
        e("s_mov_b32 s46, 2")
        g.lab("L_qg_loc")
    if not o['xc']: e("s_mov_b32 s46, 2")
    e(f"v_lshlrev_b32 v60, 3, v{vL}")
    e(f"ds_write2_b32 v60, v64, v66 offset0:{L_QL//4} offset1:{L_QL//4+1}")
    e(f"ds_write2_b32 v60, v68, v70 offset0:{L_QL//4+128} offset1:{L_QL//4+129}")
    e(f"v_or_b32 v61, s46, v{vTAG}" if o['e1'] else "v_mov_b32 v61, s46"); e(f"ds_write_b32 v34, v61 offset:{L_F}")
    g.ts("qgot")
    if o['q0k']:
        srd(sV, 10, 0x8000000); e("s_branch L_kq0")
    if SD:
        srd(sV, 10, 0x8000000)
        e("s_cmp_eq_u32 s83, 1"); e("s_cbranch_scc1 L_ksd")
    if not o['q0k']:
        for n in range(o['pre']): kload(n)
        e("s_branch L_kissue")
    g.lab("L_notw0")
    if o['tlb']:
        g.c("wave 2: touch the pages used later (V window, second half of the K window, wo rows, hand-off areas)")
        e(f"s_cmp_lg_u32 s{sW}, 2"); e("s_cbranch_scc1 L_notlb")
        srd(sV, 10, 0x8000000); srd(sWO, 14, 3670016)
        e(f"v_readfirstlane_b32 s{sT0}, v{vVO}"); e(f"v_lshlrev_b32 v37, {o['tlb']}, v{vL}"); e(f"s_and_b32 s{sT0}, s{sT0}, 0xfffc0000")
        e(f"s_mul_i32 s{sT1}, s{sKVH}, {512*896}")
        e(f"s_mov_b64 exec, {hex((1 << (262144 >> o['tlb'])) - 1)}")
        e(f"buffer_load_dword v38, v37, {sr(sV)}, s{sT0} offen {POL}")
        e(f"buffer_load_dword v39, v37, {sr(sK)}, s{sT0} offen {POL}")
        e(f"s_mov_b64 exec, {hex((1 << min(63, (524288 >> o['tlb']))) - 1)}")
        e(f"buffer_load_dword v40, v37, {sr(sWO)}, s{sT1} offen {POL}")
        e("s_mov_b64 exec, -1")
        g.lab("L_notlb")
    if o['vpf'] == 3:
        g.c("waves 1..4: touch 7 rows x 1 KB each of the group's wq block (rows 28*member ..), so that the strided slice loads meet them in L2")
        e(f"s_sub_u32 s{sT2}, s{sW}, 1"); e(f"s_cmp_gt_u32 s{sT2}, 3"); e("s_cbranch_scc1 L_novpf")
        srd(sWQ, 12, 3670016)
        e(f"s_mul_i32 s{sT0}, s{sMEM}, {28*8192}"); e(f"s_mul_i32 s{sT2}, s{sT2}, {7*8192}"); e(f"s_add_u32 s{sT0}, s{sT0}, s{sT2}")
        e(f"s_lshl_b32 s{sT1}, s{sKVH}, 10"); e(f"s_add_u32 s{sT0}, s{sT0}, s{sT1}")
        e(f"v_lshrrev_b32 v37, 3, v{vL}"); e("v_lshlrev_b32 v37, 13, v37"); e(f"v_and_b32 v38, 7, v{vL}"); e("v_lshl_add_u32 v37, v38, 7, v37")
        e("s_mov_b32 exec_hi, 0xffffff")
        e(f"buffer_load_dword v38, v37, {sr(sWQ)}, s{sT0} offen {POL}")
        e("s_mov_b64 exec, -1")
        g.lab("L_novpf")
    elif o['vpf']:
        g.c("wave 1: touch this member's 28 rows of column block 3 (the block whose owners would otherwise queue 448 requests on one path)")
        e(f"s_cmp_lg_u32 s{sW}, 1"); e("s_cbranch_scc1 L_novpf")
        srd(sWQ, 12, 3670016)
        e(f"s_mul_i32 s{sT0}, s{sMEM}, {28*8192}"); e(f"s_lshl_b32 s{sT1}, s{sKVH}, 10"); e(f"s_add_u32 s{sT0}, s{sT0}, s{sT1}"); e(f"s_add_u32 s{sT0}, s{sT0}, 384")
        if o['vpf'] == 2:
            e(f"v_lshrrev_b32 v37, 1, v{vL}"); e("v_lshlrev_b32 v37, 13, v37"); e(f"v_and_b32 v38, 1, v{vL}"); e("v_lshl_add_u32 v37, v38, 6, v37")
            e("s_mov_b32 exec_hi, 0xffffff")
        else:
            e(f"v_lshlrev_b32 v37, 13, v{vL}"); e("s_mov_b64 exec, 0xfffffff")
        e(f"buffer_load_dword v38, v37, {sr(sWQ)}, s{sT0} offen {POL}")
        e("s_mov_b64 exec, -1")
        g.lab("L_novpf")
    if not o['e1']: e(f"buffer_load_dword v{vTAG}, v34, {sr(sWS)}, 0 offen {o['spol']}")
    for n in range(o['pre']): kload(n)
    e("s_barrier")
    e(f"s_cmp_lg_u32 s{sW}, 7"); e("s_cbranch_scc1 L_kissue")
    srd(sGW, 20, 896)
    e(f"s_mul_i32 s{sT0}, s{sKVH}, 896")
    e(f"buffer_load_dwordx4 v[16:19], v33, {sr(sX)}, s{sT0} offen {o['spol']}")
    e(f"buffer_load_dwordx4 v[20:23], v33, {sr(sGW)}, 0 offen {o['spol']}")
    g.lab("L_kissue")
    if o['imm']:
        assert o['xm'] == 0
        e(f"s_xor_b32 s43, s{sR}, {BS}")
    srd(sV, 10, 0x8000000)
    if o['kv']:
        for n in range(o['pre'], 16): kload(n)
        for u in range(2):
            for j in range(8): vload(u, j)
    else:
        for n in range(o['pre'], 32):
            if o['sdel'] and n == o['sdel']: g.lab("L_ksd")
            if o['q0k'] and n == o['q0k']: g.lab("L_kq0")
            kload(n)
        if o['q0k'] == 32: g.lab("L_kq0")
    g.ts("kiss")
    srd(sWO, 14, 3670016); srd(sOUT, 22, 7168)
    g.c("output-projection role of this member (14 = none), constants")
    s0, s1 = o['skip']
    e(f"s_mov_b32 s{sROLE}, s{sMEM}")
    e(f"s_cmp_gt_u32 s{sMEM}, {s1}"); e(f"s_cselect_b32 s{sT0}, 2, 0"); e(f"s_sub_u32 s{sROLE}, s{sROLE}, s{sT0}")
    e(f"s_sub_u32 s{sT0}, s{sMEM}, {s0}"); e(f"s_cmp_lt_u32 s{sT0}, 2"); e(f"s_cselect_b32 s{sROLE}, 14, s{sROLE}")
    e(f"s_cmp_ge_u32 s{sROLE}, 7"); e(f"s_cselect_b32 s{sH3}, 1, 0"); e(f"s_mul_i32 s{sT0}, s{sH3}, 7"); e(f"s_sub_u32 s{sNL}, s{sROLE}, s{sT0}")
    def wo_setup(nper, va, vb, vc, vd, p0=0):
        e(f"s_lshl_b32 s{sT0}, s{sKVH}, 9"); e(f"s_lshl_b32 s{sT1}, s{sH3}, 8"); e(f"s_add_u32 s{sT0}, s{sT0}, s{sT1}"); e(f"s_mul_i32 s{sT1}, s{sW}, {8*nper}"); e(f"s_add_u32 s{sT0}, s{sT0}, s{sT1}")
        if p0: e(f"s_add_u32 s{sT0}, s{sT0}, {8*p0}")
        e(f"s_mul_i32 s{sT0}, s{sT0}, 896"); e(f"s_lshl_b32 s{sT1}, s{sNL}, 7"); e(f"s_add_u32 s35, s{sT0}, s{sT1}")
        e(f"s_cmp_eq_u32 s{sROLE}, 14"); e(f"s_cselect_b32 s35, 0x4000000, s35")
        if o.get('nowo'): e(f"s_mov_b32 s35, 0x4000000")
        e(f"v_lshrrev_b32 v{va}, 3, v{vL}"); e(f"v_mul_u32_u24 v{vb}, 896, v{va}"); e(f"v_and_b32 v{vc}, 7, v{vL}")
        e(f"v_and_b32 v{va}, 2, v{va}"); e(f"v_xor_b32 v{vc}, v{vc}, v{va}"); e(f"v_xor_b32 v{vd}, 4, v{vc}")
        e(f"v_lshl_add_u32 v{va}, v{vc}, 4, v{vb}"); e(f"v_lshl_add_u32 v{vb}, v{vd}, 4, v{vb}")
    def wo_issue(nper, va, vb, p0=0):
        e(f"s_mul_i32 s46, s{sW}, {1024*nper}")
        for ii in range(nper):
            e(f"s_add_u32 m0, s46, {L_WO+(p0+ii)*1024}")
            e(f"s_add_u32 s47, s35, {ii*8*896}")
            e(f"buffer_load_dwordx4 v{vb if ii%2 else va}, {sr(sWO)}, s47 offen {POL} lds")
    WE = {0: 4, 1: 0, 2: 2}[o['wol']]
    WLATE = (32 - 8*WE)//4
    NWO = WE
    if o.get('nodma'): NWO = 0
    elif WE:
        wo_setup(WE, 60, 61, 62, 63); wo_issue(WE, 60, 61)
    for v in range(8):
        pat = (0x11 << (v & 3)) << (8*(v >> 2)); pat |= pat << 16
        e(f"s_mov_b32 s{sMASK+2*v}, 0x{pat:08x}"); e(f"s_mov_b32 s{sMASK+2*v+1}, 0x{pat:08x}")
    e(f"s_mov_b32 s{sSEL0}, 0x05040100"); e(f"s_mov_b32 s{sSEL1}, 0x07060302")
    e(f"s_mov_b32 s{sC}, 0x{f2u(math.log2(math.e)/16):08x}")
    e(f"s_mov_b32 s{sM8}, 0xff00ff00"); e(f"s_mov_b32 s{sM8+1}, 0xff00ff00")
    if o['e1']:
        e(f"s_cmp_lg_u32 s{sW}, 7"); e("s_cbranch_scc1 L_b2")
        e(f"s_waitcnt vmcnt({32 - o['pre'] + NWO})")
    else:
        e(f"s_cmp_eq_u32 s{sW}, 0"); e("s_cbranch_scc1 L_b2")
        e(f"s_waitcnt vmcnt({32 - o['pre'] + NWO})")
        e(f"v_and_b32 v{vTAG}, -8, v{vTAG}"); e(f"v_add_u32 v{vTAG}, 8, v{vTAG}")
        e(f"s_cmp_lg_u32 s{sW}, 7"); e("s_cbranch_scc1 L_b2")
    g.c("wave 7: gate g -> s22, 1-g -> s23 (bf16-rounded like the reference)")
    e(f"v_cmp_gt_u32 vcc, 56, v{vL}"); e("v_mov_b32 v24, 0"); e("s_nop 0")
    for k in range(4): e(f"v_cndmask_b32 v{16+k}, 0, v{16+k}, vcc")
    for k in range(4):
        e(f"v_lshlrev_b32 v25, 16, v{16+k}"); e(f"v_and_b32 v26, 0xffff0000, v{16+k}")
        e(f"v_lshlrev_b32 v27, 16, v{20+k}"); e(f"v_and_b32 v28, 0xffff0000, v{20+k}")
        e("v_mul_f32 v25, v25, v27"); e("v_mul_f32 v26, v26, v28")
        e("v_cvt_pk_bf16_f32 v25, v25, v26")
        e("v_lshlrev_b32 v26, 16, v25"); e("v_and_b32 v25, 0xffff0000, v25")
        e("v_add_f32 v24, v24, v26"); e("v_add_f32 v24, v24, v25")
    for dpp in ("quad_perm:[1,0,3,2]", "quad_perm:[2,3,0,1]", "row_ror:4", "row_ror:8"):
        e("s_nop 1"); e(f"v_add_f32_dpp v24, v24, v24 {dpp} {DPP}")
    for sw in ("16", "32"):
        e("v_mov_b32 v25, v24"); e("s_nop 1"); e(f"v_permlane{sw}_swap_b32 v24, v25"); e("v_add_f32 v24, v24, v25")
    e("v_cvt_pk_bf16_f32 v24, v24, v24"); e("v_and_b32 v24, 0xffff0000, v24")
    e(f"v_mul_f32 v24, 0x{f2u(-math.log2(math.e)):08x}, v24"); e("v_exp_f32 v24, v24"); e("s_nop 0")
    e("v_add_f32 v24, 1.0, v24"); e("v_rcp_f32 v24, v24"); e("s_nop 0")
    e("v_cvt_pk_bf16_f32 v24, v24, v24"); e("v_and_b32 v24, 0xffff0000, v24")
    e("v_sub_f32 v25, 1.0, v24"); e("v_cvt_pk_bf16_f32 v25, v25, v25"); e("v_and_b32 v25, 0xffff0000, v25")
    e("v_readfirstlane_b32 s22, v24"); e("v_readfirstlane_b32 s23, v25")
    g.lab("L_b2")
    e(f"v_bfe_u32 v{vC}, v{vL}, 2, 1"); e(f"v_lshlrev_b32 v{vA}, 9, v{vC}")
    e(f"v_lshl_add_u32 v{vA}, v{vB}, 6, v{vA}")
    e(f"v_and_b32 v60, 3, v{vL}"); e(f"v_lshl_add_u32 v{vA}, v60, 4, v{vA}")
    e(f"s_and_b32 s{sT0}, s{sR}, 0x100"); e(f"v_add_u32 v{vA}, s{sT0}, v{vA}"); e(f"v_xor_b32 v60, 0x100, v{vA}")
    e("v_mov_b32 v62, 0"); e("s_mov_b32 s42, 1")
    if not o.get('noqw'):
        e(f"s_mov_b32 s{sSPIN}, 0x400000")
        g.lab("L_qwait")
        e(f"ds_read_b32 v61, v62 offset:{L_F}"); e("s_waitcnt lgkmcnt(0)"); e(f"v_readfirstlane_b32 s42, v61"); e(f"s_cmp_lg_u32 s42, 0"); e("s_cbranch_scc1 L_qready")
        e(f"s_sleep {o['qsl']}"); e(f"s_sub_u32 s{sSPIN}, s{sSPIN}, 1"); e("s_cbranch_scc0 L_qwait")
        g.lab("L_qready")
        if o['e1']: e(f"v_and_b32 v{vTAG}, -8, v61"); e("s_and_b32 s42, s42, 7")
    g.ts("B2")
    g.c("q fragments; QK^T, softmax, P.V")
    e(f"ds_read_b128 {vr(vQB)}, v{vA} offset:{L_QL}")
    e(f"ds_read_b128 {vr(vQB+4)}, v60 offset:{L_QL}")
    e("s_waitcnt lgkmcnt(0)")
    def xred(r, t, op):
        for sw in ("16", "32"):
            e(f"v_mov_b32 v{t}, v{r}"); e("s_nop 1"); e(f"v_permlane{sw}_swap_b32 v{r}, v{t}"); e(f"{op} v{r}, v{r}, v{t}")
    def soft(blk):
        if o.get('nocomp'): return
        S = vS + 8*blk
        if o['round_s']:
            for u in range(0, 8, 2): e(f"v_cvt_pk_bf16_f32 v{vP8+u//2}, v{S+u}, v{S+u+1}")
            for u in range(0, 8, 2):
                e(f"v_lshlrev_b32 v{S+u}, 16, v{vP8+u//2}"); e(f"v_and_b32 v{S+u+1}, 0xffff0000, v{vP8+u//2}")
        e(f"v_max3_f32 v{vA}, v{S}, v{S+1}, v{S+2}"); e(f"v_max3_f32 v{vB}, v{S+3}, v{S+4}, v{S+5}")
        e(f"v_max3_f32 v{vA}, v{vA}, v{S+6}, v{S+7}"); e(f"v_max_f32 v{vA}, v{vA}, v{vB}")
        xred(vA, vB, "v_max_f32")
        if blk == 0:
            e(f"v_mul_f32 v{vM0}, s{sC}, v{vA}")
        else:
            e(f"v_mul_f32 v{vA}, s{sC}, v{vA}"); e(f"v_max_f32 v{vA}, v{vA}, v{vM0}")
            e(f"v_sub_f32 v{vAL}, v{vM0}, v{vA}"); e(f"v_mov_b32 v{vM0}, v{vA}"); e(f"v_exp_f32 v{vAL}, v{vAL}")
        for u in range(8): e(f"v_fma_f32 v{S+u}, v{S+u}, s{sC}, -v{vM0}")
        for u in range(8): e(f"v_exp_f32 v{S+u}, v{S+u}")
        e("s_nop 0")
        for t in range(4): e(f"v_cvt_pk_bf16_f32 v{vP8+t}, v{S+2*t}, v{S+2*t+1}")
        for t in range(4): e(f"v_add_f32 v{S+t}, v{S+t}, v{S+t+4}")
        e(f"v_add_f32 v{S}, v{S}, v{S+2}"); e(f"v_add_f32 v{S+1}, v{S+1}, v{S+3}")
        if blk == 0:
            e(f"v_add_f32 v{vL0}, v{S}, v{S+1}")
        else:
            e(f"v_add_f32 v{S}, v{S}, v{S+1}"); e(f"v_fmac_f32 v{S}, v{vL0}, v{vAL}")
            xred(S, S+1, "v_add_f32")
            e(f"ds_write_b32 v{vSA}, v{vM0} offset:{L_SM}"); e(f"ds_write_b32 v{vSA}, v{S} offset:{L_SL}")
            e(f"v_mov_b32 v{S+1}, 1"); e(f"v_mov_b32 v{S+2}, 0"); e("s_mov_b64 exec, 1")
            e(f"ds_add_u32 v{S+2}, v{S+1} offset:{L_CNT}"); e("s_mov_b64 exec, -1")
            e(f"v_readlane_b32 s{sT0}, v{vAL}, 0"); e(f"v_readlane_b32 s{sT1}, v{vAL}, 4")
        for v in range(8):
            for t in range(4):
                e(f"v_cndmask_b32 v{vPV+4*v+t}, 0, v{vP8+t}, s[{sMASK+2*v}:{sMASK+2*v+1}]")
    def pv(unit):
        if o.get('nocomp'): return
        blk, hf = unit//2, unit % 2
        base = vreg(unit); acc = vACC + 4*hf
        def perms(d):
            for t in range(4):
                e(f"v_perm_b32 v{vT+4*(d%3)+t}, v{base+4*(2*t+1)+d//2}, v{base+4*(2*t)+d//2}, s{sSEL1 if d&1 else sSEL0}")
        perms(0)
        for d in range(8):
            if d < 7: perms(d+1)
            else: g.nop(2)
            cin = "0" if (blk == 0 and d == 0) else vr(acc)
            e(f"v_mfma_f32_16x16x32_bf16 {vr(acc)}, {vr(vPV+4*d)}, {vr(vT+4*(d%3))}, {cin}")
    def qkm(bt, dbase, wait):
        e(f"s_waitcnt vmcnt({wait})")
        g.ts(f"K{bt}")
        if o.get('nocomp'): return
        for u in range(4*bt, 4*bt+4):
            d = dbase + 4*(u % 4)
            e(f"v_mfma_f32_16x16x32_bf16 {vr(d)}, {vr(kreg(2*u))}, {vr(vQB)}, 0")
            e(f"v_mfma_f32_16x16x32_bf16 {vr(d)}, {vr(kreg(2*u+1))}, {vr(vQB+4)}, {vr(d)}")
    def postb(bt, dbase):
        if o.get('nocomp'): return
        for step in range(4):
            for u in range(4*bt, 4*bt+4):
                d = dbase + 4*(u % 4); s_ = vS + u
                if step == 0: e(f"v_mov_b32_dpp v{s_}, v{d} quad_perm:[0,0,0,0] {DPP}")
                else: e(f"v_add_f32_dpp v{s_}, v{d+step}, v{s_} quad_perm:[{step},{step},{step},{step}] {DPP}")
    def vunit(u):
        for j in range(8): vload(u, j)
    def addrs():
        e(f"v_lshlrev_b32 v{vC}, 5, v{vC}")
        e(f"s_lshl_b32 s{sT0}, s{sW}, 2"); e(f"v_add_u32 v{vSA}, s{sT0}, v{vC}")
        e(f"v_bfe_u32 v{vC}, v{vL}, 4, 1"); e(f"v_lshlrev_b32 v{vORA}, 10, v{vC}"); e(f"v_lshlrev_b32 v{vC}, 5, v{vC}")
        e(f"v_and_b32 v{vORB}, 15, v{vL}"); e(f"v_lshl_add_u32 v{vORA}, v{vORB}, 5, v{vORA}")
        e(f"v_lshrrev_b32 v{vORB}, 5, v{vL}"); e(f"v_lshl_add_u32 v{vORA}, v{vORB}, 4, v{vORA}")
        e(f"s_and_b32 s{sT1}, s{sR}, 0x100"); e(f"s_lshl_b32 s{sT1}, s{sT1}, 1"); e(f"v_add_u32 v{vORA}, s{sT1}, v{vORA}"); e(f"v_xor_b32 v{vORB}, 0x200, v{vORA}")
        e(f"s_lshl_b32 s{sT0}, s{sW}, 11"); e(f"s_add_u32 s{sT0}, s{sT0}, {L_OR}"); e(f"v_add_u32 v{vORA}, s{sT0}, v{vORA}"); e(f"v_add_u32 v{vORB}, s{sT0}, v{vORB}")
        if o['pret']:
            e(f"s_sub_u32 s{sT0}, s{sW}, 1"); e(f"s_cmp_gt_u32 s{sT0}, 1"); e("s_cbranch_scc1 L_nopre")
            e(f"s_and_b32 s{sT1}, s{sMEM}, 1"); e(f"s_lshl_b32 s{sT1}, s{sT1}, 3"); e(f"s_add_u32 s{sT1}, s{sT1}, s{sB}")
            e(f"s_lshl_b32 s{sT2}, s{sG}, 1"); e(f"s_add_u32 s{sT2}, s{sT2}, s{sT0}")
            e(f"s_lshl_b32 s{sT2}, s{sT2}, 14"); e(f"s_lshl_b32 s{sT1}, s{sT1}, 10"); e(f"s_add_u32 s{sT2}, s{sT2}, s{sT1}"); e(f"s_add_u32 s{sT2}, s{sT2}, {WS_O+WS_F}")
            e(f"v_add_u32 v60, 1, v{vTAG}"); e("v_mov_b32 v61, v60"); e("v_mov_b32 v62, v60"); e("v_mov_b32 v63, v60"); e(f"v_lshlrev_b32 v55, 4, v{vL}")
            e(f"buffer_store_dwordx4 v[60:63], v55, {sr(sWS)}, s{sT2} offen")
            g.lab("L_nopre")
            e("s_nop 1")
    W = NWO
    if o['kv'] == 0:
        qkm(0, 32, 24+W); vunit(0); qkm(1, 48, 24+W); vunit(1)
        postb(0, 32); postb(1, 48); addrs(); soft(0)
        qkm(2, 32, 24+W); vunit(2)
        if o['wt'] == 2:
            e("v_mov_b32 v60, 1"); e("v_mov_b32 v61, 0"); e("s_mov_b64 exec, 1"); e(f"ds_add_u32 v61, v60 offset:{L_CN2}"); e("s_mov_b64 exec, -1")
        postb(2, 32)
        e("s_waitcnt vmcnt(16)"); g.ts("V0"); pv(0)
        qkm(3, 96, 24+W); vunit(3)
        if o['wt'] == 1:
            e("v_mov_b32 v60, 1"); e("v_mov_b32 v61, 0"); e("s_mov_b64 exec, 1"); e(f"ds_add_u32 v61, v60 offset:{L_CN2}"); e("s_mov_b64 exec, -1")
        g.ts("QK")
        e("s_waitcnt vmcnt(16)"); g.ts("V1"); pv(1)
        postb(3, 96); soft(1)
    else:
        K2 = (o['kv'] == 2)
        qkm(0, 32, 24+W)
        if not K2:
            for n in range(16, 24): kload(n)
        qkm(1, 48, (16 if K2 else 24)+W)
        if not K2:
            for n in range(24, 32): kload(n)
        else: g.nop(4)
        postb(0, 32); postb(1, 48); addrs(); soft(0)
        if K2:
            e(f"s_waitcnt vmcnt({8+W})"); pv(0)
            e(f"s_waitcnt vmcnt({W})"); pv(1)
            for n in range(16, 32): kload(n)
            vunit(2); vunit(3)
        else:
            e(f"s_waitcnt vmcnt({24+W})"); pv(0); vunit(2)
            e(f"s_waitcnt vmcnt({24+W})"); pv(1); vunit(3)
        g.ts("QK")
        qkm(2, 32, 24); qkm(3, 96, 16)
        postb(2, 32); postb(3, 96); soft(1)
    e(f"v_mov_b32 v{vAL}, s{sT0}"); e(f"v_mov_b32 v{vA}, s{sT1}"); e(f"s_mov_b32 vcc_lo, 0xffff0000"); e(f"s_mov_b32 vcc_hi, 0xffff0000")
    e(f"v_cndmask_b32 v{vAL}, v{vAL}, v{vA}, vcc")
    for k in range(8): e(f"v_mul_f32 v{vACC+k}, v{vACC+k}, v{vAL}")
    g.ts("P")
    e(f"s_waitcnt vmcnt(8)"); g.ts("V2"); pv(2)
    if o['cpf2']:
        e(f"s_cmp_lg_u32 s{sW}, 3"); e("s_cbranch_scc1 L_nopf2")
        e(f"s_getpc_b64 s[{sT2}:{sT3}]")
        g.lab("L_pc2")
        e(f"v_lshlrev_b32 v60, 7, v{vL}"); e(f"s_mov_b32 s{sT0}, L_codeend-L_pc2-4"); e(f"v_min_u32 v60, s{sT0}, v60")
        e(f"global_load_dword v61, v60, s[{sT2}:{sT3}]")
        e("s_waitcnt vmcnt(0)")
        g.lab("L_nopf2")
    if o['wt']:
        e(f"s_cmp_gt_u32 s{sW}, 3"); e("s_cbranch_scc1 L_nowt")
        e(f"s_cmp_eq_u32 s{sROLE}, 14"); e("s_cbranch_scc1 L_nowt")
        wo_setup(WLATE, 60, 61, 62, 63, 8*WE)
        e("v_mov_b32 v62, 0")
        e("s_waitcnt vmcnt(0)")
        e(f"s_mov_b32 s{sSPIN}, 0x400000")
        g.lab("L_wtw")
        e(f"ds_read_b32 v63, v62 offset:{L_CN2}"); e("s_waitcnt lgkmcnt(0)"); e(f"v_readfirstlane_b32 s{sT0}, v63"); e(f"s_cmp_ge_u32 s{sT0}, {o.get('wtn', 8)}"); e("s_cbranch_scc1 L_wtg")
        e(f"s_sleep {o['ssl']}"); e(f"s_sub_u32 s{sSPIN}, s{sSPIN}, 1"); e("s_cbranch_scc0 L_wtw")
        g.lab("L_wtg")
        wo_issue(WLATE, 60, 61, 8*WE)
        g.lab("L_nowt")
    g.c("workgroup-level softmax factor from the 8 waves (max, sum)")
    e(f"s_lshl_b32 s{sT0}, s{sW}, 2"); e(f"v_add_u32 v{vB}, s{sT0}, v{vC}"); e("v_mov_b32 v62, 0")
    if o.get('nocomp') or o.get('nosw'): e("s_branch L_sready")
    e(f"s_mov_b32 s{sSPIN}, 0x400000")
    g.lab("L_swait")
    e(f"ds_read_b32 v61, v62 offset:{L_CNT}"); e("s_waitcnt lgkmcnt(0)"); e(f"v_readfirstlane_b32 s{sT0}, v61"); e(f"s_cmp_eq_u32 s{sT0}, 8"); e("s_cbranch_scc1 L_sready")
    e(f"s_sleep {o['ssl']}"); e(f"s_sub_u32 s{sSPIN}, s{sSPIN}, 1"); e("s_cbranch_scc0 L_swait")
    g.lab("L_sready")
    e(f"ds_read_b128 {vr(16)}, v{vC} offset:{L_SM}"); e(f"ds_read_b128 {vr(20)}, v{vC} offset:{L_SM+16}")
    e(f"ds_read_b32 v{vF}, v{vB} offset:{L_SM}")
    e(f"ds_read_b128 {vr(24)}, v{vC} offset:{L_SL}"); e(f"ds_read_b128 {vr(28)}, v{vC} offset:{L_SL+16}")
    e("s_waitcnt lgkmcnt(0)")
    e("v_max3_f32 v124, v16, v17, v18"); e("v_max3_f32 v125, v19, v20, v21"); e("v_max3_f32 v124, v124, v22, v23"); e("v_max_f32 v124, v124, v125")
    for w in range(8): e(f"v_sub_f32 v{16+w}, v{16+w}, v124")
    e(f"v_sub_f32 v{vF}, v{vF}, v124")
    for w in range(8): e(f"v_exp_f32 v{16+w}, v{16+w}")
    e(f"v_exp_f32 v{vF}, v{vF}")
    e("v_mul_f32 v126, v24, v16")
    for w in range(1, 8): e(f"v_fmac_f32 v126, v{24+w}, v{16+w}")
    e(f"v_rcp_f32 v16, v126"); e(f"v_mov_b32 v125, v{vTAG}"); e(f"v_mov_b32 v127, v{vTAG}")
    e(f"v_mul_f32 v{vF}, v{vF}, v16")
    e(f"v_lshrrev_b32 v53, 4, v{vL}")
    e(f"v_lshlrev_b32 v60, 4, v{vL}")
    e(f"s_lshl_b32 s{sT2}, s{sG}, 1")
    e(f"s_cmp_lt_u32 s{sW}, 4"); e("s_cbranch_scc1 L_a03")
    e(f"s_cmp_eq_u32 s{sW}, 4"); e("s_cbranch_scc1 L_a4")
    e(f"s_cmp_eq_u32 s{sW}, 7"); e("s_cbranch_scc1 L_a7")
    e(f"s_sub_u32 s{sT0}, s{sW}, 5")
    e(f"s_and_b32 s{sT1}, s{sMEM}, 1"); e(f"s_lshl_b32 s{sT1}, s{sT1}, 3"); e(f"s_add_u32 s{sT1}, s{sT1}, s{sB}")
    e(f"s_add_u32 s{sT2}, s{sT2}, s{sT0}")
    e(f"s_lshl_b32 s44, s{sT2}, 14"); e(f"s_lshl_b32 s45, s{sT1}, 10"); e(f"s_add_u32 s44, s44, s45"); e(f"s_add_u32 s44, s44, {WS_O}"); e(f"s_add_u32 s45, s44, {WS_F}")
    e(f"s_lshl_b32 s{sT2}, s{sT2}, 8"); e(f"s_lshl_b32 s{sT1}, s{sT1}, 4"); e(f"s_add_u32 s{sT2}, s{sT2}, s{sT1}"); e(f"s_add_u32 s{sT2}, s{sT2}, {WS_S}"); e(f"s_add_u32 s{sT3}, s{sT2}, {WS_F}")
    e(f"s_lshl_b32 s{sT1}, s{sT0}, 4"); e(f"s_lshl_b64 exec, 1, s{sT1}")
    e(f"s_cmp_eq_u32 s42, 1"); e(f"s_cselect_b32 s{sT2}, 0x4000000, s{sT2}"); e("s_cselect_b32 s44, 0x4000000, s44")
    if o['lst']:
        e("s_mov_b64 s[64:65], exec")
    else:
        e(f"buffer_store_dwordx4 v[124:127], v62, {sr(sWS)}, s{sT3} offen")
        e(f"buffer_store_dwordx4 v[124:127], v62, {sr(sWS)}, s{sT2} offen sc1")
    e("s_mov_b64 exec, -1")
    e(f"s_lshl_b32 s{sT1}, s{sT0}, 10"); e(f"s_add_u32 s{sT1}, s{sT1}, {L_OR}"); e(f"v_add_u32 v61, s{sT1}, v60")
    e(f"v_mov_b32 v97, v{vTAG}"); e(f"v_mov_b32 v99, v{vTAG}")
    e(f"s_waitcnt vmcnt({0 if o['lst'] else 2})")
    e("s_branch L_v3")
    g.lab("L_a03")
    e(f"s_add_u32 s{sT2}, s{sT2}, s{sH3}")
    e(f"v_and_b32 v54, 15, v{vL}"); e("v_lshlrev_b32 v52, 10, v54"); e("v_lshl_add_u32 v52, v53, 5, v52"); e("v_lshlrev_b32 v54, 2, v54")
    e(f"s_lshl_b32 s{sT3}, s{sT2}, 14"); e(f"s_lshl_b32 s{sT0}, s{sW}, 8"); e(f"s_add_u32 s{sT3}, s{sT3}, s{sT0}"); e(f"s_add_u32 s{sT3}, s{sT3}, {WS_O+WS_F}")
    e(f"s_lshl_b32 s{sT0}, s{sW}, 11"); e(f"v_add_u32 v61, s{sT0}, v60")
    e(f"v_bfe_u32 v55, v{vL}, 2, 2"); e("v_lshl_add_u32 v63, v53, 3, v55"); e("v_lshlrev_b32 v63, 7, v63")
    e(f"v_bfe_u32 v16, v{vL}, 1, 1"); e(f"s_lshl_b32 s{sT0}, s{sW}, 1"); e(f"v_add_u32 v16, s{sT0}, v16")
    if o['wosw']:
        e("v_and_b32 v55, 2, v55"); e("v_xor_b32 v16, v16, v55"); e("v_and_b32 v55, 1, v53"); e("v_lshlrev_b32 v55, 2, v55"); e("v_xor_b32 v16, v16, v55")
    e("v_lshl_add_u32 v63, v16, 4, v63"); e(f"v_and_b32 v16, 1, v{vL}"); e("v_lshl_add_u32 v63, v16, 3, v63"); e(f"v_add_u32 v63, {L_WO}, v63")
    e(f"s_lshl_b32 s{sT0}, s{sNL}, 2"); e(f"s_add_u32 s{sT0}, s{sT0}, s{sW}"); e(f"s_lshl_b32 s{sT0}, s{sT0}, 15"); e(f"s_lshl_b32 s44, s{sT2}, 7")
    e(f"s_add_u32 s44, s44, s{sT0}"); e(f"s_add_u32 s44, s44, {WS_P}")
    e(f"v_and_b32 v55, 7, v{vL}"); e("v_lshlrev_b32 v55, 12, v55"); e("v_lshl_add_u32 v55, v53, 5, v55")
    e(f"v_bfe_u32 v16, v{vL}, 3, 1"); e("v_lshl_add_u32 v55, v16, 4, v55")
    e(f"v_mov_b32 v109, v{vTAG}"); e(f"v_mov_b32 v111, v{vTAG}")
    e(f"s_lshl_b32 s45, s{sG}, 2"); e(f"s_add_u32 s45, s45, {WS_H}"); e(f"v_lshlrev_b32 v17, 8, v{vL}")
    if o['wt']:
        e(f"s_cmp_eq_u32 s{sROLE}, 14"); e("s_cbranch_scc0 L_v3")
    elif o['wol']: wo_setup(WLATE, 18, 19, 20, 21, 8*WE)
    e("s_branch L_nostat")
    g.lab("L_a4")
    e(f"s_add_u32 s{sT2}, s{sT2}, s{sH3}"); e(f"s_lshl_b32 s{sT3}, s{sT2}, 8"); e(f"s_add_u32 s{sT3}, s{sT3}, {WS_S+WS_F}")
    e(f"v_and_b32 v54, 15, v{vL}"); e("v_lshlrev_b32 v55, 4, v54"); e("v_lshlrev_b32 v54, 2, v54")
    e("s_branch L_nostat")
    g.lab("L_a7")
    e(f"s_lshl_b32 s{sT3}, s2, 12"); e(f"s_add_u32 s{sT3}, s{sT3}, {WS_P}")
    e(f"v_and_b32 v54, 7, v{vL}"); e("v_lshlrev_b32 v54, 2, v54"); e(f"v_lshlrev_b32 v55, 2, v{vL}")
    e(f"s_mul_i32 s21, s{sKVH}, 896"); e("s_lshr_b32 s20, s2, 3"); e("s_lshl_b32 s20, s20, 5"); e("s_add_u32 s21, s21, s20")
    e(f"s_and_b32 s20, s2, {o['nrep']-1}"); e("s_lshl_b32 s20, s20, 8"); e(f"s_add_u32 s20, s20, {WS_H}")
    g.lab("L_nostat")
    e("s_waitcnt vmcnt(0)")
    g.lab("L_v3")
    for k in range(4): e(f"v_mul_f32 v{vACC+k}, v{vACC+k}, v{vF}")
    g.ts("V3")
    e(f"ds_write_b128 v{vORA}, {vr(vACC)}")
    pv(3)
    e(f"s_cmp_lt_u32 s{sW}, 5")
    g.nop(7)
    for k in range(4): e(f"v_mul_f32 v{vACC+4+k}, v{vACC+4+k}, v{vF}")
    e(f"ds_write_b128 v{vORB}, {vr(vACC+4)}")
    if o['wol'] and not o['wt']:
        e(f"s_cmp_gt_u32 s{sW}, 3"); e("s_cbranch_scc1 L_nowo")
        if o.get('sk14', 1): e(f"s_cmp_eq_u32 s{sROLE}, 14"); e("s_cbranch_scc1 L_nowo")
        wo_issue(WLATE, 18, 19, 8*WE)
        g.lab("L_nowo")
        e(f"s_cmp_lt_u32 s{sW}, 5")
    e("s_waitcnt lgkmcnt(0)")
    e("s_barrier")
    g.ts("B4")
    if o.get('stopb4'): e("s_branch L_fin")
    e("s_cbranch_scc1 L_cons")
    e(f"s_cmp_eq_u32 s{sW}, 7"); e("s_cbranch_scc1 L_w7")
    g.c("waves 5,6: sum the 8 partial o, publish")
    for w in range(8): e(f"ds_read_b128 {vr(64+4*w)}, v61 offset:{w*2048}")
    if o['lst']:
        e("s_mov_b64 exec, s[64:65]")
        e(f"buffer_store_dwordx4 v[124:127], v62, {sr(sWS)}, s{sT3} offen")
        e(f"buffer_store_dwordx4 v[124:127], v62, {sr(sWS)}, s{sT2} offen sc1")
        e("s_mov_b64 exec, -1")
    for w in range(1, 8, 2):
        e(f"s_waitcnt lgkmcnt({0 if o['ts'] else 7-w})")
        if o['pk']:
            for k in (0, 2): e(f"v_pk_add_f32 {vr(64+4*(w-1)+k,2)}, {vr(64+4*(w-1)+k,2)}, {vr(64+4*w+k,2)}")
            if w > 1:
                for k in (0, 2): e(f"v_pk_add_f32 {vr(64+k,2)}, {vr(64+k,2)}, {vr(64+4*(w-1)+k,2)}")
            continue
        for k in range(4): e(f"v_add_f32 v{64+4*(w-1)+k}, v{64+4*(w-1)+k}, v{64+4*w+k}")
        if w > 1:
            for k in range(4): e(f"v_add_f32 v{64+k}, v{64+k}, v{64+4*(w-1)+k}")
    e("v_cvt_pk_bf16_f32 v96, v64, v65"); e("v_cvt_pk_bf16_f32 v98, v66, v67")
    e(f"buffer_store_dwordx4 v[96:99], v60, {sr(sWS)}, s45 offen {o['opol']}")
    g.ts("opub")
    e(f"buffer_store_dwordx4 v[96:99], v60, {sr(sWS)}, s44 offen sc1")
    e(f"s_cmp_eq_u32 s{sROLE}, 14"); e("s_cbranch_scc1 L_fin")
    if B45: e("s_barrier")
    e("s_barrier")
    e("s_branch L_fin")
    g.lab("L_cons")
    g.c("wave 4: merge weights of the two key halves; waves 0..3: gather o, project, publish partials")
    e(f"s_cmp_eq_u32 s{sROLE}, 14"); e("s_cbranch_scc1 L_fin")
    e(f"s_cmp_lt_u32 s{sW}, 4"); e("s_cbranch_scc1 L_gath")
    if B45: e("s_barrier")
    e("s_mov_b64 exec, 0xffff")
    def sl(): e(f"buffer_load_dwordx4 {vr(160)}, v55, {sr(sWS)}, s{sT3} offen {o.get('ppol2', o['ppol'])}")
    poll("sg", sl, [161, 163], 58, 59, o['sleep1'])
    if o['gate1']: e(f"v_mov_b32 v61, 9"); e(f"ds_write_b32 v62, v61 offset:{L_CNT}")
    e(f"v_mov_b32_dpp v100, v160 row_ror:8 {DPP}")
    e(f"v_mov_b32_dpp v101, v162 row_ror:8 {DPP}")
    e("v_max_f32 v102, v160, v100")
    e("v_sub_f32 v103, v160, v102"); e("v_sub_f32 v100, v100, v102")
    e("v_exp_f32 v103, v103"); e("v_exp_f32 v100, v100"); e("s_nop 0")
    e("v_mul_f32 v103, v103, v162"); e("v_fma_f32 v100, v100, v101, v103")
    e("v_rcp_f32 v100, v100"); e("s_nop 0"); e("v_mul_f32 v103, v103, v100")
    e("s_mov_b64 exec, 0xffff")
    e(f"ds_write_b32 v54, v103 offset:{L_W}")
    e("s_waitcnt lgkmcnt(0)")
    e("s_barrier")
    e("s_branch L_fin")
    g.lab("L_gath")
    def gl():
        for k in range(2):
            e(f"buffer_load_dwordx4 {vr(128+8*k)}, v52, {sr(sWS)}, s{sT3} offen offset:{128*k} {o.get('ppol2', o['ppol'])}")
            e(f"buffer_load_dwordx4 {vr(132+8*k)}, v52, {sr(sWS)}, s{sT3} offen offset:{128*k+16} {o.get('ppol2', o['ppol'])}")
    def wofr():
        for k in range(8):
            e(f"ds_read_b64_tr_b16 {vr(64+4*k,2)}, v63 offset:{k*4096}")
            e(f"ds_read_b64_tr_b16 {vr(66+4*k,2)}, v63 offset:{k*4096+512}")
            if k == 6: e("s_waitcnt lgkmcnt(4)")
    def wofr45():
        e("s_waitcnt vmcnt(4)"); e("s_barrier"); wofr()
    if o.get('pw') is not None: e(f"s_waitcnt vmcnt({o['pw']})")
    if not o['g1p']:
        poll("g1", gl, [129+2*i for i in range(8)], 58, 59, o['sleep1'], first=(wofr45 if B45 else None) if o['wol'] else wofr, gate=o['gate1'])
        for k in range(2):
            e(f"v_mov_b32 v{129+8*k}, v{130+8*k}"); e(f"v_mov_b32 v{130+8*k}, v{132+8*k}"); e(f"v_mov_b32 v{131+8*k}, v{134+8*k}")
            e(f"ds_write_b128 v61, {vr(128+8*k)} offset:{L_B3+1024*k}")
    else:
        def gl2(b):
            for k in range(2):
                e(f"buffer_load_dwordx4 {vr(b+8*k)}, v52, {sr(sWS)}, s{sT3} offen offset:{128*k} sc1")
                e(f"buffer_load_dwordx4 {vr(b+4+8*k)}, v52, {sr(sWS)}, s{sT3} offen offset:{128*k+16} sc1")
        e(f"s_mov_b32 s{sSPIN}, {o['spin']}"); e("s_mov_b64 s[66:67], 0")
        gl2(128); wofr(); e(f"s_sleep {o['g1p']}"); gl2(144)
        g.lab("L_g1")
        e("s_waitcnt vmcnt(4)")
        tagcheck([129+2*i for i in range(8)], 58, 59)
        e("s_cbranch_scc0 L_g1_ok")
        e("s_mov_b64 exec, vcc")
        gl2(128)
        e("s_waitcnt vmcnt(4)")
        tagcheck([145+2*i for i in range(8)], 58, 59)
        e("s_andn2_b64 s[64:65], exec, vcc"); e("s_or_b64 s[66:67], s[66:67], s[64:65]")
        e("s_cmp_eq_u64 vcc, 0"); e("s_cbranch_scc1 L_g1_ok")
        e("s_mov_b64 exec, vcc")
        e(f"s_cmp_eq_u32 s{sSPIN}, {o['spin']-o['fthr']}"); e(f"s_cselect_b32 s{sT0}, {WS_F}, 0"); e(f"s_sub_u32 s{sT3}, s{sT3}, s{sT0}")
        gl2(144)
        e(f"s_sub_u32 s{sSPIN}, s{sSPIN}, 1"); e("s_cbranch_scc0 L_g1")
        g.lab("L_g1_ok")
        e("s_mov_b64 exec, -1")
        for k in range(2):
            for t in range(4): e(f"v_cndmask_b32 v{192+4*k+t}, v{128+8*k+2*t}, v{144+8*k+2*t}, s[66:67]")
            e(f"ds_write_b128 v61, {vr(192+4*k)} offset:{L_B3+1024*k}")
    e(f"s_or_b32 s{sT0}, s{sW}, s{sMEM}"); e("s_cbranch_scc1 L_nohint")
    if o['nrep'] < 64: e(f"s_mov_b64 exec, {hex((1<<o['nrep'])-1)}")
    e(f"buffer_store_dword v{vTAG}, v17, {sr(sWS)}, s45 offen sc1")
    e("s_mov_b64 exec, -1")
    g.lab("L_nohint")
    g.ts("G1")
    e("s_waitcnt lgkmcnt(0)")
    e("s_barrier")
    g.ts("B5")
    if o['wol'] and not B45:
        e(f"ds_read_b32 v103, v54 offset:{L_W}")
        def rd(k):
            e(f"ds_read_b64_tr_b16 {vr(64+4*k,2)}, v63 offset:{k*4096}")
            e(f"ds_read_b64_tr_b16 {vr(66+4*k,2)}, v63 offset:{k*4096+512}")
            e(f"ds_read_b128 {vr(160+4*k)}, v60 offset:{L_B3+k*1024}")
        for k in range(4): rd(k)
        for k in range(8):
            e(f"s_waitcnt lgkmcnt({0 if 'B5' in o.get('tson',()) else 3*min(3, 7-k)})")
            e(f"v_mfma_f32_16x16x32_bf16 {vr(96)}, {vr(64+4*k)}, {vr(160+4*k)}, {'0' if k==0 else vr(96)}")
            if k+4 < 8: rd(k+4)
    else:
        for k in range(8): e(f"ds_read_b128 {vr(160+4*k)}, v60 offset:{L_B3+k*1024}")
        e(f"ds_read_b32 v103, v54 offset:{L_W}")
        for k in range(8):
            e(f"s_waitcnt lgkmcnt({0 if 'B5' in o.get('tson',()) else 8-k})")
            e(f"v_mfma_f32_16x16x32_bf16 {vr(96)}, {vr(64+4*k)}, {vr(160+4*k)}, {'0' if k==0 else vr(96)}")
    e("s_waitcnt lgkmcnt(0)")
    g.nop(7)
    for k in range(4): e(f"v_mul_f32 v{96+k}, v{96+k}, v103")
    for k in range(4): e(f"v_add_f32_dpp v{104+k}, v{96+k}, v{96+k} row_ror:8 {DPP}")
    e(f"v_cndmask_b32 v108, v104, v106, s[{sM8}:{sM8+1}]"); e(f"v_cndmask_b32 v110, v105, v107, s[{sM8}:{sM8+1}]")
    if o.get('nop'): e("s_mov_b32 s44, 0x4000000")
    e(f"buffer_store_dwordx4 v[108:111], v55, {sr(sWS)}, s44 offen {o.get('pst','sc1')}")
    g.ts("ppub")
    e("s_branch L_fin")
    g.lab("L_w7")
    g.c("wave 7: final sum, gate, store")
    for i in range(4): e(f"s_mov_b64 s[{sMASK+2*i}:{sMASK+2*i+1}], -1")
    e(f"s_mov_b32 s{sSPIN}, {o['spin']}")
    e(f"s_cmp_eq_u32 s{sROLE}, 14"); e("s_cbranch_scc1 L_nob5")
    if B45: e("s_barrier")
    e("s_barrier")
    g.lab("L_nob5")
    e("s_cmp_ge_u32 s2, 224"); e("s_cbranch_scc1 L_fin")
    e("s_mov_b64 exec, 0xffff")
    NP = max(1, o['hp'])
    for k in range(NP):
        e(f"buffer_load_dword v{64+k}, v55, {sr(sWS)}, s20 offen sc1")
        if NP > 1: e(f"s_sleep {o['hgap']}")
    g.lab("L_hp")
    for k in range(NP):
        e(f"s_waitcnt vmcnt({NP-1})")
        e(f"v_cmp_ne_u32 vcc, v{64+k}, v{vTAG}")
        e("s_cbranch_vccz L_hp_ok")
        if o['sleep2']: e(f"s_sleep {o['sleep2']}")
        e(f"buffer_load_dword v{64+k}, v55, {sr(sWS)}, s20 offen sc1")
    e(f"s_sub_u32 s{sSPIN}, s{sSPIN}, 1"); e("s_cbranch_scc0 L_hp")
    g.lab("L_hp_ok")
    g.ts("H")
    g.lab("L_g2")
    for i in range(4):
        e(f"s_mov_b64 exec, s[{sMASK+2*i}:{sMASK+2*i+1}]")
        e(f"buffer_load_dwordx4 {vr(128+4*i)}, v60, {sr(sWS)}, s{sT3} offen offset:{i*1024} sc1")
    e("s_mov_b64 exec, -1")
    e("s_waitcnt vmcnt(0)")
    for i in range(4):
        e(f"v_cmp_ne_u32 vcc, v{129+4*i}, v{vTAG}"); e(f"v_cmp_ne_u32 s[{sMASK+2*i}:{sMASK+2*i+1}], v{131+4*i}, v{vTAG}")
        e(f"s_or_b64 s[{sMASK+2*i}:{sMASK+2*i+1}], s[{sMASK+2*i}:{sMASK+2*i+1}], vcc")
    e(f"s_or_b64 s[{sT0}:{sT1}], s[{sMASK}:{sMASK+1}], s[{sMASK+2}:{sMASK+3}]"); e(f"s_or_b64 vcc, s[{sMASK+4}:{sMASK+5}], s[{sMASK+6}:{sMASK+7}]")
    e(f"s_or_b64 vcc, vcc, s[{sT0}:{sT1}]")
    e("s_cbranch_scc0 L_g2_ok")
    e(f"s_sub_u32 s{sSPIN}, s{sSPIN}, 1"); e("s_cbranch_scc0 L_g2")
    g.lab("L_g2_ok")
    g.ts("G2")
    R = [128, 130, 136, 138]
    for r in R: e(f"v_add_f32 v{r}, v{r}, v{r+4}")
    for r in R: e(f"v_add_f32_dpp v{r}, v{r}, v{r} row_ror:8 {DPP}")
    for sw in ("16", "32"):
        for r in R: e(f"v_mov_b32 v{r+1}, v{r}")
        for r in R: e(f"v_permlane{sw}_swap_b32 v{r}, v{r+1}")
        for r in R: e(f"v_add_f32 v{r}, v{r}, v{r+1}")
    e("v_cvt_pk_bf16_f32 v129, v128, v130"); e("v_cvt_pk_bf16_f32 v137, v136, v138")
    for base in (128, 136): e(f"v_lshlrev_b32 v{base}, 16, v{base+1}"); e(f"v_and_b32 v{base+2}, 0xffff0000, v{base+1}")
    for base, gs in ((128, 22), (136, 23)): e(f"v_mul_f32 v{base}, s{gs}, v{base}"); e(f"v_mul_f32 v{base+2}, s{gs}, v{base+2}")
    e("v_cvt_pk_bf16_f32 v129, v128, v130"); e("v_cvt_pk_bf16_f32 v137, v136, v138")
    for base in (128, 136): e(f"v_lshlrev_b32 v{base}, 16, v{base+1}"); e(f"v_and_b32 v{base+2}, 0xffff0000, v{base+1}")
    e("v_add_f32 v128, v128, v136"); e("v_add_f32 v130, v130, v138")
    e("v_cvt_pk_bf16_f32 v128, v128, v130")
    e("s_mov_b64 exec, 0xff")
    e(f"buffer_store_dword v128, v54, {sr(sOUT)}, s21 offen {o.get('outpol','')}")
    e("s_cmp_lg_u32 s2, 0"); e("s_cbranch_scc1 L_fin")
    e("s_mov_b64 exec, 1")
    e(f"buffer_store_dword v{vTAG}, v54, {sr(sWS)}, 0 offen sc1")
    g.lab("L_fin")
    if o['ts']:
        if o['ts'] == 2: e(f"s_cmp_lg_u32 s{sW}, 7"); e("s_cbranch_scc1 L_end")
        e("s_mov_b64 exec, -1")
        g.ts("end")
        e("s_waitcnt lgkmcnt(0)")
        for k in range(16): e(f"v_mov_b32 v{128+k}, s{TSREG[k]}" if k < g.nts else f"v_mov_b32 v{128+k}, 0")
        e(f"s_lshl_b32 s{sT0}, s2, 3"); e(f"s_add_u32 s{sT0}, s{sT0}, s{sW}"); e(f"s_lshl_b32 s{sT0}, s{sT0}, 6"); e(f"s_add_u32 s{sT0}, s{sT0}, {WS_TS}")
        e("v_mov_b32 v60, 0"); e("s_mov_b64 exec, 1")
        for k in range(1 if o['ts'] == 2 else 4): e(f"buffer_store_dwordx4 {vr(128+4*k)}, v60, {sr(sWS)}, s{sT0} offen offset:{16*k}")
        print("TS:", ",".join(g.tsn))
    g.lab("L_end")
    e("s_endpgm")
    g.lab("L_codeend")
    g.L += ['.section .rodata,"a"', ".p2align 6", f".amdhsa_kernel {KN}",
            "  .amdhsa_next_free_vgpr 256", "  .amdhsa_next_free_sgpr 102", "  .amdhsa_accum_offset 256",
            "  .amdhsa_group_segment_fixed_size 0", "  .amdhsa_kernarg_size 112", "  .amdhsa_user_sgpr_count 2",
            "  .amdhsa_user_sgpr_kernarg_segment_ptr 1", "  .amdhsa_system_sgpr_workgroup_id_x 1",
            "  .amdhsa_float_denorm_mode_32 3", ".end_amdhsa_kernel"]
    return "\n".join(g.L) + "\n"

if __name__ == "__main__":
    from lint import lint
    from build import build
    out = sys.argv[1]; opts = eval("dict(" + (sys.argv[2] if len(sys.argv) > 2 else "") + ")")
    s = gen(**opts)
    open(out, "w").write(s)
    for p in lint(s): print("LINT:", p)
    build(out)
```

```python
import sys, math, struct
sys.path.insert(0, "gen"); sys.path.insert(0, "tools")
KN = "gated_mix__sliding_block_cached__sliding_block_cached__decode_kernel"
HEADER = open("gated_mix__sliding_block_cached__sliding_block_cached__decode.s.ref").read().split("; Override launch")[0]

WS_Q = 0x10000
WS_S = 0x60000
WS_H = 0x70000
WS_O = 0x80000
WS_F = 0x100000
WS_P = 0x200000
WS_TS = 0x400000
WS_SIZE = 0x800000
L_QL = 0
L_SM = 1024
L_SL = 1088
L_W = 1152
L_F = 1216
L_CNT = 1220
L_RQ = 1228
L_CN2 = 1224
L_B3 = 2048
L_WQ = 10240
L_X = 38912
L_WO = 46080
L_OR = 78848
LDS_BYTES = 95232
TSREG = [84,86,88,90,92,94,96,98,100,8,10,12,14,16,18,20]

DOC = '''; ---------------------------------------------------------------------------------------------
; Workgroup id -> kv head = id&7, member = (id>>3)&15 (batch = member>>1, key half = member&1),
; branch = id>>7. The 16 members of a (branch, kv head) group exchange data through d_ws.
;     then gathers the 512 q columns of its own batch into LDS. All waves stream K meanwhile.
;     merged with their softmax weights, f32 partials published.
; Hand-offs: 8-byte {data, tag} granules, tag = f(word 0 of d_ws at entry); word 0 moves on at the
; ---------------------------------------------------------------------------------------------'''

def f2u(x): return struct.unpack("<I", struct.pack("<f", x))[0]
def vr(a, n=4): return f"v[{a}:{a+n-1}]"
def sr(a, n=4): return f"s[{a}:{a+n-1}]"
DPP = "row_mask:0xf bank_mask:0xf"

class G:
    def __init__(s, **o):
        s.L = []
        s.o = dict(round_s=1, ts=0, pol='nt', spin=1<<16, codepf=1, sleep1=0, sleep2=0, b0at=14, pre=2, fthr=256,
                   xm=0x100, xa=1, xb=0, kv=0, qsl=2, ssl=1, hp=0, hgap=2, skip=(6,7), wosw=1, bx=1, pret=0, g1p=0, wol=1, imm=0, nrep=8, xc=1, qp=0, pw=1, wt=1, tlb=0, cpf2=0, q0k=32, pk=1, gate1=0, vpf=3, spf=0, sdel=0, e1=1, b45=1, lst=1, spol='', ppol='sc1 nt', qpol='', opol='')
        s.o.update(o); s.nts = 0; s.tsn = []
    def e(s, t): s.L.append("  " + t)
    def c(s, t): s.L.append("  ; " + t)
    def lab(s, t): s.L.append(t + ":")
    def nop(s, n):
        while n > 0:
            k = min(n, 16); s.e(f"s_nop {k-1}"); n -= k
    def ts(s, name):
        if s.o.get('holdat') == name:
            s.e("s_memrealtime s[84:85]"); s.e("s_mov_b32 s88, 1")
        if not s.o['ts'] or name not in s.o['tson']: return
        k = s.nts; s.nts += 1
        r = TSREG[k]; s.tsn.append(name)
        s.e(f"s_memrealtime s[{r}:{r+1}]   ; ts {name}")

def gen(**opts):
    g = G(**opts); e = g.e; o = g.o; POL = o['pol']
    sK, sV, sWQ, sWO, sX, sGW, sWS, sOUT = 24, 28, 32, 36, 40, 44, 48, 52
    sW = 56; sR = 57; sT0, sT1, sT2, sT3 = 58, 59, 60, 61
    sKVH, sBR, sMEM, sB, sG = 3, 4, 5, 6, 7
    sMASK = 64; sM8 = 80; sSEL0, sSEL1 = 82, 83; sSPIN = 62; sC = 63
    sROLE = 32
    sH3 = 33; sNL = 34
    vL = 1; vKO = 2; vVO = 3; vTAG = 4; vA = 5; vB = 6; vC = 7
    vQB = 8; vS = 16; vPV = 64; vK = 128
    vT = 40; vM0 = 52; vL0 = 53; vAL = 54; vORA = 56; vORB = 57; vSA = 58; vF = 59
    vACC = 112; vP8 = 120
    BS = 131072
    assert not (o['kv'] and o['wt']), "wt needs kv=0"
    B45 = o['b45'] and o['wol']

    def tagcheck(tags, a, b_):
        if len(tags) == 2:
            e(f"v_cmp_ne_u32 vcc, v{tags[0]}, v{vTAG}"); e(f"v_cmp_ne_u32 s[{sT0}:{sT1}], v{tags[1]}, v{vTAG}")
        else:
            e(f"v_min3_u32 v{a}, v{tags[0]}, v{tags[1]}, v{tags[2]}"); e(f"v_max3_u32 v{b_}, v{tags[0]}, v{tags[1]}, v{tags[2]}")
            i = 3
            while i+1 < len(tags):
                e(f"v_min3_u32 v{a}, v{a}, v{tags[i]}, v{tags[i+1]}"); e(f"v_max3_u32 v{b_}, v{b_}, v{tags[i]}, v{tags[i+1]}"); i += 2
            if i < len(tags):
                e(f"v_min_u32 v{a}, v{a}, v{tags[i]}"); e(f"v_max_u32 v{b_}, v{b_}, v{tags[i]}")
            e(f"v_cmp_ne_u32 vcc, v{a}, v{vTAG}"); e(f"v_cmp_ne_u32 s[{sT0}:{sT1}], v{b_}, v{vTAG}")
        e(f"s_or_b64 vcc, vcc, s[{sT0}:{sT1}]")
    def poll(name, loads, tags, a, b_, sleep=0, first=None, gate=False):
        e(f"s_mov_b32 s{sSPIN}, {o['spin']}")
        if first:
            loads(); first(); e(f"s_branch L_{name}_w")
        g.lab(f"L_{name}")
        loads()
        g.lab(f"L_{name}_w")
        e("s_waitcnt vmcnt(0)")
        tagcheck(tags, a, b_)
        e(f"s_cbranch_scc0 L_{name}_ok")
        e("s_mov_b64 exec, vcc")
        if gate:
            g.lab(f"L_{name}_g")
            e(f"ds_read_b32 v{a}, v62 offset:{L_CNT}"); e("s_waitcnt lgkmcnt(0)"); e(f"v_readfirstlane_b32 s{sT0}, v{a}")
            e(f"s_cmp_eq_u32 s{sT0}, 8"); e(f"s_cbranch_scc1 L_{name}_g")
        if sleep: e(f"s_sleep {sleep}")
        e(f"s_cmp_le_u32 s{sSPIN}, {o['spin']-o['fthr']}"); e(f"s_cselect_b32 s{sT0}, {WS_F}, 0"); e(f"s_xor_b32 s{sT3}, s{sT3}, s{sT0}")
        e(f"s_sub_u32 s{sSPIN}, s{sSPIN}, 1"); e(f"s_cbranch_scc0 L_{name}")
        g.lab(f"L_{name}_ok")
        e("s_mov_b64 exec, -1")
    def srd(d, p, n):
        e(f"s_mov_b32 s{d}, s{p}"); e(f"s_mov_b32 s{d+1}, s{p+1}"); e(f"s_mov_b32 s{d+2}, {n}"); e(f"s_mov_b32 s{d+3}, 0x20000")
    def kreg(n): return vK + 4*(n % 16) if o['kv'] else vK + 4*n
    def vreg(unit): return vK + 64 + 32*(unit % 2) if o['kv'] else vK + 32*unit
    def kload(n):
        u, hf = n//2, n % 2
        if o['imm']:
            e(f"buffer_load_dwordx4 {vr(kreg(n))}, v{vKO}, {sr(sK)}, s{sR if u < 8 else 43} offen offset:{(u&7)*512+hf*256} {POL}")
            return
        e(f"s_xor_b32 s47, s{sR}, {(u&7)*512+hf*256+(u>>3)*BS}")
        e(f"buffer_load_dwordx4 {vr(kreg(n))}, v{vKO}, {sr(sK)}, s47 offen {o.get('kvpol', POL)}")
    def vload(unit, j):
        blk, hf = unit//2, unit % 2
        if o['imm']:
            e(f"buffer_load_dwordx4 {vr(vreg(unit)+4*j)}, v{vVO}, {sr(sV)}, s{sR if blk == 0 else 43} offen offset:{j*512+hf*256} {POL}")
            return
        e(f"s_xor_b32 s47, s{sR}, {j*512+hf*256+blk*BS}")
        e(f"buffer_load_dwordx4 {vr(vreg(unit)+4*j)}, v{vVO}, {sr(sV)}, s47 offen {o.get('kvpol', POL)}")

    g.L.append(HEADER.rstrip("\n"))
    g.L.append(f"; @launch grid=(256,1,1) block=(512,1,1) lds={LDS_BYTES}")
    g.L.append('.amdgcn_target "amdgcn-amd-amdhsa--gfx950"')
    g.L.append(DOC)
    g.L.append(".text"); g.L.append(f".globl {KN}"); g.L.append(".p2align 8"); g.L.append(f".type {KN},@function"); g.lab(KN)
    e("s_cmp_ge_u32 s2, 256"); e("s_cbranch_scc1 L_end")
    if o.get('holdat'): e("s_mov_b32 s88, 0")
    g.ts("start")
    e(f"s_lshr_b32 s{sBR}, s2, 7")
    e(f"s_mul_i32 s{sT0}, s{sBR}, 40")
    e(f"s_add_u32 s{sT2}, s0, s{sT0}"); e(f"s_addc_u32 s{sT3}, s1, 0")
    e(f"s_load_dwordx8 s[8:15], s[{sT2}:{sT3}], 8")
    e("s_load_dwordx2 s[16:17], s[0:1], 0")
    e("s_load_dwordx2 s[18:19], s[0:1], 104")
    e("s_load_dwordx4 s[20:23], s[0:1], 80")
    e(f"v_lshrrev_b32 v{vA}, 6, v0")
    e(f"v_and_b32 v{vL}, 63, v0")
    e(f"v_readfirstlane_b32 s{sW}, v{vA}")
    e(f"s_getpc_b64 s[{sM8}:{sM8+1}]")
    g.lab("L_pc")
    if o['codepf']:
        g.c("pull the kernel's code into L2: one dword per 128 B line (waves 1,2)")
        e(f"v_lshlrev_b32 v35, 7, v0"); e("v_subrev_u32 v35, 8192, v35")
        e(f"s_mov_b32 s{sT0}, L_codeend-L_pc-4")
        e(f"v_cmp_gt_u32 vcc, s{sT0}, v35")
        e(f"s_and_saveexec_b64 s[{sT2}:{sT3}], vcc")
        e("s_cbranch_execz L_nopf")
        e(f"global_load_dword v36, v35, s[{sM8}:{sM8+1}] {o['spol']}")
        g.lab("L_nopf")
        e("s_mov_b64 exec, -1")
    e(f"s_and_b32 s{sKVH}, s2, 7")
    e(f"s_bfe_u32 s{sMEM}, s2, 0x40003")
    e(f"s_lshr_b32 s{sB}, s{sMEM}, 1")
    e(f"s_lshl_b32 s{sG}, s{sBR}, 3"); e(f"s_add_u32 s{sG}, s{sG}, s{sKVH}")
    if o['xa'] == 1 and o['xb'] == 0:
        e(f"s_lshl_b32 s{sT0}, s{sW}, 8")
    else:
        e(f"s_mul_i32 s{sT0}, s{sW}, {o['xa']}"); e(f"s_lshr_b32 s{sT1}, s2, 3"); e(f"s_mul_i32 s{sT1}, s{sT1}, {o['xb']}"); e(f"s_add_u32 s{sT0}, s{sT0}, s{sT1}")
        e(f"s_lshl_b32 s{sT0}, s{sT0}, 8")
    e(f"s_and_b32 s{sR}, s{sT0}, {o['xm'] & 0xf00}")
    e(f"s_lshl_b32 s{sT0}, s{sB}, 24"); e(f"s_lshl_b32 s{sT1}, s{sKVH}, 21"); e(f"s_add_u32 s{sT0}, s{sT0}, s{sT1}")
    e(f"s_and_b32 s{sT1}, s{sMEM}, 1"); e(f"s_lshl_b32 s{sT1}, s{sT1}, 18"); e(f"s_add_u32 s{sT0}, s{sT0}, s{sT1}")
    if o['bx'] == 1:
        e(f"s_and_b32 s{sT2}, s{sMEM}, 8"); e(f"s_lshl_b32 s{sT2}, s{sT2}, 14"); e(f"s_or_b32 s{sR}, s{sR}, s{sT2}")
        e(f"s_xor_b32 s{sT1}, s{sW}, s{sMEM}"); e(f"s_and_b32 s{sT1}, s{sT1}, 7"); e(f"s_lshl_b32 s{sT1}, s{sT1}, 14")
    elif o['bx'] == 2:
        e(f"s_and_b32 s{sT2}, s{sMEM}, 1"); e(f"s_mul_i32 s{sT1}, s{sT2}, 7"); e(f"s_lshl_b32 s{sT2}, s{sT2}, 17"); e(f"s_or_b32 s{sR}, s{sR}, s{sT2}")
        e(f"s_xor_b32 s{sT1}, s{sW}, s{sT1}"); e(f"s_lshl_b32 s{sT1}, s{sT1}, 14")
    else:
        e(f"s_lshl_b32 s{sT1}, s{sW}, 14")
    e(f"s_add_u32 s{sT0}, s{sT0}, s{sT1}")
    e(f"s_add_u32 s{sT0}, s{sT0}, {3072*512}")
    e(f"v_bfe_u32 v{vA}, v{vL}, 2, 2"); e(f"v_lshlrev_b32 v{vA}, 12, v{vA}")
    e(f"v_lshrrev_b32 v{vB}, 4, v{vL}")
    e(f"v_lshl_add_u32 v{vKO}, v{vB}, 6, v{vA}")
    e(f"v_and_b32 v{vA}, 3, v{vL}"); e(f"v_lshl_add_u32 v{vKO}, v{vA}, 4, v{vKO}")
    e(f"v_add_u32 v{vKO}, s{sT0}, v{vKO}")
    e(f"v_and_b32 v{vC}, 15, v{vL}"); e(f"v_lshlrev_b32 v{vC}, 4, v{vC}")
    e(f"v_lshl_add_u32 v{vVO}, v{vB}, 12, v{vC}")
    e(f"v_add_u32 v{vVO}, s{sT0}, v{vVO}")
    e(f"v_lshlrev_b32 v33, 4, v{vL}")
    e(f"v_mov_b32 v34, 0")
    if o['qp']: e("v_mov_b32 v43, 0")
    e(f"ds_write_b64 v34, v[34:35] offset:{L_F}") if False else None
    e(f"ds_write_b32 v34, v34 offset:{L_F}"); e(f"ds_write_b32 v34, v34 offset:{L_CNT}")
    if o['wt']: e(f"ds_write_b32 v34, v34 offset:{L_CN2}")
    if o['qp']: e(f"ds_write_b32 v34, v34 offset:{L_RQ}")
    e(f"s_mov_b32 s{sK+2}, 0x8000000"); e(f"s_mov_b32 s{sK+3}, 0x20000")
    e(f"s_mov_b32 s{sWS+2}, {WS_SIZE}"); e(f"s_mov_b32 s{sWS+3}, 0x20000")
    e(f"s_mov_b32 s{sX+2}, 7168"); e(f"s_mov_b32 s{sX+3}, 0x20000")
    e(f"s_cmp_eq_u32 s{sW}, 0")
    e("s_waitcnt lgkmcnt(0)")
    e(f"s_mov_b32 s{sK}, s8"); e(f"s_mov_b32 s{sK+1}, s9")
    e(f"s_mov_b32 s{sWS}, s18"); e(f"s_mov_b32 s{sWS+1}, s19")
    e(f"s_mov_b32 s{sX}, s16"); e(f"s_mov_b32 s{sX+1}, s17")
    if o['spf']:
        e(f"s_lshl_b32 s{sT0}, s{sMEM}, 3"); e(f"s_add_u32 s{sT0}, s{sT0}, s{sW}"); e(f"s_min_u32 s{sT0}, s{sT0}, 111"); e(f"s_lshl_b32 s{sT0}, s{sT0}, 15")
        e(f"s_lshl_b32 s{sT1}, s{sKVH}, 10"); e(f"s_add_u32 s{sT0}, s{sT0}, s{sT1}"); e(f"s_add_u32 s{sT0}, s{sT0}, 384")
        e(f"s_add_u32 s{sT2}, s12, s{sT0}"); e(f"s_addc_u32 s{sT3}, s13, 0")
        for r in range(4):
            e(f"s_load_dword s{64+2*r}, s[{sT2}:{sT3}], {r*8192}")
            if o['spf'] == 2: e(f"s_load_dword s{65+2*r}, s[{sT2}:{sT3}], {r*8192+64}")
        e(f"s_cmp_eq_u32 s{sW}, 0")
    e("s_branch L_notw0" if o.get('now0') else "s_cbranch_scc0 L_notw0")
    g.c("wave 0: wq slice and x into LDS, q slice, publish, gather")
    srd(sWQ, 12, 3670016)
    e(f"v_lshrrev_b32 v32, 2, v{vL}"); e(f"v_lshlrev_b32 v32, 13, v32"); e(f"v_lshl_add_u32 v32, v{vA}, 4, v32")
    e(f"s_lshl_b32 s{sT0}, s{sKVH}, 10"); e(f"s_lshl_b32 s{sT1}, s{sMEM}, 6"); e(f"s_add_u32 s{sT0}, s{sT0}, s{sT1}")
    e(f"v_add_u32 v32, s{sT0}, v32")
    SD = o['sdel']
    if SD:
        e(f"s_sub_u32 s{sT0}, s{sMEM}, 6"); e(f"s_cmp_lt_u32 s{sT0}, 2"); e("s_cselect_b32 s83, 1, 0"); e("s_cbranch_scc0 L_w0n")
        e("s_barrier")
        for n in range(SD): kload(n)
        e("s_waitcnt vmcnt(0)")
        g.lab("L_w0n")
    nd = 0
    for ii in range(o.get('dn', 28)):
        if nd == o['b0at']: e("s_barrier")
        nd += 1
        e(f"s_mov_b32 m0, {L_WQ+ii*1024}")
        e(f"s_mov_b32 s{sT2}, {ii*131072}")
        e(f"buffer_load_dwordx4 v32, {sr(sWQ)}, s{sT2} offen {POL} lds")
    for ii in range(0 if o.get('nox') else 7):
        if nd == o['b0at']: e("s_barrier")
        nd += 1
        e(f"s_mov_b32 m0, {L_X+ii*1024}")
        e(f"s_mov_b32 s{sT2}, {ii*1024}")
        e(f"buffer_load_dwordx4 v33, {sr(sX)}, s{sT2} offen {o['spol']} lds")
    e(f"buffer_load_dword v{vTAG}, v34, {sr(sWS)}, 0 offen {'sc1' if o['e1'] else o['spol']}")
    if SD:
        e("s_cmp_eq_u32 s83, 1"); e("s_cbranch_scc1 L_w0nb"); e("s_barrier"); g.lab("L_w0nb")
    elif o['b0at'] >= nd: e("s_barrier")
    e(f"v_bfe_u32 v41, v{vL}, 2, 2")
    e(f"v_lshl_add_u32 v41, v{vB}, 3, v41"); e(f"v_lshlrev_b32 v41, 6, v41")
    e(f"v_lshl_add_u32 v41, v{vA}, 3, v41")
    e(f"v_and_b32 v43, 7, v{vL}"); e(f"v_mul_u32_u24 v42, 896, v43"); e(f"v_lshl_add_u32 v42, v{vB}, 4, v42")
    e(f"v_add_u32 v42, {L_X}, v42")
    e(f"s_lshl_b32 s{sT0}, s{sG}, 14"); e(f"s_lshl_b32 s{sT1}, s{sMEM}, 7"); e(f"s_add_u32 s{sT0}, s{sT0}, s{sT1}")
    e(f"s_add_u32 s{sT0}, s{sT0}, {WS_Q}"); e(f"s_add_u32 s{sT1}, s{sT0}, {WS_F}")
    e(f"v_lshlrev_b32 v43, 11, v43"); e(f"v_lshl_add_u32 v43, v{vB}, 4, v43")
    e(f"s_lshl_b32 s{sT3}, s{sG}, 3"); e(f"s_add_u32 s{sT3}, s{sT3}, s{sB}"); e(f"s_lshl_b32 s{sT3}, s{sT3}, 11"); e(f"s_add_u32 s{sT3}, s{sT3}, {WS_Q+WS_F}")
    e("s_waitcnt vmcnt(0)")
    g.ts("wq")
    e(f"v_and_b32 v{vTAG}, -8, v{vTAG}"); e(f"v_add_u32 v{vTAG}, 8, v{vTAG}")
    e("s_getreg_b32 s44, hwreg(HW_REG_XCC_ID, 0, 3)")
    steps = list(range(14)); first = True
    for ci in range(0, 14, 3):
        ch = steps[ci:ci+3]
        for k, s_ in enumerate(ch):
            a = 64 + 12*k
            for t in range(2):
                e(f"ds_read_b64_tr_b16 {vr(a+4*t,2)}, v41 offset:{L_WQ+s_*2048+t*32}")
                e(f"ds_read_b64_tr_b16 {vr(a+4*t+2,2)}, v41 offset:{L_WQ+s_*2048+256+t*32}")
            e(f"ds_read_b128 {vr(a+8)}, v42 offset:{s_*64}")
        e("s_waitcnt lgkmcnt(0)")
        for k, s_ in enumerate(ch):
            a = 64 + 12*k
            for t in range(2):
                e(f"v_mfma_f32_16x16x32_bf16 {vr(44+4*t)}, {vr(a+4*t)}, {vr(a+8)}, {'0' if first else vr(44+4*t)}")
            first = False
    e(f"v_or_b32 v53, s44, v{vTAG}"); e("v_mov_b32 v55, v53"); e(f"v_and_b32 v40, 8, v{vL}"); e("v_lshl_add_u32 v43, v40, 3, v43")
    e("s_mov_b32 vcc_lo, 0xff00ff00"); e("s_mov_b32 vcc_hi, 0xff00ff00"); e(f"s_mov_b32 s45, s{sT0}"); e("s_nop 0")
    for k in range(4): e(f"v_cndmask_b32 v{44+k}, v{44+k}, v{48+k}, vcc")
    e(f"v_cvt_pk_bf16_f32 v52, v44, v45"); e(f"v_cvt_pk_bf16_f32 v54, v46, v47")
    if o.get('noqst', 0) < 2: e(f"buffer_store_dwordx4 v[52:55], v43, {sr(sWS)}, s{sT1} offen {o['qpol']}")
    if not o['xc']: e(f"buffer_store_dwordx4 v[52:55], v43, {sr(sWS)}, s45 offen sc1")
    g.ts("qpub")
    for n in range(o['q0k']): kload(n)
    def qgather(own):
        e("s_mov_b32 s46, 1")
        if not o.get('noqw'):
            e(f"s_mov_b32 s{sSPIN}, {o['spin']}")
            g.lab("L_qg")
            e(f"buffer_load_dwordx4 v[64:67], v33, {sr(sWS)}, s{sT3} offen {o['ppol']}")
            e(f"buffer_load_dwordx4 v[68:71], v33, {sr(sWS)}, s{sT3} offen offset:1024 {o['ppol']}")
            e("s_waitcnt vmcnt(0)")
            for r in (65, 67, 69, 71): e(f"v_xor_b32 v{r+11}, v{r}, v{vTAG}")
            e("v_max3_u32 v60, v76, v78, v80"); e("v_max_u32 v60, v60, v82")
            e("v_cmp_lt_u32 vcc, 7, v60")
            e("s_cbranch_vccz L_qg_ok")
            e("s_mov_b64 exec, vcc")
            e(f"s_cmp_le_u32 s{sSPIN}, {o['spin']-o['fthr']}"); e(f"s_cselect_b32 s{sT0}, {WS_F}, 0"); e(f"s_xor_b32 s{sT3}, s{sT3}, s{sT0}")
            e(f"s_cmp_lg_u32 s{sSPIN}, {o['spin']-o['fthr']}"); e("s_cbranch_scc1 L_qg_n")
            g.c("slices missing for a long time: write own slice through; from now on rounds alternate between the two copies")
            e("s_mov_b64 exec, -1")
            if own: e(f"buffer_store_dwordx4 v[52:55], v43, {sr(sWS)}, s45 offen sc1")
            else: e("v_mov_b32 v61, 1"); e(f"ds_write_b32 v34, v61 offset:{L_RQ}")
            e("s_mov_b64 exec, vcc")
            g.lab("L_qg_n")
            e(f"s_sub_u32 s{sSPIN}, s{sSPIN}, 1"); e("s_cbranch_scc0 L_qg")
            g.lab("L_qg_ok")
            e("s_mov_b64 exec, -1")
            e("v_min3_u32 v60, v65, v67, v69"); e("v_max3_u32 v61, v65, v67, v69"); e("v_min_u32 v60, v60, v71"); e("v_max_u32 v61, v61, v71")
            e("v_cmp_ne_u32 vcc, v60, v53"); e(f"v_cmp_ne_u32 s[{sT0}:{sT1}], v61, v53"); e(f"s_or_b64 vcc, vcc, s[{sT0}:{sT1}]")
            e("s_cbranch_scc0 L_qg_loc")
            g.c("some member runs on another die: its reads need the written-through copies")
            if own: e(f"buffer_store_dwordx4 v[52:55], v43, {sr(sWS)}, s45 offen sc1")
            e("s_mov_b32 s46, 2")
            g.lab("L_qg_loc")
        if not o['xc']: e("s_mov_b32 s46, 2")
        e(f"v_lshlrev_b32 v60, 3, v{vL}")
        e(f"ds_write2_b32 v60, v64, v66 offset0:{L_QL//4} offset1:{L_QL//4+1}")
        e(f"ds_write2_b32 v60, v68, v70 offset0:{L_QL//4+128} offset1:{L_QL//4+129}")
        e(f"v_or_b32 v61, s46, v{vTAG}" if o['e1'] else "v_mov_b32 v61, s46"); e(f"ds_write_b32 v34, v61 offset:{L_F}")
        g.ts("qgot")
    if not o['qp']: qgather(True)
    if o['q0k']:
        srd(sV, 10, 0x8000000); e("s_branch L_kq0")
    if SD:
        srd(sV, 10, 0x8000000)
        e("s_cmp_eq_u32 s83, 1"); e("s_cbranch_scc1 L_ksd")
    if not o['q0k']:
        for n in range(o['pre']): kload(n)
        e("s_branch L_kissue")
    g.lab("L_notw0")
    if o['tlb']:
        g.c("wave 2: touch the pages used later (V window, second half of the K window, wo rows, hand-off areas)")
        e(f"s_cmp_lg_u32 s{sW}, 2"); e("s_cbranch_scc1 L_notlb")
        srd(sV, 10, 0x8000000); srd(sWO, 14, 3670016)
        e(f"v_readfirstlane_b32 s{sT0}, v{vVO}"); e(f"v_lshlrev_b32 v37, {o['tlb']}, v{vL}"); e(f"s_and_b32 s{sT0}, s{sT0}, 0xfffc0000")
        e(f"s_mul_i32 s{sT1}, s{sKVH}, {512*896}")
        e(f"s_mov_b64 exec, {hex((1 << (262144 >> o['tlb'])) - 1)}")
        e(f"buffer_load_dword v38, v37, {sr(sV)}, s{sT0} offen {POL}")
        e(f"buffer_load_dword v39, v37, {sr(sK)}, s{sT0} offen {POL}")
        e(f"s_mov_b64 exec, {hex((1 << min(63, (524288 >> o['tlb']))) - 1)}")
        e(f"buffer_load_dword v40, v37, {sr(sWO)}, s{sT1} offen {POL}")
        e("s_mov_b64 exec, -1")
        g.lab("L_notlb")
    if o['vpf'] == 3:
        g.c("waves 1..4: touch 7 rows x 1 KB each of the group's wq block (rows 28*member ..), so that the strided slice loads meet them in L2")
        e(f"s_sub_u32 s{sT2}, s{sW}, 1"); e(f"s_cmp_gt_u32 s{sT2}, 3"); e("s_cbranch_scc1 L_novpf")
        srd(sWQ, 12, 3670016)
        e(f"s_mul_i32 s{sT0}, s{sMEM}, {28*8192}"); e(f"s_mul_i32 s{sT2}, s{sT2}, {7*8192}"); e(f"s_add_u32 s{sT0}, s{sT0}, s{sT2}")
        e(f"s_lshl_b32 s{sT1}, s{sKVH}, 10"); e(f"s_add_u32 s{sT0}, s{sT0}, s{sT1}")
        e(f"v_lshrrev_b32 v37, 3, v{vL}"); e("v_lshlrev_b32 v37, 13, v37"); e(f"v_and_b32 v38, 7, v{vL}"); e("v_lshl_add_u32 v37, v38, 7, v37")
        e("s_mov_b32 exec_hi, 0xffffff")
        e(f"buffer_load_dword v38, v37, {sr(sWQ)}, s{sT0} offen {POL}")
        e("s_mov_b64 exec, -1")
        g.lab("L_novpf")
    elif o['vpf']:
        g.c("wave 1: touch this member's 28 rows of column block 3 (the block whose owners would otherwise queue 448 requests on one path)")
        e(f"s_cmp_lg_u32 s{sW}, 1"); e("s_cbranch_scc1 L_novpf")
        srd(sWQ, 12, 3670016)
        e(f"s_mul_i32 s{sT0}, s{sMEM}, {28*8192}"); e(f"s_lshl_b32 s{sT1}, s{sKVH}, 10"); e(f"s_add_u32 s{sT0}, s{sT0}, s{sT1}"); e(f"s_add_u32 s{sT0}, s{sT0}, 384")
        if o['vpf'] == 2:
            e(f"v_lshrrev_b32 v37, 1, v{vL}"); e("v_lshlrev_b32 v37, 13, v37"); e(f"v_and_b32 v38, 1, v{vL}"); e("v_lshl_add_u32 v37, v38, 6, v37")
            e("s_mov_b32 exec_hi, 0xffffff")
        else:
            e(f"v_lshlrev_b32 v37, 13, v{vL}"); e("s_mov_b64 exec, 0xfffffff")
        e(f"buffer_load_dword v38, v37, {sr(sWQ)}, s{sT0} offen {POL}")
        e("s_mov_b64 exec, -1")
        g.lab("L_novpf")
    if not o['e1']: e(f"buffer_load_dword v{vTAG}, v34, {sr(sWS)}, 0 offen {o['spol']}")
    if o['qp']:
        e(f"s_cmp_lg_u32 s{sW}, {o['qp']}"); e("s_cbranch_scc1 L_noep")
        e(f"buffer_load_dword v{vTAG}, v34, {sr(sWS)}, 0 offen sc1")
        g.lab("L_noep")
    for n in range(o['pre']): kload(n)
    e("s_barrier")
    e(f"s_cmp_lg_u32 s{sW}, 7"); e("s_cbranch_scc1 L_kissue")
    srd(sGW, 20, 896)
    e(f"s_mul_i32 s{sT0}, s{sKVH}, 896")
    e(f"buffer_load_dwordx4 v[16:19], v33, {sr(sX)}, s{sT0} offen {o['spol']}")
    e(f"buffer_load_dwordx4 v[20:23], v33, {sr(sGW)}, 0 offen {o['spol']}")
    g.lab("L_kissue")
    if o['imm']:
        assert o['xm'] == 0
        e(f"s_xor_b32 s43, s{sR}, {BS}")
    srd(sV, 10, 0x8000000)
    if o['kv']:
        for n in range(o['pre'], 16): kload(n)
        for u in range(2):
            for j in range(8): vload(u, j)
    else:
        for n in range(o['pre'], 32):
            if o['sdel'] and n == o['sdel']: g.lab("L_ksd")
            if o['q0k'] and n == o['q0k']: g.lab("L_kq0")
            kload(n)
        if o['q0k'] == 32: g.lab("L_kq0")
    g.ts("kiss")
    srd(sWO, 14, 3670016); srd(sOUT, 22, 7168)
    g.c("output-projection role of this member (14 = none), constants")
    s0, s1 = o['skip']
    e(f"s_mov_b32 s{sROLE}, s{sMEM}")
    e(f"s_cmp_gt_u32 s{sMEM}, {s1}"); e(f"s_cselect_b32 s{sT0}, 2, 0"); e(f"s_sub_u32 s{sROLE}, s{sROLE}, s{sT0}")
    e(f"s_sub_u32 s{sT0}, s{sMEM}, {s0}"); e(f"s_cmp_lt_u32 s{sT0}, 2"); e(f"s_cselect_b32 s{sROLE}, 14, s{sROLE}")
    e(f"s_cmp_ge_u32 s{sROLE}, 7"); e(f"s_cselect_b32 s{sH3}, 1, 0"); e(f"s_mul_i32 s{sT0}, s{sH3}, 7"); e(f"s_sub_u32 s{sNL}, s{sROLE}, s{sT0}")
    def wo_setup(nper, va, vb, vc, vd, p0=0):
        e(f"s_lshl_b32 s{sT0}, s{sKVH}, 9"); e(f"s_lshl_b32 s{sT1}, s{sH3}, 8"); e(f"s_add_u32 s{sT0}, s{sT0}, s{sT1}"); e(f"s_mul_i32 s{sT1}, s{sW}, {8*nper}"); e(f"s_add_u32 s{sT0}, s{sT0}, s{sT1}")
        if p0: e(f"s_add_u32 s{sT0}, s{sT0}, {8*p0}")
        e(f"s_mul_i32 s{sT0}, s{sT0}, 896"); e(f"s_lshl_b32 s{sT1}, s{sNL}, 7"); e(f"s_add_u32 s35, s{sT0}, s{sT1}")
        e(f"s_cmp_eq_u32 s{sROLE}, 14"); e(f"s_cselect_b32 s35, 0x4000000, s35")
        if o.get('nowo'): e(f"s_mov_b32 s35, 0x4000000")
        e(f"v_lshrrev_b32 v{va}, 3, v{vL}"); e(f"v_mul_u32_u24 v{vb}, 896, v{va}"); e(f"v_and_b32 v{vc}, 7, v{vL}")
        e(f"v_and_b32 v{va}, 2, v{va}"); e(f"v_xor_b32 v{vc}, v{vc}, v{va}"); e(f"v_xor_b32 v{vd}, 4, v{vc}")
        e(f"v_lshl_add_u32 v{va}, v{vc}, 4, v{vb}"); e(f"v_lshl_add_u32 v{vb}, v{vd}, 4, v{vb}")
    def wo_issue(nper, va, vb, p0=0):
        e(f"s_mul_i32 s46, s{sW}, {1024*nper}")
        for ii in range(nper):
            e(f"s_add_u32 m0, s46, {L_WO+(p0+ii)*1024}")
            e(f"s_add_u32 s47, s35, {ii*8*896}")
            e(f"buffer_load_dwordx4 v{vb if ii%2 else va}, {sr(sWO)}, s47 offen {POL} lds")
    WE = {0: 4, 1: 0, 2: 2}[o['wol']]
    WLATE = (32 - 8*WE)//4
    NWO = WE
    if o.get('nodma'): NWO = 0
    elif WE:
        wo_setup(WE, 60, 61, 62, 63); wo_issue(WE, 60, 61)
    for v in range(8):
        pat = (0x11 << (v & 3)) << (8*(v >> 2)); pat |= pat << 16
        e(f"s_mov_b32 s{sMASK+2*v}, 0x{pat:08x}"); e(f"s_mov_b32 s{sMASK+2*v+1}, 0x{pat:08x}")
    e(f"s_mov_b32 s{sSEL0}, 0x05040100"); e(f"s_mov_b32 s{sSEL1}, 0x07060302")
    e(f"s_mov_b32 s{sC}, 0x{f2u(math.log2(math.e)/16):08x}")
    e(f"s_mov_b32 s{sM8}, 0xff00ff00"); e(f"s_mov_b32 s{sM8+1}, 0xff00ff00")
    if o['qp']:
        e(f"s_cmp_lg_u32 s{sW}, {o['qp']}"); e("s_cbranch_scc1 L_notqp")
        e(f"s_lshl_b32 s{sT3}, s{sG}, 3"); e(f"s_add_u32 s{sT3}, s{sT3}, s{sB}"); e(f"s_lshl_b32 s{sT3}, s{sT3}, 11"); e(f"s_add_u32 s{sT3}, s{sT3}, {WS_Q+WS_F}")
        e("s_getreg_b32 s44, hwreg(HW_REG_XCC_ID, 0, 3)")
        e(f"s_waitcnt vmcnt({32 + NWO})")
        e(f"v_and_b32 v{vTAG}, -8, v{vTAG}"); e(f"v_add_u32 v{vTAG}, 8, v{vTAG}"); e(f"v_or_b32 v53, s44, v{vTAG}")
        qgather(False)
        e("s_branch L_b2")
        g.lab("L_notqp")
    if o['e1']:
        e(f"s_cmp_lg_u32 s{sW}, 7"); e("s_cbranch_scc1 L_b2")
        e(f"s_waitcnt vmcnt({32 - o['pre'] + NWO})")
    else:
        e(f"s_cmp_eq_u32 s{sW}, 0"); e("s_cbranch_scc1 L_b2")
        e(f"s_waitcnt vmcnt({32 - o['pre'] + NWO})")
        e(f"v_and_b32 v{vTAG}, -8, v{vTAG}"); e(f"v_add_u32 v{vTAG}, 8, v{vTAG}")
        e(f"s_cmp_lg_u32 s{sW}, 7"); e("s_cbranch_scc1 L_b2")
    g.c("wave 7: gate g -> s22, 1-g -> s23 (bf16-rounded like the reference)")
    e(f"v_cmp_gt_u32 vcc, 56, v{vL}"); e("v_mov_b32 v24, 0"); e("s_nop 0")
    for k in range(4): e(f"v_cndmask_b32 v{16+k}, 0, v{16+k}, vcc")
    for k in range(4):
        e(f"v_lshlrev_b32 v25, 16, v{16+k}"); e(f"v_and_b32 v26, 0xffff0000, v{16+k}")
        e(f"v_lshlrev_b32 v27, 16, v{20+k}"); e(f"v_and_b32 v28, 0xffff0000, v{20+k}")
        e("v_mul_f32 v25, v25, v27"); e("v_mul_f32 v26, v26, v28")
        e("v_cvt_pk_bf16_f32 v25, v25, v26")
        e("v_lshlrev_b32 v26, 16, v25"); e("v_and_b32 v25, 0xffff0000, v25")
        e("v_add_f32 v24, v24, v26"); e("v_add_f32 v24, v24, v25")
    for dpp in ("quad_perm:[1,0,3,2]", "quad_perm:[2,3,0,1]", "row_ror:4", "row_ror:8"):
        e("s_nop 1"); e(f"v_add_f32_dpp v24, v24, v24 {dpp} {DPP}")
    for sw in ("16", "32"):
        e("v_mov_b32 v25, v24"); e("s_nop 1"); e(f"v_permlane{sw}_swap_b32 v24, v25"); e("v_add_f32 v24, v24, v25")
    e("v_cvt_pk_bf16_f32 v24, v24, v24"); e("v_and_b32 v24, 0xffff0000, v24")
    e(f"v_mul_f32 v24, 0x{f2u(-math.log2(math.e)):08x}, v24"); e("v_exp_f32 v24, v24"); e("s_nop 0")
    e("v_add_f32 v24, 1.0, v24"); e("v_rcp_f32 v24, v24"); e("s_nop 0")
    e("v_cvt_pk_bf16_f32 v24, v24, v24"); e("v_and_b32 v24, 0xffff0000, v24")
    e("v_sub_f32 v25, 1.0, v24"); e("v_cvt_pk_bf16_f32 v25, v25, v25"); e("v_and_b32 v25, 0xffff0000, v25")
    e("v_readfirstlane_b32 s22, v24"); e("v_readfirstlane_b32 s23, v25")
    g.lab("L_b2")
    e(f"v_bfe_u32 v{vC}, v{vL}, 2, 1"); e(f"v_lshlrev_b32 v{vA}, 9, v{vC}")
    e(f"v_lshl_add_u32 v{vA}, v{vB}, 6, v{vA}")
    e(f"v_and_b32 v60, 3, v{vL}"); e(f"v_lshl_add_u32 v{vA}, v60, 4, v{vA}")
    e(f"s_and_b32 s{sT0}, s{sR}, 0x100"); e(f"v_add_u32 v{vA}, s{sT0}, v{vA}"); e(f"v_xor_b32 v60, 0x100, v{vA}")
    e("v_mov_b32 v62, 0"); e("s_mov_b32 s42, 1")
    if not o.get('noqw'):
        e(f"s_mov_b32 s{sSPIN}, 0x400000")
        if o['qp']:
            e(f"s_cmp_lg_u32 s{sW}, 0"); e("s_cbranch_scc1 L_qwait")
            g.lab("L_q0w")
            e(f"ds_read_b32 v61, v62 offset:{L_F}"); e(f"ds_read_b32 v63, v62 offset:{L_RQ}"); e("s_waitcnt lgkmcnt(0)")
            e("v_readfirstlane_b32 s42, v61"); e(f"v_readfirstlane_b32 s{sT0}, v63")
            e(f"s_and_b32 s{sT1}, s42, 2"); e(f"s_or_b32 s{sT0}, s{sT0}, s{sT1}"); e("s_cbranch_scc1 L_q0s")
            e("s_cmp_lg_u32 s42, 0"); e("s_cbranch_scc1 L_qready")
            e(f"s_sleep {o['qsl']}"); e(f"s_sub_u32 s{sSPIN}, s{sSPIN}, 1"); e("s_cbranch_scc0 L_q0w")
            g.lab("L_q0s")
            e(f"buffer_store_dwordx4 v[52:55], v43, {sr(sWS)}, s45 offen sc1")
            e("s_waitcnt vmcnt(0)")
        g.lab("L_qwait")
        e(f"ds_read_b32 v61, v62 offset:{L_F}"); e("s_waitcnt lgkmcnt(0)"); e(f"v_readfirstlane_b32 s42, v61"); e(f"s_cmp_lg_u32 s42, 0"); e("s_cbranch_scc1 L_qready")
        e(f"s_sleep {o['qsl']}"); e(f"s_sub_u32 s{sSPIN}, s{sSPIN}, 1"); e("s_cbranch_scc0 L_qwait")
        g.lab("L_qready")
        if o['e1']: e(f"v_and_b32 v{vTAG}, -8, v61"); e("s_and_b32 s42, s42, 7")
    g.ts("B2")
    g.c("q fragments; QK^T, softmax, P.V")
    e(f"ds_read_b128 {vr(vQB)}, v{vA} offset:{L_QL}")
    e(f"ds_read_b128 {vr(vQB+4)}, v60 offset:{L_QL}")
    e("s_waitcnt lgkmcnt(0)")
    def xred(r, t, op):
        for sw in ("16", "32"):
            e(f"v_mov_b32 v{t}, v{r}"); e("s_nop 1"); e(f"v_permlane{sw}_swap_b32 v{r}, v{t}"); e(f"{op} v{r}, v{r}, v{t}")
    def soft(blk):
        if o.get('nocomp'): return
        S = vS + 8*blk
        if o['round_s']:
            for u in range(0, 8, 2): e(f"v_cvt_pk_bf16_f32 v{vP8+u//2}, v{S+u}, v{S+u+1}")
            for u in range(0, 8, 2):
                e(f"v_lshlrev_b32 v{S+u}, 16, v{vP8+u//2}"); e(f"v_and_b32 v{S+u+1}, 0xffff0000, v{vP8+u//2}")
        e(f"v_max3_f32 v{vA}, v{S}, v{S+1}, v{S+2}"); e(f"v_max3_f32 v{vB}, v{S+3}, v{S+4}, v{S+5}")
        e(f"v_max3_f32 v{vA}, v{vA}, v{S+6}, v{S+7}"); e(f"v_max_f32 v{vA}, v{vA}, v{vB}")
        xred(vA, vB, "v_max_f32")
        if blk == 0:
            e(f"v_mul_f32 v{vM0}, s{sC}, v{vA}")
        else:
            e(f"v_mul_f32 v{vA}, s{sC}, v{vA}"); e(f"v_max_f32 v{vA}, v{vA}, v{vM0}")
            e(f"v_sub_f32 v{vAL}, v{vM0}, v{vA}"); e(f"v_mov_b32 v{vM0}, v{vA}"); e(f"v_exp_f32 v{vAL}, v{vAL}")
        for u in range(8): e(f"v_fma_f32 v{S+u}, v{S+u}, s{sC}, -v{vM0}")
        for u in range(8): e(f"v_exp_f32 v{S+u}, v{S+u}")
        e("s_nop 0")
        for t in range(4): e(f"v_cvt_pk_bf16_f32 v{vP8+t}, v{S+2*t}, v{S+2*t+1}")
        for t in range(4): e(f"v_add_f32 v{S+t}, v{S+t}, v{S+t+4}")
        e(f"v_add_f32 v{S}, v{S}, v{S+2}"); e(f"v_add_f32 v{S+1}, v{S+1}, v{S+3}")
        if blk == 0:
            e(f"v_add_f32 v{vL0}, v{S}, v{S+1}")
        else:
            e(f"v_add_f32 v{S}, v{S}, v{S+1}"); e(f"v_fmac_f32 v{S}, v{vL0}, v{vAL}")
            xred(S, S+1, "v_add_f32")
            e(f"ds_write_b32 v{vSA}, v{vM0} offset:{L_SM}"); e(f"ds_write_b32 v{vSA}, v{S} offset:{L_SL}")
            e(f"v_mov_b32 v{S+1}, 1"); e(f"v_mov_b32 v{S+2}, 0"); e("s_mov_b64 exec, 1")
            e(f"ds_add_u32 v{S+2}, v{S+1} offset:{L_CNT}"); e("s_mov_b64 exec, -1")
            e(f"v_readlane_b32 s{sT0}, v{vAL}, 0"); e(f"v_readlane_b32 s{sT1}, v{vAL}, 4")
        for v in range(8):
            for t in range(4):
                e(f"v_cndmask_b32 v{vPV+4*v+t}, 0, v{vP8+t}, s[{sMASK+2*v}:{sMASK+2*v+1}]")
    def pv(unit):
        if o.get('nocomp'): return
        blk, hf = unit//2, unit % 2
        base = vreg(unit); acc = vACC + 4*hf
        def perms(d):
            for t in range(4):
                e(f"v_perm_b32 v{vT+4*(d%3)+t}, v{base+4*(2*t+1)+d//2}, v{base+4*(2*t)+d//2}, s{sSEL1 if d&1 else sSEL0}")
        perms(0)
        for d in range(8):
            if d < 7: perms(d+1)
            else: g.nop(2)
            cin = "0" if (blk == 0 and d == 0) else vr(acc)
            e(f"v_mfma_f32_16x16x32_bf16 {vr(acc)}, {vr(vPV+4*d)}, {vr(vT+4*(d%3))}, {cin}")
    def qkm(bt, dbase, wait):
        e(f"s_waitcnt vmcnt({wait})")
        g.ts(f"K{bt}")
        if o.get('nocomp'): return
        for u in range(4*bt, 4*bt+4):
            d = dbase + 4*(u % 4)
            e(f"v_mfma_f32_16x16x32_bf16 {vr(d)}, {vr(kreg(2*u))}, {vr(vQB)}, 0")
            e(f"v_mfma_f32_16x16x32_bf16 {vr(d)}, {vr(kreg(2*u+1))}, {vr(vQB+4)}, {vr(d)}")
    def postb(bt, dbase):
        if o.get('nocomp'): return
        for step in range(4):
            for u in range(4*bt, 4*bt+4):
                d = dbase + 4*(u % 4); s_ = vS + u
                if step == 0: e(f"v_mov_b32_dpp v{s_}, v{d} quad_perm:[0,0,0,0] {DPP}")
                else: e(f"v_add_f32_dpp v{s_}, v{d+step}, v{s_} quad_perm:[{step},{step},{step},{step}] {DPP}")
    def vunit(u):
        for j in range(8): vload(u, j)
    def addrs():
        e(f"v_lshlrev_b32 v{vC}, 5, v{vC}")
        e(f"s_lshl_b32 s{sT0}, s{sW}, 2"); e(f"v_add_u32 v{vSA}, s{sT0}, v{vC}")
        e(f"v_bfe_u32 v{vC}, v{vL}, 4, 1"); e(f"v_lshlrev_b32 v{vORA}, 10, v{vC}"); e(f"v_lshlrev_b32 v{vC}, 5, v{vC}")
        e(f"v_and_b32 v{vORB}, 15, v{vL}"); e(f"v_lshl_add_u32 v{vORA}, v{vORB}, 5, v{vORA}")
        e(f"v_lshrrev_b32 v{vORB}, 5, v{vL}"); e(f"v_lshl_add_u32 v{vORA}, v{vORB}, 4, v{vORA}")
        e(f"s_and_b32 s{sT1}, s{sR}, 0x100"); e(f"s_lshl_b32 s{sT1}, s{sT1}, 1"); e(f"v_add_u32 v{vORA}, s{sT1}, v{vORA}"); e(f"v_xor_b32 v{vORB}, 0x200, v{vORA}")
        e(f"s_lshl_b32 s{sT0}, s{sW}, 11"); e(f"s_add_u32 s{sT0}, s{sT0}, {L_OR}"); e(f"v_add_u32 v{vORA}, s{sT0}, v{vORA}"); e(f"v_add_u32 v{vORB}, s{sT0}, v{vORB}")
        if o['pret']:
            e(f"s_sub_u32 s{sT0}, s{sW}, 1"); e(f"s_cmp_gt_u32 s{sT0}, 1"); e("s_cbranch_scc1 L_nopre")
            e(f"s_and_b32 s{sT1}, s{sMEM}, 1"); e(f"s_lshl_b32 s{sT1}, s{sT1}, 3"); e(f"s_add_u32 s{sT1}, s{sT1}, s{sB}")
            e(f"s_lshl_b32 s{sT2}, s{sG}, 1"); e(f"s_add_u32 s{sT2}, s{sT2}, s{sT0}")
            e(f"s_lshl_b32 s{sT2}, s{sT2}, 14"); e(f"s_lshl_b32 s{sT1}, s{sT1}, 10"); e(f"s_add_u32 s{sT2}, s{sT2}, s{sT1}"); e(f"s_add_u32 s{sT2}, s{sT2}, {WS_O+WS_F}")
            e(f"v_add_u32 v60, 1, v{vTAG}"); e("v_mov_b32 v61, v60"); e("v_mov_b32 v62, v60"); e("v_mov_b32 v63, v60"); e(f"v_lshlrev_b32 v55, 4, v{vL}")
            e(f"buffer_store_dwordx4 v[60:63], v55, {sr(sWS)}, s{sT2} offen")
            g.lab("L_nopre")
            e("s_nop 1")
    W = NWO
    if o['kv'] == 0:
        qkm(0, 32, 24+W); vunit(0); qkm(1, 48, 24+W); vunit(1)
        postb(0, 32); postb(1, 48); addrs(); soft(0)
        qkm(2, 32, 24+W); vunit(2)
        if o['wt'] == 2:
            e("v_mov_b32 v60, 1"); e("v_mov_b32 v61, 0"); e("s_mov_b64 exec, 1"); e(f"ds_add_u32 v61, v60 offset:{L_CN2}"); e("s_mov_b64 exec, -1")
        postb(2, 32)
        e("s_waitcnt vmcnt(16)"); g.ts("V0"); pv(0)
        qkm(3, 96, 24+W); vunit(3)
        if o['wt'] == 1:
            e("v_mov_b32 v60, 1"); e("v_mov_b32 v61, 0"); e("s_mov_b64 exec, 1"); e(f"ds_add_u32 v61, v60 offset:{L_CN2}"); e("s_mov_b64 exec, -1")
        g.ts("QK")
        e("s_waitcnt vmcnt(16)"); g.ts("V1"); pv(1)
        postb(3, 96); soft(1)
    else:
        K2 = (o['kv'] == 2)
        qkm(0, 32, 24+W)
        if not K2:
            for n in range(16, 24): kload(n)
        qkm(1, 48, (16 if K2 else 24)+W)
        if not K2:
            for n in range(24, 32): kload(n)
        else: g.nop(4)
        postb(0, 32); postb(1, 48); addrs(); soft(0)
        if K2:
            e(f"s_waitcnt vmcnt({8+W})"); pv(0)
            e(f"s_waitcnt vmcnt({W})"); pv(1)
            for n in range(16, 32): kload(n)
            vunit(2); vunit(3)
        else:
            e(f"s_waitcnt vmcnt({24+W})"); pv(0); vunit(2)
            e(f"s_waitcnt vmcnt({24+W})"); pv(1); vunit(3)
        g.ts("QK")
        qkm(2, 32, 24); qkm(3, 96, 16)
        postb(2, 32); postb(3, 96); soft(1)
    e(f"v_mov_b32 v{vAL}, s{sT0}"); e(f"v_mov_b32 v{vA}, s{sT1}"); e(f"s_mov_b32 vcc_lo, 0xffff0000"); e(f"s_mov_b32 vcc_hi, 0xffff0000")
    e(f"v_cndmask_b32 v{vAL}, v{vAL}, v{vA}, vcc")
    for k in range(8): e(f"v_mul_f32 v{vACC+k}, v{vACC+k}, v{vAL}")
    g.ts("P")
    e(f"s_waitcnt vmcnt(8)"); g.ts("V2"); pv(2)
    if o['cpf2']:
        e(f"s_cmp_lg_u32 s{sW}, 3"); e("s_cbranch_scc1 L_nopf2")
        e(f"s_getpc_b64 s[{sT2}:{sT3}]")
        g.lab("L_pc2")
        e(f"v_lshlrev_b32 v60, 7, v{vL}"); e(f"s_mov_b32 s{sT0}, L_codeend-L_pc2-4"); e(f"v_min_u32 v60, s{sT0}, v60")
        e(f"global_load_dword v61, v60, s[{sT2}:{sT3}]")
        e("s_waitcnt vmcnt(0)")
        g.lab("L_nopf2")
    if o['wt']:
        e(f"s_cmp_gt_u32 s{sW}, 3"); e("s_cbranch_scc1 L_nowt")
        e(f"s_cmp_eq_u32 s{sROLE}, 14"); e("s_cbranch_scc1 L_nowt")
        wo_setup(WLATE, 60, 61, 62, 63, 8*WE)
        e("v_mov_b32 v62, 0")
        e("s_waitcnt vmcnt(0)")
        e(f"s_mov_b32 s{sSPIN}, 0x400000")
        g.lab("L_wtw")
        e(f"ds_read_b32 v63, v62 offset:{L_CN2}"); e("s_waitcnt lgkmcnt(0)"); e(f"v_readfirstlane_b32 s{sT0}, v63"); e(f"s_cmp_ge_u32 s{sT0}, {o.get('wtn', 8)}"); e("s_cbranch_scc1 L_wtg")
        e(f"s_sleep {o['ssl']}"); e(f"s_sub_u32 s{sSPIN}, s{sSPIN}, 1"); e("s_cbranch_scc0 L_wtw")
        g.lab("L_wtg")
        wo_issue(WLATE, 60, 61, 8*WE)
        g.lab("L_nowt")
    g.c("workgroup-level softmax factor from the 8 waves (max, sum)")
    e(f"s_lshl_b32 s{sT0}, s{sW}, 2"); e(f"v_add_u32 v{vB}, s{sT0}, v{vC}"); e("v_mov_b32 v62, 0")
    if o.get('nocomp') or o.get('nosw'): e("s_branch L_sready")
    e(f"s_mov_b32 s{sSPIN}, 0x400000")
    g.lab("L_swait")
    e(f"ds_read_b32 v61, v62 offset:{L_CNT}"); e("s_waitcnt lgkmcnt(0)"); e(f"v_readfirstlane_b32 s{sT0}, v61"); e(f"s_cmp_eq_u32 s{sT0}, 8"); e("s_cbranch_scc1 L_sready")
    e(f"s_sleep {o['ssl']}"); e(f"s_sub_u32 s{sSPIN}, s{sSPIN}, 1"); e("s_cbranch_scc0 L_swait")
    g.lab("L_sready")
    e(f"ds_read_b128 {vr(16)}, v{vC} offset:{L_SM}"); e(f"ds_read_b128 {vr(20)}, v{vC} offset:{L_SM+16}")
    e(f"ds_read_b32 v{vF}, v{vB} offset:{L_SM}")
    e(f"ds_read_b128 {vr(24)}, v{vC} offset:{L_SL}"); e(f"ds_read_b128 {vr(28)}, v{vC} offset:{L_SL+16}")
    e("s_waitcnt lgkmcnt(0)")
    e("v_max3_f32 v124, v16, v17, v18"); e("v_max3_f32 v125, v19, v20, v21"); e("v_max3_f32 v124, v124, v22, v23"); e("v_max_f32 v124, v124, v125")
    for w in range(8): e(f"v_sub_f32 v{16+w}, v{16+w}, v124")
    e(f"v_sub_f32 v{vF}, v{vF}, v124")
    for w in range(8): e(f"v_exp_f32 v{16+w}, v{16+w}")
    e(f"v_exp_f32 v{vF}, v{vF}")
    e("v_mul_f32 v126, v24, v16")
    for w in range(1, 8): e(f"v_fmac_f32 v126, v{24+w}, v{16+w}")
    e(f"v_rcp_f32 v16, v126"); e(f"v_mov_b32 v125, v{vTAG}"); e(f"v_mov_b32 v127, v{vTAG}")
    e(f"v_mul_f32 v{vF}, v{vF}, v16")
    e(f"v_lshrrev_b32 v53, 4, v{vL}")
    e(f"v_lshlrev_b32 v60, 4, v{vL}")
    e(f"s_lshl_b32 s{sT2}, s{sG}, 1")
    e(f"s_cmp_lt_u32 s{sW}, 4"); e("s_cbranch_scc1 L_a03")
    e(f"s_cmp_eq_u32 s{sW}, 4"); e("s_cbranch_scc1 L_a4")
    e(f"s_cmp_eq_u32 s{sW}, 7"); e("s_cbranch_scc1 L_a7")
    e(f"s_sub_u32 s{sT0}, s{sW}, 5")
    e(f"s_and_b32 s{sT1}, s{sMEM}, 1"); e(f"s_lshl_b32 s{sT1}, s{sT1}, 3"); e(f"s_add_u32 s{sT1}, s{sT1}, s{sB}")
    e(f"s_add_u32 s{sT2}, s{sT2}, s{sT0}")
    e(f"s_lshl_b32 s44, s{sT2}, 14"); e(f"s_lshl_b32 s45, s{sT1}, 10"); e(f"s_add_u32 s44, s44, s45"); e(f"s_add_u32 s44, s44, {WS_O}"); e(f"s_add_u32 s45, s44, {WS_F}")
    e(f"s_lshl_b32 s{sT2}, s{sT2}, 8"); e(f"s_lshl_b32 s{sT1}, s{sT1}, 4"); e(f"s_add_u32 s{sT2}, s{sT2}, s{sT1}"); e(f"s_add_u32 s{sT2}, s{sT2}, {WS_S}"); e(f"s_add_u32 s{sT3}, s{sT2}, {WS_F}")
    e(f"s_lshl_b32 s{sT1}, s{sT0}, 4"); e(f"s_lshl_b64 exec, 1, s{sT1}")
    e(f"s_cmp_eq_u32 s42, 1"); e(f"s_cselect_b32 s{sT2}, 0x4000000, s{sT2}"); e("s_cselect_b32 s44, 0x4000000, s44")
    if o['lst']:
        e("s_mov_b64 s[64:65], exec")
    else:
        e(f"buffer_store_dwordx4 v[124:127], v62, {sr(sWS)}, s{sT3} offen")
        e(f"buffer_store_dwordx4 v[124:127], v62, {sr(sWS)}, s{sT2} offen sc1")
    e("s_mov_b64 exec, -1")
    e(f"s_lshl_b32 s{sT1}, s{sT0}, 10"); e(f"s_add_u32 s{sT1}, s{sT1}, {L_OR}"); e(f"v_add_u32 v61, s{sT1}, v60")
    e(f"v_mov_b32 v97, v{vTAG}"); e(f"v_mov_b32 v99, v{vTAG}")
    e(f"s_waitcnt vmcnt({0 if o['lst'] else 2})")
    e("s_branch L_v3")
    g.lab("L_a03")
    e(f"s_add_u32 s{sT2}, s{sT2}, s{sH3}")
    e(f"v_and_b32 v54, 15, v{vL}"); e("v_lshlrev_b32 v52, 10, v54"); e("v_lshl_add_u32 v52, v53, 5, v52"); e("v_lshlrev_b32 v54, 2, v54")
    e(f"s_lshl_b32 s{sT3}, s{sT2}, 14"); e(f"s_lshl_b32 s{sT0}, s{sW}, 8"); e(f"s_add_u32 s{sT3}, s{sT3}, s{sT0}"); e(f"s_add_u32 s{sT3}, s{sT3}, {WS_O+WS_F}")
    e(f"s_lshl_b32 s{sT0}, s{sW}, 11"); e(f"v_add_u32 v61, s{sT0}, v60")
    e(f"v_bfe_u32 v55, v{vL}, 2, 2"); e("v_lshl_add_u32 v63, v53, 3, v55"); e("v_lshlrev_b32 v63, 7, v63")
    e(f"v_bfe_u32 v16, v{vL}, 1, 1"); e(f"s_lshl_b32 s{sT0}, s{sW}, 1"); e(f"v_add_u32 v16, s{sT0}, v16")
    if o['wosw']:
        e("v_and_b32 v55, 2, v55"); e("v_xor_b32 v16, v16, v55"); e("v_and_b32 v55, 1, v53"); e("v_lshlrev_b32 v55, 2, v55"); e("v_xor_b32 v16, v16, v55")
    e("v_lshl_add_u32 v63, v16, 4, v63"); e(f"v_and_b32 v16, 1, v{vL}"); e("v_lshl_add_u32 v63, v16, 3, v63"); e(f"v_add_u32 v63, {L_WO}, v63")
    e(f"s_lshl_b32 s{sT0}, s{sNL}, 2"); e(f"s_add_u32 s{sT0}, s{sT0}, s{sW}"); e(f"s_lshl_b32 s{sT0}, s{sT0}, 15"); e(f"s_lshl_b32 s44, s{sT2}, 7")
    e(f"s_add_u32 s44, s44, s{sT0}"); e(f"s_add_u32 s44, s44, {WS_P}")
    e(f"v_and_b32 v55, 7, v{vL}"); e("v_lshlrev_b32 v55, 12, v55"); e("v_lshl_add_u32 v55, v53, 5, v55")
    e(f"v_bfe_u32 v16, v{vL}, 3, 1"); e("v_lshl_add_u32 v55, v16, 4, v55")
    e(f"v_mov_b32 v109, v{vTAG}"); e(f"v_mov_b32 v111, v{vTAG}")
    e(f"s_lshl_b32 s45, s{sG}, 2"); e(f"s_add_u32 s45, s45, {WS_H}"); e(f"v_lshlrev_b32 v17, 8, v{vL}")
    if o['wt']:
        e(f"s_cmp_eq_u32 s{sROLE}, 14"); e("s_cbranch_scc0 L_v3")
    elif o['wol']: wo_setup(WLATE, 18, 19, 20, 21, 8*WE)
    e("s_branch L_nostat")
    g.lab("L_a4")
    e(f"s_add_u32 s{sT2}, s{sT2}, s{sH3}"); e(f"s_lshl_b32 s{sT3}, s{sT2}, 8"); e(f"s_add_u32 s{sT3}, s{sT3}, {WS_S+WS_F}")
    e(f"v_and_b32 v54, 15, v{vL}"); e("v_lshlrev_b32 v55, 4, v54"); e("v_lshlrev_b32 v54, 2, v54")
    e("s_branch L_nostat")
    g.lab("L_a7")
    e(f"s_lshl_b32 s{sT3}, s2, 12"); e(f"s_add_u32 s{sT3}, s{sT3}, {WS_P}")
    e(f"v_and_b32 v54, 7, v{vL}"); e("v_lshlrev_b32 v54, 2, v54"); e(f"v_lshlrev_b32 v55, 2, v{vL}")
    e(f"s_mul_i32 s21, s{sKVH}, 896"); e("s_lshr_b32 s20, s2, 3"); e("s_lshl_b32 s20, s20, 5"); e("s_add_u32 s21, s21, s20")
    e(f"s_and_b32 s20, s2, {o['nrep']-1}"); e("s_lshl_b32 s20, s20, 8"); e(f"s_add_u32 s20, s20, {WS_H}")
    g.lab("L_nostat")
    e("s_waitcnt vmcnt(0)")
    g.lab("L_v3")
    for k in range(4): e(f"v_mul_f32 v{vACC+k}, v{vACC+k}, v{vF}")
    g.ts("V3")
    e(f"ds_write_b128 v{vORA}, {vr(vACC)}")
    pv(3)
    e(f"s_cmp_lt_u32 s{sW}, 5")
    g.nop(7)
    for k in range(4): e(f"v_mul_f32 v{vACC+4+k}, v{vACC+4+k}, v{vF}")
    e(f"ds_write_b128 v{vORB}, {vr(vACC+4)}")
    if o['wol'] and not o['wt']:
        e(f"s_cmp_gt_u32 s{sW}, 3"); e("s_cbranch_scc1 L_nowo")
        if o.get('sk14', 1): e(f"s_cmp_eq_u32 s{sROLE}, 14"); e("s_cbranch_scc1 L_nowo")
        wo_issue(WLATE, 18, 19, 8*WE)
        g.lab("L_nowo")
        e(f"s_cmp_lt_u32 s{sW}, 5")
    e("s_waitcnt lgkmcnt(0)")
    e("s_barrier")
    g.ts("B4")
    if o.get('stopb4'): e("s_branch L_fin")
    e("s_cbranch_scc1 L_cons")
    e(f"s_cmp_eq_u32 s{sW}, 7"); e("s_cbranch_scc1 L_w7")
    g.c("waves 5,6: sum the 8 partial o, publish")
    for w in range(8): e(f"ds_read_b128 {vr(64+4*w)}, v61 offset:{w*2048}")
    if o['lst']:
        e("s_mov_b64 exec, s[64:65]")
        e(f"buffer_store_dwordx4 v[124:127], v62, {sr(sWS)}, s{sT3} offen")
        e(f"buffer_store_dwordx4 v[124:127], v62, {sr(sWS)}, s{sT2} offen sc1")
        e("s_mov_b64 exec, -1")
    for w in range(1, 8, 2):
        e(f"s_waitcnt lgkmcnt({0 if (o['ts'] or o.get('holdat')) else 7-w})")
        if o['pk']:
            for k in (0, 2): e(f"v_pk_add_f32 {vr(64+4*(w-1)+k,2)}, {vr(64+4*(w-1)+k,2)}, {vr(64+4*w+k,2)}")
            if w > 1:
                for k in (0, 2): e(f"v_pk_add_f32 {vr(64+k,2)}, {vr(64+k,2)}, {vr(64+4*(w-1)+k,2)}")
            continue
        for k in range(4): e(f"v_add_f32 v{64+4*(w-1)+k}, v{64+4*(w-1)+k}, v{64+4*w+k}")
        if w > 1:
            for k in range(4): e(f"v_add_f32 v{64+k}, v{64+k}, v{64+4*(w-1)+k}")
    e("v_cvt_pk_bf16_f32 v96, v64, v65"); e("v_cvt_pk_bf16_f32 v98, v66, v67")
    e(f"buffer_store_dwordx4 v[96:99], v60, {sr(sWS)}, s45 offen {o['opol']}")
    g.ts("opub")
    e(f"buffer_store_dwordx4 v[96:99], v60, {sr(sWS)}, s44 offen sc1")
    e(f"s_cmp_eq_u32 s{sROLE}, 14"); e("s_cbranch_scc1 L_fin")
    if B45: e("s_barrier")
    e("s_barrier")
    e("s_branch L_fin")
    g.lab("L_cons")
    g.c("wave 4: merge weights of the two key halves; waves 0..3: gather o, project, publish partials")
    e(f"s_cmp_eq_u32 s{sROLE}, 14"); e("s_cbranch_scc1 L_fin")
    e(f"s_cmp_lt_u32 s{sW}, 4"); e("s_cbranch_scc1 L_gath")
    if B45: e("s_barrier")
    e("s_mov_b64 exec, 0xffff")
    def sl(): e(f"buffer_load_dwordx4 {vr(160)}, v55, {sr(sWS)}, s{sT3} offen {o.get('ppol2', o['ppol'])}")
    poll("sg", sl, [161, 163], 58, 59, o['sleep1'])
    if o['gate1']: e(f"v_mov_b32 v61, 9"); e(f"ds_write_b32 v62, v61 offset:{L_CNT}")
    e(f"v_mov_b32_dpp v100, v160 row_ror:8 {DPP}")
    e(f"v_mov_b32_dpp v101, v162 row_ror:8 {DPP}")
    e("v_max_f32 v102, v160, v100")
    e("v_sub_f32 v103, v160, v102"); e("v_sub_f32 v100, v100, v102")
    e("v_exp_f32 v103, v103"); e("v_exp_f32 v100, v100"); e("s_nop 0")
    e("v_mul_f32 v103, v103, v162"); e("v_fma_f32 v100, v100, v101, v103")
    e("v_rcp_f32 v100, v100"); e("s_nop 0"); e("v_mul_f32 v103, v103, v100")
    e("s_mov_b64 exec, 0xffff")
    e(f"ds_write_b32 v54, v103 offset:{L_W}")
    e("s_waitcnt lgkmcnt(0)")
    e("s_barrier")
    e("s_branch L_fin")
    g.lab("L_gath")
    def gl():
        for k in range(2):
            e(f"buffer_load_dwordx4 {vr(128+8*k)}, v52, {sr(sWS)}, s{sT3} offen offset:{128*k} {o.get('ppol2', o['ppol'])}")
            e(f"buffer_load_dwordx4 {vr(132+8*k)}, v52, {sr(sWS)}, s{sT3} offen offset:{128*k+16} {o.get('ppol2', o['ppol'])}")
    def wofr():
        for k in range(8):
            e(f"ds_read_b64_tr_b16 {vr(64+4*k,2)}, v63 offset:{k*4096}")
            e(f"ds_read_b64_tr_b16 {vr(66+4*k,2)}, v63 offset:{k*4096+512}")
            if k == 6: e("s_waitcnt lgkmcnt(4)")
    def wofr45():
        e("s_waitcnt vmcnt(4)"); e("s_barrier"); wofr()
    if o.get('pw') is not None: e(f"s_waitcnt vmcnt({o['pw']})")
    if not o['g1p']:
        poll("g1", gl, [129+2*i for i in range(8)], 58, 59, o['sleep1'], first=(wofr45 if B45 else None) if o['wol'] else wofr, gate=o['gate1'])
        for k in range(2):
            e(f"v_mov_b32 v{129+8*k}, v{130+8*k}"); e(f"v_mov_b32 v{130+8*k}, v{132+8*k}"); e(f"v_mov_b32 v{131+8*k}, v{134+8*k}")
            e(f"ds_write_b128 v61, {vr(128+8*k)} offset:{L_B3+1024*k}")
    else:
        def gl2(b):
            for k in range(2):
                e(f"buffer_load_dwordx4 {vr(b+8*k)}, v52, {sr(sWS)}, s{sT3} offen offset:{128*k} sc1")
                e(f"buffer_load_dwordx4 {vr(b+4+8*k)}, v52, {sr(sWS)}, s{sT3} offen offset:{128*k+16} sc1")
        e(f"s_mov_b32 s{sSPIN}, {o['spin']}"); e("s_mov_b64 s[66:67], 0")
        gl2(128); wofr(); e(f"s_sleep {o['g1p']}"); gl2(144)
        g.lab("L_g1")
        e("s_waitcnt vmcnt(4)")
        tagcheck([129+2*i for i in range(8)], 58, 59)
        e("s_cbranch_scc0 L_g1_ok")
        e("s_mov_b64 exec, vcc")
        gl2(128)
        e("s_waitcnt vmcnt(4)")
        tagcheck([145+2*i for i in range(8)], 58, 59)
        e("s_andn2_b64 s[64:65], exec, vcc"); e("s_or_b64 s[66:67], s[66:67], s[64:65]")
        e("s_cmp_eq_u64 vcc, 0"); e("s_cbranch_scc1 L_g1_ok")
        e("s_mov_b64 exec, vcc")
        e(f"s_cmp_eq_u32 s{sSPIN}, {o['spin']-o['fthr']}"); e(f"s_cselect_b32 s{sT0}, {WS_F}, 0"); e(f"s_sub_u32 s{sT3}, s{sT3}, s{sT0}")
        gl2(144)
        e(f"s_sub_u32 s{sSPIN}, s{sSPIN}, 1"); e("s_cbranch_scc0 L_g1")
        g.lab("L_g1_ok")
        e("s_mov_b64 exec, -1")
        for k in range(2):
            for t in range(4): e(f"v_cndmask_b32 v{192+4*k+t}, v{128+8*k+2*t}, v{144+8*k+2*t}, s[66:67]")
            e(f"ds_write_b128 v61, {vr(192+4*k)} offset:{L_B3+1024*k}")
    e(f"s_or_b32 s{sT0}, s{sW}, s{sMEM}"); e("s_cbranch_scc1 L_nohint")
    if o['nrep'] < 64: e(f"s_mov_b64 exec, {hex((1<<o['nrep'])-1)}")
    e(f"buffer_store_dword v{vTAG}, v17, {sr(sWS)}, s45 offen sc1")
    e("s_mov_b64 exec, -1")
    g.lab("L_nohint")
    g.ts("G1")
    e("s_waitcnt lgkmcnt(0)")
    e("s_barrier")
    g.ts("B5")
    if o['wol'] and not B45:
        e(f"ds_read_b32 v103, v54 offset:{L_W}")
        def rd(k):
            e(f"ds_read_b64_tr_b16 {vr(64+4*k,2)}, v63 offset:{k*4096}")
            e(f"ds_read_b64_tr_b16 {vr(66+4*k,2)}, v63 offset:{k*4096+512}")
            e(f"ds_read_b128 {vr(160+4*k)}, v60 offset:{L_B3+k*1024}")
        for k in range(4): rd(k)
        for k in range(8):
            e(f"s_waitcnt lgkmcnt({0 if 'B5' in o.get('tson',()) else 3*min(3, 7-k)})")
            e(f"v_mfma_f32_16x16x32_bf16 {vr(96)}, {vr(64+4*k)}, {vr(160+4*k)}, {'0' if k==0 else vr(96)}")
            if k+4 < 8: rd(k+4)
    else:
        for k in range(8): e(f"ds_read_b128 {vr(160+4*k)}, v60 offset:{L_B3+k*1024}")
        e(f"ds_read_b32 v103, v54 offset:{L_W}")
        for k in range(8):
            e(f"s_waitcnt lgkmcnt({0 if 'B5' in o.get('tson',()) else 8-k})")
            e(f"v_mfma_f32_16x16x32_bf16 {vr(96)}, {vr(64+4*k)}, {vr(160+4*k)}, {'0' if k==0 else vr(96)}")
    e("s_waitcnt lgkmcnt(0)")
    g.nop(7)
    for k in range(4): e(f"v_mul_f32 v{96+k}, v{96+k}, v103")
    for k in range(4): e(f"v_add_f32_dpp v{104+k}, v{96+k}, v{96+k} row_ror:8 {DPP}")
    e(f"v_cndmask_b32 v108, v104, v106, s[{sM8}:{sM8+1}]"); e(f"v_cndmask_b32 v110, v105, v107, s[{sM8}:{sM8+1}]")
    if o.get('nop'): e("s_mov_b32 s44, 0x4000000")
    e(f"buffer_store_dwordx4 v[108:111], v55, {sr(sWS)}, s44 offen {o.get('pst','sc1')}")
    g.ts("ppub")
    e("s_branch L_fin")
    g.lab("L_w7")
    g.c("wave 7: final sum, gate, store")
    for i in range(4): e(f"s_mov_b64 s[{sMASK+2*i}:{sMASK+2*i+1}], -1")
    e(f"s_mov_b32 s{sSPIN}, {o['spin']}")
    e(f"s_cmp_eq_u32 s{sROLE}, 14"); e("s_cbranch_scc1 L_nob5")
    if B45: e("s_barrier")
    e("s_barrier")
    g.lab("L_nob5")
    e("s_cmp_ge_u32 s2, 224"); e("s_cbranch_scc1 L_fin")
    e("s_mov_b64 exec, 0xffff")
    NP = max(1, o['hp'])
    for k in range(NP):
        e(f"buffer_load_dword v{64+k}, v55, {sr(sWS)}, s20 offen sc1")
        if NP > 1: e(f"s_sleep {o['hgap']}")
    g.lab("L_hp")
    for k in range(NP):
        e(f"s_waitcnt vmcnt({NP-1})")
        e(f"v_cmp_ne_u32 vcc, v{64+k}, v{vTAG}")
        e("s_cbranch_vccz L_hp_ok")
        if o['sleep2']: e(f"s_sleep {o['sleep2']}")
        e(f"buffer_load_dword v{64+k}, v55, {sr(sWS)}, s20 offen sc1")
    e(f"s_sub_u32 s{sSPIN}, s{sSPIN}, 1"); e("s_cbranch_scc0 L_hp")
    g.lab("L_hp_ok")
    g.ts("H")
    g.lab("L_g2")
    for i in range(4):
        e(f"s_mov_b64 exec, s[{sMASK+2*i}:{sMASK+2*i+1}]")
        e(f"buffer_load_dwordx4 {vr(128+4*i)}, v60, {sr(sWS)}, s{sT3} offen offset:{i*1024} sc1")
    e("s_mov_b64 exec, -1")
    e("s_waitcnt vmcnt(0)")
    for i in range(4):
        e(f"v_cmp_ne_u32 vcc, v{129+4*i}, v{vTAG}"); e(f"v_cmp_ne_u32 s[{sMASK+2*i}:{sMASK+2*i+1}], v{131+4*i}, v{vTAG}")
        e(f"s_or_b64 s[{sMASK+2*i}:{sMASK+2*i+1}], s[{sMASK+2*i}:{sMASK+2*i+1}], vcc")
    e(f"s_or_b64 s[{sT0}:{sT1}], s[{sMASK}:{sMASK+1}], s[{sMASK+2}:{sMASK+3}]"); e(f"s_or_b64 vcc, s[{sMASK+4}:{sMASK+5}], s[{sMASK+6}:{sMASK+7}]")
    e(f"s_or_b64 vcc, vcc, s[{sT0}:{sT1}]")
    e("s_cbranch_scc0 L_g2_ok")
    e(f"s_sub_u32 s{sSPIN}, s{sSPIN}, 1"); e("s_cbranch_scc0 L_g2")
    g.lab("L_g2_ok")
    g.ts("G2")
    R = [128, 130, 136, 138]
    for r in R: e(f"v_add_f32 v{r}, v{r}, v{r+4}")
    for r in R: e(f"v_add_f32_dpp v{r}, v{r}, v{r} row_ror:8 {DPP}")
    for sw in ("16", "32"):
        for r in R: e(f"v_mov_b32 v{r+1}, v{r}")
        for r in R: e(f"v_permlane{sw}_swap_b32 v{r}, v{r+1}")
        for r in R: e(f"v_add_f32 v{r}, v{r}, v{r+1}")
    e("v_cvt_pk_bf16_f32 v129, v128, v130"); e("v_cvt_pk_bf16_f32 v137, v136, v138")
    for base in (128, 136): e(f"v_lshlrev_b32 v{base}, 16, v{base+1}"); e(f"v_and_b32 v{base+2}, 0xffff0000, v{base+1}")
    for base, gs in ((128, 22), (136, 23)): e(f"v_mul_f32 v{base}, s{gs}, v{base}"); e(f"v_mul_f32 v{base+2}, s{gs}, v{base+2}")
    e("v_cvt_pk_bf16_f32 v129, v128, v130"); e("v_cvt_pk_bf16_f32 v137, v136, v138")
    for base in (128, 136): e(f"v_lshlrev_b32 v{base}, 16, v{base+1}"); e(f"v_and_b32 v{base+2}, 0xffff0000, v{base+1}")
    e("v_add_f32 v128, v128, v136"); e("v_add_f32 v130, v130, v138")
    e("v_cvt_pk_bf16_f32 v128, v128, v130")
    e("s_mov_b64 exec, 0xff")
    e(f"buffer_store_dword v128, v54, {sr(sOUT)}, s21 offen {o.get('outpol','')}")
    e("s_cmp_lg_u32 s2, 0"); e("s_cbranch_scc1 L_fin")
    e("s_mov_b64 exec, 1")
    e(f"buffer_store_dword v{vTAG}, v54, {sr(sWS)}, 0 offen sc1")
    g.lab("L_fin")
    if o.get('holdat'):
        e("s_cmp_eq_u32 s88, 0"); e("s_cbranch_scc1 L_end")
        g.lab("L_hold")
        e("s_memrealtime s[86:87]"); e("s_waitcnt lgkmcnt(0)"); e("s_sub_u32 s86, s86, s84"); e(f"s_cmp_lt_u32 s86, 3000"); e("s_cbranch_scc1 L_hold")
    if o['ts']:
        if o['ts'] == 2: e(f"s_cmp_lg_u32 s{sW}, 7"); e("s_cbranch_scc1 L_end")
        e("s_mov_b64 exec, -1")
        g.ts("end")
        e("s_waitcnt lgkmcnt(0)")
        for k in range(16): e(f"v_mov_b32 v{128+k}, s{TSREG[k]}" if k < g.nts else f"v_mov_b32 v{128+k}, 0")
        e(f"s_lshl_b32 s{sT0}, s2, 3"); e(f"s_add_u32 s{sT0}, s{sT0}, s{sW}"); e(f"s_lshl_b32 s{sT0}, s{sT0}, 6"); e(f"s_add_u32 s{sT0}, s{sT0}, {WS_TS}")
        e("v_mov_b32 v60, 0"); e("s_mov_b64 exec, 1")
        for k in range(1 if o['ts'] == 2 else 4): e(f"buffer_store_dwordx4 {vr(128+4*k)}, v60, {sr(sWS)}, s{sT0} offen offset:{16*k}")
        print("TS:", ",".join(g.tsn))
    g.lab("L_end")
    e("s_endpgm")
    g.lab("L_codeend")
    g.L += ['.section .rodata,"a"', ".p2align 6", f".amdhsa_kernel {KN}",
            "  .amdhsa_next_free_vgpr 256", "  .amdhsa_next_free_sgpr 102", "  .amdhsa_accum_offset 256",
            "  .amdhsa_group_segment_fixed_size 0", "  .amdhsa_kernarg_size 112", "  .amdhsa_user_sgpr_count 2",
            "  .amdhsa_user_sgpr_kernarg_segment_ptr 1", "  .amdhsa_system_sgpr_workgroup_id_x 1",
            "  .amdhsa_float_denorm_mode_32 3", ".end_amdhsa_kernel"]
    return "\n".join(g.L) + "\n"

if __name__ == "__main__":
    from lint import lint
    from build import build
    out = sys.argv[1]; opts = eval("dict(" + (sys.argv[2] if len(sys.argv) > 2 else "") + ")")
    s = gen(**opts)
    open(out, "w").write(s)
    for p in lint(s): print("LINT:", p)
    build(out)
```

```python
import sys, math, struct
sys.path.insert(0, "gen"); sys.path.insert(0, "tools")
KN = "gated_mix__sliding_block_cached__sliding_block_cached__decode_kernel"
HEADER = open("gated_mix__sliding_block_cached__sliding_block_cached__decode.s.ref").read().split("; Override launch")[0]

WS_Q = 0x10000
WS_S = 0x60000
WS_H = 0x70000
WS_O = 0x80000
WS_F = 0x100000
WS_P = 0x200000
WS_TS = 0x400000
WS_SIZE = 0x800000
L_QL = 0
L_SM = 1024
L_SL = 1088
L_W = 1152
L_F = 1216
L_CNT = 1220
L_RQ = 1228
L_CN2 = 1224
L_B3 = 2048
L_WQ = 10240
L_X = 38912
L_WO = 46080
L_OR = 78848
LDS_BYTES = 95232
TSREG = [84,86,88,90,92,94,96,98,100,8,10,12,14,16,18,20]

DOC = '''; ---------------------------------------------------------------------------------------------
; Workgroup id -> kv head = id&7, member = (id>>3)&15 (batch = member>>1, key half = member&1),
; branch = id>>7. The 16 members of a (branch, kv head) group exchange data through d_ws.
;     then gathers the 512 q columns of its own batch into LDS. All waves stream K meanwhile.
;     merged with their softmax weights, f32 partials published.
; Hand-offs: 8-byte {data, tag} granules, tag = f(word 0 of d_ws at entry); word 0 moves on at the
; ---------------------------------------------------------------------------------------------'''

def f2u(x): return struct.unpack("<I", struct.pack("<f", x))[0]
def vr(a, n=4): return f"v[{a}:{a+n-1}]"
def sr(a, n=4): return f"s[{a}:{a+n-1}]"
DPP = "row_mask:0xf bank_mask:0xf"

class G:
    def __init__(s, **o):
        s.L = []
        s.o = dict(round_s=1, ts=0, pol='nt', spin=1<<16, codepf=1, sleep1=0, sleep2=0, b0at=14, pre=2, fthr=256,
                   xm=0x100, xa=1, xb=0, kv=0, qsl=2, ssl=1, hp=0, hgap=2, skip=(6,7), wosw=1, bx=1, pret=0, g1p=0, wol=1, imm=0, nrep=8, xc=1, qp=0, pw=1, wt=1, tlb=0, cpf2=0, q0k=32, pk=1, gate1=0, vpf=3, spf=0, sdel=0, e1=1, b45=1, lst=1, spol='', ppol='sc1 nt', qpol='', opol='')
        s.o.update(o); s.nts = 0; s.tsn = []
    def e(s, t): s.L.append("  " + t)
    def c(s, t): s.L.append("  ; " + t)
    def lab(s, t): s.L.append(t + ":")
    def nop(s, n):
        while n > 0:
            k = min(n, 16); s.e(f"s_nop {k-1}"); n -= k
    def ts(s, name):
        if s.o.get('holdat') == name:
            s.e("s_memrealtime s[84:85]"); s.e("s_mov_b32 s88, 1")
        if not s.o['ts'] or name not in s.o['tson']: return
        k = s.nts; s.nts += 1
        r = TSREG[k]; s.tsn.append(name)
        s.e(f"s_memrealtime s[{r}:{r+1}]   ; ts {name}")

def gen(**opts):
    g = G(**opts); e = g.e; o = g.o; POL = o['pol']
    sK, sV, sWQ, sWO, sX, sGW, sWS, sOUT = 24, 28, 32, 36, 40, 44, 48, 52
    sW = 56; sR = 57; sT0, sT1, sT2, sT3 = 58, 59, 60, 61
    sKVH, sBR, sMEM, sB, sG = 3, 4, 5, 6, 7
    sMASK = 64; sM8 = 80; sSEL0, sSEL1 = 82, 83; sSPIN = 62; sC = 63
    sROLE = 32
    sH3 = 33; sNL = 34
    vL = 1; vKO = 2; vVO = 3; vTAG = 4; vA = 5; vB = 6; vC = 7
    vQB = 8; vS = 16; vPV = 64; vK = 128
    vT = 40; vM0 = 52; vL0 = 53; vAL = 54; vORA = 56; vORB = 57; vSA = 58; vF = 59
    vACC = 112; vP8 = 120
    BS = 131072
    assert not (o['kv'] and o['wt']), "wt needs kv=0"
    B45 = o['b45'] and o['wol']

    def tagcheck(tags, a, b_):
        if len(tags) == 2:
            e(f"v_cmp_ne_u32 vcc, v{tags[0]}, v{vTAG}"); e(f"v_cmp_ne_u32 s[{sT0}:{sT1}], v{tags[1]}, v{vTAG}")
        else:
            e(f"v_min3_u32 v{a}, v{tags[0]}, v{tags[1]}, v{tags[2]}"); e(f"v_max3_u32 v{b_}, v{tags[0]}, v{tags[1]}, v{tags[2]}")
            i = 3
            while i+1 < len(tags):
                e(f"v_min3_u32 v{a}, v{a}, v{tags[i]}, v{tags[i+1]}"); e(f"v_max3_u32 v{b_}, v{b_}, v{tags[i]}, v{tags[i+1]}"); i += 2
            if i < len(tags):
                e(f"v_min_u32 v{a}, v{a}, v{tags[i]}"); e(f"v_max_u32 v{b_}, v{b_}, v{tags[i]}")
            e(f"v_cmp_ne_u32 vcc, v{a}, v{vTAG}"); e(f"v_cmp_ne_u32 s[{sT0}:{sT1}], v{b_}, v{vTAG}")
        e(f"s_or_b64 vcc, vcc, s[{sT0}:{sT1}]")
    def poll(name, loads, tags, a, b_, sleep=0, first=None, gate=False):
        e(f"s_mov_b32 s{sSPIN}, {o['spin']}")
        if first:
            loads(); first(); e(f"s_branch L_{name}_w")
        g.lab(f"L_{name}")
        loads()
        g.lab(f"L_{name}_w")
        e("s_waitcnt vmcnt(0)")
        tagcheck(tags, a, b_)
        e(f"s_cbranch_scc0 L_{name}_ok")
        e("s_mov_b64 exec, vcc")
        if gate:
            g.lab(f"L_{name}_g")
            e(f"ds_read_b32 v{a}, v62 offset:{L_CNT}"); e("s_waitcnt lgkmcnt(0)"); e(f"v_readfirstlane_b32 s{sT0}, v{a}")
            e(f"s_cmp_eq_u32 s{sT0}, 8"); e(f"s_cbranch_scc1 L_{name}_g")
        if sleep: e(f"s_sleep {sleep}")
        e(f"s_cmp_le_u32 s{sSPIN}, {o['spin']-o['fthr']}"); e(f"s_cselect_b32 s{sT0}, {WS_F}, 0"); e(f"s_xor_b32 s{sT3}, s{sT3}, s{sT0}")
        e(f"s_sub_u32 s{sSPIN}, s{sSPIN}, 1"); e(f"s_cbranch_scc0 L_{name}")
        g.lab(f"L_{name}_ok")
        e("s_mov_b64 exec, -1")
    def srd(d, p, n):
        e(f"s_mov_b32 s{d}, s{p}"); e(f"s_mov_b32 s{d+1}, s{p+1}"); e(f"s_mov_b32 s{d+2}, {n}"); e(f"s_mov_b32 s{d+3}, 0x20000")
    def kreg(n): return vK + 4*(n % 16) if o['kv'] else vK + 4*n
    def vreg(unit): return vK + 64 + 32*(unit % 2) if o['kv'] else vK + 32*unit
    def kload(n):
        u, hf = n//2, n % 2
        if o['imm']:
            e(f"buffer_load_dwordx4 {vr(kreg(n))}, v{vKO}, {sr(sK)}, s{sR if u < 8 else 43} offen offset:{(u&7)*512+hf*256} {POL}")
            return
        e(f"s_xor_b32 s47, s{sR}, {(u&7)*512+hf*256+(u>>3)*BS}")
        e(f"buffer_load_dwordx4 {vr(kreg(n))}, v{vKO}, {sr(sK)}, s47 offen {o.get('kvpol', POL)}")
    def vload(unit, j):
        blk, hf = unit//2, unit % 2
        if o['imm']:
            e(f"buffer_load_dwordx4 {vr(vreg(unit)+4*j)}, v{vVO}, {sr(sV)}, s{sR if blk == 0 else 43} offen offset:{j*512+hf*256} {POL}")
            return
        e(f"s_xor_b32 s47, s{sR}, {j*512+hf*256+blk*BS}")
        e(f"buffer_load_dwordx4 {vr(vreg(unit)+4*j)}, v{vVO}, {sr(sV)}, s47 offen {o.get('kvpol', POL)}")

    g.L.append(HEADER.rstrip("\n"))
    g.L.append(f"; @launch grid=(256,1,1) block=(512,1,1) lds={LDS_BYTES}")
    g.L.append('.amdgcn_target "amdgcn-amd-amdhsa--gfx950"')
    g.L.append(DOC)
    g.L.append(".text"); g.L.append(f".globl {KN}"); g.L.append(".p2align 8"); g.L.append(f".type {KN},@function"); g.lab(KN)
    e("s_cmp_ge_u32 s2, 256"); e("s_cbranch_scc1 L_end")
    if o.get('holdat'): e("s_mov_b32 s88, 0")
    g.ts("start")
    if o['codepf'] == 1:
        g.c("pull the kernel's code into L2: one dword per 128 B line")
        e(f"s_getpc_b64 s[{sM8}:{sM8+1}]")
        g.lab("L_pc")
        e(f"v_lshlrev_b32 v35, 7, v0"); e("v_min_u32 v35, L_codeend-L_pc-4, v35")
        e(f"global_load_dword v36, v35, s[{sM8}:{sM8+1}]")
    e(f"s_lshr_b32 s{sBR}, s2, 7")
    e(f"s_mul_i32 s{sT0}, s{sBR}, 40")
    e(f"s_add_u32 s{sT2}, s0, s{sT0}"); e(f"s_addc_u32 s{sT3}, s1, 0")
    e(f"s_load_dwordx8 s[8:15], s[{sT2}:{sT3}], 8")
    e(f"s_load_dwordx2 s[{sX}:{sX+1}], s[0:1], 0")
    e(f"s_load_dwordx2 s[{sWS}:{sWS+1}], s[0:1], 104")
    e("s_load_dwordx4 s[20:23], s[0:1], 80")
    e(f"v_lshrrev_b32 v{vA}, 6, v0")
    e(f"v_and_b32 v{vL}, 63, v0")
    e(f"v_readfirstlane_b32 s{sW}, v{vA}")
    e(f"s_and_b32 s{sKVH}, s2, 7")
    e(f"s_bfe_u32 s{sMEM}, s2, 0x40003")
    e(f"s_lshr_b32 s{sB}, s{sMEM}, 1")
    assert o['xa'] == 1 and o['xb'] == 0 and o['xm'] == 0x100 and o['bx'] == 1
    e(f"s_lshl_b32 s{sT0}, s{sB}, 3"); e(f"s_or_b32 s{sT0}, s{sT0}, s{sKVH}"); e(f"s_lshl_b32 s{sT0}, s{sT0}, 3")
    e(f"s_and_b32 s{sT1}, s{sMEM}, 1"); e(f"s_or_b32 s{sT0}, s{sT0}, s{sT1}"); e(f"s_or_b32 s{sT0}, s{sT0}, 6"); e(f"s_lshl_b32 s{sT0}, s{sT0}, 4")
    e(f"s_xor_b32 s{sT1}, s{sW}, s{sMEM}"); e(f"s_and_b32 s{sT1}, s{sT1}, 7"); e(f"s_or_b32 s{sT0}, s{sT0}, s{sT1}"); e(f"s_lshl_b32 s{sT0}, s{sT0}, 14")
    e(f"s_and_b32 s{sR}, s{sMEM}, 8"); e(f"s_lshl_b32 s{sR}, s{sR}, 6"); e(f"s_and_b32 s{sT1}, s{sW}, 1"); e(f"s_or_b32 s{sR}, s{sR}, s{sT1}"); e(f"s_lshl_b32 s{sR}, s{sR}, 8")
    e(f"v_bfe_u32 v{vA}, v{vL}, 2, 2"); e(f"v_lshrrev_b32 v{vB}, 4, v{vL}")
    e(f"v_lshl_add_u32 v{vKO}, v{vA}, 6, v{vB}")
    e(f"v_and_b32 v{vA}, 3, v{vL}"); e(f"v_lshl_add_u32 v{vKO}, v{vKO}, 2, v{vA}")
    e(f"v_lshl_add_u32 v{vKO}, v{vKO}, 4, s{sT0}")
    e(f"s_mov_b32 s{sK+2}, 0x8000000"); e(f"s_mov_b32 s{sK+3}, 0x20000")
    e(f"s_mov_b32 s{sWQ+2}, 3670016"); e(f"s_mov_b32 s{sWQ+3}, 0x20000")
    e(f"s_lshl_b32 s{sT2}, s{sKVH}, 10")
    e(f"s_cmp_eq_u32 s{sW}, 0"); e("s_cbranch_scc0 L_notw0")
    g.c("wave 0: wq slice and x into LDS")
    e(f"v_lshrrev_b32 v32, 2, v{vL}"); e(f"v_lshl_add_u32 v32, v32, 9, v{vA}"); e(f"s_lshl_b32 s{sT1}, s{sMEM}, 6"); e(f"s_add_u32 s{sT2}, s{sT2}, s{sT1}")
    e(f"v_lshlrev_b32 v32, 4, v32"); e(f"v_mov_b32 v34, 0"); e(f"v_mov_b32 v35, 0"); e(f"s_mov_b32 m0, {L_WQ}")
    e(f"ds_write_b64 v34, v[34:35] offset:{L_F}")
    e(f"ds_write_b32 v34, v34 offset:{L_CN2}")
    e("s_waitcnt lgkmcnt(0)")
    g.ts("ka")
    e(f"s_mov_b32 s{sWQ}, s12"); e(f"s_mov_b32 s{sWQ+1}, s13")
    if o.get('xin', 1):
        e(f"v_lshlrev_b32 v33, 4, v{vL}")
        e(f"s_mov_b32 s{sWS+2}, {WS_SIZE}"); e(f"s_mov_b32 s{sWS+3}, 0x20000")
        e(f"s_mov_b32 s{sX+2}, 7168"); e(f"s_mov_b32 s{sX+3}, 0x20000")
        e(f"s_mov_b32 m0, {L_X}"); e(f"s_movk_i32 s{sT1}, 0x1000")
        for ii in range(4): e(f"buffer_load_dwordx4 v33, {sr(sX)}, 0 offen offset:{ii*1024} lds")
        e(f"s_mov_b32 m0, {L_X+4096}")
        e(f"buffer_load_dword v{vTAG}, v34, {sr(sWS)}, 0 offen sc1")
        for ii in range(3): e(f"buffer_load_dwordx4 v33, {sr(sX)}, s{sT1} offen offset:{ii*1024} lds")
        e(f"s_mov_b32 m0, {L_WQ}"); e("s_nop 0")
    B0 = o['b0at']
    g.lab("L_wql")
    e(f"buffer_load_dwordx4 v32, {sr(sWQ)}, s{sT2} offen {POL} lds")
    e("s_add_u32 m0, m0, 1024"); e(f"s_add_u32 s{sT2}, s{sT2}, 131072")
    if 0 < B0 < 28:
        e(f"s_cmp_lg_u32 m0, {L_WQ+1024*B0}"); e("s_cbranch_scc1 L_wqn"); e("s_barrier"); g.lab("L_wqn")
    e(f"s_cmp_lt_u32 m0, {L_WQ+1024*28}"); e("s_cbranch_scc1 L_wql")
    e("s_branch L_w0b")
    g.lab("L_notw0")
    assert o['vpf'] == 3
    g.c("waves 1..4: touch 7 rows x 1 KB each of the group's wq block (rows 28*member ..), so that the strided slice loads meet them in L2")
    e(f"v_lshrrev_b32 v37, 3, v{vL}"); e(f"v_and_b32 v38, 7, v{vL}"); e("v_lshl_add_u32 v37, v37, 6, v38"); e("v_lshlrev_b32 v37, 7, v37")
    TW = o.get('tw', 4)
    e(f"s_mul_i32 s{sT1}, s{sMEM}, {TW}"); e(f"s_add_u32 s{sT1}, s{sT1}, s{sW}"); e(f"s_mul_i32 s{sT1}, s{sT1}, {7*8192}"); e(f"s_add_u32 s{sT2}, s{sT2}, s{sT1}")
    e(f"s_add_u32 s{sT2}, s{sT2}, {((448-112*TW)-7)*8192 & 0xffffffff}")
    e(f"s_cmp_gt_u32 s{sW}, {TW}")
    e("s_waitcnt lgkmcnt(0)")
    g.ts("ka")
    e(f"s_mov_b32 s{sK}, s8"); e(f"s_mov_b32 s{sK+1}, s9")
    e("s_cbranch_scc1 L_novpf")
    e(f"s_mov_b32 s{sWQ}, s12"); e(f"s_mov_b32 s{sWQ+1}, s13")
    e("s_mov_b32 exec_hi, 0xffffff")
    e(f"buffer_load_dword v38, v37, {sr(sWQ)}, s{sT2} offen {POL}")
    e("s_mov_b64 exec, -1")
    g.lab("L_novpf")
    for n in range(o['pre']): kload(n)
    if o['codepf'] == 2:
        g.c("waves 5,6: pull the rest of the kernel's code into L2: one dword per 128 B line")
        e(f"s_sub_u32 s{sT1}, s{sW}, 5"); e(f"s_cmp_gt_u32 s{sT1}, 1"); e("s_cbranch_scc1 L_nopf")
        e(f"s_getpc_b64 s[{sM8}:{sM8+1}]")
        g.lab("L_pc")
        e(f"v_lshlrev_b32 v35, 7, v0"); e(f"v_subrev_u32 v35, {5*8192}, v35"); e("v_min_u32 v35, L_codeend-L_pc-4, v35")
        e(f"global_load_dword v36, v35, s[{sM8}:{sM8+1}]")
        g.lab("L_nopf")
    g.ts("kpre")
    if B0 > 0: e("s_barrier")
    g.ts("b0")
    for n in range(o['pre'], 32): kload(n)
    g.lab("L_kq0")
    if B0 == 0: e("s_barrier")
    def common2():
        e(f"s_lshl_b32 s{sG}, s{sBR}, 3"); e(f"s_add_u32 s{sG}, s{sG}, s{sKVH}")
        e(f"v_lshlrev_b32 v33, 4, v{vL}")
        e(f"s_mov_b32 s{sWS+2}, {WS_SIZE}"); e(f"s_mov_b32 s{sWS+3}, 0x20000")
        e(f"s_mov_b32 s{sX+2}, 7168"); e(f"s_mov_b32 s{sX+3}, 0x20000")
    common2()
    e(f"v_readfirstlane_b32 s{sT0}, v{vKO}"); e(f"v_and_b32 v{vC}, 15, v{vL}"); e(f"v_lshl_add_u32 v{vVO}, v{vB}, 8, v{vC}")
    e(f"s_cmp_lg_u32 s{sW}, 7")
    e(f"v_lshl_add_u32 v{vVO}, v{vVO}, 4, s{sT0}")
    e("s_cbranch_scc1 L_nog7")
    srd(sGW, 20, 896)
    e(f"s_mul_i32 s{sT0}, s{sKVH}, 896")
    e(f"buffer_load_dwordx4 v[16:19], v33, {sr(sX)}, s{sT0} offen")
    e(f"buffer_load_dwordx4 v[20:23], v33, {sr(sGW)}, 0 offen")
    g.lab("L_nog7")
    srd(sV, 10, 0x8000000)
    g.ts("kiss")
    srd(sWO, 14, 3670016); srd(sOUT, 22, 7168)
    g.c("output-projection role of this member (14 = none), constants")
    s0, s1 = o['skip']
    e(f"s_mov_b32 s{sROLE}, s{sMEM}")
    e(f"s_cmp_gt_u32 s{sMEM}, {s1}"); e(f"s_cselect_b32 s{sT0}, 2, 0"); e(f"s_sub_u32 s{sROLE}, s{sROLE}, s{sT0}")
    e(f"s_sub_u32 s{sT0}, s{sMEM}, {s0}"); e(f"s_cmp_lt_u32 s{sT0}, 2"); e(f"s_cselect_b32 s{sROLE}, 14, s{sROLE}")
    e(f"s_cmp_ge_u32 s{sROLE}, 7"); e(f"s_cselect_b32 s{sH3}, 1, 0"); e(f"s_mul_i32 s{sT0}, s{sH3}, 7"); e(f"s_sub_u32 s{sNL}, s{sROLE}, s{sT0}")
    def wo_setup(nper, va, vb, vc, vd, p0=0):
        e(f"s_lshl_b32 s{sT0}, s{sKVH}, 9"); e(f"s_lshl_b32 s{sT1}, s{sH3}, 8"); e(f"s_add_u32 s{sT0}, s{sT0}, s{sT1}"); e(f"s_mul_i32 s{sT1}, s{sW}, {8*nper}"); e(f"s_add_u32 s{sT0}, s{sT0}, s{sT1}")
        if p0: e(f"s_add_u32 s{sT0}, s{sT0}, {8*p0}")
        e(f"s_mul_i32 s{sT0}, s{sT0}, 896"); e(f"s_lshl_b32 s{sT1}, s{sNL}, 7"); e(f"s_add_u32 s35, s{sT0}, s{sT1}")
        e(f"s_cmp_eq_u32 s{sROLE}, 14"); e(f"s_cselect_b32 s35, 0x4000000, s35")
        if o.get('nowo'): e(f"s_mov_b32 s35, 0x4000000")
        e(f"v_lshrrev_b32 v{va}, 3, v{vL}"); e(f"v_mul_u32_u24 v{vb}, 896, v{va}"); e(f"v_and_b32 v{vc}, 7, v{vL}")
        e(f"v_and_b32 v{va}, 2, v{va}"); e(f"v_xor_b32 v{vc}, v{vc}, v{va}"); e(f"v_xor_b32 v{vd}, 4, v{vc}")
        e(f"v_lshl_add_u32 v{va}, v{vc}, 4, v{vb}"); e(f"v_lshl_add_u32 v{vb}, v{vd}, 4, v{vb}")
    def wo_issue(nper, va, vb, p0=0):
        e(f"s_mul_i32 s46, s{sW}, {1024*nper}")
        for ii in range(nper):
            e(f"s_add_u32 m0, s46, {L_WO+(p0+ii)*1024}")
            e(f"s_add_u32 s47, s35, {ii*8*896}")
            e(f"buffer_load_dwordx4 v{vb if ii%2 else va}, {sr(sWO)}, s47 offen {POL} lds")
    WE = {0: 4, 1: 0, 2: 2}[o['wol']]
    WLATE = (32 - 8*WE)//4
    NWO = WE
    if o.get('nodma'): NWO = 0
    elif WE:
        wo_setup(WE, 60, 61, 62, 63); wo_issue(WE, 60, 61)
    for v in range(8):
        pat = (0x11 << (v & 3)) << (8*(v >> 2)); pat |= pat << 16
        e(f"s_mov_b32 s{sMASK+2*v}, 0x{pat:08x}"); e(f"s_mov_b32 s{sMASK+2*v+1}, 0x{pat:08x}")
    e(f"s_mov_b32 s{sSEL0}, 0x05040100"); e(f"s_mov_b32 s{sSEL1}, 0x07060302")
    e(f"s_mov_b32 s{sC}, 0x{f2u(math.log2(math.e)/16):08x}")
    e(f"s_mov_b32 s{sM8}, 0xff00ff00"); e(f"s_mov_b32 s{sM8+1}, 0xff00ff00")
    if o['qp']:
        e(f"s_cmp_lg_u32 s{sW}, {o['qp']}"); e("s_cbranch_scc1 L_notqp")
        e(f"s_lshl_b32 s{sT3}, s{sG}, 3"); e(f"s_add_u32 s{sT3}, s{sT3}, s{sB}"); e(f"s_lshl_b32 s{sT3}, s{sT3}, 11"); e(f"s_add_u32 s{sT3}, s{sT3}, {WS_Q+WS_F}")
        e("s_getreg_b32 s44, hwreg(HW_REG_XCC_ID, 0, 3)")
        e(f"s_waitcnt vmcnt({32 + NWO})")
        e(f"v_and_b32 v{vTAG}, -8, v{vTAG}"); e(f"v_add_u32 v{vTAG}, 8, v{vTAG}"); e(f"v_or_b32 v53, s44, v{vTAG}")
        qgather(False)
        e("s_branch L_b2")
        g.lab("L_notqp")
    if o['e1']:
        e(f"s_cmp_lg_u32 s{sW}, 7"); e("s_cbranch_scc1 L_b2")
        e(f"s_waitcnt vmcnt({NWO})")
    else:
        e(f"s_cmp_eq_u32 s{sW}, 0"); e("s_cbranch_scc1 L_b2")
        e(f"s_waitcnt vmcnt({32 - o['pre'] + NWO})")
        e(f"v_and_b32 v{vTAG}, -8, v{vTAG}"); e(f"v_add_u32 v{vTAG}, 8, v{vTAG}")
        e(f"s_cmp_lg_u32 s{sW}, 7"); e("s_cbranch_scc1 L_b2")
    g.c("wave 7: gate g -> s22, 1-g -> s23 (bf16-rounded like the reference)")
    e(f"v_cmp_gt_u32 vcc, 56, v{vL}"); e("v_mov_b32 v24, 0"); e("s_nop 0")
    for k in range(4): e(f"v_cndmask_b32 v{16+k}, 0, v{16+k}, vcc")
    for k in range(4):
        e(f"v_lshlrev_b32 v25, 16, v{16+k}"); e(f"v_and_b32 v26, 0xffff0000, v{16+k}")
        e(f"v_lshlrev_b32 v27, 16, v{20+k}"); e(f"v_and_b32 v28, 0xffff0000, v{20+k}")
        e("v_mul_f32 v25, v25, v27"); e("v_mul_f32 v26, v26, v28")
        e("v_cvt_pk_bf16_f32 v25, v25, v26")
        e("v_lshlrev_b32 v26, 16, v25"); e("v_and_b32 v25, 0xffff0000, v25")
        e("v_add_f32 v24, v24, v26"); e("v_add_f32 v24, v24, v25")
    for dpp in ("quad_perm:[1,0,3,2]", "quad_perm:[2,3,0,1]", "row_ror:4", "row_ror:8"):
        e("s_nop 1"); e(f"v_add_f32_dpp v24, v24, v24 {dpp} {DPP}")
    for sw in ("16", "32"):
        e("v_mov_b32 v25, v24"); e("s_nop 1"); e(f"v_permlane{sw}_swap_b32 v24, v25"); e("v_add_f32 v24, v24, v25")
    e("v_cvt_pk_bf16_f32 v24, v24, v24"); e("v_and_b32 v24, 0xffff0000, v24")
    e(f"v_mul_f32 v24, 0x{f2u(-math.log2(math.e)):08x}, v24"); e("v_exp_f32 v24, v24"); e("s_nop 0")
    e("v_add_f32 v24, 1.0, v24"); e("v_rcp_f32 v24, v24"); e("s_nop 0")
    e("v_cvt_pk_bf16_f32 v24, v24, v24"); e("v_and_b32 v24, 0xffff0000, v24")
    e("v_sub_f32 v25, 1.0, v24"); e("v_cvt_pk_bf16_f32 v25, v25, v25"); e("v_and_b32 v25, 0xffff0000, v25")
    e("v_readfirstlane_b32 s22, v24"); e("v_readfirstlane_b32 s23, v25")
    g.lab("L_b2")
    e(f"v_bfe_u32 v{vC}, v{vL}, 2, 1"); e(f"v_lshlrev_b32 v{vA}, 9, v{vC}")
    e(f"v_lshl_add_u32 v{vA}, v{vB}, 6, v{vA}")
    e(f"v_and_b32 v60, 3, v{vL}"); e(f"v_lshl_add_u32 v{vA}, v60, 4, v{vA}")
    e(f"s_and_b32 s{sT0}, s{sR}, 0x100"); e(f"v_add_u32 v{vA}, s{sT0}, v{vA}"); e(f"v_xor_b32 v60, 0x100, v{vA}")
    e("v_mov_b32 v62, 0"); e("s_mov_b32 s42, 1")
    if not o.get('noqw'):
        e(f"s_mov_b32 s{sSPIN}, 0x400000")
        if o['qp']:
            e(f"s_cmp_lg_u32 s{sW}, 0"); e("s_cbranch_scc1 L_qwait")
            g.lab("L_q0w")
            e(f"ds_read_b32 v61, v62 offset:{L_F}"); e(f"ds_read_b32 v63, v62 offset:{L_RQ}"); e("s_waitcnt lgkmcnt(0)")
            e("v_readfirstlane_b32 s42, v61"); e(f"v_readfirstlane_b32 s{sT0}, v63")
            e(f"s_and_b32 s{sT1}, s42, 2"); e(f"s_or_b32 s{sT0}, s{sT0}, s{sT1}"); e("s_cbranch_scc1 L_q0s")
            e("s_cmp_lg_u32 s42, 0"); e("s_cbranch_scc1 L_qready")
            e(f"s_sleep {o['qsl']}"); e(f"s_sub_u32 s{sSPIN}, s{sSPIN}, 1"); e("s_cbranch_scc0 L_q0w")
            g.lab("L_q0s")
            e(f"buffer_store_dwordx4 v[52:55], v43, {sr(sWS)}, s45 offen sc1")
            e("s_waitcnt vmcnt(0)")
        g.lab("L_qwait")
        e(f"ds_read_b32 v61, v62 offset:{L_F}"); e("s_waitcnt lgkmcnt(0)"); e(f"v_readfirstlane_b32 s42, v61"); e(f"s_cmp_lg_u32 s42, 0"); e("s_cbranch_scc1 L_qready")
        e(f"s_sleep {o['qsl']}"); e(f"s_sub_u32 s{sSPIN}, s{sSPIN}, 1"); e("s_cbranch_scc0 L_qwait")
        g.lab("L_qready")
        if o['e1']: e(f"v_and_b32 v{vTAG}, -8, v61"); e("s_and_b32 s42, s42, 7")
    if o.get('b2'): e("s_barrier")
    g.ts("B2")
    g.c("q fragments; QK^T, softmax, P.V")
    e(f"ds_read_b128 {vr(vQB)}, v{vA} offset:{L_QL}")
    e(f"ds_read_b128 {vr(vQB+4)}, v60 offset:{L_QL}")
    e("s_waitcnt lgkmcnt(0)")
    def xred(r, t, op):
        for sw in ("16", "32"):
            e(f"v_mov_b32 v{t}, v{r}"); e("s_nop 1"); e(f"v_permlane{sw}_swap_b32 v{r}, v{t}"); e(f"{op} v{r}, v{r}, v{t}")
    def soft(blk):
        if o.get('nocomp'): return
        S = vS + 8*blk
        if o['round_s']:
            for u in range(0, 8, 2): e(f"v_cvt_pk_bf16_f32 v{vP8+u//2}, v{S+u}, v{S+u+1}")
            for u in range(0, 8, 2):
                e(f"v_lshlrev_b32 v{S+u}, 16, v{vP8+u//2}"); e(f"v_and_b32 v{S+u+1}, 0xffff0000, v{vP8+u//2}")
        e(f"v_max3_f32 v{vA}, v{S}, v{S+1}, v{S+2}"); e(f"v_max3_f32 v{vB}, v{S+3}, v{S+4}, v{S+5}")
        e(f"v_max3_f32 v{vA}, v{vA}, v{S+6}, v{S+7}"); e(f"v_max_f32 v{vA}, v{vA}, v{vB}")
        xred(vA, vB, "v_max_f32")
        if blk == 0:
            e(f"v_mul_f32 v{vM0}, s{sC}, v{vA}")
        else:
            e(f"v_mul_f32 v{vA}, s{sC}, v{vA}"); e(f"v_max_f32 v{vA}, v{vA}, v{vM0}")
            e(f"v_sub_f32 v{vAL}, v{vM0}, v{vA}"); e(f"v_mov_b32 v{vM0}, v{vA}"); e(f"v_exp_f32 v{vAL}, v{vAL}")
        for u in range(8): e(f"v_fma_f32 v{S+u}, v{S+u}, s{sC}, -v{vM0}")
        for u in range(8): e(f"v_exp_f32 v{S+u}, v{S+u}")
        e("s_nop 0")
        for t in range(4): e(f"v_cvt_pk_bf16_f32 v{vP8+t}, v{S+2*t}, v{S+2*t+1}")
        for t in range(4): e(f"v_add_f32 v{S+t}, v{S+t}, v{S+t+4}")
        e(f"v_add_f32 v{S}, v{S}, v{S+2}"); e(f"v_add_f32 v{S+1}, v{S+1}, v{S+3}")
        if blk == 0:
            e(f"v_add_f32 v{vL0}, v{S}, v{S+1}")
        else:
            e(f"v_add_f32 v{S}, v{S}, v{S+1}"); e(f"v_fmac_f32 v{S}, v{vL0}, v{vAL}")
            xred(S, S+1, "v_add_f32")
            e(f"ds_write_b32 v{vSA}, v{vM0} offset:{L_SM}"); e(f"ds_write_b32 v{vSA}, v{S} offset:{L_SL}")
            e(f"v_mov_b32 v{S+1}, 1"); e(f"v_mov_b32 v{S+2}, 0"); e("s_mov_b64 exec, 1")
            e(f"ds_add_u32 v{S+2}, v{S+1} offset:{L_CNT}"); e("s_mov_b64 exec, -1")
            e(f"v_readlane_b32 s{sT0}, v{vAL}, 0"); e(f"v_readlane_b32 s{sT1}, v{vAL}, 4")
        for v in range(8):
            for t in range(4):
                e(f"v_cndmask_b32 v{vPV+4*v+t}, 0, v{vP8+t}, s[{sMASK+2*v}:{sMASK+2*v+1}]")
    def pv(unit):
        if o.get('nocomp'): return
        blk, hf = unit//2, unit % 2
        base = vreg(unit); acc = vACC + 4*hf
        def perms(d):
            for t in range(4):
                e(f"v_perm_b32 v{vT+4*(d%3)+t}, v{base+4*(2*t+1)+d//2}, v{base+4*(2*t)+d//2}, s{sSEL1 if d&1 else sSEL0}")
        perms(0)
        for d in range(8):
            if d < 7: perms(d+1)
            else: g.nop(2)
            cin = "0" if (blk == 0 and d == 0) else vr(acc)
            e(f"v_mfma_f32_16x16x32_bf16 {vr(acc)}, {vr(vPV+4*d)}, {vr(vT+4*(d%3))}, {cin}")
    def qkm(bt, dbase, wait):
        e(f"s_waitcnt vmcnt({wait})")
        g.ts(f"K{bt}")
        if o.get('nocomp'): return
        for u in range(4*bt, 4*bt+4):
            d = dbase + 4*(u % 4)
            e(f"v_mfma_f32_16x16x32_bf16 {vr(d)}, {vr(kreg(2*u))}, {vr(vQB)}, 0")
            e(f"v_mfma_f32_16x16x32_bf16 {vr(d)}, {vr(kreg(2*u+1))}, {vr(vQB+4)}, {vr(d)}")
    def postb(bt, dbase):
        if o.get('nocomp'): return
        for step in range(4):
            for u in range(4*bt, 4*bt+4):
                d = dbase + 4*(u % 4); s_ = vS + u
                if step == 0: e(f"v_mov_b32_dpp v{s_}, v{d} quad_perm:[0,0,0,0] {DPP}")
                else: e(f"v_add_f32_dpp v{s_}, v{d+step}, v{s_} quad_perm:[{step},{step},{step},{step}] {DPP}")
    def vunit(u):
        for j in range(8): vload(u, j)
    def addrs():
        e(f"v_lshlrev_b32 v{vC}, 5, v{vC}")
        e(f"s_lshl_b32 s{sT0}, s{sW}, 2"); e(f"v_add_u32 v{vSA}, s{sT0}, v{vC}")
        e(f"v_bfe_u32 v{vC}, v{vL}, 4, 1"); e(f"v_lshlrev_b32 v{vORA}, 10, v{vC}"); e(f"v_lshlrev_b32 v{vC}, 5, v{vC}")
        e(f"v_and_b32 v{vORB}, 15, v{vL}"); e(f"v_lshl_add_u32 v{vORA}, v{vORB}, 5, v{vORA}")
        e(f"v_lshrrev_b32 v{vORB}, 5, v{vL}"); e(f"v_lshl_add_u32 v{vORA}, v{vORB}, 4, v{vORA}")
        e(f"s_and_b32 s{sT1}, s{sR}, 0x100"); e(f"s_lshl_b32 s{sT1}, s{sT1}, 1"); e(f"v_add_u32 v{vORA}, s{sT1}, v{vORA}"); e(f"v_xor_b32 v{vORB}, 0x200, v{vORA}")
        e(f"s_lshl_b32 s{sT0}, s{sW}, 11"); e(f"s_add_u32 s{sT0}, s{sT0}, {L_OR}"); e(f"v_add_u32 v{vORA}, s{sT0}, v{vORA}"); e(f"v_add_u32 v{vORB}, s{sT0}, v{vORB}")
        if o['pret']:
            e(f"s_sub_u32 s{sT0}, s{sW}, 1"); e(f"s_cmp_gt_u32 s{sT0}, 1"); e("s_cbranch_scc1 L_nopre")
            e(f"s_and_b32 s{sT1}, s{sMEM}, 1"); e(f"s_lshl_b32 s{sT1}, s{sT1}, 3"); e(f"s_add_u32 s{sT1}, s{sT1}, s{sB}")
            e(f"s_lshl_b32 s{sT2}, s{sG}, 1"); e(f"s_add_u32 s{sT2}, s{sT2}, s{sT0}")
            e(f"s_lshl_b32 s{sT2}, s{sT2}, 14"); e(f"s_lshl_b32 s{sT1}, s{sT1}, 10"); e(f"s_add_u32 s{sT2}, s{sT2}, s{sT1}"); e(f"s_add_u32 s{sT2}, s{sT2}, {WS_O+WS_F}")
            e(f"v_add_u32 v60, 1, v{vTAG}"); e("v_mov_b32 v61, v60"); e("v_mov_b32 v62, v60"); e("v_mov_b32 v63, v60"); e(f"v_lshlrev_b32 v55, 4, v{vL}")
            e(f"buffer_store_dwordx4 v[60:63], v55, {sr(sWS)}, s{sT2} offen")
            g.lab("L_nopre")
            e("s_nop 1")
    W = NWO
    if o['kv'] == 0:
        qkm(0, 32, 24+W); vunit(0); qkm(1, 48, 24+W); vunit(1)
        postb(0, 32); postb(1, 48); addrs(); soft(0)
        qkm(2, 32, 24+W); vunit(2)
        if o['wt'] == 2:
            e("v_mov_b32 v60, 1"); e("v_mov_b32 v61, 0"); e("s_mov_b64 exec, 1"); e(f"ds_add_u32 v61, v60 offset:{L_CN2}"); e("s_mov_b64 exec, -1")
        postb(2, 32)
        e("s_waitcnt vmcnt(16)"); g.ts("V0"); pv(0)
        qkm(3, 96, 24+W); vunit(3)
        if o['wt'] == 1:
            e("v_mov_b32 v60, 1"); e("v_mov_b32 v61, 0"); e("s_mov_b64 exec, 1"); e(f"ds_add_u32 v61, v60 offset:{L_CN2}"); e("s_mov_b64 exec, -1")
        g.ts("QK")
        e("s_waitcnt vmcnt(16)"); g.ts("V1"); pv(1)
        postb(3, 96); soft(1)
    else:
        K2 = (o['kv'] == 2)
        qkm(0, 32, 24+W)
        if not K2:
            for n in range(16, 24): kload(n)
        qkm(1, 48, (16 if K2 else 24)+W)
        if not K2:
            for n in range(24, 32): kload(n)
        else: g.nop(4)
        postb(0, 32); postb(1, 48); addrs(); soft(0)
        if K2:
            e(f"s_waitcnt vmcnt({8+W})"); pv(0)
            e(f"s_waitcnt vmcnt({W})"); pv(1)
            for n in range(16, 32): kload(n)
            vunit(2); vunit(3)
        else:
            e(f"s_waitcnt vmcnt({24+W})"); pv(0); vunit(2)
            e(f"s_waitcnt vmcnt({24+W})"); pv(1); vunit(3)
        g.ts("QK")
        qkm(2, 32, 24); qkm(3, 96, 16)
        postb(2, 32); postb(3, 96); soft(1)
    e(f"v_mov_b32 v{vAL}, s{sT0}"); e(f"v_mov_b32 v{vA}, s{sT1}"); e(f"s_mov_b32 vcc_lo, 0xffff0000"); e(f"s_mov_b32 vcc_hi, 0xffff0000")
    e(f"v_cndmask_b32 v{vAL}, v{vAL}, v{vA}, vcc")
    for k in range(8): e(f"v_mul_f32 v{vACC+k}, v{vACC+k}, v{vAL}")
    g.ts("P")
    e(f"s_waitcnt vmcnt(8)"); g.ts("V2"); pv(2)
    if o['cpf2']:
        e(f"s_cmp_lg_u32 s{sW}, 3"); e("s_cbranch_scc1 L_nopf2")
        e(f"s_getpc_b64 s[{sT2}:{sT3}]")
        g.lab("L_pc2")
        e(f"v_lshlrev_b32 v60, 7, v{vL}"); e(f"s_mov_b32 s{sT0}, L_codeend-L_pc2-4"); e(f"v_min_u32 v60, s{sT0}, v60")
        e(f"global_load_dword v61, v60, s[{sT2}:{sT3}]")
        e("s_waitcnt vmcnt(0)")
        g.lab("L_nopf2")
    if o['wt']:
        e(f"s_cmp_gt_u32 s{sW}, 3"); e("s_cbranch_scc1 L_nowt")
        e(f"s_cmp_eq_u32 s{sROLE}, 14"); e("s_cbranch_scc1 L_nowt")
        wo_setup(WLATE, 60, 61, 62, 63, 8*WE)
        e("v_mov_b32 v62, 0")
        e("s_waitcnt vmcnt(0)")
        e(f"s_mov_b32 s{sSPIN}, 0x400000")
        g.lab("L_wtw")
        e(f"ds_read_b32 v63, v62 offset:{L_CN2}"); e("s_waitcnt lgkmcnt(0)"); e(f"v_readfirstlane_b32 s{sT0}, v63"); e(f"s_cmp_ge_u32 s{sT0}, {o.get('wtn', 8)}"); e("s_cbranch_scc1 L_wtg")
        e(f"s_sleep {o['ssl']}"); e(f"s_sub_u32 s{sSPIN}, s{sSPIN}, 1"); e("s_cbranch_scc0 L_wtw")
        g.lab("L_wtg")
        wo_issue(WLATE, 60, 61, 8*WE)
        g.lab("L_nowt")
    g.c("workgroup-level softmax factor from the 8 waves (max, sum)")
    e(f"s_lshl_b32 s{sT0}, s{sW}, 2"); e(f"v_add_u32 v{vB}, s{sT0}, v{vC}"); e("v_mov_b32 v62, 0")
    if o.get('nocomp') or o.get('nosw'): e("s_branch L_sready")
    e(f"s_mov_b32 s{sSPIN}, 0x400000")
    g.lab("L_swait")
    e(f"ds_read_b32 v61, v62 offset:{L_CNT}"); e("s_waitcnt lgkmcnt(0)"); e(f"v_readfirstlane_b32 s{sT0}, v61"); e(f"s_cmp_eq_u32 s{sT0}, 8"); e("s_cbranch_scc1 L_sready")
    e(f"s_sleep {o['ssl']}"); e(f"s_sub_u32 s{sSPIN}, s{sSPIN}, 1"); e("s_cbranch_scc0 L_swait")
    g.lab("L_sready")
    e(f"ds_read_b128 {vr(16)}, v{vC} offset:{L_SM}"); e(f"ds_read_b128 {vr(20)}, v{vC} offset:{L_SM+16}")
    e(f"ds_read_b32 v{vF}, v{vB} offset:{L_SM}")
    e(f"ds_read_b128 {vr(24)}, v{vC} offset:{L_SL}"); e(f"ds_read_b128 {vr(28)}, v{vC} offset:{L_SL+16}")
    e("s_waitcnt lgkmcnt(0)")
    e("v_max3_f32 v124, v16, v17, v18"); e("v_max3_f32 v125, v19, v20, v21"); e("v_max3_f32 v124, v124, v22, v23"); e("v_max_f32 v124, v124, v125")
    for w in range(8): e(f"v_sub_f32 v{16+w}, v{16+w}, v124")
    e(f"v_sub_f32 v{vF}, v{vF}, v124")
    for w in range(8): e(f"v_exp_f32 v{16+w}, v{16+w}")
    e(f"v_exp_f32 v{vF}, v{vF}")
    e("v_mul_f32 v126, v24, v16")
    for w in range(1, 8): e(f"v_fmac_f32 v126, v{24+w}, v{16+w}")
    e(f"v_rcp_f32 v16, v126"); e(f"v_mov_b32 v125, v{vTAG}"); e(f"v_mov_b32 v127, v{vTAG}")
    e(f"v_mul_f32 v{vF}, v{vF}, v16")
    e(f"v_lshrrev_b32 v53, 4, v{vL}")
    e(f"v_lshlrev_b32 v60, 4, v{vL}")
    e(f"s_lshl_b32 s{sT2}, s{sG}, 1")
    e(f"s_cmp_lt_u32 s{sW}, 4"); e("s_cbranch_scc1 L_a03")
    e(f"s_cmp_eq_u32 s{sW}, 4"); e("s_cbranch_scc1 L_a4")
    e(f"s_cmp_eq_u32 s{sW}, 7"); e("s_cbranch_scc1 L_a7")
    e(f"s_sub_u32 s{sT0}, s{sW}, 5")
    e(f"s_and_b32 s{sT1}, s{sMEM}, 1"); e(f"s_lshl_b32 s{sT1}, s{sT1}, 3"); e(f"s_add_u32 s{sT1}, s{sT1}, s{sB}")
    e(f"s_add_u32 s{sT2}, s{sT2}, s{sT0}")
    e(f"s_lshl_b32 s44, s{sT2}, 14"); e(f"s_lshl_b32 s45, s{sT1}, 10"); e(f"s_add_u32 s44, s44, s45"); e(f"s_add_u32 s44, s44, {WS_O}"); e(f"s_add_u32 s45, s44, {WS_F}")
    e(f"s_lshl_b32 s{sT2}, s{sT2}, 8"); e(f"s_lshl_b32 s{sT1}, s{sT1}, 4"); e(f"s_add_u32 s{sT2}, s{sT2}, s{sT1}"); e(f"s_add_u32 s{sT2}, s{sT2}, {WS_S}"); e(f"s_add_u32 s{sT3}, s{sT2}, {WS_F}")
    e(f"s_lshl_b32 s{sT1}, s{sT0}, 4"); e(f"s_lshl_b64 exec, 1, s{sT1}")
    e(f"s_cmp_eq_u32 s42, 1"); e(f"s_cselect_b32 s{sT2}, 0x4000000, s{sT2}"); e("s_cselect_b32 s44, 0x4000000, s44")
    if o['lst']:
        e("s_mov_b64 s[64:65], exec")
    else:
        e(f"buffer_store_dwordx4 v[124:127], v62, {sr(sWS)}, s{sT3} offen")
        e(f"buffer_store_dwordx4 v[124:127], v62, {sr(sWS)}, s{sT2} offen sc1")
    e("s_mov_b64 exec, -1")
    e(f"s_lshl_b32 s{sT1}, s{sT0}, 10"); e(f"s_add_u32 s{sT1}, s{sT1}, {L_OR}"); e(f"v_add_u32 v61, s{sT1}, v60")
    e(f"v_mov_b32 v97, v{vTAG}"); e(f"v_mov_b32 v99, v{vTAG}")
    e(f"s_waitcnt vmcnt({0 if o['lst'] else 2})")
    e("s_branch L_v3")
    g.lab("L_a03")
    e(f"s_add_u32 s{sT2}, s{sT2}, s{sH3}")
    e(f"v_and_b32 v54, 15, v{vL}"); e("v_lshlrev_b32 v52, 10, v54"); e("v_lshl_add_u32 v52, v53, 5, v52"); e("v_lshlrev_b32 v54, 2, v54")
    e(f"s_lshl_b32 s{sT3}, s{sT2}, 14"); e(f"s_lshl_b32 s{sT0}, s{sW}, 8"); e(f"s_add_u32 s{sT3}, s{sT3}, s{sT0}"); e(f"s_add_u32 s{sT3}, s{sT3}, {WS_O+WS_F}")
    e(f"s_lshl_b32 s{sT0}, s{sW}, 11"); e(f"v_add_u32 v61, s{sT0}, v60")
    e(f"v_bfe_u32 v55, v{vL}, 2, 2"); e("v_lshl_add_u32 v63, v53, 3, v55"); e("v_lshlrev_b32 v63, 7, v63")
    e(f"v_bfe_u32 v16, v{vL}, 1, 1"); e(f"s_lshl_b32 s{sT0}, s{sW}, 1"); e(f"v_add_u32 v16, s{sT0}, v16")
    if o['wosw']:
        e("v_and_b32 v55, 2, v55"); e("v_xor_b32 v16, v16, v55"); e("v_and_b32 v55, 1, v53"); e("v_lshlrev_b32 v55, 2, v55"); e("v_xor_b32 v16, v16, v55")
    e("v_lshl_add_u32 v63, v16, 4, v63"); e(f"v_and_b32 v16, 1, v{vL}"); e("v_lshl_add_u32 v63, v16, 3, v63"); e(f"v_add_u32 v63, {L_WO}, v63")
    e(f"s_lshl_b32 s{sT0}, s{sNL}, 2"); e(f"s_add_u32 s{sT0}, s{sT0}, s{sW}"); e(f"s_lshl_b32 s{sT0}, s{sT0}, 15"); e(f"s_lshl_b32 s44, s{sT2}, 7")
    e(f"s_add_u32 s44, s44, s{sT0}"); e(f"s_add_u32 s44, s44, {WS_P}")
    e(f"v_and_b32 v55, 7, v{vL}"); e("v_lshlrev_b32 v55, 12, v55"); e("v_lshl_add_u32 v55, v53, 5, v55")
    e(f"v_bfe_u32 v16, v{vL}, 3, 1"); e("v_lshl_add_u32 v55, v16, 4, v55")
    e(f"v_mov_b32 v109, v{vTAG}"); e(f"v_mov_b32 v111, v{vTAG}")
    e(f"s_lshl_b32 s45, s{sG}, 2"); e(f"s_add_u32 s45, s45, {WS_H}"); e(f"v_lshlrev_b32 v17, 8, v{vL}")
    if o['wt']:
        e(f"s_cmp_eq_u32 s{sROLE}, 14"); e("s_cbranch_scc0 L_v3")
    elif o['wol']: wo_setup(WLATE, 18, 19, 20, 21, 8*WE)
    e("s_branch L_nostat")
    g.lab("L_a4")
    e(f"s_add_u32 s{sT2}, s{sT2}, s{sH3}"); e(f"s_lshl_b32 s{sT3}, s{sT2}, 8"); e(f"s_add_u32 s{sT3}, s{sT3}, {WS_S+WS_F}")
    e(f"v_and_b32 v54, 15, v{vL}"); e("v_lshlrev_b32 v55, 4, v54"); e("v_lshlrev_b32 v54, 2, v54")
    e("s_branch L_nostat")
    g.lab("L_a7")
    e(f"s_lshl_b32 s{sT3}, s2, 12"); e(f"s_add_u32 s{sT3}, s{sT3}, {WS_P}")
    e(f"v_and_b32 v54, 7, v{vL}"); e("v_lshlrev_b32 v54, 2, v54"); e(f"v_lshlrev_b32 v55, 2, v{vL}")
    e(f"s_mul_i32 s21, s{sKVH}, 896"); e("s_lshr_b32 s20, s2, 3"); e("s_lshl_b32 s20, s20, 5"); e("s_add_u32 s21, s21, s20")
    e(f"s_and_b32 s20, s2, {o['nrep']-1}"); e("s_lshl_b32 s20, s20, 8"); e(f"s_add_u32 s20, s20, {WS_H}")
    g.lab("L_nostat")
    e("s_waitcnt vmcnt(0)")
    g.lab("L_v3")
    for k in range(4): e(f"v_mul_f32 v{vACC+k}, v{vACC+k}, v{vF}")
    g.ts("V3")
    e(f"ds_write_b128 v{vORA}, {vr(vACC)}")
    pv(3)
    e(f"s_cmp_lt_u32 s{sW}, 5")
    g.nop(7)
    for k in range(4): e(f"v_mul_f32 v{vACC+4+k}, v{vACC+4+k}, v{vF}")
    e(f"ds_write_b128 v{vORB}, {vr(vACC+4)}")
    if o['wol'] and not o['wt']:
        e(f"s_cmp_gt_u32 s{sW}, 3"); e("s_cbranch_scc1 L_nowo")
        if o.get('sk14', 1): e(f"s_cmp_eq_u32 s{sROLE}, 14"); e("s_cbranch_scc1 L_nowo")
        wo_issue(WLATE, 18, 19, 8*WE)
        g.lab("L_nowo")
        e(f"s_cmp_lt_u32 s{sW}, 5")
    e("s_waitcnt lgkmcnt(0)")
    e("s_barrier")
    g.ts("B4")
    if o.get('stopb4'): e("s_branch L_fin")
    e("s_cbranch_scc1 L_cons")
    e(f"s_cmp_eq_u32 s{sW}, 7"); e("s_cbranch_scc1 L_w7")
    g.c("waves 5,6: sum the 8 partial o, publish")
    for w in range(8): e(f"ds_read_b128 {vr(64+4*w)}, v61 offset:{w*2048}")
    if o['lst']:
        e("s_mov_b64 exec, s[64:65]")
        e(f"buffer_store_dwordx4 v[124:127], v62, {sr(sWS)}, s{sT3} offen")
        e(f"buffer_store_dwordx4 v[124:127], v62, {sr(sWS)}, s{sT2} offen sc1")
        e("s_mov_b64 exec, -1")
    for w in range(1, 8, 2):
        e(f"s_waitcnt lgkmcnt({0 if (o['ts'] or o.get('holdat')) else 7-w})")
        if o['pk']:
            for k in (0, 2): e(f"v_pk_add_f32 {vr(64+4*(w-1)+k,2)}, {vr(64+4*(w-1)+k,2)}, {vr(64+4*w+k,2)}")
            if w > 1:
                for k in (0, 2): e(f"v_pk_add_f32 {vr(64+k,2)}, {vr(64+k,2)}, {vr(64+4*(w-1)+k,2)}")
            continue
        for k in range(4): e(f"v_add_f32 v{64+4*(w-1)+k}, v{64+4*(w-1)+k}, v{64+4*w+k}")
        if w > 1:
            for k in range(4): e(f"v_add_f32 v{64+k}, v{64+k}, v{64+4*(w-1)+k}")
    e("v_cvt_pk_bf16_f32 v96, v64, v65"); e("v_cvt_pk_bf16_f32 v98, v66, v67")
    e(f"buffer_store_dwordx4 v[96:99], v60, {sr(sWS)}, s45 offen {o['opol']}")
    g.ts("opub")
    e(f"buffer_store_dwordx4 v[96:99], v60, {sr(sWS)}, s44 offen sc1")
    e(f"s_cmp_eq_u32 s{sROLE}, 14"); e("s_cbranch_scc1 L_fin")
    if B45: e("s_barrier")
    e("s_barrier")
    e("s_branch L_fin")
    g.lab("L_cons")
    g.c("wave 4: merge weights of the two key halves; waves 0..3: gather o, project, publish partials")
    e(f"s_cmp_eq_u32 s{sROLE}, 14"); e("s_cbranch_scc1 L_fin")
    e(f"s_cmp_lt_u32 s{sW}, 4"); e("s_cbranch_scc1 L_gath")
    if B45: e("s_barrier")
    e("s_mov_b64 exec, 0xffff")
    def sl(): e(f"buffer_load_dwordx4 {vr(160)}, v55, {sr(sWS)}, s{sT3} offen {o.get('ppol2', o['ppol'])}")
    poll("sg", sl, [161, 163], 58, 59, o['sleep1'])
    if o['gate1']: e(f"v_mov_b32 v61, 9"); e(f"ds_write_b32 v62, v61 offset:{L_CNT}")
    e(f"v_mov_b32_dpp v100, v160 row_ror:8 {DPP}")
    e(f"v_mov_b32_dpp v101, v162 row_ror:8 {DPP}")
    e("v_max_f32 v102, v160, v100")
    e("v_sub_f32 v103, v160, v102"); e("v_sub_f32 v100, v100, v102")
    e("v_exp_f32 v103, v103"); e("v_exp_f32 v100, v100"); e("s_nop 0")
    e("v_mul_f32 v103, v103, v162"); e("v_fma_f32 v100, v100, v101, v103")
    e("v_rcp_f32 v100, v100"); e("s_nop 0"); e("v_mul_f32 v103, v103, v100")
    e("s_mov_b64 exec, 0xffff")
    e(f"ds_write_b32 v54, v103 offset:{L_W}")
    e("s_waitcnt lgkmcnt(0)")
    e("s_barrier")
    e("s_branch L_fin")
    g.lab("L_gath")
    def gl():
        for k in range(2):
            e(f"buffer_load_dwordx4 {vr(128+8*k)}, v52, {sr(sWS)}, s{sT3} offen offset:{128*k} {o.get('ppol2', o['ppol'])}")
            e(f"buffer_load_dwordx4 {vr(132+8*k)}, v52, {sr(sWS)}, s{sT3} offen offset:{128*k+16} {o.get('ppol2', o['ppol'])}")
    def wofr():
        for k in range(8):
            e(f"ds_read_b64_tr_b16 {vr(64+4*k,2)}, v63 offset:{k*4096}")
            e(f"ds_read_b64_tr_b16 {vr(66+4*k,2)}, v63 offset:{k*4096+512}")
            if k == 6: e("s_waitcnt lgkmcnt(4)")
    def wofr45():
        e("s_waitcnt vmcnt(4)"); e("s_barrier"); wofr()
    if o.get('pw') is not None: e(f"s_waitcnt vmcnt({o['pw']})")
    if not o['g1p']:
        poll("g1", gl, [129+2*i for i in range(8)], 58, 59, o['sleep1'], first=(wofr45 if B45 else None) if o['wol'] else wofr, gate=o['gate1'])
        for k in range(2):
            e(f"v_mov_b32 v{129+8*k}, v{130+8*k}"); e(f"v_mov_b32 v{130+8*k}, v{132+8*k}"); e(f"v_mov_b32 v{131+8*k}, v{134+8*k}")
            e(f"ds_write_b128 v61, {vr(128+8*k)} offset:{L_B3+1024*k}")
    else:
        def gl2(b):
            for k in range(2):
                e(f"buffer_load_dwordx4 {vr(b+8*k)}, v52, {sr(sWS)}, s{sT3} offen offset:{128*k} sc1")
                e(f"buffer_load_dwordx4 {vr(b+4+8*k)}, v52, {sr(sWS)}, s{sT3} offen offset:{128*k+16} sc1")
        e(f"s_mov_b32 s{sSPIN}, {o['spin']}"); e("s_mov_b64 s[66:67], 0")
        gl2(128); wofr(); e(f"s_sleep {o['g1p']}"); gl2(144)
        g.lab("L_g1")
        e("s_waitcnt vmcnt(4)")
        tagcheck([129+2*i for i in range(8)], 58, 59)
        e("s_cbranch_scc0 L_g1_ok")
        e("s_mov_b64 exec, vcc")
        gl2(128)
        e("s_waitcnt vmcnt(4)")
        tagcheck([145+2*i for i in range(8)], 58, 59)
        e("s_andn2_b64 s[64:65], exec, vcc"); e("s_or_b64 s[66:67], s[66:67], s[64:65]")
        e("s_cmp_eq_u64 vcc, 0"); e("s_cbranch_scc1 L_g1_ok")
        e("s_mov_b64 exec, vcc")
        e(f"s_cmp_eq_u32 s{sSPIN}, {o['spin']-o['fthr']}"); e(f"s_cselect_b32 s{sT0}, {WS_F}, 0"); e(f"s_sub_u32 s{sT3}, s{sT3}, s{sT0}")
        gl2(144)
        e(f"s_sub_u32 s{sSPIN}, s{sSPIN}, 1"); e("s_cbranch_scc0 L_g1")
        g.lab("L_g1_ok")
        e("s_mov_b64 exec, -1")
        for k in range(2):
            for t in range(4): e(f"v_cndmask_b32 v{192+4*k+t}, v{128+8*k+2*t}, v{144+8*k+2*t}, s[66:67]")
            e(f"ds_write_b128 v61, {vr(192+4*k)} offset:{L_B3+1024*k}")
    e(f"s_or_b32 s{sT0}, s{sW}, s{sMEM}"); e("s_cbranch_scc1 L_nohint")
    if o['nrep'] < 64: e(f"s_mov_b64 exec, {hex((1<<o['nrep'])-1)}")
    e(f"buffer_store_dword v{vTAG}, v17, {sr(sWS)}, s45 offen sc1")
    e("s_mov_b64 exec, -1")
    g.lab("L_nohint")
    g.ts("G1")
    e("s_waitcnt lgkmcnt(0)")
    e("s_barrier")
    g.ts("B5")
    if o['wol'] and not B45:
        e(f"ds_read_b32 v103, v54 offset:{L_W}")
        def rd(k):
            e(f"ds_read_b64_tr_b16 {vr(64+4*k,2)}, v63 offset:{k*4096}")
            e(f"ds_read_b64_tr_b16 {vr(66+4*k,2)}, v63 offset:{k*4096+512}")
            e(f"ds_read_b128 {vr(160+4*k)}, v60 offset:{L_B3+k*1024}")
        for k in range(4): rd(k)
        for k in range(8):
            e(f"s_waitcnt lgkmcnt({0 if 'B5' in o.get('tson',()) else 3*min(3, 7-k)})")
            e(f"v_mfma_f32_16x16x32_bf16 {vr(96)}, {vr(64+4*k)}, {vr(160+4*k)}, {'0' if k==0 else vr(96)}")
            if k+4 < 8: rd(k+4)
    else:
        for k in range(8): e(f"ds_read_b128 {vr(160+4*k)}, v60 offset:{L_B3+k*1024}")
        e(f"ds_read_b32 v103, v54 offset:{L_W}")
        for k in range(8):
            e(f"s_waitcnt lgkmcnt({0 if 'B5' in o.get('tson',()) else 8-k})")
            e(f"v_mfma_f32_16x16x32_bf16 {vr(96)}, {vr(64+4*k)}, {vr(160+4*k)}, {'0' if k==0 else vr(96)}")
    e("s_waitcnt lgkmcnt(0)")
    g.nop(7)
    for k in range(4): e(f"v_mul_f32 v{96+k}, v{96+k}, v103")
    for k in range(4): e(f"v_add_f32_dpp v{104+k}, v{96+k}, v{96+k} row_ror:8 {DPP}")
    e(f"v_cndmask_b32 v108, v104, v106, s[{sM8}:{sM8+1}]"); e(f"v_cndmask_b32 v110, v105, v107, s[{sM8}:{sM8+1}]")
    if o.get('nop'): e("s_mov_b32 s44, 0x4000000")
    e(f"buffer_store_dwordx4 v[108:111], v55, {sr(sWS)}, s44 offen {o.get('pst','sc1')}")
    g.ts("ppub")
    e("s_branch L_fin")
    g.lab("L_w7")
    g.c("wave 7: final sum, gate, store")
    for i in range(4): e(f"s_mov_b64 s[{sMASK+2*i}:{sMASK+2*i+1}], -1")
    e(f"s_mov_b32 s{sSPIN}, {o['spin']}")
    e(f"s_cmp_eq_u32 s{sROLE}, 14"); e("s_cbranch_scc1 L_nob5")
    if B45: e("s_barrier")
    e("s_barrier")
    g.lab("L_nob5")
    e("s_cmp_ge_u32 s2, 224"); e("s_cbranch_scc1 L_fin")
    e("s_mov_b64 exec, 0xffff")
    NP = max(1, o['hp'])
    for k in range(NP):
        e(f"buffer_load_dword v{64+k}, v55, {sr(sWS)}, s20 offen sc1")
        if NP > 1: e(f"s_sleep {o['hgap']}")
    g.lab("L_hp")
    for k in range(NP):
        e(f"s_waitcnt vmcnt({NP-1})")
        e(f"v_cmp_ne_u32 vcc, v{64+k}, v{vTAG}")
        e("s_cbranch_vccz L_hp_ok")
        if o['sleep2']: e(f"s_sleep {o['sleep2']}")
        e(f"buffer_load_dword v{64+k}, v55, {sr(sWS)}, s20 offen sc1")
    e(f"s_sub_u32 s{sSPIN}, s{sSPIN}, 1"); e("s_cbranch_scc0 L_hp")
    g.lab("L_hp_ok")
    g.ts("H")
    g.lab("L_g2")
    for i in range(4):
        e(f"s_mov_b64 exec, s[{sMASK+2*i}:{sMASK+2*i+1}]")
        e(f"buffer_load_dwordx4 {vr(128+4*i)}, v60, {sr(sWS)}, s{sT3} offen offset:{i*1024} sc1")
    e("s_mov_b64 exec, -1")
    e("s_waitcnt vmcnt(0)")
    for i in range(4):
        e(f"v_cmp_ne_u32 vcc, v{129+4*i}, v{vTAG}"); e(f"v_cmp_ne_u32 s[{sMASK+2*i}:{sMASK+2*i+1}], v{131+4*i}, v{vTAG}")
        e(f"s_or_b64 s[{sMASK+2*i}:{sMASK+2*i+1}], s[{sMASK+2*i}:{sMASK+2*i+1}], vcc")
    e(f"s_or_b64 s[{sT0}:{sT1}], s[{sMASK}:{sMASK+1}], s[{sMASK+2}:{sMASK+3}]"); e(f"s_or_b64 vcc, s[{sMASK+4}:{sMASK+5}], s[{sMASK+6}:{sMASK+7}]")
    e(f"s_or_b64 vcc, vcc, s[{sT0}:{sT1}]")
    e("s_cbranch_scc0 L_g2_ok")
    e(f"s_sub_u32 s{sSPIN}, s{sSPIN}, 1"); e("s_cbranch_scc0 L_g2")
    g.lab("L_g2_ok")
    g.ts("G2")
    R = [128, 130, 136, 138]
    for r in R: e(f"v_add_f32 v{r}, v{r}, v{r+4}")
    for r in R: e(f"v_add_f32_dpp v{r}, v{r}, v{r} row_ror:8 {DPP}")
    for sw in ("16", "32"):
        for r in R: e(f"v_mov_b32 v{r+1}, v{r}")
        for r in R: e(f"v_permlane{sw}_swap_b32 v{r}, v{r+1}")
        for r in R: e(f"v_add_f32 v{r}, v{r}, v{r+1}")
    e("v_cvt_pk_bf16_f32 v129, v128, v130"); e("v_cvt_pk_bf16_f32 v137, v136, v138")
    for base in (128, 136): e(f"v_lshlrev_b32 v{base}, 16, v{base+1}"); e(f"v_and_b32 v{base+2}, 0xffff0000, v{base+1}")
    for base, gs in ((128, 22), (136, 23)): e(f"v_mul_f32 v{base}, s{gs}, v{base}"); e(f"v_mul_f32 v{base+2}, s{gs}, v{base+2}")
    e("v_cvt_pk_bf16_f32 v129, v128, v130"); e("v_cvt_pk_bf16_f32 v137, v136, v138")
    for base in (128, 136): e(f"v_lshlrev_b32 v{base}, 16, v{base+1}"); e(f"v_and_b32 v{base+2}, 0xffff0000, v{base+1}")
    e("v_add_f32 v128, v128, v136"); e("v_add_f32 v130, v130, v138")
    e("v_cvt_pk_bf16_f32 v128, v128, v130")
    e("s_mov_b64 exec, 0xff")
    e(f"buffer_store_dword v128, v54, {sr(sOUT)}, s21 offen {o.get('outpol','')}")
    e("s_cmp_lg_u32 s2, 0"); e("s_cbranch_scc1 L_fin")
    e("s_mov_b64 exec, 1")
    e(f"buffer_store_dword v{vTAG}, v54, {sr(sWS)}, 0 offen sc1")
    g.lab("L_fin")
    if o.get('holdat'):
        e("s_cmp_eq_u32 s88, 0"); e("s_cbranch_scc1 L_end")
        g.lab("L_hold")
        e("s_memrealtime s[86:87]"); e("s_waitcnt lgkmcnt(0)"); e("s_sub_u32 s86, s86, s84"); e(f"s_cmp_lt_u32 s86, 3000"); e("s_cbranch_scc1 L_hold")
    if o['ts']:
        if o['ts'] == 2: e(f"s_cmp_lg_u32 s{sW}, 7"); e("s_cbranch_scc1 L_end")
        e("s_mov_b64 exec, -1")
        g.ts("end")
        e("s_waitcnt lgkmcnt(0)")
        for k in range(16): e(f"v_mov_b32 v{128+k}, s{TSREG[k]}" if k < g.nts else f"v_mov_b32 v{128+k}, 0")
        e(f"s_lshl_b32 s{sT0}, s2, 3"); e(f"s_add_u32 s{sT0}, s{sT0}, s{sW}"); e(f"s_lshl_b32 s{sT0}, s{sT0}, 6"); e(f"s_add_u32 s{sT0}, s{sT0}, {WS_TS}")
        e("v_mov_b32 v60, 0"); e("s_mov_b64 exec, 1")
        for k in range(1 if o['ts'] == 2 else 4): e(f"buffer_store_dwordx4 {vr(128+4*k)}, v60, {sr(sWS)}, s{sT0} offen offset:{16*k}")
        print("TS:", ",".join(g.tsn))
    g.lab("L_end")
    e("s_endpgm")
    g.lab("L_w0b")
    g.c("wave 0: q slice, publish, own K loads, gather")
    common2()
    e(f"s_mov_b32 s{sK}, s8"); e(f"s_mov_b32 s{sK+1}, s9")
    if not o.get('xin', 1):
        e(f"s_mov_b32 m0, {L_X}"); e(f"s_movk_i32 s{sT2}, 0x1000")
        for ii in range(4): e(f"buffer_load_dwordx4 v33, {sr(sX)}, 0 offen offset:{ii*1024} lds")
        e(f"s_mov_b32 m0, {L_X+4096}"); e("s_nop 0")
        for ii in range(3): e(f"buffer_load_dwordx4 v33, {sr(sX)}, s{sT2} offen offset:{ii*1024} lds")
        e(f"buffer_load_dword v{vTAG}, v34, {sr(sWS)}, 0 offen sc1")
    if B0 >= 28: e("s_barrier")
    e(f"v_bfe_u32 v41, v{vL}, 2, 2")
    e(f"v_lshl_add_u32 v41, v{vB}, 3, v41"); e(f"v_lshlrev_b32 v41, 6, v41")
    e(f"v_lshl_add_u32 v41, v{vA}, 3, v41")
    e(f"v_and_b32 v43, 7, v{vL}"); e(f"v_mul_u32_u24 v42, 896, v43"); e(f"v_lshl_add_u32 v42, v{vB}, 4, v42")
    e(f"v_add_u32 v42, {L_X}, v42")
    e(f"s_lshl_b32 s{sT0}, s{sG}, 14"); e(f"s_lshl_b32 s{sT1}, s{sMEM}, 7"); e(f"s_add_u32 s{sT0}, s{sT0}, s{sT1}")
    e(f"s_add_u32 s{sT0}, s{sT0}, {WS_Q}"); e(f"s_add_u32 s{sT1}, s{sT0}, {WS_F}")
    e(f"v_lshlrev_b32 v43, 11, v43"); e(f"v_lshl_add_u32 v43, v{vB}, 4, v43")
    e(f"s_lshl_b32 s{sT3}, s{sG}, 3"); e(f"s_add_u32 s{sT3}, s{sT3}, s{sB}"); e(f"s_lshl_b32 s{sT3}, s{sT3}, 11"); e(f"s_add_u32 s{sT3}, s{sT3}, {WS_Q+WS_F}")
    e("s_waitcnt vmcnt(0)")
    g.ts("wq")
    e(f"v_and_b32 v{vTAG}, -8, v{vTAG}"); e(f"v_add_u32 v{vTAG}, 8, v{vTAG}")
    e("s_getreg_b32 s44, hwreg(HW_REG_XCC_ID, 0, 3)")
    steps = list(range(14)); first = True
    for ci in range(0, 14, 3):
        ch = steps[ci:ci+3]
        for k, s_ in enumerate(ch):
            a = 64 + 12*k
            for t in range(2):
                e(f"ds_read_b64_tr_b16 {vr(a+4*t,2)}, v41 offset:{L_WQ+s_*2048+t*32}")
                e(f"ds_read_b64_tr_b16 {vr(a+4*t+2,2)}, v41 offset:{L_WQ+s_*2048+256+t*32}")
            e(f"ds_read_b128 {vr(a+8)}, v42 offset:{s_*64}")
        e("s_waitcnt lgkmcnt(0)")
        for k, s_ in enumerate(ch):
            a = 64 + 12*k
            for t in range(2):
                e(f"v_mfma_f32_16x16x32_bf16 {vr(44+4*t)}, {vr(a+4*t)}, {vr(a+8)}, {'0' if first else vr(44+4*t)}")
            first = False
    e(f"v_or_b32 v53, s44, v{vTAG}"); e("v_mov_b32 v55, v53"); e(f"v_and_b32 v40, 8, v{vL}"); e("v_lshl_add_u32 v43, v40, 3, v43")
    e("s_mov_b32 vcc_lo, 0xff00ff00"); e("s_mov_b32 vcc_hi, 0xff00ff00"); e(f"s_mov_b32 s45, s{sT0}"); e("s_nop 0")
    for k in range(4): e(f"v_cndmask_b32 v{44+k}, v{44+k}, v{48+k}, vcc")
    e(f"v_cvt_pk_bf16_f32 v52, v44, v45"); e(f"v_cvt_pk_bf16_f32 v54, v46, v47")
    if o.get('noqst', 0) < 2: e(f"buffer_store_dwordx4 v[52:55], v43, {sr(sWS)}, s{sT1} offen {o['qpol']}")
    if not o['xc']: e(f"buffer_store_dwordx4 v[52:55], v43, {sr(sWS)}, s45 offen sc1")
    g.ts("qpub")
    for n in range(o['q0k']): kload(n)
    def qgather(own):
        e("s_mov_b32 s46, 1")
        if not o.get('noqw'):
            e(f"s_mov_b32 s{sSPIN}, {o['spin']}")
            g.lab("L_qg")
            e(f"buffer_load_dwordx4 v[64:67], v33, {sr(sWS)}, s{sT3} offen {o['ppol']}")
            e(f"buffer_load_dwordx4 v[68:71], v33, {sr(sWS)}, s{sT3} offen offset:1024 {o['ppol']}")
            e("s_waitcnt vmcnt(0)")
            for r in (65, 67, 69, 71): e(f"v_xor_b32 v{r+11}, v{r}, v{vTAG}")
            e("v_max3_u32 v60, v76, v78, v80"); e("v_max_u32 v60, v60, v82")
            e("v_cmp_lt_u32 vcc, 7, v60")
            e("s_cbranch_vccz L_qg_ok")
            e("s_mov_b64 exec, vcc")
            e(f"s_cmp_le_u32 s{sSPIN}, {o['spin']-o['fthr']}"); e(f"s_cselect_b32 s{sT0}, {WS_F}, 0"); e(f"s_xor_b32 s{sT3}, s{sT3}, s{sT0}")
            e(f"s_cmp_lg_u32 s{sSPIN}, {o['spin']-o['fthr']}"); e("s_cbranch_scc1 L_qg_n")
            g.c("slices missing for a long time: write own slice through; from now on rounds alternate between the two copies")
            e("s_mov_b64 exec, -1")
            if own: e(f"buffer_store_dwordx4 v[52:55], v43, {sr(sWS)}, s45 offen sc1")
            else: e("v_mov_b32 v61, 1"); e(f"ds_write_b32 v34, v61 offset:{L_RQ}")
            e("s_mov_b64 exec, vcc")
            g.lab("L_qg_n")
            e(f"s_sub_u32 s{sSPIN}, s{sSPIN}, 1"); e("s_cbranch_scc0 L_qg")
            g.lab("L_qg_ok")
            e("s_mov_b64 exec, -1")
            e("v_min3_u32 v60, v65, v67, v69"); e("v_max3_u32 v61, v65, v67, v69"); e("v_min_u32 v60, v60, v71"); e("v_max_u32 v61, v61, v71")
            e("v_cmp_ne_u32 vcc, v60, v53"); e(f"v_cmp_ne_u32 s[{sT0}:{sT1}], v61, v53"); e(f"s_or_b64 vcc, vcc, s[{sT0}:{sT1}]")
            e("s_cbranch_scc0 L_qg_loc")
            g.c("some member runs on another die: its reads need the written-through copies")
            if own: e(f"buffer_store_dwordx4 v[52:55], v43, {sr(sWS)}, s45 offen sc1")
            e("s_mov_b32 s46, 2")
            g.lab("L_qg_loc")
        if not o['xc']: e("s_mov_b32 s46, 2")
        e(f"v_lshlrev_b32 v60, 3, v{vL}")
        e(f"ds_write2_b32 v60, v64, v66 offset0:{L_QL//4} offset1:{L_QL//4+1}")
        e(f"ds_write2_b32 v60, v68, v70 offset0:{L_QL//4+128} offset1:{L_QL//4+129}")
        e(f"v_or_b32 v61, s46, v{vTAG}" if o['e1'] else "v_mov_b32 v61, s46"); e(f"ds_write_b32 v34, v61 offset:{L_F}")
        g.ts("qgot")
    if not o['qp']: qgather(True)
    e("s_branch L_kq0")

    g.lab("L_codeend")
    g.L += ['.section .rodata,"a"', ".p2align 6", f".amdhsa_kernel {KN}",
            "  .amdhsa_next_free_vgpr 256", "  .amdhsa_next_free_sgpr 102", "  .amdhsa_accum_offset 256",
            "  .amdhsa_group_segment_fixed_size 0", "  .amdhsa_kernarg_size 112", "  .amdhsa_user_sgpr_count 2",
            "  .amdhsa_user_sgpr_kernarg_segment_ptr 1", "  .amdhsa_system_sgpr_workgroup_id_x 1",
            "  .amdhsa_float_denorm_mode_32 3", ".end_amdhsa_kernel"]
    return "\n".join(g.L) + "\n"

if __name__ == "__main__":
    from lint import lint
    from build import build
    out = sys.argv[1]; opts = eval("dict(" + (sys.argv[2] if len(sys.argv) > 2 else "") + ")")
    s = gen(**opts)
    open(out, "w").write(s)
    for p in lint(s): print("LINT:", p)
    build(out)
```

```python
import sys, math, struct
sys.path.insert(0, "gen"); sys.path.insert(0, "tools")
KN = "gated_mix__sliding_block_cached__sliding_block_cached__decode_kernel"
HEADER = open("gated_mix__sliding_block_cached__sliding_block_cached__decode.s.ref").read().split("; Override launch")[0]

WS_Q = 0x10000
WS_S = 0x60000
WS_H = 0x70000
WS_O = 0x80000
WS_F = 0x100000
WS_P = 0x200000
WS_TS = 0x400000
WS_SIZE = 0x800000
L_QL = 0
L_SM = 1024
L_SL = 1088
L_W = 1152
L_F = 1216
L_CNT = 1220
L_RQ = 1228
L_CN2 = 1224
L_B3 = 2048
L_WQ = 10240
L_X = 38912
L_WO = 46080
L_OR = 78848
LDS_BYTES = 95232
TSREG = [84,86,88,90,92,94,96,98,100,8,10,12,14,16,18,20]

DOC = '''; ---------------------------------------------------------------------------------------------
; Workgroup id -> kv head = id&7, member = (id>>3)&15 (batch = member>>1, key half = member&1),
; branch = id>>7. The 16 members of a (branch, kv head) group exchange data through d_ws.
;     then gathers the 512 q columns of its own batch into LDS. All waves stream K meanwhile.
;     merged with their softmax weights, f32 partials published.
; Hand-offs: 8-byte {data, tag} granules, tag = f(word 0 of d_ws at entry); word 0 moves on at the
; ---------------------------------------------------------------------------------------------'''

def f2u(x): return struct.unpack("<I", struct.pack("<f", x))[0]
def vr(a, n=4): return f"v[{a}:{a+n-1}]"
def sr(a, n=4): return f"s[{a}:{a+n-1}]"
DPP = "row_mask:0xf bank_mask:0xf"

class G:
    def __init__(s, **o):
        s.L = []
        s.o = dict(round_s=1, ts=0, pol='nt', spin=1<<16, codepf=1, sleep1=0, sleep2=0, b0at=14, pre=2, fthr=256,
                   xm=0x100, xa=1, xb=0, kv=0, qsl=2, ssl=1, hp=0, hgap=2, skip=(6,7), wosw=1, bx=1, pret=0, g1p=0, wol=1, imm=0, nrep=8, xc=1, qp=0, pw=1, wt=1, tlb=0, cpf2=0, q0k=32, pk=1, gate1=0, vpf=3, spf=0, sdel=0, e1=1, b45=1, lst=1, spol='', ppol='sc1 nt', qpol='', opol='')
        s.o.update(o); s.nts = 0; s.tsn = []
    def e(s, t): s.L.append("  " + t)
    def c(s, t): s.L.append("  ; " + t)
    def lab(s, t): s.L.append(t + ":")
    def nop(s, n):
        while n > 0:
            k = min(n, 16); s.e(f"s_nop {k-1}"); n -= k
    def ts(s, name):
        if s.o.get('holdat') == name:
            s.e("s_memrealtime s[84:85]"); s.e("s_mov_b32 s88, 1")
        if not s.o['ts'] or name not in s.o['tson']: return
        k = s.nts; s.nts += 1
        r = TSREG[k]; s.tsn.append(name)
        s.e(f"s_memrealtime s[{r}:{r+1}]   ; ts {name}")

def gen(**opts):
    g = G(**opts); e = g.e; o = g.o; POL = o['pol']
    sK, sV, sWQ, sWO, sX, sGW, sWS, sOUT = 24, 28, 32, 36, 40, 44, 48, 52
    sW = 56; sR = 57; sT0, sT1, sT2, sT3 = 58, 59, 60, 61
    sKVH, sBR, sMEM, sB, sG = 3, 4, 5, 6, 7
    sMASK = 64; sM8 = 80; sSEL0, sSEL1 = 82, 83; sSPIN = 62; sC = 63
    sROLE = 32
    sH3 = 33; sNL = 34
    vL = 1; vKO = 2; vVO = 3; vTAG = 4; vA = 5; vB = 6; vC = 7
    vQB = 8; vS = 16; vPV = 64; vK = 128
    vT = 40; vM0 = 52; vL0 = 53; vAL = 54; vORA = 56; vORB = 57; vSA = 58; vF = 59
    vACC = 112; vP8 = 120
    BS = 131072
    assert not (o['kv'] and o['wt']), "wt needs kv=0"
    B45 = o['b45'] and o['wol']

    def tagcheck(tags, a, b_):
        if len(tags) == 2:
            e(f"v_cmp_ne_u32 vcc, v{tags[0]}, v{vTAG}"); e(f"v_cmp_ne_u32 s[{sT0}:{sT1}], v{tags[1]}, v{vTAG}")
        else:
            e(f"v_min3_u32 v{a}, v{tags[0]}, v{tags[1]}, v{tags[2]}"); e(f"v_max3_u32 v{b_}, v{tags[0]}, v{tags[1]}, v{tags[2]}")
            i = 3
            while i+1 < len(tags):
                e(f"v_min3_u32 v{a}, v{a}, v{tags[i]}, v{tags[i+1]}"); e(f"v_max3_u32 v{b_}, v{b_}, v{tags[i]}, v{tags[i+1]}"); i += 2
            if i < len(tags):
                e(f"v_min_u32 v{a}, v{a}, v{tags[i]}"); e(f"v_max_u32 v{b_}, v{b_}, v{tags[i]}")
            e(f"v_cmp_ne_u32 vcc, v{a}, v{vTAG}"); e(f"v_cmp_ne_u32 s[{sT0}:{sT1}], v{b_}, v{vTAG}")
        e(f"s_or_b64 vcc, vcc, s[{sT0}:{sT1}]")
    def poll(name, loads, tags, a, b_, sleep=0, first=None, gate=False):
        e(f"s_mov_b32 s{sSPIN}, {o['spin']}")
        if first:
            loads(); first(); e(f"s_branch L_{name}_w")
        g.lab(f"L_{name}")
        loads()
        g.lab(f"L_{name}_w")
        e("s_waitcnt vmcnt(0)")
        tagcheck(tags, a, b_)
        e(f"s_cbranch_scc0 L_{name}_ok")
        e("s_mov_b64 exec, vcc")
        if gate:
            g.lab(f"L_{name}_g")
            e(f"ds_read_b32 v{a}, v62 offset:{L_CNT}"); e("s_waitcnt lgkmcnt(0)"); e(f"v_readfirstlane_b32 s{sT0}, v{a}")
            e(f"s_cmp_eq_u32 s{sT0}, 8"); e(f"s_cbranch_scc1 L_{name}_g")
        if sleep: e(f"s_sleep {sleep}")
        e(f"s_cmp_le_u32 s{sSPIN}, {o['spin']-o['fthr']}"); e(f"s_cselect_b32 s{sT0}, {WS_F}, 0"); e(f"s_xor_b32 s{sT3}, s{sT3}, s{sT0}")
        e(f"s_sub_u32 s{sSPIN}, s{sSPIN}, 1"); e(f"s_cbranch_scc0 L_{name}")
        g.lab(f"L_{name}_ok")
        e("s_mov_b64 exec, -1")
    def srd(d, p, n):
        e(f"s_mov_b32 s{d}, s{p}"); e(f"s_mov_b32 s{d+1}, s{p+1}"); e(f"s_mov_b32 s{d+2}, {n}"); e(f"s_mov_b32 s{d+3}, 0x20000")
    def kreg(n): return vK + 4*(n % 16) if o['kv'] else vK + 4*n
    def vreg(unit): return vK + 64 + 32*(unit % 2) if o['kv'] else vK + 32*unit
    def kload(n):
        u, hf = n//2, n % 2
        if o['imm']:
            e(f"buffer_load_dwordx4 {vr(kreg(n))}, v{vKO}, {sr(sK)}, s{sR if u < 8 else 43} offen offset:{(u&7)*512+hf*256} {POL}")
            return
        e(f"s_xor_b32 s47, s{sR}, {(u&7)*512+hf*256+(u>>3)*BS}")
        e(f"buffer_load_dwordx4 {vr(kreg(n))}, v{vKO}, {sr(sK)}, s47 offen {o.get('kvpol', POL)}")
    def vload(unit, j):
        blk, hf = unit//2, unit % 2
        if o['imm']:
            e(f"buffer_load_dwordx4 {vr(vreg(unit)+4*j)}, v{vVO}, {sr(sV)}, s{sR if blk == 0 else 43} offen offset:{j*512+hf*256} {POL}")
            return
        e(f"s_xor_b32 s47, s{sR}, {j*512+hf*256+blk*BS}")
        e(f"buffer_load_dwordx4 {vr(vreg(unit)+4*j)}, v{vVO}, {sr(sV)}, s47 offen {o.get('kvpol', POL)}")

    g.L.append(HEADER.rstrip("\n"))
    g.L.append(f"; @launch grid=(256,1,1) block=(512,1,1) lds={LDS_BYTES}")
    g.L.append('.amdgcn_target "amdgcn-amd-amdhsa--gfx950"')
    g.L.append(DOC)
    g.L.append(".text"); g.L.append(f".globl {KN}"); g.L.append(".p2align 8"); g.L.append(f".type {KN},@function"); g.lab(KN)
    e("s_cmp_ge_u32 s2, 256"); e("s_cbranch_scc1 L_end")
    if o.get('holdat'): e("s_mov_b32 s88, 0")
    g.ts("start")
    e(f"s_lshr_b32 s{sBR}, s2, 7")
    e(f"s_mul_i32 s{sT0}, s{sBR}, 40")
    e(f"s_add_u32 s{sT2}, s0, s{sT0}"); e(f"s_addc_u32 s{sT3}, s1, 0")
    e(f"s_load_dwordx8 s[8:15], s[{sT2}:{sT3}], 8")
    e("s_load_dwordx2 s[16:17], s[0:1], 0")
    e("s_load_dwordx2 s[18:19], s[0:1], 104")
    e("s_load_dwordx4 s[20:23], s[0:1], 80")
    e(f"v_lshrrev_b32 v{vA}, 6, v0")
    e(f"v_and_b32 v{vL}, 63, v0")
    e(f"v_readfirstlane_b32 s{sW}, v{vA}")
    e(f"s_getpc_b64 s[{sM8}:{sM8+1}]")
    g.lab("L_pc")
    if o['codepf']:
        g.c("pull the kernel's code into L2: one dword per 128 B line (waves 1,2)")
        e(f"v_lshlrev_b32 v35, 7, v0"); e("v_subrev_u32 v35, 8192, v35")
        e(f"s_mov_b32 s{sT0}, L_codeend-L_pc-4")
        e(f"v_cmp_gt_u32 vcc, s{sT0}, v35")
        e(f"s_and_saveexec_b64 s[{sT2}:{sT3}], vcc")
        e("s_cbranch_execz L_nopf")
        e(f"global_load_dword v36, v35, s[{sM8}:{sM8+1}] {o['spol']}")
        g.lab("L_nopf")
        e("s_mov_b64 exec, -1")
    e(f"s_and_b32 s{sKVH}, s2, 7")
    e(f"s_bfe_u32 s{sMEM}, s2, 0x40003")
    e(f"s_lshr_b32 s{sB}, s{sMEM}, 1")
    e(f"s_lshl_b32 s{sG}, s{sBR}, 3"); e(f"s_add_u32 s{sG}, s{sG}, s{sKVH}")
    if o['xa'] == 1 and o['xb'] == 0:
        e(f"s_lshl_b32 s{sT0}, s{sW}, 8")
    else:
        e(f"s_mul_i32 s{sT0}, s{sW}, {o['xa']}"); e(f"s_lshr_b32 s{sT1}, s2, 3"); e(f"s_mul_i32 s{sT1}, s{sT1}, {o['xb']}"); e(f"s_add_u32 s{sT0}, s{sT0}, s{sT1}")
        e(f"s_lshl_b32 s{sT0}, s{sT0}, 8")
    e(f"s_and_b32 s{sR}, s{sT0}, {o['xm'] & 0xf00}")
    e(f"s_lshl_b32 s{sT0}, s{sB}, 24"); e(f"s_lshl_b32 s{sT1}, s{sKVH}, 21"); e(f"s_add_u32 s{sT0}, s{sT0}, s{sT1}")
    e(f"s_and_b32 s{sT1}, s{sMEM}, 1"); e(f"s_lshl_b32 s{sT1}, s{sT1}, 18"); e(f"s_add_u32 s{sT0}, s{sT0}, s{sT1}")
    if o['bx'] == 1:
        e(f"s_and_b32 s{sT2}, s{sMEM}, 8"); e(f"s_lshl_b32 s{sT2}, s{sT2}, 14"); e(f"s_or_b32 s{sR}, s{sR}, s{sT2}")
        e(f"s_xor_b32 s{sT1}, s{sW}, s{sMEM}"); e(f"s_and_b32 s{sT1}, s{sT1}, 7"); e(f"s_lshl_b32 s{sT1}, s{sT1}, 14")
    elif o['bx'] == 2:
        e(f"s_and_b32 s{sT2}, s{sMEM}, 1"); e(f"s_mul_i32 s{sT1}, s{sT2}, 7"); e(f"s_lshl_b32 s{sT2}, s{sT2}, 17"); e(f"s_or_b32 s{sR}, s{sR}, s{sT2}")
        e(f"s_xor_b32 s{sT1}, s{sW}, s{sT1}"); e(f"s_lshl_b32 s{sT1}, s{sT1}, 14")
    else:
        e(f"s_lshl_b32 s{sT1}, s{sW}, 14")
    e(f"s_add_u32 s{sT0}, s{sT0}, s{sT1}")
    e(f"s_add_u32 s{sT0}, s{sT0}, {3072*512}")
    e(f"v_bfe_u32 v{vA}, v{vL}, 2, 2"); e(f"v_lshlrev_b32 v{vA}, 12, v{vA}")
    e(f"v_lshrrev_b32 v{vB}, 4, v{vL}")
    e(f"v_lshl_add_u32 v{vKO}, v{vB}, 6, v{vA}")
    e(f"v_and_b32 v{vA}, 3, v{vL}"); e(f"v_lshl_add_u32 v{vKO}, v{vA}, 4, v{vKO}")
    e(f"v_add_u32 v{vKO}, s{sT0}, v{vKO}")
    e(f"v_and_b32 v{vC}, 15, v{vL}"); e(f"v_lshlrev_b32 v{vC}, 4, v{vC}")
    e(f"v_lshl_add_u32 v{vVO}, v{vB}, 12, v{vC}")
    e(f"v_add_u32 v{vVO}, s{sT0}, v{vVO}")
    e(f"v_lshlrev_b32 v33, 4, v{vL}")
    e(f"v_mov_b32 v34, 0")
    if o['qp']: e("v_mov_b32 v43, 0")
    e(f"ds_write_b64 v34, v[34:35] offset:{L_F}") if False else None
    e(f"ds_write_b32 v34, v34 offset:{L_F}"); e(f"ds_write_b32 v34, v34 offset:{L_CNT}")
    if o['wt']: e(f"ds_write_b32 v34, v34 offset:{L_CN2}")
    if o['qp']: e(f"ds_write_b32 v34, v34 offset:{L_RQ}")
    e(f"s_mov_b32 s{sK+2}, 0x8000000"); e(f"s_mov_b32 s{sK+3}, 0x20000")
    e(f"s_mov_b32 s{sWS+2}, {WS_SIZE}"); e(f"s_mov_b32 s{sWS+3}, 0x20000")
    e(f"s_mov_b32 s{sX+2}, 7168"); e(f"s_mov_b32 s{sX+3}, 0x20000")
    e(f"s_cmp_eq_u32 s{sW}, 0")
    e("s_waitcnt lgkmcnt(0)")
    g.ts("ka")
    e(f"s_mov_b32 s{sK}, s8"); e(f"s_mov_b32 s{sK+1}, s9")
    e(f"s_mov_b32 s{sWS}, s18"); e(f"s_mov_b32 s{sWS+1}, s19")
    e(f"s_mov_b32 s{sX}, s16"); e(f"s_mov_b32 s{sX+1}, s17")
    if o['spf']:
        e(f"s_lshl_b32 s{sT0}, s{sMEM}, 3"); e(f"s_add_u32 s{sT0}, s{sT0}, s{sW}"); e(f"s_min_u32 s{sT0}, s{sT0}, 111"); e(f"s_lshl_b32 s{sT0}, s{sT0}, 15")
        e(f"s_lshl_b32 s{sT1}, s{sKVH}, 10"); e(f"s_add_u32 s{sT0}, s{sT0}, s{sT1}"); e(f"s_add_u32 s{sT0}, s{sT0}, 384")
        e(f"s_add_u32 s{sT2}, s12, s{sT0}"); e(f"s_addc_u32 s{sT3}, s13, 0")
        for r in range(4):
            e(f"s_load_dword s{64+2*r}, s[{sT2}:{sT3}], {r*8192}")
            if o['spf'] == 2: e(f"s_load_dword s{65+2*r}, s[{sT2}:{sT3}], {r*8192+64}")
        e(f"s_cmp_eq_u32 s{sW}, 0")
    e("s_branch L_notw0" if o.get('now0') else "s_cbranch_scc0 L_notw0")
    g.c("wave 0: wq slice and x into LDS, q slice, publish, gather")
    srd(sWQ, 12, 3670016)
    e(f"v_lshrrev_b32 v32, 2, v{vL}"); e(f"v_lshlrev_b32 v32, 13, v32"); e(f"v_lshl_add_u32 v32, v{vA}, 4, v32")
    e(f"s_lshl_b32 s{sT0}, s{sKVH}, 10"); e(f"s_lshl_b32 s{sT1}, s{sMEM}, 6"); e(f"s_add_u32 s{sT0}, s{sT0}, s{sT1}")
    e(f"v_add_u32 v32, s{sT0}, v32")
    SD = o['sdel']
    if SD:
        e(f"s_sub_u32 s{sT0}, s{sMEM}, 6"); e(f"s_cmp_lt_u32 s{sT0}, 2"); e("s_cselect_b32 s83, 1, 0"); e("s_cbranch_scc0 L_w0n")
        e("s_barrier")
        for n in range(SD): kload(n)
        e("s_waitcnt vmcnt(0)")
        g.lab("L_w0n")
    nd = 0
    for ii in range(o.get('dn', 28)):
        if nd == o['b0at']: e("s_barrier")
        nd += 1
        e(f"s_mov_b32 m0, {L_WQ+ii*1024}")
        e(f"s_mov_b32 s{sT2}, {ii*131072}")
        e(f"buffer_load_dwordx4 v32, {sr(sWQ)}, s{sT2} offen {POL} lds")
    for ii in range(0 if o.get('nox') else 7):
        if nd == o['b0at']: e("s_barrier")
        nd += 1
        e(f"s_mov_b32 m0, {L_X+ii*1024}")
        e(f"s_mov_b32 s{sT2}, {ii*1024}")
        e(f"buffer_load_dwordx4 v33, {sr(sX)}, s{sT2} offen {o['spol']} lds")
    e(f"buffer_load_dword v{vTAG}, v34, {sr(sWS)}, 0 offen {'sc1' if o['e1'] else o['spol']}")
    if SD:
        e("s_cmp_eq_u32 s83, 1"); e("s_cbranch_scc1 L_w0nb"); e("s_barrier"); g.lab("L_w0nb")
    elif o['b0at'] >= nd: e("s_barrier")
    e(f"v_bfe_u32 v41, v{vL}, 2, 2")
    e(f"v_lshl_add_u32 v41, v{vB}, 3, v41"); e(f"v_lshlrev_b32 v41, 6, v41")
    e(f"v_lshl_add_u32 v41, v{vA}, 3, v41")
    e(f"v_and_b32 v43, 7, v{vL}"); e(f"v_mul_u32_u24 v42, 896, v43"); e(f"v_lshl_add_u32 v42, v{vB}, 4, v42")
    e(f"v_add_u32 v42, {L_X}, v42")
    e(f"s_lshl_b32 s{sT0}, s{sG}, 14"); e(f"s_lshl_b32 s{sT1}, s{sMEM}, 7"); e(f"s_add_u32 s{sT0}, s{sT0}, s{sT1}")
    e(f"s_add_u32 s{sT0}, s{sT0}, {WS_Q}"); e(f"s_add_u32 s{sT1}, s{sT0}, {WS_F}")
    e(f"v_lshlrev_b32 v43, 11, v43"); e(f"v_lshl_add_u32 v43, v{vB}, 4, v43")
    e(f"s_lshl_b32 s{sT3}, s{sG}, 3"); e(f"s_add_u32 s{sT3}, s{sT3}, s{sB}"); e(f"s_lshl_b32 s{sT3}, s{sT3}, 11"); e(f"s_add_u32 s{sT3}, s{sT3}, {WS_Q+WS_F}")
    e("s_waitcnt vmcnt(0)")
    g.ts("wq")
    e(f"v_and_b32 v{vTAG}, -8, v{vTAG}"); e(f"v_add_u32 v{vTAG}, 8, v{vTAG}")
    e("s_getreg_b32 s44, hwreg(HW_REG_XCC_ID, 0, 3)")
    steps = list(range(14)); first = True
    for ci in range(0, 14, 3):
        ch = steps[ci:ci+3]
        for k, s_ in enumerate(ch):
            a = 64 + 12*k
            for t in range(2):
                e(f"ds_read_b64_tr_b16 {vr(a+4*t,2)}, v41 offset:{L_WQ+s_*2048+t*32}")
                e(f"ds_read_b64_tr_b16 {vr(a+4*t+2,2)}, v41 offset:{L_WQ+s_*2048+256+t*32}")
            e(f"ds_read_b128 {vr(a+8)}, v42 offset:{s_*64}")
        e("s_waitcnt lgkmcnt(0)")
        for k, s_ in enumerate(ch):
            a = 64 + 12*k
            for t in range(2):
                e(f"v_mfma_f32_16x16x32_bf16 {vr(44+4*t)}, {vr(a+4*t)}, {vr(a+8)}, {'0' if first else vr(44+4*t)}")
            first = False
    e(f"v_or_b32 v53, s44, v{vTAG}"); e("v_mov_b32 v55, v53"); e(f"v_and_b32 v40, 8, v{vL}"); e("v_lshl_add_u32 v43, v40, 3, v43")
    e("s_mov_b32 vcc_lo, 0xff00ff00"); e("s_mov_b32 vcc_hi, 0xff00ff00"); e(f"s_mov_b32 s45, s{sT0}"); e("s_nop 0")
    for k in range(4): e(f"v_cndmask_b32 v{44+k}, v{44+k}, v{48+k}, vcc")
    e(f"v_cvt_pk_bf16_f32 v52, v44, v45"); e(f"v_cvt_pk_bf16_f32 v54, v46, v47")
    if o.get('noqst', 0) < 2: e(f"buffer_store_dwordx4 v[52:55], v43, {sr(sWS)}, s{sT1} offen {o['qpol']}")
    if not o['xc']: e(f"buffer_store_dwordx4 v[52:55], v43, {sr(sWS)}, s45 offen sc1")
    g.ts("qpub")
    for n in range(o['q0k']): kload(n)
    def qgather(own):
        e("s_mov_b32 s46, 1")
        if not o.get('noqw'):
            e(f"s_mov_b32 s{sSPIN}, {o['spin']}")
            g.lab("L_qg")
            e(f"buffer_load_dwordx4 v[64:67], v33, {sr(sWS)}, s{sT3} offen {o['ppol']}")
            e(f"buffer_load_dwordx4 v[68:71], v33, {sr(sWS)}, s{sT3} offen offset:1024 {o['ppol']}")
            e("s_waitcnt vmcnt(0)")
            for r in (65, 67, 69, 71): e(f"v_xor_b32 v{r+11}, v{r}, v{vTAG}")
            e("v_max3_u32 v60, v76, v78, v80"); e("v_max_u32 v60, v60, v82")
            e("v_cmp_lt_u32 vcc, 7, v60")
            e("s_cbranch_vccz L_qg_ok")
            e("s_mov_b64 exec, vcc")
            e(f"s_cmp_le_u32 s{sSPIN}, {o['spin']-o['fthr']}"); e(f"s_cselect_b32 s{sT0}, {WS_F}, 0"); e(f"s_xor_b32 s{sT3}, s{sT3}, s{sT0}")
            e(f"s_cmp_lg_u32 s{sSPIN}, {o['spin']-o['fthr']}"); e("s_cbranch_scc1 L_qg_n")
            g.c("slices missing for a long time: write own slice through; from now on rounds alternate between the two copies")
            e("s_mov_b64 exec, -1")
            if own: e(f"buffer_store_dwordx4 v[52:55], v43, {sr(sWS)}, s45 offen sc1")
            else: e("v_mov_b32 v61, 1"); e(f"ds_write_b32 v34, v61 offset:{L_RQ}")
            e("s_mov_b64 exec, vcc")
            g.lab("L_qg_n")
            e(f"s_sub_u32 s{sSPIN}, s{sSPIN}, 1"); e("s_cbranch_scc0 L_qg")
            g.lab("L_qg_ok")
            e("s_mov_b64 exec, -1")
            e("v_min3_u32 v60, v65, v67, v69"); e("v_max3_u32 v61, v65, v67, v69"); e("v_min_u32 v60, v60, v71"); e("v_max_u32 v61, v61, v71")
            e("v_cmp_ne_u32 vcc, v60, v53"); e(f"v_cmp_ne_u32 s[{sT0}:{sT1}], v61, v53"); e(f"s_or_b64 vcc, vcc, s[{sT0}:{sT1}]")
            e("s_cbranch_scc0 L_qg_loc")
            g.c("some member runs on another die: its reads need the written-through copies")
            if own: e(f"buffer_store_dwordx4 v[52:55], v43, {sr(sWS)}, s45 offen sc1")
            e("s_mov_b32 s46, 2")
            g.lab("L_qg_loc")
        if not o['xc']: e("s_mov_b32 s46, 2")
        e(f"v_lshlrev_b32 v60, 3, v{vL}")
        e(f"ds_write2_b32 v60, v64, v66 offset0:{L_QL//4} offset1:{L_QL//4+1}")
        e(f"ds_write2_b32 v60, v68, v70 offset0:{L_QL//4+128} offset1:{L_QL//4+129}")
        e(f"v_or_b32 v61, s46, v{vTAG}" if o['e1'] else "v_mov_b32 v61, s46"); e(f"ds_write_b32 v34, v61 offset:{L_F}")
        g.ts("qgot")
    if not o['qp']: qgather(True)
    if o['q0k']:
        srd(sV, 10, 0x8000000); e("s_branch L_kq0")
    if SD:
        srd(sV, 10, 0x8000000)
        e("s_cmp_eq_u32 s83, 1"); e("s_cbranch_scc1 L_ksd")
    if not o['q0k']:
        for n in range(o['pre']): kload(n)
        e("s_branch L_kissue")
    g.lab("L_notw0")
    if o['tlb']:
        g.c("wave 2: touch the pages used later (V window, second half of the K window, wo rows, hand-off areas)")
        e(f"s_cmp_lg_u32 s{sW}, 2"); e("s_cbranch_scc1 L_notlb")
        srd(sV, 10, 0x8000000); srd(sWO, 14, 3670016)
        e(f"v_readfirstlane_b32 s{sT0}, v{vVO}"); e(f"v_lshlrev_b32 v37, {o['tlb']}, v{vL}"); e(f"s_and_b32 s{sT0}, s{sT0}, 0xfffc0000")
        e(f"s_mul_i32 s{sT1}, s{sKVH}, {512*896}")
        e(f"s_mov_b64 exec, {hex((1 << (262144 >> o['tlb'])) - 1)}")
        e(f"buffer_load_dword v38, v37, {sr(sV)}, s{sT0} offen {POL}")
        e(f"buffer_load_dword v39, v37, {sr(sK)}, s{sT0} offen {POL}")
        e(f"s_mov_b64 exec, {hex((1 << min(63, (524288 >> o['tlb']))) - 1)}")
        e(f"buffer_load_dword v40, v37, {sr(sWO)}, s{sT1} offen {POL}")
        e("s_mov_b64 exec, -1")
        g.lab("L_notlb")
    if o['vpf'] == 3:
        g.c("waves 1..4: touch 7 rows x 1 KB each of the group's wq block (rows 28*member ..), so that the strided slice loads meet them in L2")
        e(f"s_sub_u32 s{sT2}, s{sW}, 1"); e(f"s_cmp_gt_u32 s{sT2}, 3"); e("s_cbranch_scc1 L_novpf")
        srd(sWQ, 12, 3670016)
        e(f"s_mul_i32 s{sT0}, s{sMEM}, {28*8192}"); e(f"s_mul_i32 s{sT2}, s{sT2}, {7*8192}"); e(f"s_add_u32 s{sT0}, s{sT0}, s{sT2}")
        e(f"s_lshl_b32 s{sT1}, s{sKVH}, 10"); e(f"s_add_u32 s{sT0}, s{sT0}, s{sT1}")
        e(f"v_lshrrev_b32 v37, 3, v{vL}"); e("v_lshlrev_b32 v37, 13, v37"); e(f"v_and_b32 v38, 7, v{vL}"); e("v_lshl_add_u32 v37, v38, 7, v37")
        e("s_mov_b32 exec_hi, 0xffffff")
        e(f"buffer_load_dword v38, v37, {sr(sWQ)}, s{sT0} offen {POL}")
        e("s_mov_b64 exec, -1")
        g.lab("L_novpf")
    elif o['vpf']:
        g.c("wave 1: touch this member's 28 rows of column block 3 (the block whose owners would otherwise queue 448 requests on one path)")
        e(f"s_cmp_lg_u32 s{sW}, 1"); e("s_cbranch_scc1 L_novpf")
        srd(sWQ, 12, 3670016)
        e(f"s_mul_i32 s{sT0}, s{sMEM}, {28*8192}"); e(f"s_lshl_b32 s{sT1}, s{sKVH}, 10"); e(f"s_add_u32 s{sT0}, s{sT0}, s{sT1}"); e(f"s_add_u32 s{sT0}, s{sT0}, 384")
        if o['vpf'] == 2:
            e(f"v_lshrrev_b32 v37, 1, v{vL}"); e("v_lshlrev_b32 v37, 13, v37"); e(f"v_and_b32 v38, 1, v{vL}"); e("v_lshl_add_u32 v37, v38, 6, v37")
            e("s_mov_b32 exec_hi, 0xffffff")
        else:
            e(f"v_lshlrev_b32 v37, 13, v{vL}"); e("s_mov_b64 exec, 0xfffffff")
        e(f"buffer_load_dword v38, v37, {sr(sWQ)}, s{sT0} offen {POL}")
        e("s_mov_b64 exec, -1")
        g.lab("L_novpf")
    if not o['e1']: e(f"buffer_load_dword v{vTAG}, v34, {sr(sWS)}, 0 offen {o['spol']}")
    if o['qp']:
        e(f"s_cmp_lg_u32 s{sW}, {o['qp']}"); e("s_cbranch_scc1 L_noep")
        e(f"buffer_load_dword v{vTAG}, v34, {sr(sWS)}, 0 offen sc1")
        g.lab("L_noep")
    for n in range(o['pre']): kload(n)
    g.ts("kpre")
    if o.get('holdat') == 'k2': e("s_waitcnt vmcnt(0)"); g.ts("k2")
    e("s_barrier")
    g.ts("b0")
    e(f"s_cmp_lg_u32 s{sW}, 7"); e("s_cbranch_scc1 L_kissue")
    srd(sGW, 20, 896)
    e(f"s_mul_i32 s{sT0}, s{sKVH}, 896")
    e(f"buffer_load_dwordx4 v[16:19], v33, {sr(sX)}, s{sT0} offen {o['spol']}")
    e(f"buffer_load_dwordx4 v[20:23], v33, {sr(sGW)}, 0 offen {o['spol']}")
    g.lab("L_kissue")
    if o['imm']:
        assert o['xm'] == 0
        e(f"s_xor_b32 s43, s{sR}, {BS}")
    srd(sV, 10, 0x8000000)
    if o['kv']:
        for n in range(o['pre'], 16): kload(n)
        for u in range(2):
            for j in range(8): vload(u, j)
    else:
        for n in range(o['pre'], 32):
            if o['sdel'] and n == o['sdel']: g.lab("L_ksd")
            if o['q0k'] and n == o['q0k']: g.lab("L_kq0")
            kload(n)
        if o['q0k'] == 32: g.lab("L_kq0")
    g.ts("kiss")
    srd(sWO, 14, 3670016); srd(sOUT, 22, 7168)
    g.c("output-projection role of this member (14 = none), constants")
    s0, s1 = o['skip']
    e(f"s_mov_b32 s{sROLE}, s{sMEM}")
    e(f"s_cmp_gt_u32 s{sMEM}, {s1}"); e(f"s_cselect_b32 s{sT0}, 2, 0"); e(f"s_sub_u32 s{sROLE}, s{sROLE}, s{sT0}")
    e(f"s_sub_u32 s{sT0}, s{sMEM}, {s0}"); e(f"s_cmp_lt_u32 s{sT0}, 2"); e(f"s_cselect_b32 s{sROLE}, 14, s{sROLE}")
    e(f"s_cmp_ge_u32 s{sROLE}, 7"); e(f"s_cselect_b32 s{sH3}, 1, 0"); e(f"s_mul_i32 s{sT0}, s{sH3}, 7"); e(f"s_sub_u32 s{sNL}, s{sROLE}, s{sT0}")
    def wo_setup(nper, va, vb, vc, vd, p0=0):
        e(f"s_lshl_b32 s{sT0}, s{sKVH}, 9"); e(f"s_lshl_b32 s{sT1}, s{sH3}, 8"); e(f"s_add_u32 s{sT0}, s{sT0}, s{sT1}"); e(f"s_mul_i32 s{sT1}, s{sW}, {8*nper}"); e(f"s_add_u32 s{sT0}, s{sT0}, s{sT1}")
        if p0: e(f"s_add_u32 s{sT0}, s{sT0}, {8*p0}")
        e(f"s_mul_i32 s{sT0}, s{sT0}, 896"); e(f"s_lshl_b32 s{sT1}, s{sNL}, 7"); e(f"s_add_u32 s35, s{sT0}, s{sT1}")
        e(f"s_cmp_eq_u32 s{sROLE}, 14"); e(f"s_cselect_b32 s35, 0x4000000, s35")
        if o.get('nowo'): e(f"s_mov_b32 s35, 0x4000000")
        e(f"v_lshrrev_b32 v{va}, 3, v{vL}"); e(f"v_mul_u32_u24 v{vb}, 896, v{va}"); e(f"v_and_b32 v{vc}, 7, v{vL}")
        e(f"v_and_b32 v{va}, 2, v{va}"); e(f"v_xor_b32 v{vc}, v{vc}, v{va}"); e(f"v_xor_b32 v{vd}, 4, v{vc}")
        e(f"v_lshl_add_u32 v{va}, v{vc}, 4, v{vb}"); e(f"v_lshl_add_u32 v{vb}, v{vd}, 4, v{vb}")
    def wo_issue(nper, va, vb, p0=0):
        e(f"s_mul_i32 s46, s{sW}, {1024*nper}")
        for ii in range(nper):
            e(f"s_add_u32 m0, s46, {L_WO+(p0+ii)*1024}")
            e(f"s_add_u32 s47, s35, {ii*8*896}")
            e(f"buffer_load_dwordx4 v{vb if ii%2 else va}, {sr(sWO)}, s47 offen {POL} lds")
    WE = {0: 4, 1: 0, 2: 2}[o['wol']]
    WLATE = (32 - 8*WE)//4
    NWO = WE
    if o.get('nodma'): NWO = 0
    elif WE:
        wo_setup(WE, 60, 61, 62, 63); wo_issue(WE, 60, 61)
    for v in range(8):
        pat = (0x11 << (v & 3)) << (8*(v >> 2)); pat |= pat << 16
        e(f"s_mov_b32 s{sMASK+2*v}, 0x{pat:08x}"); e(f"s_mov_b32 s{sMASK+2*v+1}, 0x{pat:08x}")
    e(f"s_mov_b32 s{sSEL0}, 0x05040100"); e(f"s_mov_b32 s{sSEL1}, 0x07060302")
    e(f"s_mov_b32 s{sC}, 0x{f2u(math.log2(math.e)/16):08x}")
    e(f"s_mov_b32 s{sM8}, 0xff00ff00"); e(f"s_mov_b32 s{sM8+1}, 0xff00ff00")
    if o['qp']:
        e(f"s_cmp_lg_u32 s{sW}, {o['qp']}"); e("s_cbranch_scc1 L_notqp")
        e(f"s_lshl_b32 s{sT3}, s{sG}, 3"); e(f"s_add_u32 s{sT3}, s{sT3}, s{sB}"); e(f"s_lshl_b32 s{sT3}, s{sT3}, 11"); e(f"s_add_u32 s{sT3}, s{sT3}, {WS_Q+WS_F}")
        e("s_getreg_b32 s44, hwreg(HW_REG_XCC_ID, 0, 3)")
        e(f"s_waitcnt vmcnt({32 + NWO})")
        e(f"v_and_b32 v{vTAG}, -8, v{vTAG}"); e(f"v_add_u32 v{vTAG}, 8, v{vTAG}"); e(f"v_or_b32 v53, s44, v{vTAG}")
        qgather(False)
        e("s_branch L_b2")
        g.lab("L_notqp")
    if o['e1']:
        e(f"s_cmp_lg_u32 s{sW}, 7"); e("s_cbranch_scc1 L_b2")
        e(f"s_waitcnt vmcnt({32 - o['pre'] + NWO})")
    else:
        e(f"s_cmp_eq_u32 s{sW}, 0"); e("s_cbranch_scc1 L_b2")
        e(f"s_waitcnt vmcnt({32 - o['pre'] + NWO})")
        e(f"v_and_b32 v{vTAG}, -8, v{vTAG}"); e(f"v_add_u32 v{vTAG}, 8, v{vTAG}")
        e(f"s_cmp_lg_u32 s{sW}, 7"); e("s_cbranch_scc1 L_b2")
    g.c("wave 7: gate g -> s22, 1-g -> s23 (bf16-rounded like the reference)")
    e(f"v_cmp_gt_u32 vcc, 56, v{vL}"); e("v_mov_b32 v24, 0"); e("s_nop 0")
    for k in range(4): e(f"v_cndmask_b32 v{16+k}, 0, v{16+k}, vcc")
    for k in range(4):
        e(f"v_lshlrev_b32 v25, 16, v{16+k}"); e(f"v_and_b32 v26, 0xffff0000, v{16+k}")
        e(f"v_lshlrev_b32 v27, 16, v{20+k}"); e(f"v_and_b32 v28, 0xffff0000, v{20+k}")
        e("v_mul_f32 v25, v25, v27"); e("v_mul_f32 v26, v26, v28")
        e("v_cvt_pk_bf16_f32 v25, v25, v26")
        e("v_lshlrev_b32 v26, 16, v25"); e("v_and_b32 v25, 0xffff0000, v25")
        e("v_add_f32 v24, v24, v26"); e("v_add_f32 v24, v24, v25")
    for dpp in ("quad_perm:[1,0,3,2]", "quad_perm:[2,3,0,1]", "row_ror:4", "row_ror:8"):
        e("s_nop 1"); e(f"v_add_f32_dpp v24, v24, v24 {dpp} {DPP}")
    for sw in ("16", "32"):
        e("v_mov_b32 v25, v24"); e("s_nop 1"); e(f"v_permlane{sw}_swap_b32 v24, v25"); e("v_add_f32 v24, v24, v25")
    e("v_cvt_pk_bf16_f32 v24, v24, v24"); e("v_and_b32 v24, 0xffff0000, v24")
    e(f"v_mul_f32 v24, 0x{f2u(-math.log2(math.e)):08x}, v24"); e("v_exp_f32 v24, v24"); e("s_nop 0")
    e("v_add_f32 v24, 1.0, v24"); e("v_rcp_f32 v24, v24"); e("s_nop 0")
    e("v_cvt_pk_bf16_f32 v24, v24, v24"); e("v_and_b32 v24, 0xffff0000, v24")
    e("v_sub_f32 v25, 1.0, v24"); e("v_cvt_pk_bf16_f32 v25, v25, v25"); e("v_and_b32 v25, 0xffff0000, v25")
    e("v_readfirstlane_b32 s22, v24"); e("v_readfirstlane_b32 s23, v25")
    g.lab("L_b2")
    e(f"v_bfe_u32 v{vC}, v{vL}, 2, 1"); e(f"v_lshlrev_b32 v{vA}, 9, v{vC}")
    e(f"v_lshl_add_u32 v{vA}, v{vB}, 6, v{vA}")
    e(f"v_and_b32 v60, 3, v{vL}"); e(f"v_lshl_add_u32 v{vA}, v60, 4, v{vA}")
    e(f"s_and_b32 s{sT0}, s{sR}, 0x100"); e(f"v_add_u32 v{vA}, s{sT0}, v{vA}"); e(f"v_xor_b32 v60, 0x100, v{vA}")
    e("v_mov_b32 v62, 0"); e("s_mov_b32 s42, 1")
    if not o.get('noqw'):
        e(f"s_mov_b32 s{sSPIN}, 0x400000")
        if o['qp']:
            e(f"s_cmp_lg_u32 s{sW}, 0"); e("s_cbranch_scc1 L_qwait")
            g.lab("L_q0w")
            e(f"ds_read_b32 v61, v62 offset:{L_F}"); e(f"ds_read_b32 v63, v62 offset:{L_RQ}"); e("s_waitcnt lgkmcnt(0)")
            e("v_readfirstlane_b32 s42, v61"); e(f"v_readfirstlane_b32 s{sT0}, v63")
            e(f"s_and_b32 s{sT1}, s42, 2"); e(f"s_or_b32 s{sT0}, s{sT0}, s{sT1}"); e("s_cbranch_scc1 L_q0s")
            e("s_cmp_lg_u32 s42, 0"); e("s_cbranch_scc1 L_qready")
            e(f"s_sleep {o['qsl']}"); e(f"s_sub_u32 s{sSPIN}, s{sSPIN}, 1"); e("s_cbranch_scc0 L_q0w")
            g.lab("L_q0s")
            e(f"buffer_store_dwordx4 v[52:55], v43, {sr(sWS)}, s45 offen sc1")
            e("s_waitcnt vmcnt(0)")
        g.lab("L_qwait")
        e(f"ds_read_b32 v61, v62 offset:{L_F}"); e("s_waitcnt lgkmcnt(0)"); e(f"v_readfirstlane_b32 s42, v61"); e(f"s_cmp_lg_u32 s42, 0"); e("s_cbranch_scc1 L_qready")
        e(f"s_sleep {o['qsl']}"); e(f"s_sub_u32 s{sSPIN}, s{sSPIN}, 1"); e("s_cbranch_scc0 L_qwait")
        g.lab("L_qready")
        if o['e1']: e(f"v_and_b32 v{vTAG}, -8, v61"); e("s_and_b32 s42, s42, 7")
    if o.get('b2'): e("s_barrier")
    g.ts("B2")
    g.c("q fragments; QK^T, softmax, P.V")
    e(f"ds_read_b128 {vr(vQB)}, v{vA} offset:{L_QL}")
    e(f"ds_read_b128 {vr(vQB+4)}, v60 offset:{L_QL}")
    e("s_waitcnt lgkmcnt(0)")
    def xred(r, t, op):
        for sw in ("16", "32"):
            e(f"v_mov_b32 v{t}, v{r}"); e("s_nop 1"); e(f"v_permlane{sw}_swap_b32 v{r}, v{t}"); e(f"{op} v{r}, v{r}, v{t}")
    def soft(blk):
        if o.get('nocomp'): return
        S = vS + 8*blk
        if o['round_s']:
            for u in range(0, 8, 2): e(f"v_cvt_pk_bf16_f32 v{vP8+u//2}, v{S+u}, v{S+u+1}")
            for u in range(0, 8, 2):
                e(f"v_lshlrev_b32 v{S+u}, 16, v{vP8+u//2}"); e(f"v_and_b32 v{S+u+1}, 0xffff0000, v{vP8+u//2}")
        e(f"v_max3_f32 v{vA}, v{S}, v{S+1}, v{S+2}"); e(f"v_max3_f32 v{vB}, v{S+3}, v{S+4}, v{S+5}")
        e(f"v_max3_f32 v{vA}, v{vA}, v{S+6}, v{S+7}"); e(f"v_max_f32 v{vA}, v{vA}, v{vB}")
        xred(vA, vB, "v_max_f32")
        if blk == 0:
            e(f"v_mul_f32 v{vM0}, s{sC}, v{vA}")
        else:
            e(f"v_mul_f32 v{vA}, s{sC}, v{vA}"); e(f"v_max_f32 v{vA}, v{vA}, v{vM0}")
            e(f"v_sub_f32 v{vAL}, v{vM0}, v{vA}"); e(f"v_mov_b32 v{vM0}, v{vA}"); e(f"v_exp_f32 v{vAL}, v{vAL}")
        for u in range(8): e(f"v_fma_f32 v{S+u}, v{S+u}, s{sC}, -v{vM0}")
        for u in range(8): e(f"v_exp_f32 v{S+u}, v{S+u}")
        e("s_nop 0")
        for t in range(4): e(f"v_cvt_pk_bf16_f32 v{vP8+t}, v{S+2*t}, v{S+2*t+1}")
        for t in range(4): e(f"v_add_f32 v{S+t}, v{S+t}, v{S+t+4}")
        e(f"v_add_f32 v{S}, v{S}, v{S+2}"); e(f"v_add_f32 v{S+1}, v{S+1}, v{S+3}")
        if blk == 0:
            e(f"v_add_f32 v{vL0}, v{S}, v{S+1}")
        else:
            e(f"v_add_f32 v{S}, v{S}, v{S+1}"); e(f"v_fmac_f32 v{S}, v{vL0}, v{vAL}")
            xred(S, S+1, "v_add_f32")
            e(f"ds_write_b32 v{vSA}, v{vM0} offset:{L_SM}"); e(f"ds_write_b32 v{vSA}, v{S} offset:{L_SL}")
            e(f"v_mov_b32 v{S+1}, 1"); e(f"v_mov_b32 v{S+2}, 0"); e("s_mov_b64 exec, 1")
            e(f"ds_add_u32 v{S+2}, v{S+1} offset:{L_CNT}"); e("s_mov_b64 exec, -1")
            e(f"v_readlane_b32 s{sT0}, v{vAL}, 0"); e(f"v_readlane_b32 s{sT1}, v{vAL}, 4")
        for v in range(8):
            for t in range(4):
                e(f"v_cndmask_b32 v{vPV+4*v+t}, 0, v{vP8+t}, s[{sMASK+2*v}:{sMASK+2*v+1}]")
    def pv(unit):
        if o.get('nocomp'): return
        blk, hf = unit//2, unit % 2
        base = vreg(unit); acc = vACC + 4*hf
        def perms(d):
            for t in range(4):
                e(f"v_perm_b32 v{vT+4*(d%3)+t}, v{base+4*(2*t+1)+d//2}, v{base+4*(2*t)+d//2}, s{sSEL1 if d&1 else sSEL0}")
        perms(0)
        for d in range(8):
            if d < 7: perms(d+1)
            else: g.nop(2)
            cin = "0" if (blk == 0 and d == 0) else vr(acc)
            e(f"v_mfma_f32_16x16x32_bf16 {vr(acc)}, {vr(vPV+4*d)}, {vr(vT+4*(d%3))}, {cin}")
    def qkm(bt, dbase, wait):
        e(f"s_waitcnt vmcnt({wait})")
        g.ts(f"K{bt}")
        if o.get('nocomp'): return
        for u in range(4*bt, 4*bt+4):
            d = dbase + 4*(u % 4)
            e(f"v_mfma_f32_16x16x32_bf16 {vr(d)}, {vr(kreg(2*u))}, {vr(vQB)}, 0")
            e(f"v_mfma_f32_16x16x32_bf16 {vr(d)}, {vr(kreg(2*u+1))}, {vr(vQB+4)}, {vr(d)}")
    def postb(bt, dbase):
        if o.get('nocomp'): return
        for step in range(4):
            for u in range(4*bt, 4*bt+4):
                d = dbase + 4*(u % 4); s_ = vS + u
                if step == 0: e(f"v_mov_b32_dpp v{s_}, v{d} quad_perm:[0,0,0,0] {DPP}")
                else: e(f"v_add_f32_dpp v{s_}, v{d+step}, v{s_} quad_perm:[{step},{step},{step},{step}] {DPP}")
    def vunit(u):
        for j in range(8): vload(u, j)
    def addrs():
        e(f"v_lshlrev_b32 v{vC}, 5, v{vC}")
        e(f"s_lshl_b32 s{sT0}, s{sW}, 2"); e(f"v_add_u32 v{vSA}, s{sT0}, v{vC}")
        e(f"v_bfe_u32 v{vC}, v{vL}, 4, 1"); e(f"v_lshlrev_b32 v{vORA}, 10, v{vC}"); e(f"v_lshlrev_b32 v{vC}, 5, v{vC}")
        e(f"v_and_b32 v{vORB}, 15, v{vL}"); e(f"v_lshl_add_u32 v{vORA}, v{vORB}, 5, v{vORA}")
        e(f"v_lshrrev_b32 v{vORB}, 5, v{vL}"); e(f"v_lshl_add_u32 v{vORA}, v{vORB}, 4, v{vORA}")
        e(f"s_and_b32 s{sT1}, s{sR}, 0x100"); e(f"s_lshl_b32 s{sT1}, s{sT1}, 1"); e(f"v_add_u32 v{vORA}, s{sT1}, v{vORA}"); e(f"v_xor_b32 v{vORB}, 0x200, v{vORA}")
        e(f"s_lshl_b32 s{sT0}, s{sW}, 11"); e(f"s_add_u32 s{sT0}, s{sT0}, {L_OR}"); e(f"v_add_u32 v{vORA}, s{sT0}, v{vORA}"); e(f"v_add_u32 v{vORB}, s{sT0}, v{vORB}")
        if o['pret']:
            e(f"s_sub_u32 s{sT0}, s{sW}, 1"); e(f"s_cmp_gt_u32 s{sT0}, 1"); e("s_cbranch_scc1 L_nopre")
            e(f"s_and_b32 s{sT1}, s{sMEM}, 1"); e(f"s_lshl_b32 s{sT1}, s{sT1}, 3"); e(f"s_add_u32 s{sT1}, s{sT1}, s{sB}")
            e(f"s_lshl_b32 s{sT2}, s{sG}, 1"); e(f"s_add_u32 s{sT2}, s{sT2}, s{sT0}")
            e(f"s_lshl_b32 s{sT2}, s{sT2}, 14"); e(f"s_lshl_b32 s{sT1}, s{sT1}, 10"); e(f"s_add_u32 s{sT2}, s{sT2}, s{sT1}"); e(f"s_add_u32 s{sT2}, s{sT2}, {WS_O+WS_F}")
            e(f"v_add_u32 v60, 1, v{vTAG}"); e("v_mov_b32 v61, v60"); e("v_mov_b32 v62, v60"); e("v_mov_b32 v63, v60"); e(f"v_lshlrev_b32 v55, 4, v{vL}")
            e(f"buffer_store_dwordx4 v[60:63], v55, {sr(sWS)}, s{sT2} offen")
            g.lab("L_nopre")
            e("s_nop 1")
    W = NWO
    if o['kv'] == 0:
        qkm(0, 32, 24+W); vunit(0); qkm(1, 48, 24+W); vunit(1)
        postb(0, 32); postb(1, 48); addrs(); soft(0)
        qkm(2, 32, 24+W); vunit(2)
        if o['wt'] == 2:
            e("v_mov_b32 v60, 1"); e("v_mov_b32 v61, 0"); e("s_mov_b64 exec, 1"); e(f"ds_add_u32 v61, v60 offset:{L_CN2}"); e("s_mov_b64 exec, -1")
        postb(2, 32)
        e("s_waitcnt vmcnt(16)"); g.ts("V0"); pv(0)
        qkm(3, 96, 24+W); vunit(3)
        if o['wt'] == 1:
            e("v_mov_b32 v60, 1"); e("v_mov_b32 v61, 0"); e("s_mov_b64 exec, 1"); e(f"ds_add_u32 v61, v60 offset:{L_CN2}"); e("s_mov_b64 exec, -1")
        g.ts("QK")
        e("s_waitcnt vmcnt(16)"); g.ts("V1"); pv(1)
        postb(3, 96); soft(1)
    else:
        K2 = (o['kv'] == 2)
        qkm(0, 32, 24+W)
        if not K2:
            for n in range(16, 24): kload(n)
        qkm(1, 48, (16 if K2 else 24)+W)
        if not K2:
            for n in range(24, 32): kload(n)
        else: g.nop(4)
        postb(0, 32); postb(1, 48); addrs(); soft(0)
        if K2:
            e(f"s_waitcnt vmcnt({8+W})"); pv(0)
            e(f"s_waitcnt vmcnt({W})"); pv(1)
            for n in range(16, 32): kload(n)
            vunit(2); vunit(3)
        else:
            e(f"s_waitcnt vmcnt({24+W})"); pv(0); vunit(2)
            e(f"s_waitcnt vmcnt({24+W})"); pv(1); vunit(3)
        g.ts("QK")
        qkm(2, 32, 24); qkm(3, 96, 16)
        postb(2, 32); postb(3, 96); soft(1)
    e(f"v_mov_b32 v{vAL}, s{sT0}"); e(f"v_mov_b32 v{vA}, s{sT1}"); e(f"s_mov_b32 vcc_lo, 0xffff0000"); e(f"s_mov_b32 vcc_hi, 0xffff0000")
    e(f"v_cndmask_b32 v{vAL}, v{vAL}, v{vA}, vcc")
    for k in range(8): e(f"v_mul_f32 v{vACC+k}, v{vACC+k}, v{vAL}")
    g.ts("P")
    e(f"s_waitcnt vmcnt(8)"); g.ts("V2"); pv(2)
    if o['cpf2']:
        e(f"s_cmp_lg_u32 s{sW}, 3"); e("s_cbranch_scc1 L_nopf2")
        e(f"s_getpc_b64 s[{sT2}:{sT3}]")
        g.lab("L_pc2")
        e(f"v_lshlrev_b32 v60, 7, v{vL}"); e(f"s_mov_b32 s{sT0}, L_codeend-L_pc2-4"); e(f"v_min_u32 v60, s{sT0}, v60")
        e(f"global_load_dword v61, v60, s[{sT2}:{sT3}]")
        e("s_waitcnt vmcnt(0)")
        g.lab("L_nopf2")
    if o['wt']:
        e(f"s_cmp_gt_u32 s{sW}, 3"); e("s_cbranch_scc1 L_nowt")
        e(f"s_cmp_eq_u32 s{sROLE}, 14"); e("s_cbranch_scc1 L_nowt")
        wo_setup(WLATE, 60, 61, 62, 63, 8*WE)
        e("v_mov_b32 v62, 0")
        e("s_waitcnt vmcnt(0)")
        e(f"s_mov_b32 s{sSPIN}, 0x400000")
        g.lab("L_wtw")
        e(f"ds_read_b32 v63, v62 offset:{L_CN2}"); e("s_waitcnt lgkmcnt(0)"); e(f"v_readfirstlane_b32 s{sT0}, v63"); e(f"s_cmp_ge_u32 s{sT0}, {o.get('wtn', 8)}"); e("s_cbranch_scc1 L_wtg")
        e(f"s_sleep {o['ssl']}"); e(f"s_sub_u32 s{sSPIN}, s{sSPIN}, 1"); e("s_cbranch_scc0 L_wtw")
        g.lab("L_wtg")
        wo_issue(WLATE, 60, 61, 8*WE)
        g.lab("L_nowt")
    g.c("workgroup-level softmax factor from the 8 waves (max, sum)")
    e(f"s_lshl_b32 s{sT0}, s{sW}, 2"); e(f"v_add_u32 v{vB}, s{sT0}, v{vC}"); e("v_mov_b32 v62, 0")
    if o.get('nocomp') or o.get('nosw'): e("s_branch L_sready")
    e(f"s_mov_b32 s{sSPIN}, 0x400000")
    g.lab("L_swait")
    e(f"ds_read_b32 v61, v62 offset:{L_CNT}"); e("s_waitcnt lgkmcnt(0)"); e(f"v_readfirstlane_b32 s{sT0}, v61"); e(f"s_cmp_eq_u32 s{sT0}, 8"); e("s_cbranch_scc1 L_sready")
    e(f"s_sleep {o['ssl']}"); e(f"s_sub_u32 s{sSPIN}, s{sSPIN}, 1"); e("s_cbranch_scc0 L_swait")
    g.lab("L_sready")
    e(f"ds_read_b128 {vr(16)}, v{vC} offset:{L_SM}"); e(f"ds_read_b128 {vr(20)}, v{vC} offset:{L_SM+16}")
    e(f"ds_read_b32 v{vF}, v{vB} offset:{L_SM}")
    e(f"ds_read_b128 {vr(24)}, v{vC} offset:{L_SL}"); e(f"ds_read_b128 {vr(28)}, v{vC} offset:{L_SL+16}")
    e("s_waitcnt lgkmcnt(0)")
    e("v_max3_f32 v124, v16, v17, v18"); e("v_max3_f32 v125, v19, v20, v21"); e("v_max3_f32 v124, v124, v22, v23"); e("v_max_f32 v124, v124, v125")
    for w in range(8): e(f"v_sub_f32 v{16+w}, v{16+w}, v124")
    e(f"v_sub_f32 v{vF}, v{vF}, v124")
    for w in range(8): e(f"v_exp_f32 v{16+w}, v{16+w}")
    e(f"v_exp_f32 v{vF}, v{vF}")
    e("v_mul_f32 v126, v24, v16")
    for w in range(1, 8): e(f"v_fmac_f32 v126, v{24+w}, v{16+w}")
    e(f"v_rcp_f32 v16, v126"); e(f"v_mov_b32 v125, v{vTAG}"); e(f"v_mov_b32 v127, v{vTAG}")
    e(f"v_mul_f32 v{vF}, v{vF}, v16")
    e(f"v_lshrrev_b32 v53, 4, v{vL}")
    e(f"v_lshlrev_b32 v60, 4, v{vL}")
    e(f"s_lshl_b32 s{sT2}, s{sG}, 1")
    e(f"s_cmp_lt_u32 s{sW}, 4"); e("s_cbranch_scc1 L_a03")
    e(f"s_cmp_eq_u32 s{sW}, 4"); e("s_cbranch_scc1 L_a4")
    e(f"s_cmp_eq_u32 s{sW}, 7"); e("s_cbranch_scc1 L_a7")
    e(f"s_sub_u32 s{sT0}, s{sW}, 5")
    e(f"s_and_b32 s{sT1}, s{sMEM}, 1"); e(f"s_lshl_b32 s{sT1}, s{sT1}, 3"); e(f"s_add_u32 s{sT1}, s{sT1}, s{sB}")
    e(f"s_add_u32 s{sT2}, s{sT2}, s{sT0}")
    e(f"s_lshl_b32 s44, s{sT2}, 14"); e(f"s_lshl_b32 s45, s{sT1}, 10"); e(f"s_add_u32 s44, s44, s45"); e(f"s_add_u32 s44, s44, {WS_O}"); e(f"s_add_u32 s45, s44, {WS_F}")
    e(f"s_lshl_b32 s{sT2}, s{sT2}, 8"); e(f"s_lshl_b32 s{sT1}, s{sT1}, 4"); e(f"s_add_u32 s{sT2}, s{sT2}, s{sT1}"); e(f"s_add_u32 s{sT2}, s{sT2}, {WS_S}"); e(f"s_add_u32 s{sT3}, s{sT2}, {WS_F}")
    e(f"s_lshl_b32 s{sT1}, s{sT0}, 4"); e(f"s_lshl_b64 exec, 1, s{sT1}")
    e(f"s_cmp_eq_u32 s42, 1"); e(f"s_cselect_b32 s{sT2}, 0x4000000, s{sT2}"); e("s_cselect_b32 s44, 0x4000000, s44")
    if o['lst']:
        e("s_mov_b64 s[64:65], exec")
    else:
        e(f"buffer_store_dwordx4 v[124:127], v62, {sr(sWS)}, s{sT3} offen")
        e(f"buffer_store_dwordx4 v[124:127], v62, {sr(sWS)}, s{sT2} offen sc1")
    e("s_mov_b64 exec, -1")
    e(f"s_lshl_b32 s{sT1}, s{sT0}, 10"); e(f"s_add_u32 s{sT1}, s{sT1}, {L_OR}"); e(f"v_add_u32 v61, s{sT1}, v60")
    e(f"v_mov_b32 v97, v{vTAG}"); e(f"v_mov_b32 v99, v{vTAG}")
    e(f"s_waitcnt vmcnt({0 if o['lst'] else 2})")
    e("s_branch L_v3")
    g.lab("L_a03")
    e(f"s_add_u32 s{sT2}, s{sT2}, s{sH3}")
    e(f"v_and_b32 v54, 15, v{vL}"); e("v_lshlrev_b32 v52, 10, v54"); e("v_lshl_add_u32 v52, v53, 5, v52"); e("v_lshlrev_b32 v54, 2, v54")
    e(f"s_lshl_b32 s{sT3}, s{sT2}, 14"); e(f"s_lshl_b32 s{sT0}, s{sW}, 8"); e(f"s_add_u32 s{sT3}, s{sT3}, s{sT0}"); e(f"s_add_u32 s{sT3}, s{sT3}, {WS_O+WS_F}")
    e(f"s_lshl_b32 s{sT0}, s{sW}, 11"); e(f"v_add_u32 v61, s{sT0}, v60")
    e(f"v_bfe_u32 v55, v{vL}, 2, 2"); e("v_lshl_add_u32 v63, v53, 3, v55"); e("v_lshlrev_b32 v63, 7, v63")
    e(f"v_bfe_u32 v16, v{vL}, 1, 1"); e(f"s_lshl_b32 s{sT0}, s{sW}, 1"); e(f"v_add_u32 v16, s{sT0}, v16")
    if o['wosw']:
        e("v_and_b32 v55, 2, v55"); e("v_xor_b32 v16, v16, v55"); e("v_and_b32 v55, 1, v53"); e("v_lshlrev_b32 v55, 2, v55"); e("v_xor_b32 v16, v16, v55")
    e("v_lshl_add_u32 v63, v16, 4, v63"); e(f"v_and_b32 v16, 1, v{vL}"); e("v_lshl_add_u32 v63, v16, 3, v63"); e(f"v_add_u32 v63, {L_WO}, v63")
    e(f"s_lshl_b32 s{sT0}, s{sNL}, 2"); e(f"s_add_u32 s{sT0}, s{sT0}, s{sW}"); e(f"s_lshl_b32 s{sT0}, s{sT0}, 15"); e(f"s_lshl_b32 s44, s{sT2}, 7")
    e(f"s_add_u32 s44, s44, s{sT0}"); e(f"s_add_u32 s44, s44, {WS_P}")
    e(f"v_and_b32 v55, 7, v{vL}"); e("v_lshlrev_b32 v55, 12, v55"); e("v_lshl_add_u32 v55, v53, 5, v55")
    e(f"v_bfe_u32 v16, v{vL}, 3, 1"); e("v_lshl_add_u32 v55, v16, 4, v55")
    e(f"v_mov_b32 v109, v{vTAG}"); e(f"v_mov_b32 v111, v{vTAG}")
    e(f"s_lshl_b32 s45, s{sG}, 2"); e(f"s_add_u32 s45, s45, {WS_H}"); e(f"v_lshlrev_b32 v17, 8, v{vL}")
    if o['wt']:
        e(f"s_cmp_eq_u32 s{sROLE}, 14"); e("s_cbranch_scc0 L_v3")
    elif o['wol']: wo_setup(WLATE, 18, 19, 20, 21, 8*WE)
    e("s_branch L_nostat")
    g.lab("L_a4")
    e(f"s_add_u32 s{sT2}, s{sT2}, s{sH3}"); e(f"s_lshl_b32 s{sT3}, s{sT2}, 8"); e(f"s_add_u32 s{sT3}, s{sT3}, {WS_S+WS_F}")
    e(f"v_and_b32 v54, 15, v{vL}"); e("v_lshlrev_b32 v55, 4, v54"); e("v_lshlrev_b32 v54, 2, v54")
    e("s_branch L_nostat")
    g.lab("L_a7")
    e(f"s_lshl_b32 s{sT3}, s2, 12"); e(f"s_add_u32 s{sT3}, s{sT3}, {WS_P}")
    e(f"v_and_b32 v54, 7, v{vL}"); e("v_lshlrev_b32 v54, 2, v54"); e(f"v_lshlrev_b32 v55, 2, v{vL}")
    e(f"s_mul_i32 s21, s{sKVH}, 896"); e("s_lshr_b32 s20, s2, 3"); e("s_lshl_b32 s20, s20, 5"); e("s_add_u32 s21, s21, s20")
    e(f"s_and_b32 s20, s2, {o['nrep']-1}"); e("s_lshl_b32 s20, s20, 8"); e(f"s_add_u32 s20, s20, {WS_H}")
    g.lab("L_nostat")
    e("s_waitcnt vmcnt(0)")
    g.lab("L_v3")
    for k in range(4): e(f"v_mul_f32 v{vACC+k}, v{vACC+k}, v{vF}")
    g.ts("V3")
    e(f"ds_write_b128 v{vORA}, {vr(vACC)}")
    pv(3)
    e(f"s_cmp_lt_u32 s{sW}, 5")
    g.nop(7)
    for k in range(4): e(f"v_mul_f32 v{vACC+4+k}, v{vACC+4+k}, v{vF}")
    e(f"ds_write_b128 v{vORB}, {vr(vACC+4)}")
    if o['wol'] and not o['wt']:
        e(f"s_cmp_gt_u32 s{sW}, 3"); e("s_cbranch_scc1 L_nowo")
        if o.get('sk14', 1): e(f"s_cmp_eq_u32 s{sROLE}, 14"); e("s_cbranch_scc1 L_nowo")
        wo_issue(WLATE, 18, 19, 8*WE)
        g.lab("L_nowo")
        e(f"s_cmp_lt_u32 s{sW}, 5")
    e("s_waitcnt lgkmcnt(0)")
    e("s_barrier")
    g.ts("B4")
    if o.get('stopb4'): e("s_branch L_fin")
    e("s_cbranch_scc1 L_cons")
    e(f"s_cmp_eq_u32 s{sW}, 7"); e("s_cbranch_scc1 L_w7")
    g.c("waves 5,6: sum the 8 partial o, publish")
    for w in range(8): e(f"ds_read_b128 {vr(64+4*w)}, v61 offset:{w*2048}")
    if o['lst']:
        e("s_mov_b64 exec, s[64:65]")
        e(f"buffer_store_dwordx4 v[124:127], v62, {sr(sWS)}, s{sT3} offen")
        e(f"buffer_store_dwordx4 v[124:127], v62, {sr(sWS)}, s{sT2} offen sc1")
        e("s_mov_b64 exec, -1")
    for w in range(1, 8, 2):
        e(f"s_waitcnt lgkmcnt({0 if (o['ts'] or o.get('holdat')) else 7-w})")
        if o['pk']:
            for k in (0, 2): e(f"v_pk_add_f32 {vr(64+4*(w-1)+k,2)}, {vr(64+4*(w-1)+k,2)}, {vr(64+4*w+k,2)}")
            if w > 1:
                for k in (0, 2): e(f"v_pk_add_f32 {vr(64+k,2)}, {vr(64+k,2)}, {vr(64+4*(w-1)+k,2)}")
            continue
        for k in range(4): e(f"v_add_f32 v{64+4*(w-1)+k}, v{64+4*(w-1)+k}, v{64+4*w+k}")
        if w > 1:
            for k in range(4): e(f"v_add_f32 v{64+k}, v{64+k}, v{64+4*(w-1)+k}")
    e("v_cvt_pk_bf16_f32 v96, v64, v65"); e("v_cvt_pk_bf16_f32 v98, v66, v67")
    e(f"buffer_store_dwordx4 v[96:99], v60, {sr(sWS)}, s45 offen {o['opol']}")
    g.ts("opub")
    e(f"buffer_store_dwordx4 v[96:99], v60, {sr(sWS)}, s44 offen sc1")
    e(f"s_cmp_eq_u32 s{sROLE}, 14"); e("s_cbranch_scc1 L_fin")
    if B45: e("s_barrier")
    e("s_barrier")
    e("s_branch L_fin")
    g.lab("L_cons")
    g.c("wave 4: merge weights of the two key halves; waves 0..3: gather o, project, publish partials")
    e(f"s_cmp_eq_u32 s{sROLE}, 14"); e("s_cbranch_scc1 L_fin")
    e(f"s_cmp_lt_u32 s{sW}, 4"); e("s_cbranch_scc1 L_gath")
    if B45: e("s_barrier")
    e("s_mov_b64 exec, 0xffff")
    def sl(): e(f"buffer_load_dwordx4 {vr(160)}, v55, {sr(sWS)}, s{sT3} offen {o.get('ppol2', o['ppol'])}")
    poll("sg", sl, [161, 163], 58, 59, o['sleep1'])
    if o['gate1']: e(f"v_mov_b32 v61, 9"); e(f"ds_write_b32 v62, v61 offset:{L_CNT}")
    e(f"v_mov_b32_dpp v100, v160 row_ror:8 {DPP}")
    e(f"v_mov_b32_dpp v101, v162 row_ror:8 {DPP}")
    e("v_max_f32 v102, v160, v100")
    e("v_sub_f32 v103, v160, v102"); e("v_sub_f32 v100, v100, v102")
    e("v_exp_f32 v103, v103"); e("v_exp_f32 v100, v100"); e("s_nop 0")
    e("v_mul_f32 v103, v103, v162"); e("v_fma_f32 v100, v100, v101, v103")
    e("v_rcp_f32 v100, v100"); e("s_nop 0"); e("v_mul_f32 v103, v103, v100")
    e("s_mov_b64 exec, 0xffff")
    e(f"ds_write_b32 v54, v103 offset:{L_W}")
    e("s_waitcnt lgkmcnt(0)")
    e("s_barrier")
    e("s_branch L_fin")
    g.lab("L_gath")
    def gl():
        for k in range(2):
            e(f"buffer_load_dwordx4 {vr(128+8*k)}, v52, {sr(sWS)}, s{sT3} offen offset:{128*k} {o.get('ppol2', o['ppol'])}")
            e(f"buffer_load_dwordx4 {vr(132+8*k)}, v52, {sr(sWS)}, s{sT3} offen offset:{128*k+16} {o.get('ppol2', o['ppol'])}")
    def wofr():
        for k in range(8):
            e(f"ds_read_b64_tr_b16 {vr(64+4*k,2)}, v63 offset:{k*4096}")
            e(f"ds_read_b64_tr_b16 {vr(66+4*k,2)}, v63 offset:{k*4096+512}")
            if k == 6: e("s_waitcnt lgkmcnt(4)")
    def wofr45():
        e("s_waitcnt vmcnt(4)"); e("s_barrier"); wofr()
    if o.get('pw') is not None: e(f"s_waitcnt vmcnt({o['pw']})")
    if not o['g1p']:
        poll("g1", gl, [129+2*i for i in range(8)], 58, 59, o['sleep1'], first=(wofr45 if B45 else None) if o['wol'] else wofr, gate=o['gate1'])
        for k in range(2):
            e(f"v_mov_b32 v{129+8*k}, v{130+8*k}"); e(f"v_mov_b32 v{130+8*k}, v{132+8*k}"); e(f"v_mov_b32 v{131+8*k}, v{134+8*k}")
            e(f"ds_write_b128 v61, {vr(128+8*k)} offset:{L_B3+1024*k}")
    else:
        def gl2(b):
            for k in range(2):
                e(f"buffer_load_dwordx4 {vr(b+8*k)}, v52, {sr(sWS)}, s{sT3} offen offset:{128*k} sc1")
                e(f"buffer_load_dwordx4 {vr(b+4+8*k)}, v52, {sr(sWS)}, s{sT3} offen offset:{128*k+16} sc1")
        e(f"s_mov_b32 s{sSPIN}, {o['spin']}"); e("s_mov_b64 s[66:67], 0")
        gl2(128); wofr(); e(f"s_sleep {o['g1p']}"); gl2(144)
        g.lab("L_g1")
        e("s_waitcnt vmcnt(4)")
        tagcheck([129+2*i for i in range(8)], 58, 59)
        e("s_cbranch_scc0 L_g1_ok")
        e("s_mov_b64 exec, vcc")
        gl2(128)
        e("s_waitcnt vmcnt(4)")
        tagcheck([145+2*i for i in range(8)], 58, 59)
        e("s_andn2_b64 s[64:65], exec, vcc"); e("s_or_b64 s[66:67], s[66:67], s[64:65]")
        e("s_cmp_eq_u64 vcc, 0"); e("s_cbranch_scc1 L_g1_ok")
        e("s_mov_b64 exec, vcc")
        e(f"s_cmp_eq_u32 s{sSPIN}, {o['spin']-o['fthr']}"); e(f"s_cselect_b32 s{sT0}, {WS_F}, 0"); e(f"s_sub_u32 s{sT3}, s{sT3}, s{sT0}")
        gl2(144)
        e(f"s_sub_u32 s{sSPIN}, s{sSPIN}, 1"); e("s_cbranch_scc0 L_g1")
        g.lab("L_g1_ok")
        e("s_mov_b64 exec, -1")
        for k in range(2):
            for t in range(4): e(f"v_cndmask_b32 v{192+4*k+t}, v{128+8*k+2*t}, v{144+8*k+2*t}, s[66:67]")
            e(f"ds_write_b128 v61, {vr(192+4*k)} offset:{L_B3+1024*k}")
    e(f"s_or_b32 s{sT0}, s{sW}, s{sMEM}"); e("s_cbranch_scc1 L_nohint")
    if o['nrep'] < 64: e(f"s_mov_b64 exec, {hex((1<<o['nrep'])-1)}")
    e(f"buffer_store_dword v{vTAG}, v17, {sr(sWS)}, s45 offen sc1")
    e("s_mov_b64 exec, -1")
    g.lab("L_nohint")
    g.ts("G1")
    e("s_waitcnt lgkmcnt(0)")
    e("s_barrier")
    g.ts("B5")
    if o['wol'] and not B45:
        e(f"ds_read_b32 v103, v54 offset:{L_W}")
        def rd(k):
            e(f"ds_read_b64_tr_b16 {vr(64+4*k,2)}, v63 offset:{k*4096}")
            e(f"ds_read_b64_tr_b16 {vr(66+4*k,2)}, v63 offset:{k*4096+512}")
            e(f"ds_read_b128 {vr(160+4*k)}, v60 offset:{L_B3+k*1024}")
        for k in range(4): rd(k)
        for k in range(8):
            e(f"s_waitcnt lgkmcnt({0 if 'B5' in o.get('tson',()) else 3*min(3, 7-k)})")
            e(f"v_mfma_f32_16x16x32_bf16 {vr(96)}, {vr(64+4*k)}, {vr(160+4*k)}, {'0' if k==0 else vr(96)}")
            if k+4 < 8: rd(k+4)
    else:
        for k in range(8): e(f"ds_read_b128 {vr(160+4*k)}, v60 offset:{L_B3+k*1024}")
        e(f"ds_read_b32 v103, v54 offset:{L_W}")
        for k in range(8):
            e(f"s_waitcnt lgkmcnt({0 if 'B5' in o.get('tson',()) else 8-k})")
            e(f"v_mfma_f32_16x16x32_bf16 {vr(96)}, {vr(64+4*k)}, {vr(160+4*k)}, {'0' if k==0 else vr(96)}")
    e("s_waitcnt lgkmcnt(0)")
    g.nop(7)
    for k in range(4): e(f"v_mul_f32 v{96+k}, v{96+k}, v103")
    for k in range(4): e(f"v_add_f32_dpp v{104+k}, v{96+k}, v{96+k} row_ror:8 {DPP}")
    e(f"v_cndmask_b32 v108, v104, v106, s[{sM8}:{sM8+1}]"); e(f"v_cndmask_b32 v110, v105, v107, s[{sM8}:{sM8+1}]")
    if o.get('nop'): e("s_mov_b32 s44, 0x4000000")
    e(f"buffer_store_dwordx4 v[108:111], v55, {sr(sWS)}, s44 offen {o.get('pst','sc1')}")
    g.ts("ppub")
    e("s_branch L_fin")
    g.lab("L_w7")
    g.c("wave 7: final sum, gate, store")
    for i in range(4): e(f"s_mov_b64 s[{sMASK+2*i}:{sMASK+2*i+1}], -1")
    e(f"s_mov_b32 s{sSPIN}, {o['spin']}")
    e(f"s_cmp_eq_u32 s{sROLE}, 14"); e("s_cbranch_scc1 L_nob5")
    if B45: e("s_barrier")
    e("s_barrier")
    g.lab("L_nob5")
    e("s_cmp_ge_u32 s2, 224"); e("s_cbranch_scc1 L_fin")
    e("s_mov_b64 exec, 0xffff")
    NP = max(1, o['hp'])
    for k in range(NP):
        e(f"buffer_load_dword v{64+k}, v55, {sr(sWS)}, s20 offen sc1")
        if NP > 1: e(f"s_sleep {o['hgap']}")
    g.lab("L_hp")
    for k in range(NP):
        e(f"s_waitcnt vmcnt({NP-1})")
        e(f"v_cmp_ne_u32 vcc, v{64+k}, v{vTAG}")
        e("s_cbranch_vccz L_hp_ok")
        if o['sleep2']: e(f"s_sleep {o['sleep2']}")
        e(f"buffer_load_dword v{64+k}, v55, {sr(sWS)}, s20 offen sc1")
    e(f"s_sub_u32 s{sSPIN}, s{sSPIN}, 1"); e("s_cbranch_scc0 L_hp")
    g.lab("L_hp_ok")
    g.ts("H")
    g.lab("L_g2")
    for i in range(4):
        e(f"s_mov_b64 exec, s[{sMASK+2*i}:{sMASK+2*i+1}]")
        e(f"buffer_load_dwordx4 {vr(128+4*i)}, v60, {sr(sWS)}, s{sT3} offen offset:{i*1024} sc1")
    e("s_mov_b64 exec, -1")
    e("s_waitcnt vmcnt(0)")
    for i in range(4):
        e(f"v_cmp_ne_u32 vcc, v{129+4*i}, v{vTAG}"); e(f"v_cmp_ne_u32 s[{sMASK+2*i}:{sMASK+2*i+1}], v{131+4*i}, v{vTAG}")
        e(f"s_or_b64 s[{sMASK+2*i}:{sMASK+2*i+1}], s[{sMASK+2*i}:{sMASK+2*i+1}], vcc")
    e(f"s_or_b64 s[{sT0}:{sT1}], s[{sMASK}:{sMASK+1}], s[{sMASK+2}:{sMASK+3}]"); e(f"s_or_b64 vcc, s[{sMASK+4}:{sMASK+5}], s[{sMASK+6}:{sMASK+7}]")
    e(f"s_or_b64 vcc, vcc, s[{sT0}:{sT1}]")
    e("s_cbranch_scc0 L_g2_ok")
    e(f"s_sub_u32 s{sSPIN}, s{sSPIN}, 1"); e("s_cbranch_scc0 L_g2")
    g.lab("L_g2_ok")
    g.ts("G2")
    R = [128, 130, 136, 138]
    for r in R: e(f"v_add_f32 v{r}, v{r}, v{r+4}")
    for r in R: e(f"v_add_f32_dpp v{r}, v{r}, v{r} row_ror:8 {DPP}")
    for sw in ("16", "32"):
        for r in R: e(f"v_mov_b32 v{r+1}, v{r}")
        for r in R: e(f"v_permlane{sw}_swap_b32 v{r}, v{r+1}")
        for r in R: e(f"v_add_f32 v{r}, v{r}, v{r+1}")
    e("v_cvt_pk_bf16_f32 v129, v128, v130"); e("v_cvt_pk_bf16_f32 v137, v136, v138")
    for base in (128, 136): e(f"v_lshlrev_b32 v{base}, 16, v{base+1}"); e(f"v_and_b32 v{base+2}, 0xffff0000, v{base+1}")
    for base, gs in ((128, 22), (136, 23)): e(f"v_mul_f32 v{base}, s{gs}, v{base}"); e(f"v_mul_f32 v{base+2}, s{gs}, v{base+2}")
    e("v_cvt_pk_bf16_f32 v129, v128, v130"); e("v_cvt_pk_bf16_f32 v137, v136, v138")
    for base in (128, 136): e(f"v_lshlrev_b32 v{base}, 16, v{base+1}"); e(f"v_and_b32 v{base+2}, 0xffff0000, v{base+1}")
    e("v_add_f32 v128, v128, v136"); e("v_add_f32 v130, v130, v138")
    e("v_cvt_pk_bf16_f32 v128, v128, v130")
    e("s_mov_b64 exec, 0xff")
    e(f"buffer_store_dword v128, v54, {sr(sOUT)}, s21 offen {o.get('outpol','')}")
    e("s_cmp_lg_u32 s2, 0"); e("s_cbranch_scc1 L_fin")
    e("s_mov_b64 exec, 1")
    e(f"buffer_store_dword v{vTAG}, v54, {sr(sWS)}, 0 offen sc1")
    g.lab("L_fin")
    if o.get('holdat'):
        e("s_cmp_eq_u32 s88, 0"); e("s_cbranch_scc1 L_end")
        g.lab("L_hold")
        e("s_memrealtime s[86:87]"); e("s_waitcnt lgkmcnt(0)"); e("s_sub_u32 s86, s86, s84"); e(f"s_cmp_lt_u32 s86, 3000"); e("s_cbranch_scc1 L_hold")
    if o['ts']:
        if o['ts'] == 2: e(f"s_cmp_lg_u32 s{sW}, 7"); e("s_cbranch_scc1 L_end")
        e("s_mov_b64 exec, -1")
        g.ts("end")
        e("s_waitcnt lgkmcnt(0)")
        for k in range(16): e(f"v_mov_b32 v{128+k}, s{TSREG[k]}" if k < g.nts else f"v_mov_b32 v{128+k}, 0")
        e(f"s_lshl_b32 s{sT0}, s2, 3"); e(f"s_add_u32 s{sT0}, s{sT0}, s{sW}"); e(f"s_lshl_b32 s{sT0}, s{sT0}, 6"); e(f"s_add_u32 s{sT0}, s{sT0}, {WS_TS}")
        e("v_mov_b32 v60, 0"); e("s_mov_b64 exec, 1")
        for k in range(1 if o['ts'] == 2 else 4): e(f"buffer_store_dwordx4 {vr(128+4*k)}, v60, {sr(sWS)}, s{sT0} offen offset:{16*k}")
        print("TS:", ",".join(g.tsn))
    g.lab("L_end")
    e("s_endpgm")
    g.lab("L_codeend")
    g.L += ['.section .rodata,"a"', ".p2align 6", f".amdhsa_kernel {KN}",
            "  .amdhsa_next_free_vgpr 256", "  .amdhsa_next_free_sgpr 102", "  .amdhsa_accum_offset 256",
            "  .amdhsa_group_segment_fixed_size 0", "  .amdhsa_kernarg_size 112", "  .amdhsa_user_sgpr_count 2",
            "  .amdhsa_user_sgpr_kernarg_segment_ptr 1", "  .amdhsa_system_sgpr_workgroup_id_x 1",
            "  .amdhsa_float_denorm_mode_32 3", ".end_amdhsa_kernel"]
    return "\n".join(g.L) + "\n"

if __name__ == "__main__":
    from lint import lint
    from build import build
    out = sys.argv[1]; opts = eval("dict(" + (sys.argv[2] if len(sys.argv) > 2 else "") + ")")
    s = gen(**opts)
    open(out, "w").write(s)
    for p in lint(s): print("LINT:", p)
    build(out)
```

```python
import sys, math, struct
sys.path.insert(0, "gen"); sys.path.insert(0, "tools")
KN = "gated_mix__sliding_block_cached__sliding_block_cached__decode_kernel"
HEADER = open("gated_mix__sliding_block_cached__sliding_block_cached__decode.s.ref").read().split("; Override launch")[0]

WS_Q = 0x10000
WS_S = 0x60000
WS_H = 0x70000
WS_O = 0x80000
WS_F = 0x100000
WS_P = 0x200000
WS_TS = 0x400000
WS_SIZE = 0x800000
L_QL = 0
L_SM = 1024
L_SL = 1088
L_W = 1152
L_F = 1216
L_CNT = 1220
L_RQ = 1228
L_CN2 = 1224
L_B3 = 2048
L_WQ = 10240
L_X = 38912
L_WO = 46080
L_OR = 78848
LDS_BYTES = 95232
TSREG = [84,86,88,90,92,94,96,98,100,8,10,12,14,16,18,20]

DOC = '''; ---------------------------------------------------------------------------------------------
; Workgroup id -> kv head = id&7, member = (id>>3)&15 (batch = member>>1, key half = member&1),
; branch = id>>7. The 16 members of a (branch, kv head) group exchange data through d_ws.
;     then gathers the 512 q columns of its own batch into LDS. All waves stream K meanwhile.
;  4. 14 members each take (head, 64 output columns): o @ wo tile by MFMA, the two key halves
;     merged with their softmax weights, f32 partials published.
; Hand-offs: 8-byte {data, tag} granules, tag = f(word 0 of d_ws at entry); word 0 moves on at the
; ---------------------------------------------------------------------------------------------'''

def f2u(x): return struct.unpack("<I", struct.pack("<f", x))[0]
def vr(a, n=4): return f"v[{a}:{a+n-1}]"
def sr(a, n=4): return f"s[{a}:{a+n-1}]"
DPP = "row_mask:0xf bank_mask:0xf"

class G:
    def __init__(s, **o):
        s.L = []
        s.o = dict(round_s=1, ts=0, pol='nt', spin=1<<16, codepf=1, sleep1=0, sleep2=0, b0at=14, pre=2, fthr=256,
                   xm=0x100, xa=1, xb=0, kv=0, qsl=2, ssl=1, hp=0, hgap=2, skip=(6,7), wosw=1, bx=1, pret=0, g1p=0, wol=1, imm=0, nrep=8, xc=1, qp=0, pw=1, wt=1, tlb=0, cpf2=0, q0k=32, pk=1, gate1=0, vpf=3, spf=0, sdel=0, e1=1, b45=1, lst=1, spol='', ppol='sc1 nt', qpol='', opol='')
        s.o.update(o); s.nts = 0; s.tsn = []
    def e(s, t): s.L.append("  " + t)
    def c(s, t): s.L.append("  ; " + t)
    def lab(s, t): s.L.append(t + ":")
    def nop(s, n):
        while n > 0:
            k = min(n, 16); s.e(f"s_nop {k-1}"); n -= k
    def ts(s, name):
        if s.o.get('holdat') == name:
            s.e("s_memrealtime s[84:85]"); s.e("s_mov_b32 s88, 1")
        if not s.o['ts'] or name not in s.o['tson']: return
        k = s.nts; s.nts += 1
        r = TSREG[k]; s.tsn.append(name)
        s.e(f"s_memrealtime s[{r}:{r+1}]   ; ts {name}")

def gen(**opts):
    g = G(**opts); e = g.e; o = g.o; POL = o['pol']
    sK, sV, sWQ, sWO, sX, sGW, sWS, sOUT = 24, 28, 32, 36, 40, 44, 48, 52
    sW = 56; sR = 57; sT0, sT1, sT2, sT3 = 58, 59, 60, 61
    sKVH, sBR, sMEM, sB, sG = 3, 4, 5, 6, 7
    sMASK = 64; sM8 = 80; sSEL0, sSEL1 = 82, 83; sSPIN = 62; sC = 63
    sROLE = 32
    sH3 = 33; sNL = 34
    vL = 1; vKO = 2; vVO = 3; vTAG = 4; vA = 5; vB = 6; vC = 7
    vQB = 8; vS = 16; vPV = 64; vK = 128
    vT = 40; vM0 = 52; vL0 = 53; vAL = 54; vORA = 56; vORB = 57; vSA = 58; vF = 59
    vACC = 112; vP8 = 120
    BS = 131072
    assert not (o['kv'] and o['wt']), "wt needs kv=0"
    B45 = o['b45'] and o['wol']

    def tagcheck(tags, a, b_):
        if len(tags) == 2:
            e(f"v_cmp_ne_u32 vcc, v{tags[0]}, v{vTAG}"); e(f"v_cmp_ne_u32 s[{sT0}:{sT1}], v{tags[1]}, v{vTAG}")
        else:
            e(f"v_min3_u32 v{a}, v{tags[0]}, v{tags[1]}, v{tags[2]}"); e(f"v_max3_u32 v{b_}, v{tags[0]}, v{tags[1]}, v{tags[2]}")
            i = 3
            while i+1 < len(tags):
                e(f"v_min3_u32 v{a}, v{a}, v{tags[i]}, v{tags[i+1]}"); e(f"v_max3_u32 v{b_}, v{b_}, v{tags[i]}, v{tags[i+1]}"); i += 2
            if i < len(tags):
                e(f"v_min_u32 v{a}, v{a}, v{tags[i]}"); e(f"v_max_u32 v{b_}, v{b_}, v{tags[i]}")
            e(f"v_cmp_ne_u32 vcc, v{a}, v{vTAG}"); e(f"v_cmp_ne_u32 s[{sT0}:{sT1}], v{b_}, v{vTAG}")
        e(f"s_or_b64 vcc, vcc, s[{sT0}:{sT1}]")
    def poll(name, loads, tags, a, b_, sleep=0, first=None, gate=False):
        e(f"s_mov_b32 s{sSPIN}, {o['spin']}")
        if first:
            loads(); first(); e(f"s_branch L_{name}_w")
        g.lab(f"L_{name}")
        loads()
        g.lab(f"L_{name}_w")
        e("s_waitcnt vmcnt(0)")
        tagcheck(tags, a, b_)
        e(f"s_cbranch_scc0 L_{name}_ok")
        e("s_mov_b64 exec, vcc")
        if gate:
            g.lab(f"L_{name}_g")
            e(f"ds_read_b32 v{a}, v62 offset:{L_CNT}"); e("s_waitcnt lgkmcnt(0)"); e(f"v_readfirstlane_b32 s{sT0}, v{a}")
            e(f"s_cmp_eq_u32 s{sT0}, 8"); e(f"s_cbranch_scc1 L_{name}_g")
        if sleep: e(f"s_sleep {sleep}")
        e(f"s_cmp_le_u32 s{sSPIN}, {o['spin']-o['fthr']}"); e(f"s_cselect_b32 s{sT0}, {WS_F}, 0"); e(f"s_xor_b32 s{sT3}, s{sT3}, s{sT0}")
        e(f"s_sub_u32 s{sSPIN}, s{sSPIN}, 1"); e(f"s_cbranch_scc0 L_{name}")
        g.lab(f"L_{name}_ok")
        e("s_mov_b64 exec, -1")
    def srd(d, p, n):
        e(f"s_mov_b32 s{d}, s{p}"); e(f"s_mov_b32 s{d+1}, s{p+1}"); e(f"s_mov_b32 s{d+2}, {n}"); e(f"s_mov_b32 s{d+3}, 0x20000")
    def kreg(n): return vK + 4*(n % 16) if o['kv'] else vK + 4*n
    def vreg(unit): return vK + 64 + 32*(unit % 2) if o['kv'] else vK + 32*unit
    def kload(n):
        u, hf = n//2, n % 2
        if o['imm']:
            e(f"buffer_load_dwordx4 {vr(kreg(n))}, v{vKO}, {sr(sK)}, s{sR if u < 8 else 43} offen offset:{(u&7)*512+hf*256} {POL}")
            return
        e(f"s_xor_b32 s47, s{sR}, {(u&7)*512+hf*256+(u>>3)*BS}")
        e(f"buffer_load_dwordx4 {vr(kreg(n))}, v{vKO}, {sr(sK)}, s47 offen {o.get('kvpol', POL)}")
    def vload(unit, j):
        blk, hf = unit//2, unit % 2
        if o['imm']:
            e(f"buffer_load_dwordx4 {vr(vreg(unit)+4*j)}, v{vVO}, {sr(sV)}, s{sR if blk == 0 else 43} offen offset:{j*512+hf*256} {POL}")
            return
        e(f"s_xor_b32 s47, s{sR}, {j*512+hf*256+blk*BS}")
        e(f"buffer_load_dwordx4 {vr(vreg(unit)+4*j)}, v{vVO}, {sr(sV)}, s47 offen {o.get('kvpol', POL)}")

    g.L.append(HEADER.rstrip("\n"))
    g.L.append(f"; @launch grid=(256,1,1) block=(512,1,1) lds={LDS_BYTES}")
    g.L.append('.amdgcn_target "amdgcn-amd-amdhsa--gfx950"')
    g.L.append(DOC)
    g.L.append(".text"); g.L.append(f".globl {KN}"); g.L.append(".p2align 8"); g.L.append(f".type {KN},@function"); g.lab(KN)
    e("s_cmp_ge_u32 s2, 256"); e("s_cbranch_scc1 L_end")
    if o.get('holdat'): e("s_mov_b32 s88, 0")
    g.ts("start")
    if o['codepf'] == 1:
        g.c("pull the kernel's code into L2: one dword per 128 B line")
        e(f"s_getpc_b64 s[{sM8}:{sM8+1}]")
        g.lab("L_pc")
        e(f"v_lshlrev_b32 v35, 7, v0"); e("v_min_u32 v35, L_codeend-L_pc-4, v35")
        e(f"global_load_dword v36, v35, s[{sM8}:{sM8+1}]")
    e(f"s_lshr_b32 s{sBR}, s2, 7")
    e(f"s_mul_i32 s{sT0}, s{sBR}, 40")
    e(f"s_add_u32 s{sT2}, s0, s{sT0}"); e(f"s_addc_u32 s{sT3}, s1, 0")
    e(f"s_load_dwordx8 s[8:15], s[{sT2}:{sT3}], 8")
    e(f"s_load_dwordx2 s[{sX}:{sX+1}], s[0:1], 0")
    e(f"s_load_dwordx2 s[{sWS}:{sWS+1}], s[0:1], 104")
    e("s_load_dwordx4 s[20:23], s[0:1], 80")
    e(f"v_lshrrev_b32 v{vA}, 6, v0")
    e(f"v_and_b32 v{vL}, 63, v0")
    e(f"v_readfirstlane_b32 s{sW}, v{vA}")
    e(f"s_and_b32 s{sKVH}, s2, 7")
    e(f"s_bfe_u32 s{sMEM}, s2, 0x40003")
    e(f"s_lshr_b32 s{sB}, s{sMEM}, 1")
    assert o['xa'] == 1 and o['xb'] == 0 and o['xm'] == 0x100 and o['bx'] == 1
    e(f"s_lshl_b32 s{sT0}, s{sB}, 3"); e(f"s_or_b32 s{sT0}, s{sT0}, s{sKVH}"); e(f"s_lshl_b32 s{sT0}, s{sT0}, 3")
    e(f"s_and_b32 s{sT1}, s{sMEM}, 1"); e(f"s_or_b32 s{sT0}, s{sT0}, s{sT1}"); e(f"s_or_b32 s{sT0}, s{sT0}, 6"); e(f"s_lshl_b32 s{sT0}, s{sT0}, 4")
    e(f"s_xor_b32 s{sT1}, s{sW}, s{sMEM}"); e(f"s_and_b32 s{sT1}, s{sT1}, 7"); e(f"s_or_b32 s{sT0}, s{sT0}, s{sT1}"); e(f"s_lshl_b32 s{sT0}, s{sT0}, 14")
    e(f"s_and_b32 s{sR}, s{sMEM}, 8"); e(f"s_lshl_b32 s{sR}, s{sR}, 6"); e(f"s_and_b32 s{sT1}, s{sW}, 1"); e(f"s_or_b32 s{sR}, s{sR}, s{sT1}"); e(f"s_lshl_b32 s{sR}, s{sR}, 8")
    e(f"v_bfe_u32 v{vA}, v{vL}, 2, 2"); e(f"v_lshrrev_b32 v{vB}, 4, v{vL}")
    e(f"v_lshl_add_u32 v{vKO}, v{vA}, 6, v{vB}")
    e(f"v_and_b32 v{vA}, 3, v{vL}"); e(f"v_lshl_add_u32 v{vKO}, v{vKO}, 2, v{vA}")
    e(f"v_lshl_add_u32 v{vKO}, v{vKO}, 4, s{sT0}")
    e(f"s_mov_b32 s{sK+2}, 0x8000000"); e(f"s_mov_b32 s{sK+3}, 0x20000")
    e(f"s_mov_b32 s{sWQ+2}, 3670016"); e(f"s_mov_b32 s{sWQ+3}, 0x20000")
    e(f"s_lshl_b32 s{sT2}, s{sKVH}, 10")
    e(f"s_cmp_eq_u32 s{sW}, 0"); e("s_cbranch_scc0 L_notw0")
    g.c("wave 0: wq slice and x into LDS")
    e(f"v_lshrrev_b32 v32, 2, v{vL}"); e(f"v_lshl_add_u32 v32, v32, 9, v{vA}"); e(f"s_lshl_b32 s{sT1}, s{sMEM}, 6"); e(f"s_add_u32 s{sT2}, s{sT2}, s{sT1}")
    e(f"v_lshlrev_b32 v32, 4, v32"); e(f"v_mov_b32 v34, 0"); e(f"v_mov_b32 v35, 0"); e(f"s_mov_b32 m0, {L_WQ}")
    e(f"ds_write_b64 v34, v[34:35] offset:{L_F}")
    e(f"ds_write_b32 v34, v34 offset:{L_CN2}")
    e("s_waitcnt lgkmcnt(0)")
    g.ts("ka")
    e(f"s_mov_b32 s{sWQ}, s12"); e(f"s_mov_b32 s{sWQ+1}, s13")
    if o.get('xin', 1):
        e(f"v_lshlrev_b32 v33, 4, v{vL}")
        e(f"s_mov_b32 s{sWS+2}, {WS_SIZE}"); e(f"s_mov_b32 s{sWS+3}, 0x20000")
        e(f"s_mov_b32 s{sX+2}, 7168"); e(f"s_mov_b32 s{sX+3}, 0x20000")
        e(f"s_mov_b32 m0, {L_X}"); e(f"s_movk_i32 s{sT1}, 0x1000")
        for ii in range(4): e(f"buffer_load_dwordx4 v33, {sr(sX)}, 0 offen offset:{ii*1024} lds")
        e(f"s_mov_b32 m0, {L_X+4096}")
        e(f"buffer_load_dword v{vTAG}, v34, {sr(sWS)}, 0 offen sc1")
        for ii in range(3): e(f"buffer_load_dwordx4 v33, {sr(sX)}, s{sT1} offen offset:{ii*1024} lds")
        e(f"s_mov_b32 m0, {L_WQ}"); e("s_nop 0")
    B0 = o['b0at']
    g.lab("L_wql")
    e(f"buffer_load_dwordx4 v32, {sr(sWQ)}, s{sT2} offen {POL} lds")
    e("s_add_u32 m0, m0, 1024"); e(f"s_add_u32 s{sT2}, s{sT2}, 131072")
    if 0 < B0 < 28:
        e(f"s_cmp_lg_u32 m0, {L_WQ+1024*B0}"); e("s_cbranch_scc1 L_wqn"); e("s_barrier"); g.lab("L_wqn")
    e(f"s_cmp_lt_u32 m0, {L_WQ+1024*28}"); e("s_cbranch_scc1 L_wql")
    if B0 == 28: e("s_barrier")
    e("s_branch L_w0b")
    g.lab("L_notw0")
    assert o['vpf'] == 3
    if o.get('tw', 4) < 0:
        g.c("wave 1: touch this member's 28 rows of column block 3 (the block whose owners would otherwise queue 448 requests on one path)")
        e(f"v_lshlrev_b32 v37, 13, v{vL}")
        e(f"s_mul_i32 s{sT1}, s{sMEM}, {28*8192}"); e(f"s_add_u32 s{sT2}, s{sT2}, s{sT1}"); e(f"s_add_u32 s{sT2}, s{sT2}, 384")
        e(f"s_cmp_gt_u32 s{sW}, 1")
    else:
        g.c("waves 1..4: touch 7 rows x 1 KB each of the group's wq block (rows 28*member ..), so that the strided slice loads meet them in L2")
        e(f"v_lshrrev_b32 v37, 3, v{vL}"); e(f"v_and_b32 v38, 7, v{vL}"); e("v_lshl_add_u32 v37, v37, 6, v38"); e("v_lshlrev_b32 v37, 7, v37")
        TW = o.get('tw', 4)
        e(f"s_mul_i32 s{sT1}, s{sMEM}, {TW}"); e(f"s_add_u32 s{sT1}, s{sT1}, s{sW}"); e(f"s_mul_i32 s{sT1}, s{sT1}, {7*8192}"); e(f"s_add_u32 s{sT2}, s{sT2}, s{sT1}")
        e(f"s_add_u32 s{sT2}, s{sT2}, {((448-112*TW)-7)*8192 & 0xffffffff}")
        e(f"s_cmp_gt_u32 s{sW}, {TW}")
    e("s_waitcnt lgkmcnt(0)")
    g.ts("ka")
    e(f"s_mov_b32 s{sK}, s8"); e(f"s_mov_b32 s{sK+1}, s9")
    e("s_cbranch_scc1 L_novpf")
    e(f"s_mov_b32 s{sWQ}, s12"); e(f"s_mov_b32 s{sWQ+1}, s13")
    e("s_mov_b64 exec, 0xfffffff" if o.get('tw', 4) < 0 else "s_mov_b32 exec_hi, 0xffffff")
    e(f"buffer_load_dword v38, v37, {sr(sWQ)}, s{sT2} offen {POL}")
    e("s_mov_b64 exec, -1")
    g.lab("L_novpf")
    for n in range(o['pre']): kload(n)
    if o['codepf'] == 2:
        g.c("waves 5,6: pull the rest of the kernel's code into L2: one dword per 128 B line")
        e(f"s_sub_u32 s{sT1}, s{sW}, 5"); e(f"s_cmp_gt_u32 s{sT1}, 1"); e("s_cbranch_scc1 L_nopf")
        e(f"s_getpc_b64 s[{sM8}:{sM8+1}]")
        g.lab("L_pc")
        e(f"v_lshlrev_b32 v35, 7, v0"); e(f"v_subrev_u32 v35, {5*8192}, v35"); e("v_min_u32 v35, L_codeend-L_pc-4, v35")
        e(f"global_load_dword v36, v35, s[{sM8}:{sM8+1}]")
        g.lab("L_nopf")
    g.ts("kpre")
    if B0 > 0: e("s_barrier")
    g.ts("b0")
    for n in range(o['pre'], 32): kload(n)
    g.lab("L_kq0")
    if B0 == 0: e("s_barrier")
    def common2():
        e(f"s_lshl_b32 s{sG}, s{sBR}, 3"); e(f"s_add_u32 s{sG}, s{sG}, s{sKVH}")
        e(f"v_lshlrev_b32 v33, 4, v{vL}")
        e(f"s_mov_b32 s{sWS+2}, {WS_SIZE}"); e(f"s_mov_b32 s{sWS+3}, 0x20000")
        e(f"s_mov_b32 s{sX+2}, 7168"); e(f"s_mov_b32 s{sX+3}, 0x20000")
    common2()
    e(f"v_readfirstlane_b32 s{sT0}, v{vKO}"); e(f"v_and_b32 v{vC}, 15, v{vL}"); e(f"v_lshl_add_u32 v{vVO}, v{vB}, 8, v{vC}")
    e(f"s_cmp_lg_u32 s{sW}, 7")
    e(f"v_lshl_add_u32 v{vVO}, v{vVO}, 4, s{sT0}")
    e("s_cbranch_scc1 L_nog7")
    srd(sGW, 20, 896)
    e(f"s_mul_i32 s{sT0}, s{sKVH}, 896")
    e(f"buffer_load_dwordx4 v[16:19], v33, {sr(sX)}, s{sT0} offen")
    e(f"buffer_load_dwordx4 v[20:23], v33, {sr(sGW)}, 0 offen")
    g.lab("L_nog7")
    srd(sV, 10, 0x8000000)
    g.ts("kiss")
    srd(sWO, 14, 3670016); srd(sOUT, 22, 7168)
    g.c("output-projection role of this member (14 = none), constants")
    s0, s1 = o['skip']
    e(f"s_mov_b32 s{sROLE}, s{sMEM}")
    e(f"s_cmp_gt_u32 s{sMEM}, {s1}"); e(f"s_cselect_b32 s{sT0}, 2, 0"); e(f"s_sub_u32 s{sROLE}, s{sROLE}, s{sT0}")
    e(f"s_sub_u32 s{sT0}, s{sMEM}, {s0}"); e(f"s_cmp_lt_u32 s{sT0}, 2"); e(f"s_cselect_b32 s{sROLE}, 14, s{sROLE}")
    e(f"s_cmp_ge_u32 s{sROLE}, 7"); e(f"s_cselect_b32 s{sH3}, 1, 0"); e(f"s_mul_i32 s{sT0}, s{sH3}, 7"); e(f"s_sub_u32 s{sNL}, s{sROLE}, s{sT0}")
    def wo_setup(nper, va, vb, vc, vd, p0=0):
        e(f"s_lshl_b32 s{sT0}, s{sKVH}, 9"); e(f"s_lshl_b32 s{sT1}, s{sH3}, 8"); e(f"s_add_u32 s{sT0}, s{sT0}, s{sT1}"); e(f"s_mul_i32 s{sT1}, s{sW}, {8*nper}"); e(f"s_add_u32 s{sT0}, s{sT0}, s{sT1}")
        if p0: e(f"s_add_u32 s{sT0}, s{sT0}, {8*p0}")
        e(f"s_mul_i32 s{sT0}, s{sT0}, 896"); e(f"s_lshl_b32 s{sT1}, s{sNL}, 7"); e(f"s_add_u32 s35, s{sT0}, s{sT1}")
        e(f"s_cmp_eq_u32 s{sROLE}, 14"); e(f"s_cselect_b32 s35, 0x4000000, s35")
        if o.get('nowo'): e(f"s_mov_b32 s35, 0x4000000")
        e(f"v_lshrrev_b32 v{va}, 3, v{vL}"); e(f"v_mul_u32_u24 v{vb}, 896, v{va}"); e(f"v_and_b32 v{vc}, 7, v{vL}")
        e(f"v_and_b32 v{va}, 2, v{va}"); e(f"v_xor_b32 v{vc}, v{vc}, v{va}"); e(f"v_xor_b32 v{vd}, 4, v{vc}")
        e(f"v_lshl_add_u32 v{va}, v{vc}, 4, v{vb}"); e(f"v_lshl_add_u32 v{vb}, v{vd}, 4, v{vb}")
    def wo_issue(nper, va, vb, p0=0):
        e(f"s_mul_i32 s46, s{sW}, {1024*nper}")
        for ii in range(nper):
            e(f"s_add_u32 m0, s46, {L_WO+(p0+ii)*1024}")
            e(f"s_add_u32 s47, s35, {ii*8*896}")
            e(f"buffer_load_dwordx4 v{vb if ii%2 else va}, {sr(sWO)}, s47 offen {POL} lds")
    WE = {0: 4, 1: 0, 2: 2}[o['wol']]
    WLATE = (32 - 8*WE)//4
    NWO = WE
    if o.get('nodma'): NWO = 0
    elif WE:
        wo_setup(WE, 60, 61, 62, 63); wo_issue(WE, 60, 61)
    for v in range(8):
        pat = (0x11 << (v & 3)) << (8*(v >> 2)); pat |= pat << 16
        e(f"s_mov_b32 s{sMASK+2*v}, 0x{pat:08x}"); e(f"s_mov_b32 s{sMASK+2*v+1}, 0x{pat:08x}")
    e(f"s_mov_b32 s{sSEL0}, 0x05040100"); e(f"s_mov_b32 s{sSEL1}, 0x07060302")
    e(f"s_mov_b32 s{sC}, 0x{f2u(math.log2(math.e)/16):08x}")
    e(f"s_mov_b32 s{sM8}, 0xff00ff00"); e(f"s_mov_b32 s{sM8+1}, 0xff00ff00")
    if o['qp']:
        e(f"s_cmp_lg_u32 s{sW}, {o['qp']}"); e("s_cbranch_scc1 L_notqp")
        e(f"s_lshl_b32 s{sT3}, s{sG}, 3"); e(f"s_add_u32 s{sT3}, s{sT3}, s{sB}"); e(f"s_lshl_b32 s{sT3}, s{sT3}, 11"); e(f"s_add_u32 s{sT3}, s{sT3}, {WS_Q+WS_F}")
        e("s_getreg_b32 s44, hwreg(HW_REG_XCC_ID, 0, 3)")
        e(f"s_waitcnt vmcnt({32 + NWO})")
        e(f"v_and_b32 v{vTAG}, -8, v{vTAG}"); e(f"v_add_u32 v{vTAG}, 8, v{vTAG}"); e(f"v_or_b32 v53, s44, v{vTAG}")
        qgather(False)
        e("s_branch L_b2")
        g.lab("L_notqp")
    if o['e1']:
        e(f"s_cmp_lg_u32 s{sW}, 7"); e("s_cbranch_scc1 L_b2")
        e(f"s_waitcnt vmcnt({NWO})")
    else:
        e(f"s_cmp_eq_u32 s{sW}, 0"); e("s_cbranch_scc1 L_b2")
        e(f"s_waitcnt vmcnt({32 - o['pre'] + NWO})")
        e(f"v_and_b32 v{vTAG}, -8, v{vTAG}"); e(f"v_add_u32 v{vTAG}, 8, v{vTAG}")
        e(f"s_cmp_lg_u32 s{sW}, 7"); e("s_cbranch_scc1 L_b2")
    g.c("wave 7: gate g -> s22, 1-g -> s23 (bf16-rounded like the reference)")
    e(f"v_cmp_gt_u32 vcc, 56, v{vL}"); e("v_mov_b32 v24, 0"); e("s_nop 0")
    for k in range(4): e(f"v_cndmask_b32 v{16+k}, 0, v{16+k}, vcc")
    for k in range(4):
        e(f"v_lshlrev_b32 v25, 16, v{16+k}"); e(f"v_and_b32 v26, 0xffff0000, v{16+k}")
        e(f"v_lshlrev_b32 v27, 16, v{20+k}"); e(f"v_and_b32 v28, 0xffff0000, v{20+k}")
        e("v_mul_f32 v25, v25, v27"); e("v_mul_f32 v26, v26, v28")
        e("v_cvt_pk_bf16_f32 v25, v25, v26")
        e("v_lshlrev_b32 v26, 16, v25"); e("v_and_b32 v25, 0xffff0000, v25")
        e("v_add_f32 v24, v24, v26"); e("v_add_f32 v24, v24, v25")
    for dpp in ("quad_perm:[1,0,3,2]", "quad_perm:[2,3,0,1]", "row_ror:4", "row_ror:8"):
        e("s_nop 1"); e(f"v_add_f32_dpp v24, v24, v24 {dpp} {DPP}")
    for sw in ("16", "32"):
        e("v_mov_b32 v25, v24"); e("s_nop 1"); e(f"v_permlane{sw}_swap_b32 v24, v25"); e("v_add_f32 v24, v24, v25")
    e("v_cvt_pk_bf16_f32 v24, v24, v24"); e("v_and_b32 v24, 0xffff0000, v24")
    e(f"v_mul_f32 v24, 0x{f2u(-math.log2(math.e)):08x}, v24"); e("v_exp_f32 v24, v24"); e("s_nop 0")
    e("v_add_f32 v24, 1.0, v24"); e("v_rcp_f32 v24, v24"); e("s_nop 0")
    e("v_cvt_pk_bf16_f32 v24, v24, v24"); e("v_and_b32 v24, 0xffff0000, v24")
    e("v_sub_f32 v25, 1.0, v24"); e("v_cvt_pk_bf16_f32 v25, v25, v25"); e("v_and_b32 v25, 0xffff0000, v25")
    e("v_readfirstlane_b32 s22, v24"); e("v_readfirstlane_b32 s23, v25")
    g.lab("L_b2")
    e(f"v_bfe_u32 v{vC}, v{vL}, 2, 1"); e(f"v_lshlrev_b32 v{vA}, 9, v{vC}")
    e(f"v_lshl_add_u32 v{vA}, v{vB}, 6, v{vA}")
    e(f"v_and_b32 v60, 3, v{vL}"); e(f"v_lshl_add_u32 v{vA}, v60, 4, v{vA}")
    e(f"s_and_b32 s{sT0}, s{sR}, 0x100"); e(f"v_add_u32 v{vA}, s{sT0}, v{vA}"); e(f"v_xor_b32 v60, 0x100, v{vA}")
    e("v_mov_b32 v62, 0"); e("s_mov_b32 s42, 1")
    if not o.get('noqw'):
        e(f"s_mov_b32 s{sSPIN}, 0x400000")
        if o['qp']:
            e(f"s_cmp_lg_u32 s{sW}, 0"); e("s_cbranch_scc1 L_qwait")
            g.lab("L_q0w")
            e(f"ds_read_b32 v61, v62 offset:{L_F}"); e(f"ds_read_b32 v63, v62 offset:{L_RQ}"); e("s_waitcnt lgkmcnt(0)")
            e("v_readfirstlane_b32 s42, v61"); e(f"v_readfirstlane_b32 s{sT0}, v63")
            e(f"s_and_b32 s{sT1}, s42, 2"); e(f"s_or_b32 s{sT0}, s{sT0}, s{sT1}"); e("s_cbranch_scc1 L_q0s")
            e("s_cmp_lg_u32 s42, 0"); e("s_cbranch_scc1 L_qready")
            e(f"s_sleep {o['qsl']}"); e(f"s_sub_u32 s{sSPIN}, s{sSPIN}, 1"); e("s_cbranch_scc0 L_q0w")
            g.lab("L_q0s")
            e(f"buffer_store_dwordx4 v[52:55], v43, {sr(sWS)}, s45 offen sc1")
            e("s_waitcnt vmcnt(0)")
        g.lab("L_qwait")
        e(f"ds_read_b32 v61, v62 offset:{L_F}"); e("s_waitcnt lgkmcnt(0)"); e(f"v_readfirstlane_b32 s42, v61"); e(f"s_cmp_lg_u32 s42, 0"); e("s_cbranch_scc1 L_qready")
        e(f"s_sleep {o['qsl']}"); e(f"s_sub_u32 s{sSPIN}, s{sSPIN}, 1"); e("s_cbranch_scc0 L_qwait")
        g.lab("L_qready")
        if o['e1']: e(f"v_and_b32 v{vTAG}, -8, v61"); e("s_and_b32 s42, s42, 7")
    if o.get('b2'): e("s_barrier")
    g.ts("B2")
    g.c("q fragments; QK^T, softmax, P.V")
    e(f"ds_read_b128 {vr(vQB)}, v{vA} offset:{L_QL}")
    e(f"ds_read_b128 {vr(vQB+4)}, v60 offset:{L_QL}")
    e("s_waitcnt lgkmcnt(0)")
    def xred(r, t, op):
        for sw in ("16", "32"):
            e(f"v_mov_b32 v{t}, v{r}"); e("s_nop 1"); e(f"v_permlane{sw}_swap_b32 v{r}, v{t}"); e(f"{op} v{r}, v{r}, v{t}")
    def soft(blk):
        if o.get('nocomp'): return
        S = vS + 8*blk
        if o['round_s']:
            for u in range(0, 8, 2): e(f"v_cvt_pk_bf16_f32 v{vP8+u//2}, v{S+u}, v{S+u+1}")
            for u in range(0, 8, 2):
                e(f"v_lshlrev_b32 v{S+u}, 16, v{vP8+u//2}"); e(f"v_and_b32 v{S+u+1}, 0xffff0000, v{vP8+u//2}")
        e(f"v_max3_f32 v{vA}, v{S}, v{S+1}, v{S+2}"); e(f"v_max3_f32 v{vB}, v{S+3}, v{S+4}, v{S+5}")
        e(f"v_max3_f32 v{vA}, v{vA}, v{S+6}, v{S+7}"); e(f"v_max_f32 v{vA}, v{vA}, v{vB}")
        xred(vA, vB, "v_max_f32")
        if blk == 0:
            e(f"v_mul_f32 v{vM0}, s{sC}, v{vA}")
        else:
            e(f"v_mul_f32 v{vA}, s{sC}, v{vA}"); e(f"v_max_f32 v{vA}, v{vA}, v{vM0}")
            e(f"v_sub_f32 v{vAL}, v{vM0}, v{vA}"); e(f"v_mov_b32 v{vM0}, v{vA}"); e(f"v_exp_f32 v{vAL}, v{vAL}")
        for u in range(8): e(f"v_fma_f32 v{S+u}, v{S+u}, s{sC}, -v{vM0}")
        for u in range(8): e(f"v_exp_f32 v{S+u}, v{S+u}")
        e("s_nop 0")
        for t in range(4): e(f"v_cvt_pk_bf16_f32 v{vP8+t}, v{S+2*t}, v{S+2*t+1}")
        for t in range(4): e(f"v_add_f32 v{S+t}, v{S+t}, v{S+t+4}")
        e(f"v_add_f32 v{S}, v{S}, v{S+2}"); e(f"v_add_f32 v{S+1}, v{S+1}, v{S+3}")
        if blk == 0:
            e(f"v_add_f32 v{vL0}, v{S}, v{S+1}")
        else:
            e(f"v_add_f32 v{S}, v{S}, v{S+1}"); e(f"v_fmac_f32 v{S}, v{vL0}, v{vAL}")
            xred(S, S+1, "v_add_f32")
            e(f"ds_write_b32 v{vSA}, v{vM0} offset:{L_SM}"); e(f"ds_write_b32 v{vSA}, v{S} offset:{L_SL}")
            e(f"v_mov_b32 v{S+1}, 1"); e(f"v_mov_b32 v{S+2}, 0"); e("s_mov_b64 exec, 1")
            e(f"ds_add_u32 v{S+2}, v{S+1} offset:{L_CNT}"); e("s_mov_b64 exec, -1")
            e(f"v_readlane_b32 s{sT0}, v{vAL}, 0"); e(f"v_readlane_b32 s{sT1}, v{vAL}, 4")
        for v in range(8):
            for t in range(4):
                e(f"v_cndmask_b32 v{vPV+4*v+t}, 0, v{vP8+t}, s[{sMASK+2*v}:{sMASK+2*v+1}]")
    def pv(unit):
        if o.get('nocomp'): return
        blk, hf = unit//2, unit % 2
        base = vreg(unit); acc = vACC + 4*hf
        def perms(d):
            for t in range(4):
                e(f"v_perm_b32 v{vT+4*(d%3)+t}, v{base+4*(2*t+1)+d//2}, v{base+4*(2*t)+d//2}, s{sSEL1 if d&1 else sSEL0}")
        perms(0)
        for d in range(8):
            if d < 7: perms(d+1)
            else: g.nop(2)
            cin = "0" if (blk == 0 and d == 0) else vr(acc)
            e(f"v_mfma_f32_16x16x32_bf16 {vr(acc)}, {vr(vPV+4*d)}, {vr(vT+4*(d%3))}, {cin}")
    def qkm(bt, dbase, wait):
        e(f"s_waitcnt vmcnt({wait})")
        g.ts(f"K{bt}")
        if o.get('nocomp'): return
        for u in range(4*bt, 4*bt+4):
            d = dbase + 4*(u % 4)
            e(f"v_mfma_f32_16x16x32_bf16 {vr(d)}, {vr(kreg(2*u))}, {vr(vQB)}, 0")
            e(f"v_mfma_f32_16x16x32_bf16 {vr(d)}, {vr(kreg(2*u+1))}, {vr(vQB+4)}, {vr(d)}")
    def postb(bt, dbase):
        if o.get('nocomp'): return
        for step in range(4):
            for u in range(4*bt, 4*bt+4):
                d = dbase + 4*(u % 4); s_ = vS + u
                if step == 0: e(f"v_mov_b32_dpp v{s_}, v{d} quad_perm:[0,0,0,0] {DPP}")
                else: e(f"v_add_f32_dpp v{s_}, v{d+step}, v{s_} quad_perm:[{step},{step},{step},{step}] {DPP}")
    def vunit(u):
        for j in range(8): vload(u, j)
    def addrs():
        e(f"v_lshlrev_b32 v{vC}, 5, v{vC}")
        e(f"s_lshl_b32 s{sT0}, s{sW}, 2"); e(f"v_add_u32 v{vSA}, s{sT0}, v{vC}")
        e(f"v_bfe_u32 v{vC}, v{vL}, 4, 1"); e(f"v_lshlrev_b32 v{vORA}, 10, v{vC}"); e(f"v_lshlrev_b32 v{vC}, 5, v{vC}")
        e(f"v_and_b32 v{vORB}, 15, v{vL}"); e(f"v_lshl_add_u32 v{vORA}, v{vORB}, 5, v{vORA}")
        e(f"v_lshrrev_b32 v{vORB}, 5, v{vL}"); e(f"v_lshl_add_u32 v{vORA}, v{vORB}, 4, v{vORA}")
        e(f"s_and_b32 s{sT1}, s{sR}, 0x100"); e(f"s_lshl_b32 s{sT1}, s{sT1}, 1"); e(f"v_add_u32 v{vORA}, s{sT1}, v{vORA}"); e(f"v_xor_b32 v{vORB}, 0x200, v{vORA}")
        e(f"s_lshl_b32 s{sT0}, s{sW}, 11"); e(f"s_add_u32 s{sT0}, s{sT0}, {L_OR}"); e(f"v_add_u32 v{vORA}, s{sT0}, v{vORA}"); e(f"v_add_u32 v{vORB}, s{sT0}, v{vORB}")
        if o['pret']:
            e(f"s_sub_u32 s{sT0}, s{sW}, 1"); e(f"s_cmp_gt_u32 s{sT0}, 1"); e("s_cbranch_scc1 L_nopre")
            e(f"s_and_b32 s{sT1}, s{sMEM}, 1"); e(f"s_lshl_b32 s{sT1}, s{sT1}, 3"); e(f"s_add_u32 s{sT1}, s{sT1}, s{sB}")
            e(f"s_lshl_b32 s{sT2}, s{sG}, 1"); e(f"s_add_u32 s{sT2}, s{sT2}, s{sT0}")
            e(f"s_lshl_b32 s{sT2}, s{sT2}, 14"); e(f"s_lshl_b32 s{sT1}, s{sT1}, 10"); e(f"s_add_u32 s{sT2}, s{sT2}, s{sT1}"); e(f"s_add_u32 s{sT2}, s{sT2}, {WS_O+WS_F}")
            e(f"v_add_u32 v60, 1, v{vTAG}"); e("v_mov_b32 v61, v60"); e("v_mov_b32 v62, v60"); e("v_mov_b32 v63, v60"); e(f"v_lshlrev_b32 v55, 4, v{vL}")
            e(f"buffer_store_dwordx4 v[60:63], v55, {sr(sWS)}, s{sT2} offen")
            g.lab("L_nopre")
            e("s_nop 1")
    W = NWO
    if o['kv'] == 0:
        qkm(0, 32, 24+W); vunit(0); qkm(1, 48, 24+W); vunit(1)
        postb(0, 32); postb(1, 48); addrs(); soft(0)
        qkm(2, 32, 24+W); vunit(2)
        if o['wt'] == 2:
            e("v_mov_b32 v60, 1"); e("v_mov_b32 v61, 0"); e("s_mov_b64 exec, 1"); e(f"ds_add_u32 v61, v60 offset:{L_CN2}"); e("s_mov_b64 exec, -1")
        postb(2, 32)
        e("s_waitcnt vmcnt(16)"); g.ts("V0"); pv(0)
        qkm(3, 96, 24+W); vunit(3)
        if o['wt'] == 1:
            e("v_mov_b32 v60, 1"); e("v_mov_b32 v61, 0"); e("s_mov_b64 exec, 1"); e(f"ds_add_u32 v61, v60 offset:{L_CN2}"); e("s_mov_b64 exec, -1")
        g.ts("QK")
        e("s_waitcnt vmcnt(16)"); g.ts("V1"); pv(1)
        postb(3, 96); soft(1)
    else:
        K2 = (o['kv'] == 2)
        qkm(0, 32, 24+W)
        if not K2:
            for n in range(16, 24): kload(n)
        qkm(1, 48, (16 if K2 else 24)+W)
        if not K2:
            for n in range(24, 32): kload(n)
        else: g.nop(4)
        postb(0, 32); postb(1, 48); addrs(); soft(0)
        if K2:
            e(f"s_waitcnt vmcnt({8+W})"); pv(0)
            e(f"s_waitcnt vmcnt({W})"); pv(1)
            for n in range(16, 32): kload(n)
            vunit(2); vunit(3)
        else:
            e(f"s_waitcnt vmcnt({24+W})"); pv(0); vunit(2)
            e(f"s_waitcnt vmcnt({24+W})"); pv(1); vunit(3)
        g.ts("QK")
        qkm(2, 32, 24); qkm(3, 96, 16)
        postb(2, 32); postb(3, 96); soft(1)
    e(f"v_mov_b32 v{vAL}, s{sT0}"); e(f"v_mov_b32 v{vA}, s{sT1}"); e(f"s_mov_b32 vcc_lo, 0xffff0000"); e(f"s_mov_b32 vcc_hi, 0xffff0000")
    e(f"v_cndmask_b32 v{vAL}, v{vAL}, v{vA}, vcc")
    for k in range(8): e(f"v_mul_f32 v{vACC+k}, v{vACC+k}, v{vAL}")
    g.ts("P")
    e(f"s_waitcnt vmcnt(8)"); g.ts("V2"); pv(2)
    if o['cpf2']:
        e(f"s_cmp_lg_u32 s{sW}, 3"); e("s_cbranch_scc1 L_nopf2")
        e(f"s_getpc_b64 s[{sT2}:{sT3}]")
        g.lab("L_pc2")
        e(f"v_lshlrev_b32 v60, 7, v{vL}"); e(f"s_mov_b32 s{sT0}, L_codeend-L_pc2-4"); e(f"v_min_u32 v60, s{sT0}, v60")
        e(f"global_load_dword v61, v60, s[{sT2}:{sT3}]")
        e("s_waitcnt vmcnt(0)")
        g.lab("L_nopf2")
    if o['wt']:
        e(f"s_cmp_gt_u32 s{sW}, 3"); e("s_cbranch_scc1 L_nowt")
        e(f"s_cmp_eq_u32 s{sROLE}, 14"); e("s_cbranch_scc1 L_nowt")
        wo_setup(WLATE, 60, 61, 62, 63, 8*WE)
        e("v_mov_b32 v62, 0")
        e("s_waitcnt vmcnt(0)")
        e(f"s_mov_b32 s{sSPIN}, 0x400000")
        g.lab("L_wtw")
        e(f"ds_read_b32 v63, v62 offset:{L_CN2}"); e("s_waitcnt lgkmcnt(0)"); e(f"v_readfirstlane_b32 s{sT0}, v63"); e(f"s_cmp_ge_u32 s{sT0}, {o.get('wtn', 8)}"); e("s_cbranch_scc1 L_wtg")
        e(f"s_sleep {o['ssl']}"); e(f"s_sub_u32 s{sSPIN}, s{sSPIN}, 1"); e("s_cbranch_scc0 L_wtw")
        g.lab("L_wtg")
        wo_issue(WLATE, 60, 61, 8*WE)
        g.lab("L_nowt")
    g.c("workgroup-level softmax factor from the 8 waves (max, sum)")
    e(f"s_lshl_b32 s{sT0}, s{sW}, 2"); e(f"v_add_u32 v{vB}, s{sT0}, v{vC}"); e("v_mov_b32 v62, 0")
    if o.get('nocomp') or o.get('nosw'): e("s_branch L_sready")
    e(f"s_mov_b32 s{sSPIN}, 0x400000")
    g.lab("L_swait")
    e(f"ds_read_b32 v61, v62 offset:{L_CNT}"); e("s_waitcnt lgkmcnt(0)"); e(f"v_readfirstlane_b32 s{sT0}, v61"); e(f"s_cmp_eq_u32 s{sT0}, 8"); e("s_cbranch_scc1 L_sready")
    e(f"s_sleep {o['ssl']}"); e(f"s_sub_u32 s{sSPIN}, s{sSPIN}, 1"); e("s_cbranch_scc0 L_swait")
    g.lab("L_sready")
    e(f"ds_read_b128 {vr(16)}, v{vC} offset:{L_SM}"); e(f"ds_read_b128 {vr(20)}, v{vC} offset:{L_SM+16}")
    e(f"ds_read_b32 v{vF}, v{vB} offset:{L_SM}")
    e(f"ds_read_b128 {vr(24)}, v{vC} offset:{L_SL}"); e(f"ds_read_b128 {vr(28)}, v{vC} offset:{L_SL+16}")
    e("s_waitcnt lgkmcnt(0)")
    e("v_max3_f32 v124, v16, v17, v18"); e("v_max3_f32 v125, v19, v20, v21"); e("v_max3_f32 v124, v124, v22, v23"); e("v_max_f32 v124, v124, v125")
    for w in range(8): e(f"v_sub_f32 v{16+w}, v{16+w}, v124")
    e(f"v_sub_f32 v{vF}, v{vF}, v124")
    for w in range(8): e(f"v_exp_f32 v{16+w}, v{16+w}")
    e(f"v_exp_f32 v{vF}, v{vF}")
    e("v_mul_f32 v126, v24, v16")
    for w in range(1, 8): e(f"v_fmac_f32 v126, v{24+w}, v{16+w}")
    e(f"v_rcp_f32 v16, v126"); e(f"v_mov_b32 v125, v{vTAG}"); e(f"v_mov_b32 v127, v{vTAG}")
    e(f"v_mul_f32 v{vF}, v{vF}, v16")
    e(f"v_lshrrev_b32 v53, 4, v{vL}")
    e(f"v_lshlrev_b32 v60, 4, v{vL}")
    e(f"s_lshl_b32 s{sT2}, s{sG}, 1")
    e(f"s_cmp_lt_u32 s{sW}, 4"); e("s_cbranch_scc1 L_a03")
    e(f"s_cmp_eq_u32 s{sW}, 4"); e("s_cbranch_scc1 L_a4")
    e(f"s_cmp_eq_u32 s{sW}, 7"); e("s_cbranch_scc1 L_a7")
    e(f"s_sub_u32 s{sT0}, s{sW}, 5")
    e(f"s_and_b32 s{sT1}, s{sMEM}, 1"); e(f"s_lshl_b32 s{sT1}, s{sT1}, 3"); e(f"s_add_u32 s{sT1}, s{sT1}, s{sB}")
    e(f"s_add_u32 s{sT2}, s{sT2}, s{sT0}")
    e(f"s_lshl_b32 s44, s{sT2}, 14"); e(f"s_lshl_b32 s45, s{sT1}, 10"); e(f"s_add_u32 s44, s44, s45"); e(f"s_add_u32 s44, s44, {WS_O}"); e(f"s_add_u32 s45, s44, {WS_F}")
    e(f"s_lshl_b32 s{sT2}, s{sT2}, 8"); e(f"s_lshl_b32 s{sT1}, s{sT1}, 4"); e(f"s_add_u32 s{sT2}, s{sT2}, s{sT1}"); e(f"s_add_u32 s{sT2}, s{sT2}, {WS_S}"); e(f"s_add_u32 s{sT3}, s{sT2}, {WS_F}")
    e(f"s_lshl_b32 s{sT1}, s{sT0}, 4"); e(f"s_lshl_b64 exec, 1, s{sT1}")
    e(f"s_cmp_eq_u32 s42, 1"); e(f"s_cselect_b32 s{sT2}, 0x4000000, s{sT2}"); e("s_cselect_b32 s44, 0x4000000, s44")
    if o['lst']:
        e("s_mov_b64 s[64:65], exec")
    else:
        e(f"buffer_store_dwordx4 v[124:127], v62, {sr(sWS)}, s{sT3} offen")
        e(f"buffer_store_dwordx4 v[124:127], v62, {sr(sWS)}, s{sT2} offen sc1")
    e("s_mov_b64 exec, -1")
    e(f"s_lshl_b32 s{sT1}, s{sT0}, 10"); e(f"s_add_u32 s{sT1}, s{sT1}, {L_OR}"); e(f"v_add_u32 v61, s{sT1}, v60")
    e(f"v_mov_b32 v97, v{vTAG}"); e(f"v_mov_b32 v99, v{vTAG}")
    e(f"s_waitcnt vmcnt({0 if o['lst'] else 2})")
    e("s_branch L_v3")
    g.lab("L_a03")
    e(f"s_add_u32 s{sT2}, s{sT2}, s{sH3}")
    e(f"v_and_b32 v54, 15, v{vL}"); e("v_lshlrev_b32 v52, 10, v54"); e("v_lshl_add_u32 v52, v53, 5, v52"); e("v_lshlrev_b32 v54, 2, v54")
    e(f"s_lshl_b32 s{sT3}, s{sT2}, 14"); e(f"s_lshl_b32 s{sT0}, s{sW}, 8"); e(f"s_add_u32 s{sT3}, s{sT3}, s{sT0}"); e(f"s_add_u32 s{sT3}, s{sT3}, {WS_O+WS_F}")
    e(f"s_lshl_b32 s{sT0}, s{sW}, 11"); e(f"v_add_u32 v61, s{sT0}, v60")
    e(f"v_bfe_u32 v55, v{vL}, 2, 2"); e("v_lshl_add_u32 v63, v53, 3, v55"); e("v_lshlrev_b32 v63, 7, v63")
    e(f"v_bfe_u32 v16, v{vL}, 1, 1"); e(f"s_lshl_b32 s{sT0}, s{sW}, 1"); e(f"v_add_u32 v16, s{sT0}, v16")
    if o['wosw']:
        e("v_and_b32 v55, 2, v55"); e("v_xor_b32 v16, v16, v55"); e("v_and_b32 v55, 1, v53"); e("v_lshlrev_b32 v55, 2, v55"); e("v_xor_b32 v16, v16, v55")
    e("v_lshl_add_u32 v63, v16, 4, v63"); e(f"v_and_b32 v16, 1, v{vL}"); e("v_lshl_add_u32 v63, v16, 3, v63"); e(f"v_add_u32 v63, {L_WO}, v63")
    e(f"s_lshl_b32 s{sT0}, s{sNL}, 2"); e(f"s_add_u32 s{sT0}, s{sT0}, s{sW}"); e(f"s_lshl_b32 s{sT0}, s{sT0}, 15"); e(f"s_lshl_b32 s44, s{sT2}, 7")
    e(f"s_add_u32 s44, s44, s{sT0}"); e(f"s_add_u32 s44, s44, {WS_P}")
    e(f"v_and_b32 v55, 7, v{vL}"); e("v_lshlrev_b32 v55, 12, v55"); e("v_lshl_add_u32 v55, v53, 5, v55")
    e(f"v_bfe_u32 v16, v{vL}, 3, 1"); e("v_lshl_add_u32 v55, v16, 4, v55")
    e(f"v_mov_b32 v109, v{vTAG}"); e(f"v_mov_b32 v111, v{vTAG}")
    e(f"s_lshl_b32 s45, s{sG}, 2"); e(f"s_add_u32 s45, s45, {WS_H}"); e(f"v_lshlrev_b32 v17, 8, v{vL}")
    if o['wt']:
        e(f"s_cmp_eq_u32 s{sROLE}, 14"); e("s_cbranch_scc0 L_v3")
    elif o['wol']: wo_setup(WLATE, 18, 19, 20, 21, 8*WE)
    e("s_branch L_nostat")
    g.lab("L_a4")
    e(f"s_add_u32 s{sT2}, s{sT2}, s{sH3}"); e(f"s_lshl_b32 s{sT3}, s{sT2}, 8"); e(f"s_add_u32 s{sT3}, s{sT3}, {WS_S+WS_F}")
    e(f"v_and_b32 v54, 15, v{vL}"); e("v_lshlrev_b32 v55, 4, v54"); e("v_lshlrev_b32 v54, 2, v54")
    e("s_branch L_nostat")
    g.lab("L_a7")
    e(f"s_lshl_b32 s{sT3}, s2, 12"); e(f"s_add_u32 s{sT3}, s{sT3}, {WS_P}")
    e(f"v_and_b32 v54, 7, v{vL}"); e("v_lshlrev_b32 v54, 2, v54"); e(f"v_lshlrev_b32 v55, 2, v{vL}")
    e(f"s_mul_i32 s21, s{sKVH}, 896"); e("s_lshr_b32 s20, s2, 3"); e("s_lshl_b32 s20, s20, 5"); e("s_add_u32 s21, s21, s20")
    e(f"s_and_b32 s20, s2, {o['nrep']-1}"); e("s_lshl_b32 s20, s20, 8"); e(f"s_add_u32 s20, s20, {WS_H}")
    g.lab("L_nostat")
    e("s_waitcnt vmcnt(0)")
    g.lab("L_v3")
    for k in range(4): e(f"v_mul_f32 v{vACC+k}, v{vACC+k}, v{vF}")
    g.ts("V3")
    e(f"ds_write_b128 v{vORA}, {vr(vACC)}")
    pv(3)
    e(f"s_cmp_lt_u32 s{sW}, 5")
    g.nop(7)
    for k in range(4): e(f"v_mul_f32 v{vACC+4+k}, v{vACC+4+k}, v{vF}")
    e(f"ds_write_b128 v{vORB}, {vr(vACC+4)}")
    if o['wol'] and not o['wt']:
        e(f"s_cmp_gt_u32 s{sW}, 3"); e("s_cbranch_scc1 L_nowo")
        if o.get('sk14', 1): e(f"s_cmp_eq_u32 s{sROLE}, 14"); e("s_cbranch_scc1 L_nowo")
        wo_issue(WLATE, 18, 19, 8*WE)
        g.lab("L_nowo")
        e(f"s_cmp_lt_u32 s{sW}, 5")
    e("s_waitcnt lgkmcnt(0)")
    e("s_barrier")
    g.ts("B4")
    if o.get('stopb4'): e("s_branch L_fin")
    e("s_cbranch_scc1 L_cons")
    e(f"s_cmp_eq_u32 s{sW}, 7"); e("s_cbranch_scc1 L_w7")
    g.c("waves 5,6: sum the 8 partial o, publish")
    for w in range(8): e(f"ds_read_b128 {vr(64+4*w)}, v61 offset:{w*2048}")
    if o['lst']:
        e("s_mov_b64 exec, s[64:65]")
        e(f"buffer_store_dwordx4 v[124:127], v62, {sr(sWS)}, s{sT3} offen")
        e(f"buffer_store_dwordx4 v[124:127], v62, {sr(sWS)}, s{sT2} offen sc1")
        e("s_mov_b64 exec, -1")
    for w in range(1, 8, 2):
        e(f"s_waitcnt lgkmcnt({0 if (o['ts'] or o.get('holdat')) else 7-w})")
        if o['pk']:
            for k in (0, 2): e(f"v_pk_add_f32 {vr(64+4*(w-1)+k,2)}, {vr(64+4*(w-1)+k,2)}, {vr(64+4*w+k,2)}")
            if w > 1:
                for k in (0, 2): e(f"v_pk_add_f32 {vr(64+k,2)}, {vr(64+k,2)}, {vr(64+4*(w-1)+k,2)}")
            continue
        for k in range(4): e(f"v_add_f32 v{64+4*(w-1)+k}, v{64+4*(w-1)+k}, v{64+4*w+k}")
        if w > 1:
            for k in range(4): e(f"v_add_f32 v{64+k}, v{64+k}, v{64+4*(w-1)+k}")
    e("v_cvt_pk_bf16_f32 v96, v64, v65"); e("v_cvt_pk_bf16_f32 v98, v66, v67")
    e(f"buffer_store_dwordx4 v[96:99], v60, {sr(sWS)}, s45 offen {o['opol']}")
    g.ts("opub")
    e(f"buffer_store_dwordx4 v[96:99], v60, {sr(sWS)}, s44 offen sc1")
    e(f"s_cmp_eq_u32 s{sROLE}, 14"); e("s_cbranch_scc1 L_fin")
    if B45: e("s_barrier")
    e("s_barrier")
    e("s_branch L_fin")
    g.lab("L_cons")
    g.c("wave 4: merge weights of the two key halves; waves 0..3: gather o, project, publish partials")
    e(f"s_cmp_eq_u32 s{sROLE}, 14"); e("s_cbranch_scc1 L_fin")
    e(f"s_cmp_lt_u32 s{sW}, 4"); e("s_cbranch_scc1 L_gath")
    if B45: e("s_barrier")
    e("s_mov_b64 exec, 0xffff")
    def sl(): e(f"buffer_load_dwordx4 {vr(160)}, v55, {sr(sWS)}, s{sT3} offen {o.get('ppol2', o['ppol'])}")
    poll("sg", sl, [161, 163], 58, 59, o['sleep1'])
    if o['gate1']: e(f"v_mov_b32 v61, 9"); e(f"ds_write_b32 v62, v61 offset:{L_CNT}")
    e(f"v_mov_b32_dpp v100, v160 row_ror:8 {DPP}")
    e(f"v_mov_b32_dpp v101, v162 row_ror:8 {DPP}")
    e("v_max_f32 v102, v160, v100")
    e("v_sub_f32 v103, v160, v102"); e("v_sub_f32 v100, v100, v102")
    e("v_exp_f32 v103, v103"); e("v_exp_f32 v100, v100"); e("s_nop 0")
    e("v_mul_f32 v103, v103, v162"); e("v_fma_f32 v100, v100, v101, v103")
    e("v_rcp_f32 v100, v100"); e("s_nop 0"); e("v_mul_f32 v103, v103, v100")
    e("s_mov_b64 exec, 0xffff")
    e(f"ds_write_b32 v54, v103 offset:{L_W}")
    e("s_waitcnt lgkmcnt(0)")
    e("s_barrier")
    e("s_branch L_fin")
    g.lab("L_gath")
    def gl():
        for k in range(2):
            e(f"buffer_load_dwordx4 {vr(128+8*k)}, v52, {sr(sWS)}, s{sT3} offen offset:{128*k} {o.get('ppol2', o['ppol'])}")
            e(f"buffer_load_dwordx4 {vr(132+8*k)}, v52, {sr(sWS)}, s{sT3} offen offset:{128*k+16} {o.get('ppol2', o['ppol'])}")
    def wofr():
        for k in range(8):
            e(f"ds_read_b64_tr_b16 {vr(64+4*k,2)}, v63 offset:{k*4096}")
            e(f"ds_read_b64_tr_b16 {vr(66+4*k,2)}, v63 offset:{k*4096+512}")
            if k == 6: e("s_waitcnt lgkmcnt(4)")
    def wofr45():
        e("s_waitcnt vmcnt(4)"); e("s_barrier"); wofr()
    if o.get('pw') is not None: e(f"s_waitcnt vmcnt({o['pw']})")
    if not o['g1p']:
        poll("g1", gl, [129+2*i for i in range(8)], 58, 59, o['sleep1'], first=(wofr45 if B45 else None) if o['wol'] else wofr, gate=o['gate1'])
        for k in range(2):
            e(f"v_mov_b32 v{129+8*k}, v{130+8*k}"); e(f"v_mov_b32 v{130+8*k}, v{132+8*k}"); e(f"v_mov_b32 v{131+8*k}, v{134+8*k}")
            e(f"ds_write_b128 v61, {vr(128+8*k)} offset:{L_B3+1024*k}")
    else:
        def gl2(b):
            for k in range(2):
                e(f"buffer_load_dwordx4 {vr(b+8*k)}, v52, {sr(sWS)}, s{sT3} offen offset:{128*k} sc1")
                e(f"buffer_load_dwordx4 {vr(b+4+8*k)}, v52, {sr(sWS)}, s{sT3} offen offset:{128*k+16} sc1")
        e(f"s_mov_b32 s{sSPIN}, {o['spin']}"); e("s_mov_b64 s[66:67], 0")
        gl2(128); wofr(); e(f"s_sleep {o['g1p']}"); gl2(144)
        g.lab("L_g1")
        e("s_waitcnt vmcnt(4)")
        tagcheck([129+2*i for i in range(8)], 58, 59)
        e("s_cbranch_scc0 L_g1_ok")
        e("s_mov_b64 exec, vcc")
        gl2(128)
        e("s_waitcnt vmcnt(4)")
        tagcheck([145+2*i for i in range(8)], 58, 59)
        e("s_andn2_b64 s[64:65], exec, vcc"); e("s_or_b64 s[66:67], s[66:67], s[64:65]")
        e("s_cmp_eq_u64 vcc, 0"); e("s_cbranch_scc1 L_g1_ok")
        e("s_mov_b64 exec, vcc")
        e(f"s_cmp_eq_u32 s{sSPIN}, {o['spin']-o['fthr']}"); e(f"s_cselect_b32 s{sT0}, {WS_F}, 0"); e(f"s_sub_u32 s{sT3}, s{sT3}, s{sT0}")
        gl2(144)
        e(f"s_sub_u32 s{sSPIN}, s{sSPIN}, 1"); e("s_cbranch_scc0 L_g1")
        g.lab("L_g1_ok")
        e("s_mov_b64 exec, -1")
        for k in range(2):
            for t in range(4): e(f"v_cndmask_b32 v{192+4*k+t}, v{128+8*k+2*t}, v{144+8*k+2*t}, s[66:67]")
            e(f"ds_write_b128 v61, {vr(192+4*k)} offset:{L_B3+1024*k}")
    e(f"s_or_b32 s{sT0}, s{sW}, s{sMEM}"); e("s_cbranch_scc1 L_nohint")
    if o['nrep'] < 64: e(f"s_mov_b64 exec, {hex((1<<o['nrep'])-1)}")
    e(f"buffer_store_dword v{vTAG}, v17, {sr(sWS)}, s45 offen sc1")
    e("s_mov_b64 exec, -1")
    g.lab("L_nohint")
    g.ts("G1")
    e("s_waitcnt lgkmcnt(0)")
    e("s_barrier")
    g.ts("B5")
    if o['wol'] and not B45:
        e(f"ds_read_b32 v103, v54 offset:{L_W}")
        def rd(k):
            e(f"ds_read_b64_tr_b16 {vr(64+4*k,2)}, v63 offset:{k*4096}")
            e(f"ds_read_b64_tr_b16 {vr(66+4*k,2)}, v63 offset:{k*4096+512}")
            e(f"ds_read_b128 {vr(160+4*k)}, v60 offset:{L_B3+k*1024}")
        for k in range(4): rd(k)
        for k in range(8):
            e(f"s_waitcnt lgkmcnt({0 if 'B5' in o.get('tson',()) else 3*min(3, 7-k)})")
            e(f"v_mfma_f32_16x16x32_bf16 {vr(96)}, {vr(64+4*k)}, {vr(160+4*k)}, {'0' if k==0 else vr(96)}")
            if k+4 < 8: rd(k+4)
    else:
        for k in range(8): e(f"ds_read_b128 {vr(160+4*k)}, v60 offset:{L_B3+k*1024}")
        e(f"ds_read_b32 v103, v54 offset:{L_W}")
        for k in range(8):
            e(f"s_waitcnt lgkmcnt({0 if 'B5' in o.get('tson',()) else 8-k})")
            e(f"v_mfma_f32_16x16x32_bf16 {vr(96)}, {vr(64+4*k)}, {vr(160+4*k)}, {'0' if k==0 else vr(96)}")
    e("s_waitcnt lgkmcnt(0)")
    g.nop(7)
    for k in range(4): e(f"v_mul_f32 v{96+k}, v{96+k}, v103")
    for k in range(4): e(f"v_add_f32_dpp v{104+k}, v{96+k}, v{96+k} row_ror:8 {DPP}")
    e(f"v_cndmask_b32 v108, v104, v106, s[{sM8}:{sM8+1}]"); e(f"v_cndmask_b32 v110, v105, v107, s[{sM8}:{sM8+1}]")
    if o.get('nop'): e("s_mov_b32 s44, 0x4000000")
    e(f"buffer_store_dwordx4 v[108:111], v55, {sr(sWS)}, s44 offen {o.get('pst','sc1')}")
    g.ts("ppub")
    e("s_branch L_fin")
    g.lab("L_w7")
    g.c("wave 7: final sum, gate, store")
    for i in range(4): e(f"s_mov_b64 s[{sMASK+2*i}:{sMASK+2*i+1}], -1")
    e(f"s_mov_b32 s{sSPIN}, {o['spin']}")
    e(f"s_cmp_eq_u32 s{sROLE}, 14"); e("s_cbranch_scc1 L_nob5")
    if B45: e("s_barrier")
    e("s_barrier")
    g.lab("L_nob5")
    e("s_cmp_ge_u32 s2, 224"); e("s_cbranch_scc1 L_fin")
    e("s_mov_b64 exec, 0xffff")
    NP = max(1, o['hp'])
    for k in range(NP):
        e(f"buffer_load_dword v{64+k}, v55, {sr(sWS)}, s20 offen sc1")
        if NP > 1: e(f"s_sleep {o['hgap']}")
    g.lab("L_hp")
    for k in range(NP):
        e(f"s_waitcnt vmcnt({NP-1})")
        e(f"v_cmp_ne_u32 vcc, v{64+k}, v{vTAG}")
        e("s_cbranch_vccz L_hp_ok")
        if o['sleep2']: e(f"s_sleep {o['sleep2']}")
        e(f"buffer_load_dword v{64+k}, v55, {sr(sWS)}, s20 offen sc1")
    e(f"s_sub_u32 s{sSPIN}, s{sSPIN}, 1"); e("s_cbranch_scc0 L_hp")
    g.lab("L_hp_ok")
    g.ts("H")
    g.lab("L_g2")
    for i in range(4):
        e(f"s_mov_b64 exec, s[{sMASK+2*i}:{sMASK+2*i+1}]")
        e(f"buffer_load_dwordx4 {vr(128+4*i)}, v60, {sr(sWS)}, s{sT3} offen offset:{i*1024} sc1")
    e("s_mov_b64 exec, -1")
    e("s_waitcnt vmcnt(0)")
    for i in range(4):
        e(f"v_cmp_ne_u32 vcc, v{129+4*i}, v{vTAG}"); e(f"v_cmp_ne_u32 s[{sMASK+2*i}:{sMASK+2*i+1}], v{131+4*i}, v{vTAG}")
        e(f"s_or_b64 s[{sMASK+2*i}:{sMASK+2*i+1}], s[{sMASK+2*i}:{sMASK+2*i+1}], vcc")
    e(f"s_or_b64 s[{sT0}:{sT1}], s[{sMASK}:{sMASK+1}], s[{sMASK+2}:{sMASK+3}]"); e(f"s_or_b64 vcc, s[{sMASK+4}:{sMASK+5}], s[{sMASK+6}:{sMASK+7}]")
    e(f"s_or_b64 vcc, vcc, s[{sT0}:{sT1}]")
    e("s_cbranch_scc0 L_g2_ok")
    e(f"s_sub_u32 s{sSPIN}, s{sSPIN}, 1"); e("s_cbranch_scc0 L_g2")
    g.lab("L_g2_ok")
    g.ts("G2")
    R = [128, 130, 136, 138]
    for r in R: e(f"v_add_f32 v{r}, v{r}, v{r+4}")
    for r in R: e(f"v_add_f32_dpp v{r}, v{r}, v{r} row_ror:8 {DPP}")
    for sw in ("16", "32"):
        for r in R: e(f"v_mov_b32 v{r+1}, v{r}")
        for r in R: e(f"v_permlane{sw}_swap_b32 v{r}, v{r+1}")
        for r in R: e(f"v_add_f32 v{r}, v{r}, v{r+1}")
    e("v_cvt_pk_bf16_f32 v129, v128, v130"); e("v_cvt_pk_bf16_f32 v137, v136, v138")
    for base in (128, 136): e(f"v_lshlrev_b32 v{base}, 16, v{base+1}"); e(f"v_and_b32 v{base+2}, 0xffff0000, v{base+1}")
    for base, gs in ((128, 22), (136, 23)): e(f"v_mul_f32 v{base}, s{gs}, v{base}"); e(f"v_mul_f32 v{base+2}, s{gs}, v{base+2}")
    e("v_cvt_pk_bf16_f32 v129, v128, v130"); e("v_cvt_pk_bf16_f32 v137, v136, v138")
    for base in (128, 136): e(f"v_lshlrev_b32 v{base}, 16, v{base+1}"); e(f"v_and_b32 v{base+2}, 0xffff0000, v{base+1}")
    e("v_add_f32 v128, v128, v136"); e("v_add_f32 v130, v130, v138")
    e("v_cvt_pk_bf16_f32 v128, v128, v130")
    e("s_mov_b64 exec, 0xff")
    e(f"buffer_store_dword v128, v54, {sr(sOUT)}, s21 offen {o.get('outpol','')}")
    e("s_cmp_lg_u32 s2, 0"); e("s_cbranch_scc1 L_fin")
    e("s_mov_b64 exec, 1")
    e(f"buffer_store_dword v{vTAG}, v54, {sr(sWS)}, 0 offen sc1")
    g.lab("L_fin")
    if o.get('holdat'):
        e("s_cmp_eq_u32 s88, 0"); e("s_cbranch_scc1 L_end")
        g.lab("L_hold")
        e("s_memrealtime s[86:87]"); e("s_waitcnt lgkmcnt(0)"); e("s_sub_u32 s86, s86, s84"); e(f"s_cmp_lt_u32 s86, 3000"); e("s_cbranch_scc1 L_hold")
    if o['ts']:
        if o['ts'] == 2: e(f"s_cmp_lg_u32 s{sW}, 7"); e("s_cbranch_scc1 L_end")
        e("s_mov_b64 exec, -1")
        g.ts("end")
        e("s_waitcnt lgkmcnt(0)")
        for k in range(16): e(f"v_mov_b32 v{128+k}, s{TSREG[k]}" if k < g.nts else f"v_mov_b32 v{128+k}, 0")
        e(f"s_lshl_b32 s{sT0}, s2, 3"); e(f"s_add_u32 s{sT0}, s{sT0}, s{sW}"); e(f"s_lshl_b32 s{sT0}, s{sT0}, 6"); e(f"s_add_u32 s{sT0}, s{sT0}, {WS_TS}")
        e("v_mov_b32 v60, 0"); e("s_mov_b64 exec, 1")
        for k in range(1 if o['ts'] == 2 else 4): e(f"buffer_store_dwordx4 {vr(128+4*k)}, v60, {sr(sWS)}, s{sT0} offen offset:{16*k}")
        print("TS:", ",".join(g.tsn))
    g.lab("L_end")
    e("s_endpgm")
    g.lab("L_w0b")
    g.c("wave 0: q slice, publish, own K loads, gather")
    common2()
    e(f"s_mov_b32 s{sK}, s8"); e(f"s_mov_b32 s{sK+1}, s9")
    if not o.get('xin', 1):
        e(f"s_mov_b32 m0, {L_X}"); e(f"s_movk_i32 s{sT2}, 0x1000")
        for ii in range(4): e(f"buffer_load_dwordx4 v33, {sr(sX)}, 0 offen offset:{ii*1024} lds")
        e(f"s_mov_b32 m0, {L_X+4096}"); e("s_nop 0")
        for ii in range(3): e(f"buffer_load_dwordx4 v33, {sr(sX)}, s{sT2} offen offset:{ii*1024} lds")
        e(f"buffer_load_dword v{vTAG}, v34, {sr(sWS)}, 0 offen sc1")
    if B0 > 28: e("s_barrier")
    e(f"v_bfe_u32 v41, v{vL}, 2, 2")
    e(f"v_lshl_add_u32 v41, v{vB}, 3, v41"); e(f"v_lshlrev_b32 v41, 6, v41")
    e(f"v_lshl_add_u32 v41, v{vA}, 3, v41")
    e(f"v_and_b32 v43, 7, v{vL}"); e(f"v_mul_u32_u24 v42, 896, v43"); e(f"v_lshl_add_u32 v42, v{vB}, 4, v42")
    e(f"v_add_u32 v42, {L_X}, v42")
    e(f"s_lshl_b32 s{sT0}, s{sG}, 14"); e(f"s_lshl_b32 s{sT1}, s{sMEM}, 7"); e(f"s_add_u32 s{sT0}, s{sT0}, s{sT1}")
    e(f"s_add_u32 s{sT0}, s{sT0}, {WS_Q}"); e(f"s_add_u32 s{sT1}, s{sT0}, {WS_F}")
    e(f"v_lshlrev_b32 v43, 11, v43"); e(f"v_lshl_add_u32 v43, v{vB}, 4, v43")
    e(f"s_lshl_b32 s{sT3}, s{sG}, 3"); e(f"s_add_u32 s{sT3}, s{sT3}, s{sB}"); e(f"s_lshl_b32 s{sT3}, s{sT3}, 11"); e(f"s_add_u32 s{sT3}, s{sT3}, {WS_Q+WS_F}")
    e("s_waitcnt vmcnt(0)")
    g.ts("wq")
    e(f"v_and_b32 v{vTAG}, -8, v{vTAG}"); e(f"v_add_u32 v{vTAG}, 8, v{vTAG}")
    e("s_getreg_b32 s44, hwreg(HW_REG_XCC_ID, 0, 3)")
    steps = list(range(14)); first = True
    for ci in range(0, 14, 3):
        ch = steps[ci:ci+3]
        for k, s_ in enumerate(ch):
            a = 64 + 12*k
            for t in range(2):
                e(f"ds_read_b64_tr_b16 {vr(a+4*t,2)}, v41 offset:{L_WQ+s_*2048+t*32}")
                e(f"ds_read_b64_tr_b16 {vr(a+4*t+2,2)}, v41 offset:{L_WQ+s_*2048+256+t*32}")
            e(f"ds_read_b128 {vr(a+8)}, v42 offset:{s_*64}")
        e("s_waitcnt lgkmcnt(0)")
        for k, s_ in enumerate(ch):
            a = 64 + 12*k
            for t in range(2):
                e(f"v_mfma_f32_16x16x32_bf16 {vr(44+4*t)}, {vr(a+4*t)}, {vr(a+8)}, {'0' if first else vr(44+4*t)}")
            first = False
    e(f"v_or_b32 v53, s44, v{vTAG}"); e("v_mov_b32 v55, v53"); e(f"v_and_b32 v40, 8, v{vL}"); e("v_lshl_add_u32 v43, v40, 3, v43")
    e("s_mov_b32 vcc_lo, 0xff00ff00"); e("s_mov_b32 vcc_hi, 0xff00ff00"); e(f"s_mov_b32 s45, s{sT0}"); e("s_nop 0")
    for k in range(4): e(f"v_cndmask_b32 v{44+k}, v{44+k}, v{48+k}, vcc")
    e(f"v_cvt_pk_bf16_f32 v52, v44, v45"); e(f"v_cvt_pk_bf16_f32 v54, v46, v47")
    if o.get('noqst', 0) < 2: e(f"buffer_store_dwordx4 v[52:55], v43, {sr(sWS)}, s{sT1} offen {o['qpol']}")
    if not o['xc']: e(f"buffer_store_dwordx4 v[52:55], v43, {sr(sWS)}, s45 offen sc1")
    g.ts("qpub")
    for n in range(o['q0k']): kload(n)
    def qgather(own):
        e("s_mov_b32 s46, 1")
        if not o.get('noqw'):
            e(f"s_mov_b32 s{sSPIN}, {o['spin']}")
            g.lab("L_qg")
            e(f"buffer_load_dwordx4 v[64:67], v33, {sr(sWS)}, s{sT3} offen {o['ppol']}")
            e(f"buffer_load_dwordx4 v[68:71], v33, {sr(sWS)}, s{sT3} offen offset:1024 {o['ppol']}")
            e("s_waitcnt vmcnt(0)")
            for r in (65, 67, 69, 71): e(f"v_xor_b32 v{r+11}, v{r}, v{vTAG}")
            e("v_max3_u32 v60, v76, v78, v80"); e("v_max_u32 v60, v60, v82")
            e("v_cmp_lt_u32 vcc, 7, v60")
            e("s_cbranch_vccz L_qg_ok")
            e("s_mov_b64 exec, vcc")
            e(f"s_cmp_le_u32 s{sSPIN}, {o['spin']-o['fthr']}"); e(f"s_cselect_b32 s{sT0}, {WS_F}, 0"); e(f"s_xor_b32 s{sT3}, s{sT3}, s{sT0}")
            e(f"s_cmp_lg_u32 s{sSPIN}, {o['spin']-o['fthr']}"); e("s_cbranch_scc1 L_qg_n")
            g.c("slices missing for a long time: write own slice through; from now on rounds alternate between the two copies")
            e("s_mov_b64 exec, -1")
            if own: e(f"buffer_store_dwordx4 v[52:55], v43, {sr(sWS)}, s45 offen sc1")
            else: e("v_mov_b32 v61, 1"); e(f"ds_write_b32 v34, v61 offset:{L_RQ}")
            e("s_mov_b64 exec, vcc")
            g.lab("L_qg_n")
            e(f"s_sub_u32 s{sSPIN}, s{sSPIN}, 1"); e("s_cbranch_scc0 L_qg")
            g.lab("L_qg_ok")
            e("s_mov_b64 exec, -1")
            e("v_min3_u32 v60, v65, v67, v69"); e("v_max3_u32 v61, v65, v67, v69"); e("v_min_u32 v60, v60, v71"); e("v_max_u32 v61, v61, v71")
            e("v_cmp_ne_u32 vcc, v60, v53"); e(f"v_cmp_ne_u32 s[{sT0}:{sT1}], v61, v53"); e(f"s_or_b64 vcc, vcc, s[{sT0}:{sT1}]")
            e("s_cbranch_scc0 L_qg_loc")
            g.c("some member runs on another die: its reads need the written-through copies")
            if own: e(f"buffer_store_dwordx4 v[52:55], v43, {sr(sWS)}, s45 offen sc1")
            e("s_mov_b32 s46, 2")
            g.lab("L_qg_loc")
        if not o['xc']: e("s_mov_b32 s46, 2")
        e(f"v_lshlrev_b32 v60, 3, v{vL}")
        e(f"ds_write2_b32 v60, v64, v66 offset0:{L_QL//4} offset1:{L_QL//4+1}")
        e(f"ds_write2_b32 v60, v68, v70 offset0:{L_QL//4+128} offset1:{L_QL//4+129}")
        e(f"v_or_b32 v61, s46, v{vTAG}" if o['e1'] else "v_mov_b32 v61, s46"); e(f"ds_write_b32 v34, v61 offset:{L_F}")
        g.ts("qgot")
    if not o['qp']: qgather(True)
    e("s_branch L_kq0")

    g.lab("L_codeend")
    g.L += ['.section .rodata,"a"', ".p2align 6", f".amdhsa_kernel {KN}",
            "  .amdhsa_next_free_vgpr 256", "  .amdhsa_next_free_sgpr 102", "  .amdhsa_accum_offset 256",
            "  .amdhsa_group_segment_fixed_size 0", "  .amdhsa_kernarg_size 112", "  .amdhsa_user_sgpr_count 2",
            "  .amdhsa_user_sgpr_kernarg_segment_ptr 1", "  .amdhsa_system_sgpr_workgroup_id_x 1",
            "  .amdhsa_float_denorm_mode_32 3", ".end_amdhsa_kernel"]
    return "\n".join(g.L) + "\n"

if __name__ == "__main__":
    from lint import lint
    from build import build
    out = sys.argv[1]; opts = eval("dict(" + (sys.argv[2] if len(sys.argv) > 2 else "") + ")")
    s = gen(**opts)
    open(out, "w").write(s)
    for p in lint(s): print("LINT:", p)
    build(out)
```

```python
import sys, math, struct
sys.path.insert(0, "gen"); sys.path.insert(0, "tools")
KN = "gated_mix__sliding_block_cached__sliding_block_cached__decode_kernel"
HEADER = open("gated_mix__sliding_block_cached__sliding_block_cached__decode.s.ref").read().split("; Override launch")[0]

WS_Q = 0x10000
WS_S = 0x60000
WS_H = 0x70000
WS_O = 0x80000
WS_F = 0x100000
WS_P = 0x200000
WS_TS = 0x400000
WS_SIZE = 0x800000
L_QL = 0
L_SM = 1024
L_SL = 1088
L_W = 1152
L_F = 1216
L_CNT = 1220
L_RQ = 1228
L_CN2 = 1224
L_B3 = 2048
L_WQ = 10240
L_X = 38912
L_WO = 46080
L_OR = 78848
LDS_BYTES = 95232
TSREG = [84,86,88,90,92,94,96,98,100,8,10,12,14,16,18,20]

DOC = '''; ---------------------------------------------------------------------------------------------
; Workgroup id -> kv head = id&7, member = (id>>3)&15 (batch = member>>1, key half = member&1),
; branch = id>>7. The 16 members of a (branch, kv head) group exchange data through d_ws.
;     then gathers the 512 q columns of its own batch into LDS. All waves stream K meanwhile.
;  4. 14 members each take (head, 64 output columns): o @ wo tile by MFMA, the two key halves
;     merged with their softmax weights, f32 partials published.
; Hand-offs: 8-byte {data, tag} granules, tag = f(word 0 of d_ws at entry); word 0 moves on at the
; ---------------------------------------------------------------------------------------------'''

def f2u(x): return struct.unpack("<I", struct.pack("<f", x))[0]
def vr(a, n=4): return f"v[{a}:{a+n-1}]"
def sr(a, n=4): return f"s[{a}:{a+n-1}]"
DPP = "row_mask:0xf bank_mask:0xf"

class G:
    def __init__(s, **o):
        s.L = []
        s.o = dict(round_s=1, ts=0, pol='nt', spin=1<<16, codepf=1, sleep1=0, sleep2=0, b0at=28, pre=2, fthr=256,
                   xm=0x100, xa=1, xb=0, kv=0, qsl=2, ssl=1, hp=0, hgap=2, skip=(6,7), wosw=1, bx=1, pret=0, g1p=0, wol=1, imm=0, nrep=8, xc=1, tw=-1, qp=0, pw=1, wt=1, tlb=0, cpf2=0, q0k=32, pk=1, gate1=0, vpf=3, spf=0, sdel=0, e1=1, b45=1, lst=1, spol='', ppol='sc1 nt', qpol='', opol='')
        s.o.update(o); s.nts = 0; s.tsn = []
    def e(s, t): s.L.append("  " + t)
    def c(s, t): s.L.append("  ; " + t)
    def lab(s, t): s.L.append(t + ":")
    def nop(s, n):
        while n > 0:
            k = min(n, 16); s.e(f"s_nop {k-1}"); n -= k
    def ts(s, name):
        if s.o.get('holdat') == name:
            s.e("s_memrealtime s[84:85]"); s.e("s_mov_b32 s88, 1")
        if not s.o['ts'] or name not in s.o['tson']: return
        k = s.nts; s.nts += 1
        r = TSREG[k]; s.tsn.append(name)
        s.e(f"s_memrealtime s[{r}:{r+1}]   ; ts {name}")

def gen(**opts):
    g = G(**opts); e = g.e; o = g.o; POL = o['pol']
    sK, sV, sWQ, sWO, sX, sGW, sWS, sOUT = 24, 28, 32, 36, 40, 44, 48, 52
    sW = 56; sR = 57; sT0, sT1, sT2, sT3 = 58, 59, 60, 61
    sKVH, sBR, sMEM, sB, sG = 3, 4, 5, 6, 7
    sMASK = 64; sM8 = 80; sSEL0, sSEL1 = 82, 83; sSPIN = 62; sC = 63
    sROLE = 32
    sH3 = 33; sNL = 34
    vL = 1; vKO = 2; vVO = 3; vTAG = 4; vA = 5; vB = 6; vC = 7
    vQB = 8; vS = 16; vPV = 64; vK = 128
    vT = 40; vM0 = 52; vL0 = 53; vAL = 54; vORA = 56; vORB = 57; vSA = 58; vF = 59
    vACC = 112; vP8 = 120
    BS = 131072
    assert not (o['kv'] and o['wt']), "wt needs kv=0"
    B45 = o['b45'] and o['wol']

    def tagcheck(tags, a, b_):
        if len(tags) == 2:
            e(f"v_cmp_ne_u32 vcc, v{tags[0]}, v{vTAG}"); e(f"v_cmp_ne_u32 s[{sT0}:{sT1}], v{tags[1]}, v{vTAG}")
        else:
            e(f"v_min3_u32 v{a}, v{tags[0]}, v{tags[1]}, v{tags[2]}"); e(f"v_max3_u32 v{b_}, v{tags[0]}, v{tags[1]}, v{tags[2]}")
            i = 3
            while i+1 < len(tags):
                e(f"v_min3_u32 v{a}, v{a}, v{tags[i]}, v{tags[i+1]}"); e(f"v_max3_u32 v{b_}, v{b_}, v{tags[i]}, v{tags[i+1]}"); i += 2
            if i < len(tags):
                e(f"v_min_u32 v{a}, v{a}, v{tags[i]}"); e(f"v_max_u32 v{b_}, v{b_}, v{tags[i]}")
            e(f"v_cmp_ne_u32 vcc, v{a}, v{vTAG}"); e(f"v_cmp_ne_u32 s[{sT0}:{sT1}], v{b_}, v{vTAG}")
        e(f"s_or_b64 vcc, vcc, s[{sT0}:{sT1}]")
    def poll(name, loads, tags, a, b_, sleep=0, first=None, gate=False):
        e(f"s_mov_b32 s{sSPIN}, {o['spin']}")
        if first:
            loads(); first(); e(f"s_branch L_{name}_w")
        g.lab(f"L_{name}")
        loads()
        g.lab(f"L_{name}_w")
        e("s_waitcnt vmcnt(0)")
        tagcheck(tags, a, b_)
        e(f"s_cbranch_scc0 L_{name}_ok")
        e("s_mov_b64 exec, vcc")
        if gate:
            g.lab(f"L_{name}_g")
            e(f"ds_read_b32 v{a}, v62 offset:{L_CNT}"); e("s_waitcnt lgkmcnt(0)"); e(f"v_readfirstlane_b32 s{sT0}, v{a}")
            e(f"s_cmp_eq_u32 s{sT0}, 8"); e(f"s_cbranch_scc1 L_{name}_g")
        if sleep: e(f"s_sleep {sleep}")
        e(f"s_cmp_le_u32 s{sSPIN}, {o['spin']-o['fthr']}"); e(f"s_cselect_b32 s{sT0}, {WS_F}, 0"); e(f"s_xor_b32 s{sT3}, s{sT3}, s{sT0}")
        e(f"s_sub_u32 s{sSPIN}, s{sSPIN}, 1"); e(f"s_cbranch_scc0 L_{name}")
        g.lab(f"L_{name}_ok")
        e("s_mov_b64 exec, -1")
    def srd(d, p, n):
        e(f"s_mov_b32 s{d}, s{p}"); e(f"s_mov_b32 s{d+1}, s{p+1}"); e(f"s_mov_b32 s{d+2}, {n}"); e(f"s_mov_b32 s{d+3}, 0x20000")
    def kreg(n): return vK + 4*(n % 16) if o['kv'] else vK + 4*n
    def vreg(unit): return vK + 64 + 32*(unit % 2) if o['kv'] else vK + 32*unit
    def kload(n):
        u, hf = n//2, n % 2
        if o['imm']:
            e(f"buffer_load_dwordx4 {vr(kreg(n))}, v{vKO}, {sr(sK)}, s{sR if u < 8 else 43} offen offset:{(u&7)*512+hf*256} {POL}")
            return
        e(f"s_xor_b32 s47, s{sR}, {(u&7)*512+hf*256+(u>>3)*BS}")
        e(f"buffer_load_dwordx4 {vr(kreg(n))}, v{vKO}, {sr(sK)}, s47 offen {o.get('kvpol', POL)}")
    def vload(unit, j):
        blk, hf = unit//2, unit % 2
        if o['imm']:
            e(f"buffer_load_dwordx4 {vr(vreg(unit)+4*j)}, v{vVO}, {sr(sV)}, s{sR if blk == 0 else 43} offen offset:{j*512+hf*256} {POL}")
            return
        e(f"s_xor_b32 s47, s{sR}, {j*512+hf*256+blk*BS}")
        e(f"buffer_load_dwordx4 {vr(vreg(unit)+4*j)}, v{vVO}, {sr(sV)}, s47 offen {o.get('kvpol', POL)}")

    g.L.append(HEADER.rstrip("\n"))
    g.L.append(f"; @launch grid=(256,1,1) block=(512,1,1) lds={LDS_BYTES}")
    g.L.append('.amdgcn_target "amdgcn-amd-amdhsa--gfx950"')
    g.L.append(DOC)
    g.L.append(".text"); g.L.append(f".globl {KN}"); g.L.append(".p2align 8"); g.L.append(f".type {KN},@function"); g.lab(KN)
    e("s_cmp_ge_u32 s2, 256"); e("s_cbranch_scc1 L_end")
    if o.get('holdat'): e("s_mov_b32 s88, 0")
    g.ts("start")
    if o['codepf'] == 1:
        g.c("pull the kernel's code into L2: one dword per 128 B line")
        e(f"s_getpc_b64 s[{sM8}:{sM8+1}]")
        g.lab("L_pc")
        e(f"v_lshlrev_b32 v35, 7, v0"); e("v_min_u32 v35, L_codeend-L_pc-4, v35")
        e(f"global_load_dword v36, v35, s[{sM8}:{sM8+1}]")
    e(f"s_lshr_b32 s{sBR}, s2, 7")
    e(f"s_mul_i32 s{sT0}, s{sBR}, 40")
    e(f"s_add_u32 s{sT2}, s0, s{sT0}"); e(f"s_addc_u32 s{sT3}, s1, 0")
    e(f"s_load_dwordx8 s[8:15], s[{sT2}:{sT3}], 8")
    e(f"s_load_dwordx2 s[{sX}:{sX+1}], s[0:1], 0")
    e(f"s_load_dwordx2 s[{sWS}:{sWS+1}], s[0:1], 104")
    e("s_load_dwordx4 s[20:23], s[0:1], 80")
    e(f"v_lshrrev_b32 v{vA}, 6, v0")
    e(f"v_and_b32 v{vL}, 63, v0")
    e(f"v_readfirstlane_b32 s{sW}, v{vA}")
    e(f"s_and_b32 s{sKVH}, s2, 7")
    e(f"s_bfe_u32 s{sMEM}, s2, 0x40003")
    e(f"s_lshr_b32 s{sB}, s{sMEM}, 1")
    assert o['xa'] == 1 and o['xb'] == 0 and o['xm'] == 0x100 and o['bx'] == 1
    e(f"s_lshl_b32 s{sT0}, s{sB}, 3"); e(f"s_or_b32 s{sT0}, s{sT0}, s{sKVH}"); e(f"s_lshl_b32 s{sT0}, s{sT0}, 3")
    e(f"s_and_b32 s{sT1}, s{sMEM}, 1"); e(f"s_or_b32 s{sT0}, s{sT0}, s{sT1}"); e(f"s_or_b32 s{sT0}, s{sT0}, 6"); e(f"s_lshl_b32 s{sT0}, s{sT0}, 4")
    e(f"s_xor_b32 s{sT1}, s{sW}, s{sMEM}"); e(f"s_and_b32 s{sT1}, s{sT1}, 7"); e(f"s_or_b32 s{sT0}, s{sT0}, s{sT1}"); e(f"s_lshl_b32 s{sT0}, s{sT0}, 14")
    e(f"s_and_b32 s{sR}, s{sMEM}, 8"); e(f"s_lshl_b32 s{sR}, s{sR}, 6"); e(f"s_and_b32 s{sT1}, s{sW}, 1"); e(f"s_or_b32 s{sR}, s{sR}, s{sT1}"); e(f"s_lshl_b32 s{sR}, s{sR}, 8")
    e(f"v_bfe_u32 v{vA}, v{vL}, 2, 2"); e(f"v_lshrrev_b32 v{vB}, 4, v{vL}")
    e(f"v_lshl_add_u32 v{vKO}, v{vA}, 6, v{vB}")
    e(f"v_and_b32 v{vA}, 3, v{vL}"); e(f"v_lshl_add_u32 v{vKO}, v{vKO}, 2, v{vA}")
    e(f"v_lshl_add_u32 v{vKO}, v{vKO}, 4, s{sT0}")
    e(f"s_mov_b32 s{sK+2}, 0x8000000"); e(f"s_mov_b32 s{sK+3}, 0x20000")
    e(f"s_mov_b32 s{sWQ+2}, 3670016"); e(f"s_mov_b32 s{sWQ+3}, 0x20000")
    e(f"s_lshl_b32 s{sT2}, s{sKVH}, 10")
    e(f"s_cmp_eq_u32 s{sW}, 0"); e("s_cbranch_scc0 L_notw0")
    g.c("wave 0: wq slice and x into LDS")
    e(f"v_lshrrev_b32 v32, 2, v{vL}"); e(f"v_lshl_add_u32 v32, v32, 9, v{vA}"); e(f"s_lshl_b32 s{sT1}, s{sMEM}, 6"); e(f"s_add_u32 s{sT2}, s{sT2}, s{sT1}")
    e(f"v_lshlrev_b32 v32, 4, v32"); e(f"v_mov_b32 v34, 0"); e(f"v_mov_b32 v35, 0"); e(f"s_mov_b32 m0, {L_WQ}")
    e(f"ds_write_b64 v34, v[34:35] offset:{L_F}")
    e(f"ds_write_b32 v34, v34 offset:{L_CN2}")
    e("s_waitcnt lgkmcnt(0)")
    g.ts("ka")
    e(f"s_mov_b32 s{sWQ}, s12"); e(f"s_mov_b32 s{sWQ+1}, s13")
    if o.get('xin', 1):
        e(f"v_lshlrev_b32 v33, 4, v{vL}")
        e(f"s_mov_b32 s{sWS+2}, {WS_SIZE}"); e(f"s_mov_b32 s{sWS+3}, 0x20000")
        e(f"s_mov_b32 s{sX+2}, 7168"); e(f"s_mov_b32 s{sX+3}, 0x20000")
        e(f"s_mov_b32 m0, {L_X}"); e(f"s_movk_i32 s{sT1}, 0x1000")
        for ii in range(4): e(f"buffer_load_dwordx4 v33, {sr(sX)}, 0 offen offset:{ii*1024} lds")
        e(f"s_mov_b32 m0, {L_X+4096}")
        e(f"buffer_load_dword v{vTAG}, v34, {sr(sWS)}, 0 offen sc1")
        for ii in range(3): e(f"buffer_load_dwordx4 v33, {sr(sX)}, s{sT1} offen offset:{ii*1024} lds")
        e(f"s_mov_b32 m0, {L_WQ}"); e("s_nop 0")
    B0 = o['b0at']
    g.lab("L_wql")
    e(f"buffer_load_dwordx4 v32, {sr(sWQ)}, s{sT2} offen {POL} lds")
    e("s_add_u32 m0, m0, 1024"); e(f"s_add_u32 s{sT2}, s{sT2}, 131072")
    if 0 < B0 < 28:
        e(f"s_cmp_lg_u32 m0, {L_WQ+1024*B0}"); e("s_cbranch_scc1 L_wqn"); e("s_barrier"); g.lab("L_wqn")
    e(f"s_cmp_lt_u32 m0, {L_WQ+1024*28}"); e("s_cbranch_scc1 L_wql")
    if B0 == 28: e("s_barrier")
    e("s_branch L_w0b")
    g.lab("L_notw0")
    assert o['vpf'] == 3
    if o.get('tw', 4) < 0:
        g.c("wave 1: touch this member's 28 rows of column block 3 (the block whose owners would otherwise queue 448 requests on one path)")
        e(f"v_lshlrev_b32 v37, 13, v{vL}")
        e(f"s_mul_i32 s{sT1}, s{sMEM}, {28*8192}"); e(f"s_add_u32 s{sT2}, s{sT2}, s{sT1}"); e(f"s_add_u32 s{sT2}, s{sT2}, 384")
        e(f"s_cmp_gt_u32 s{sW}, 1")
    else:
        g.c("waves 1..4: touch 7 rows x 1 KB each of the group's wq block (rows 28*member ..), so that the strided slice loads meet them in L2")
        e(f"v_lshrrev_b32 v37, 3, v{vL}"); e(f"v_and_b32 v38, 7, v{vL}"); e("v_lshl_add_u32 v37, v37, 6, v38"); e("v_lshlrev_b32 v37, 7, v37")
        TW = o.get('tw', 4)
        e(f"s_mul_i32 s{sT1}, s{sMEM}, {TW}"); e(f"s_add_u32 s{sT1}, s{sT1}, s{sW}"); e(f"s_mul_i32 s{sT1}, s{sT1}, {7*8192}"); e(f"s_add_u32 s{sT2}, s{sT2}, s{sT1}")
        e(f"s_add_u32 s{sT2}, s{sT2}, {((448-112*TW)-7)*8192 & 0xffffffff}")
        e(f"s_cmp_gt_u32 s{sW}, {TW}")
    e("s_waitcnt lgkmcnt(0)")
    g.ts("ka")
    e(f"s_mov_b32 s{sK}, s8"); e(f"s_mov_b32 s{sK+1}, s9")
    e("s_cbranch_scc1 L_novpf")
    e(f"s_mov_b32 s{sWQ}, s12"); e(f"s_mov_b32 s{sWQ+1}, s13")
    e("s_mov_b64 exec, 0xfffffff" if o.get('tw', 4) < 0 else "s_mov_b32 exec_hi, 0xffffff")
    e(f"buffer_load_dword v38, v37, {sr(sWQ)}, s{sT2} offen {POL}")
    e("s_mov_b64 exec, -1")
    g.lab("L_novpf")
    for n in range(o['pre']): kload(n)
    if o['codepf'] == 2:
        g.c("waves 5,6: pull the rest of the kernel's code into L2: one dword per 128 B line")
        e(f"s_sub_u32 s{sT1}, s{sW}, 5"); e(f"s_cmp_gt_u32 s{sT1}, 1"); e("s_cbranch_scc1 L_nopf")
        e(f"s_getpc_b64 s[{sM8}:{sM8+1}]")
        g.lab("L_pc")
        e(f"v_lshlrev_b32 v35, 7, v0"); e(f"v_subrev_u32 v35, {5*8192}, v35"); e("v_min_u32 v35, L_codeend-L_pc-4, v35")
        e(f"global_load_dword v36, v35, s[{sM8}:{sM8+1}]")
        g.lab("L_nopf")
    g.ts("kpre")
    if B0 > 0: e("s_barrier")
    g.ts("b0")
    for n in range(o['pre'], 32): kload(n)
    g.lab("L_kq0")
    if B0 == 0: e("s_barrier")
    def common2():
        e(f"s_lshl_b32 s{sG}, s{sBR}, 3"); e(f"s_add_u32 s{sG}, s{sG}, s{sKVH}")
        e(f"v_lshlrev_b32 v33, 4, v{vL}")
        e(f"s_mov_b32 s{sWS+2}, {WS_SIZE}"); e(f"s_mov_b32 s{sWS+3}, 0x20000")
        e(f"s_mov_b32 s{sX+2}, 7168"); e(f"s_mov_b32 s{sX+3}, 0x20000")
    common2()
    e(f"v_readfirstlane_b32 s{sT0}, v{vKO}"); e(f"v_and_b32 v{vC}, 15, v{vL}"); e(f"v_lshl_add_u32 v{vVO}, v{vB}, 8, v{vC}")
    e(f"s_cmp_lg_u32 s{sW}, 7")
    e(f"v_lshl_add_u32 v{vVO}, v{vVO}, 4, s{sT0}")
    e("s_cbranch_scc1 L_nog7")
    srd(sGW, 20, 896)
    e(f"s_mul_i32 s{sT0}, s{sKVH}, 896")
    e(f"buffer_load_dwordx4 v[16:19], v33, {sr(sX)}, s{sT0} offen")
    e(f"buffer_load_dwordx4 v[20:23], v33, {sr(sGW)}, 0 offen")
    g.lab("L_nog7")
    srd(sV, 10, 0x8000000)
    g.ts("kiss")
    srd(sWO, 14, 3670016); srd(sOUT, 22, 7168)
    g.c("output-projection role of this member (14 = none), constants")
    s0, s1 = o['skip']
    e(f"s_mov_b32 s{sROLE}, s{sMEM}")
    e(f"s_cmp_gt_u32 s{sMEM}, {s1}"); e(f"s_cselect_b32 s{sT0}, 2, 0"); e(f"s_sub_u32 s{sROLE}, s{sROLE}, s{sT0}")
    e(f"s_sub_u32 s{sT0}, s{sMEM}, {s0}"); e(f"s_cmp_lt_u32 s{sT0}, 2"); e(f"s_cselect_b32 s{sROLE}, 14, s{sROLE}")
    e(f"s_cmp_ge_u32 s{sROLE}, 7"); e(f"s_cselect_b32 s{sH3}, 1, 0"); e(f"s_mul_i32 s{sT0}, s{sH3}, 7"); e(f"s_sub_u32 s{sNL}, s{sROLE}, s{sT0}")
    def wo_setup(nper, va, vb, vc, vd, p0=0):
        e(f"s_lshl_b32 s{sT0}, s{sKVH}, 9"); e(f"s_lshl_b32 s{sT1}, s{sH3}, 8"); e(f"s_add_u32 s{sT0}, s{sT0}, s{sT1}"); e(f"s_mul_i32 s{sT1}, s{sW}, {8*nper}"); e(f"s_add_u32 s{sT0}, s{sT0}, s{sT1}")
        if p0: e(f"s_add_u32 s{sT0}, s{sT0}, {8*p0}")
        e(f"s_mul_i32 s{sT0}, s{sT0}, 896"); e(f"s_lshl_b32 s{sT1}, s{sNL}, 7"); e(f"s_add_u32 s35, s{sT0}, s{sT1}")
        e(f"s_cmp_eq_u32 s{sROLE}, 14"); e(f"s_cselect_b32 s35, 0x4000000, s35")
        if o.get('nowo'): e(f"s_mov_b32 s35, 0x4000000")
        e(f"v_lshrrev_b32 v{va}, 3, v{vL}"); e(f"v_mul_u32_u24 v{vb}, 896, v{va}"); e(f"v_and_b32 v{vc}, 7, v{vL}")
        e(f"v_and_b32 v{va}, 2, v{va}"); e(f"v_xor_b32 v{vc}, v{vc}, v{va}"); e(f"v_xor_b32 v{vd}, 4, v{vc}")
        e(f"v_lshl_add_u32 v{va}, v{vc}, 4, v{vb}"); e(f"v_lshl_add_u32 v{vb}, v{vd}, 4, v{vb}")
    def wo_issue(nper, va, vb, p0=0):
        e(f"s_mul_i32 s46, s{sW}, {1024*nper}")
        for ii in range(nper):
            e(f"s_add_u32 m0, s46, {L_WO+(p0+ii)*1024}")
            e(f"s_add_u32 s47, s35, {ii*8*896}")
            e(f"buffer_load_dwordx4 v{vb if ii%2 else va}, {sr(sWO)}, s47 offen {POL} lds")
    WE = {0: 4, 1: 0, 2: 2}[o['wol']]
    WLATE = (32 - 8*WE)//4
    NWO = WE
    if o.get('nodma'): NWO = 0
    elif WE:
        wo_setup(WE, 60, 61, 62, 63); wo_issue(WE, 60, 61)
    for v in range(8):
        pat = (0x11 << (v & 3)) << (8*(v >> 2)); pat |= pat << 16
        e(f"s_mov_b32 s{sMASK+2*v}, 0x{pat:08x}"); e(f"s_mov_b32 s{sMASK+2*v+1}, 0x{pat:08x}")
    e(f"s_mov_b32 s{sSEL0}, 0x05040100"); e(f"s_mov_b32 s{sSEL1}, 0x07060302")
    e(f"s_mov_b32 s{sC}, 0x{f2u(math.log2(math.e)/16):08x}")
    e(f"s_mov_b32 s{sM8}, 0xff00ff00"); e(f"s_mov_b32 s{sM8+1}, 0xff00ff00")
    if o['qp']:
        e(f"s_cmp_lg_u32 s{sW}, {o['qp']}"); e("s_cbranch_scc1 L_notqp")
        e(f"s_lshl_b32 s{sT3}, s{sG}, 3"); e(f"s_add_u32 s{sT3}, s{sT3}, s{sB}"); e(f"s_lshl_b32 s{sT3}, s{sT3}, 11"); e(f"s_add_u32 s{sT3}, s{sT3}, {WS_Q+WS_F}")
        e("s_getreg_b32 s44, hwreg(HW_REG_XCC_ID, 0, 3)")
        e(f"s_waitcnt vmcnt({32 + NWO})")
        e(f"v_and_b32 v{vTAG}, -8, v{vTAG}"); e(f"v_add_u32 v{vTAG}, 8, v{vTAG}"); e(f"v_or_b32 v53, s44, v{vTAG}")
        qgather(False)
        e("s_branch L_b2")
        g.lab("L_notqp")
    if o['e1']:
        e(f"s_cmp_lg_u32 s{sW}, 7"); e("s_cbranch_scc1 L_b2")
        e(f"s_waitcnt vmcnt({NWO})")
    else:
        e(f"s_cmp_eq_u32 s{sW}, 0"); e("s_cbranch_scc1 L_b2")
        e(f"s_waitcnt vmcnt({32 - o['pre'] + NWO})")
        e(f"v_and_b32 v{vTAG}, -8, v{vTAG}"); e(f"v_add_u32 v{vTAG}, 8, v{vTAG}")
        e(f"s_cmp_lg_u32 s{sW}, 7"); e("s_cbranch_scc1 L_b2")
    g.c("wave 7: gate g -> s22, 1-g -> s23 (bf16-rounded like the reference)")
    e(f"v_cmp_gt_u32 vcc, 56, v{vL}"); e("v_mov_b32 v24, 0"); e("s_nop 0")
    for k in range(4): e(f"v_cndmask_b32 v{16+k}, 0, v{16+k}, vcc")
    for k in range(4):
        e(f"v_lshlrev_b32 v25, 16, v{16+k}"); e(f"v_and_b32 v26, 0xffff0000, v{16+k}")
        e(f"v_lshlrev_b32 v27, 16, v{20+k}"); e(f"v_and_b32 v28, 0xffff0000, v{20+k}")
        e("v_mul_f32 v25, v25, v27"); e("v_mul_f32 v26, v26, v28")
        e("v_cvt_pk_bf16_f32 v25, v25, v26")
        e("v_lshlrev_b32 v26, 16, v25"); e("v_and_b32 v25, 0xffff0000, v25")
        e("v_add_f32 v24, v24, v26"); e("v_add_f32 v24, v24, v25")
    for dpp in ("quad_perm:[1,0,3,2]", "quad_perm:[2,3,0,1]", "row_ror:4", "row_ror:8"):
        e("s_nop 1"); e(f"v_add_f32_dpp v24, v24, v24 {dpp} {DPP}")
    for sw in ("16", "32"):
        e("v_mov_b32 v25, v24"); e("s_nop 1"); e(f"v_permlane{sw}_swap_b32 v24, v25"); e("v_add_f32 v24, v24, v25")
    e("v_cvt_pk_bf16_f32 v24, v24, v24"); e("v_and_b32 v24, 0xffff0000, v24")
    e(f"v_mul_f32 v24, 0x{f2u(-math.log2(math.e)):08x}, v24"); e("v_exp_f32 v24, v24"); e("s_nop 0")
    e("v_add_f32 v24, 1.0, v24"); e("v_rcp_f32 v24, v24"); e("s_nop 0")
    e("v_cvt_pk_bf16_f32 v24, v24, v24"); e("v_and_b32 v24, 0xffff0000, v24")
    e("v_sub_f32 v25, 1.0, v24"); e("v_cvt_pk_bf16_f32 v25, v25, v25"); e("v_and_b32 v25, 0xffff0000, v25")
    e("v_readfirstlane_b32 s22, v24"); e("v_readfirstlane_b32 s23, v25")
    g.lab("L_b2")
    e(f"v_bfe_u32 v{vC}, v{vL}, 2, 1"); e(f"v_lshlrev_b32 v{vA}, 9, v{vC}")
    e(f"v_lshl_add_u32 v{vA}, v{vB}, 6, v{vA}")
    e(f"v_and_b32 v60, 3, v{vL}"); e(f"v_lshl_add_u32 v{vA}, v60, 4, v{vA}")
    e(f"s_and_b32 s{sT0}, s{sR}, 0x100"); e(f"v_add_u32 v{vA}, s{sT0}, v{vA}"); e(f"v_xor_b32 v60, 0x100, v{vA}")
    e("v_mov_b32 v62, 0"); e("s_mov_b32 s42, 1")
    if not o.get('noqw'):
        e(f"s_mov_b32 s{sSPIN}, 0x400000")
        if o['qp']:
            e(f"s_cmp_lg_u32 s{sW}, 0"); e("s_cbranch_scc1 L_qwait")
            g.lab("L_q0w")
            e(f"ds_read_b32 v61, v62 offset:{L_F}"); e(f"ds_read_b32 v63, v62 offset:{L_RQ}"); e("s_waitcnt lgkmcnt(0)")
            e("v_readfirstlane_b32 s42, v61"); e(f"v_readfirstlane_b32 s{sT0}, v63")
            e(f"s_and_b32 s{sT1}, s42, 2"); e(f"s_or_b32 s{sT0}, s{sT0}, s{sT1}"); e("s_cbranch_scc1 L_q0s")
            e("s_cmp_lg_u32 s42, 0"); e("s_cbranch_scc1 L_qready")
            e(f"s_sleep {o['qsl']}"); e(f"s_sub_u32 s{sSPIN}, s{sSPIN}, 1"); e("s_cbranch_scc0 L_q0w")
            g.lab("L_q0s")
            e(f"buffer_store_dwordx4 v[52:55], v43, {sr(sWS)}, s45 offen sc1")
            e("s_waitcnt vmcnt(0)")
        g.lab("L_qwait")
        e(f"ds_read_b32 v61, v62 offset:{L_F}"); e("s_waitcnt lgkmcnt(0)"); e(f"v_readfirstlane_b32 s42, v61"); e(f"s_cmp_lg_u32 s42, 0"); e("s_cbranch_scc1 L_qready")
        e(f"s_sleep {o['qsl']}"); e(f"s_sub_u32 s{sSPIN}, s{sSPIN}, 1"); e("s_cbranch_scc0 L_qwait")
        g.lab("L_qready")
        if o['e1']: e(f"v_and_b32 v{vTAG}, -8, v61"); e("s_and_b32 s42, s42, 7")
    if o.get('b2'): e("s_barrier")
    g.ts("B2")
    g.c("q fragments; QK^T, softmax, P.V")
    e(f"ds_read_b128 {vr(vQB)}, v{vA} offset:{L_QL}")
    e(f"ds_read_b128 {vr(vQB+4)}, v60 offset:{L_QL}")
    e("s_waitcnt lgkmcnt(0)")
    def xred(r, t, op):
        for sw in ("16", "32"):
            e(f"v_mov_b32 v{t}, v{r}"); e("s_nop 1"); e(f"v_permlane{sw}_swap_b32 v{r}, v{t}"); e(f"{op} v{r}, v{r}, v{t}")
    def soft(blk):
        if o.get('nocomp'): return
        S = vS + 8*blk
        if o['round_s']:
            for u in range(0, 8, 2): e(f"v_cvt_pk_bf16_f32 v{vP8+u//2}, v{S+u}, v{S+u+1}")
            for u in range(0, 8, 2):
                e(f"v_lshlrev_b32 v{S+u}, 16, v{vP8+u//2}"); e(f"v_and_b32 v{S+u+1}, 0xffff0000, v{vP8+u//2}")
        e(f"v_max3_f32 v{vA}, v{S}, v{S+1}, v{S+2}"); e(f"v_max3_f32 v{vB}, v{S+3}, v{S+4}, v{S+5}")
        e(f"v_max3_f32 v{vA}, v{vA}, v{S+6}, v{S+7}"); e(f"v_max_f32 v{vA}, v{vA}, v{vB}")
        xred(vA, vB, "v_max_f32")
        if blk == 0:
            e(f"v_mul_f32 v{vM0}, s{sC}, v{vA}")
        else:
            e(f"v_mul_f32 v{vA}, s{sC}, v{vA}"); e(f"v_max_f32 v{vA}, v{vA}, v{vM0}")
            e(f"v_sub_f32 v{vAL}, v{vM0}, v{vA}"); e(f"v_mov_b32 v{vM0}, v{vA}"); e(f"v_exp_f32 v{vAL}, v{vAL}")
        for u in range(8): e(f"v_fma_f32 v{S+u}, v{S+u}, s{sC}, -v{vM0}")
        for u in range(8): e(f"v_exp_f32 v{S+u}, v{S+u}")
        e("s_nop 0")
        for t in range(4): e(f"v_cvt_pk_bf16_f32 v{vP8+t}, v{S+2*t}, v{S+2*t+1}")
        for t in range(4): e(f"v_add_f32 v{S+t}, v{S+t}, v{S+t+4}")
        e(f"v_add_f32 v{S}, v{S}, v{S+2}"); e(f"v_add_f32 v{S+1}, v{S+1}, v{S+3}")
        if blk == 0:
            e(f"v_add_f32 v{vL0}, v{S}, v{S+1}")
        else:
            e(f"v_add_f32 v{S}, v{S}, v{S+1}"); e(f"v_fmac_f32 v{S}, v{vL0}, v{vAL}")
            xred(S, S+1, "v_add_f32")
            e(f"ds_write_b32 v{vSA}, v{vM0} offset:{L_SM}"); e(f"ds_write_b32 v{vSA}, v{S} offset:{L_SL}")
            e(f"v_mov_b32 v{S+1}, 1"); e(f"v_mov_b32 v{S+2}, 0"); e("s_mov_b64 exec, 1")
            e(f"ds_add_u32 v{S+2}, v{S+1} offset:{L_CNT}"); e("s_mov_b64 exec, -1")
            e(f"v_readlane_b32 s{sT0}, v{vAL}, 0"); e(f"v_readlane_b32 s{sT1}, v{vAL}, 4")
        for v in range(8):
            for t in range(4):
                e(f"v_cndmask_b32 v{vPV+4*v+t}, 0, v{vP8+t}, s[{sMASK+2*v}:{sMASK+2*v+1}]")
    def pv(unit):
        if o.get('nocomp'): return
        blk, hf = unit//2, unit % 2
        base = vreg(unit); acc = vACC + 4*hf
        def perms(d):
            for t in range(4):
                e(f"v_perm_b32 v{vT+4*(d%3)+t}, v{base+4*(2*t+1)+d//2}, v{base+4*(2*t)+d//2}, s{sSEL1 if d&1 else sSEL0}")
        perms(0)
        for d in range(8):
            if d < 7: perms(d+1)
            else: g.nop(2)
            cin = "0" if (blk == 0 and d == 0) else vr(acc)
            e(f"v_mfma_f32_16x16x32_bf16 {vr(acc)}, {vr(vPV+4*d)}, {vr(vT+4*(d%3))}, {cin}")
    def qkm(bt, dbase, wait):
        e(f"s_waitcnt vmcnt({wait})")
        g.ts(f"K{bt}")
        if o.get('nocomp'): return
        for u in range(4*bt, 4*bt+4):
            d = dbase + 4*(u % 4)
            e(f"v_mfma_f32_16x16x32_bf16 {vr(d)}, {vr(kreg(2*u))}, {vr(vQB)}, 0")
            e(f"v_mfma_f32_16x16x32_bf16 {vr(d)}, {vr(kreg(2*u+1))}, {vr(vQB+4)}, {vr(d)}")
    def postb(bt, dbase):
        if o.get('nocomp'): return
        for step in range(4):
            for u in range(4*bt, 4*bt+4):
                d = dbase + 4*(u % 4); s_ = vS + u
                if step == 0: e(f"v_mov_b32_dpp v{s_}, v{d} quad_perm:[0,0,0,0] {DPP}")
                else: e(f"v_add_f32_dpp v{s_}, v{d+step}, v{s_} quad_perm:[{step},{step},{step},{step}] {DPP}")
    def vunit(u):
        for j in range(8): vload(u, j)
    def addrs():
        e(f"v_lshlrev_b32 v{vC}, 5, v{vC}")
        e(f"s_lshl_b32 s{sT0}, s{sW}, 2"); e(f"v_add_u32 v{vSA}, s{sT0}, v{vC}")
        e(f"v_bfe_u32 v{vC}, v{vL}, 4, 1"); e(f"v_lshlrev_b32 v{vORA}, 10, v{vC}"); e(f"v_lshlrev_b32 v{vC}, 5, v{vC}")
        e(f"v_and_b32 v{vORB}, 15, v{vL}"); e(f"v_lshl_add_u32 v{vORA}, v{vORB}, 5, v{vORA}")
        e(f"v_lshrrev_b32 v{vORB}, 5, v{vL}"); e(f"v_lshl_add_u32 v{vORA}, v{vORB}, 4, v{vORA}")
        e(f"s_and_b32 s{sT1}, s{sR}, 0x100"); e(f"s_lshl_b32 s{sT1}, s{sT1}, 1"); e(f"v_add_u32 v{vORA}, s{sT1}, v{vORA}"); e(f"v_xor_b32 v{vORB}, 0x200, v{vORA}")
        e(f"s_lshl_b32 s{sT0}, s{sW}, 11"); e(f"s_add_u32 s{sT0}, s{sT0}, {L_OR}"); e(f"v_add_u32 v{vORA}, s{sT0}, v{vORA}"); e(f"v_add_u32 v{vORB}, s{sT0}, v{vORB}")
        if o['pret']:
            e(f"s_sub_u32 s{sT0}, s{sW}, 1"); e(f"s_cmp_gt_u32 s{sT0}, 1"); e("s_cbranch_scc1 L_nopre")
            e(f"s_and_b32 s{sT1}, s{sMEM}, 1"); e(f"s_lshl_b32 s{sT1}, s{sT1}, 3"); e(f"s_add_u32 s{sT1}, s{sT1}, s{sB}")
            e(f"s_lshl_b32 s{sT2}, s{sG}, 1"); e(f"s_add_u32 s{sT2}, s{sT2}, s{sT0}")
            e(f"s_lshl_b32 s{sT2}, s{sT2}, 14"); e(f"s_lshl_b32 s{sT1}, s{sT1}, 10"); e(f"s_add_u32 s{sT2}, s{sT2}, s{sT1}"); e(f"s_add_u32 s{sT2}, s{sT2}, {WS_O+WS_F}")
            e(f"v_add_u32 v60, 1, v{vTAG}"); e("v_mov_b32 v61, v60"); e("v_mov_b32 v62, v60"); e("v_mov_b32 v63, v60"); e(f"v_lshlrev_b32 v55, 4, v{vL}")
            e(f"buffer_store_dwordx4 v[60:63], v55, {sr(sWS)}, s{sT2} offen")
            g.lab("L_nopre")
            e("s_nop 1")
    W = NWO
    if o['kv'] == 0:
        qkm(0, 32, 24+W); vunit(0); qkm(1, 48, 24+W); vunit(1)
        postb(0, 32); postb(1, 48); addrs(); soft(0)
        qkm(2, 32, 24+W); vunit(2)
        if o['wt'] == 2:
            e("v_mov_b32 v60, 1"); e("v_mov_b32 v61, 0"); e("s_mov_b64 exec, 1"); e(f"ds_add_u32 v61, v60 offset:{L_CN2}"); e("s_mov_b64 exec, -1")
        postb(2, 32)
        e("s_waitcnt vmcnt(16)"); g.ts("V0"); pv(0)
        qkm(3, 96, 24+W); vunit(3)
        if o['wt'] == 1:
            e("v_mov_b32 v60, 1"); e("v_mov_b32 v61, 0"); e("s_mov_b64 exec, 1"); e(f"ds_add_u32 v61, v60 offset:{L_CN2}"); e("s_mov_b64 exec, -1")
        g.ts("QK")
        e("s_waitcnt vmcnt(16)"); g.ts("V1"); pv(1)
        postb(3, 96); soft(1)
    else:
        K2 = (o['kv'] == 2)
        qkm(0, 32, 24+W)
        if not K2:
            for n in range(16, 24): kload(n)
        qkm(1, 48, (16 if K2 else 24)+W)
        if not K2:
            for n in range(24, 32): kload(n)
        else: g.nop(4)
        postb(0, 32); postb(1, 48); addrs(); soft(0)
        if K2:
            e(f"s_waitcnt vmcnt({8+W})"); pv(0)
            e(f"s_waitcnt vmcnt({W})"); pv(1)
            for n in range(16, 32): kload(n)
            vunit(2); vunit(3)
        else:
            e(f"s_waitcnt vmcnt({24+W})"); pv(0); vunit(2)
            e(f"s_waitcnt vmcnt({24+W})"); pv(1); vunit(3)
        g.ts("QK")
        qkm(2, 32, 24); qkm(3, 96, 16)
        postb(2, 32); postb(3, 96); soft(1)
    e(f"v_mov_b32 v{vAL}, s{sT0}"); e(f"v_mov_b32 v{vA}, s{sT1}"); e(f"s_mov_b32 vcc_lo, 0xffff0000"); e(f"s_mov_b32 vcc_hi, 0xffff0000")
    e(f"v_cndmask_b32 v{vAL}, v{vAL}, v{vA}, vcc")
    for k in range(8): e(f"v_mul_f32 v{vACC+k}, v{vACC+k}, v{vAL}")
    g.ts("P")
    e(f"s_waitcnt vmcnt(8)"); g.ts("V2"); pv(2)
    if o['cpf2']:
        e(f"s_cmp_lg_u32 s{sW}, 3"); e("s_cbranch_scc1 L_nopf2")
        e(f"s_getpc_b64 s[{sT2}:{sT3}]")
        g.lab("L_pc2")
        e(f"v_lshlrev_b32 v60, 7, v{vL}"); e(f"s_mov_b32 s{sT0}, L_codeend-L_pc2-4"); e(f"v_min_u32 v60, s{sT0}, v60")
        e(f"global_load_dword v61, v60, s[{sT2}:{sT3}]")
        e("s_waitcnt vmcnt(0)")
        g.lab("L_nopf2")
    if o['wt']:
        e(f"s_cmp_gt_u32 s{sW}, 3"); e("s_cbranch_scc1 L_nowt")
        e(f"s_cmp_eq_u32 s{sROLE}, 14"); e("s_cbranch_scc1 L_nowt")
        wo_setup(WLATE, 60, 61, 62, 63, 8*WE)
        e("v_mov_b32 v62, 0")
        e("s_waitcnt vmcnt(0)")
        e(f"s_mov_b32 s{sSPIN}, 0x400000")
        g.lab("L_wtw")
        e(f"ds_read_b32 v63, v62 offset:{L_CN2}"); e("s_waitcnt lgkmcnt(0)"); e(f"v_readfirstlane_b32 s{sT0}, v63"); e(f"s_cmp_ge_u32 s{sT0}, {o.get('wtn', 8)}"); e("s_cbranch_scc1 L_wtg")
        e(f"s_sleep {o['ssl']}"); e(f"s_sub_u32 s{sSPIN}, s{sSPIN}, 1"); e("s_cbranch_scc0 L_wtw")
        g.lab("L_wtg")
        wo_issue(WLATE, 60, 61, 8*WE)
        g.lab("L_nowt")
    g.c("workgroup-level softmax factor from the 8 waves (max, sum)")
    e(f"s_lshl_b32 s{sT0}, s{sW}, 2"); e(f"v_add_u32 v{vB}, s{sT0}, v{vC}"); e("v_mov_b32 v62, 0")
    if o.get('nocomp') or o.get('nosw'): e("s_branch L_sready")
    e(f"s_mov_b32 s{sSPIN}, 0x400000")
    g.lab("L_swait")
    e(f"ds_read_b32 v61, v62 offset:{L_CNT}"); e("s_waitcnt lgkmcnt(0)"); e(f"v_readfirstlane_b32 s{sT0}, v61"); e(f"s_cmp_eq_u32 s{sT0}, 8"); e("s_cbranch_scc1 L_sready")
    e(f"s_sleep {o['ssl']}"); e(f"s_sub_u32 s{sSPIN}, s{sSPIN}, 1"); e("s_cbranch_scc0 L_swait")
    g.lab("L_sready")
    e(f"ds_read_b128 {vr(16)}, v{vC} offset:{L_SM}"); e(f"ds_read_b128 {vr(20)}, v{vC} offset:{L_SM+16}")
    e(f"ds_read_b32 v{vF}, v{vB} offset:{L_SM}")
    e(f"ds_read_b128 {vr(24)}, v{vC} offset:{L_SL}"); e(f"ds_read_b128 {vr(28)}, v{vC} offset:{L_SL+16}")
    e("s_waitcnt lgkmcnt(0)")
    e("v_max3_f32 v124, v16, v17, v18"); e("v_max3_f32 v125, v19, v20, v21"); e("v_max3_f32 v124, v124, v22, v23"); e("v_max_f32 v124, v124, v125")
    for w in range(8): e(f"v_sub_f32 v{16+w}, v{16+w}, v124")
    e(f"v_sub_f32 v{vF}, v{vF}, v124")
    for w in range(8): e(f"v_exp_f32 v{16+w}, v{16+w}")
    e(f"v_exp_f32 v{vF}, v{vF}")
    e("v_mul_f32 v126, v24, v16")
    for w in range(1, 8): e(f"v_fmac_f32 v126, v{24+w}, v{16+w}")
    e(f"v_rcp_f32 v16, v126"); e(f"v_mov_b32 v125, v{vTAG}"); e(f"v_mov_b32 v127, v{vTAG}")
    e(f"v_mul_f32 v{vF}, v{vF}, v16")
    e(f"v_lshrrev_b32 v53, 4, v{vL}")
    e(f"v_lshlrev_b32 v60, 4, v{vL}")
    e(f"s_lshl_b32 s{sT2}, s{sG}, 1")
    e(f"s_cmp_lt_u32 s{sW}, 4"); e("s_cbranch_scc1 L_a03")
    e(f"s_cmp_eq_u32 s{sW}, 4"); e("s_cbranch_scc1 L_a4")
    e(f"s_cmp_eq_u32 s{sW}, 7"); e("s_cbranch_scc1 L_a7")
    e(f"s_sub_u32 s{sT0}, s{sW}, 5")
    e(f"s_and_b32 s{sT1}, s{sMEM}, 1"); e(f"s_lshl_b32 s{sT1}, s{sT1}, 3"); e(f"s_add_u32 s{sT1}, s{sT1}, s{sB}")
    e(f"s_add_u32 s{sT2}, s{sT2}, s{sT0}")
    e(f"s_lshl_b32 s44, s{sT2}, 14"); e(f"s_lshl_b32 s45, s{sT1}, 10"); e(f"s_add_u32 s44, s44, s45"); e(f"s_add_u32 s44, s44, {WS_O}"); e(f"s_add_u32 s45, s44, {WS_F}")
    e(f"s_lshl_b32 s{sT2}, s{sT2}, 8"); e(f"s_lshl_b32 s{sT1}, s{sT1}, 4"); e(f"s_add_u32 s{sT2}, s{sT2}, s{sT1}"); e(f"s_add_u32 s{sT2}, s{sT2}, {WS_S}"); e(f"s_add_u32 s{sT3}, s{sT2}, {WS_F}")
    e(f"s_lshl_b32 s{sT1}, s{sT0}, 4"); e(f"s_lshl_b64 exec, 1, s{sT1}")
    e(f"s_cmp_eq_u32 s42, 1"); e(f"s_cselect_b32 s{sT2}, 0x4000000, s{sT2}"); e("s_cselect_b32 s44, 0x4000000, s44")
    if o['lst']:
        e("s_mov_b64 s[64:65], exec")
    else:
        e(f"buffer_store_dwordx4 v[124:127], v62, {sr(sWS)}, s{sT3} offen")
        e(f"buffer_store_dwordx4 v[124:127], v62, {sr(sWS)}, s{sT2} offen sc1")
    e("s_mov_b64 exec, -1")
    e(f"s_lshl_b32 s{sT1}, s{sT0}, 10"); e(f"s_add_u32 s{sT1}, s{sT1}, {L_OR}"); e(f"v_add_u32 v61, s{sT1}, v60")
    e(f"v_mov_b32 v97, v{vTAG}"); e(f"v_mov_b32 v99, v{vTAG}")
    e(f"s_waitcnt vmcnt({0 if o['lst'] else 2})")
    e("s_branch L_v3")
    g.lab("L_a03")
    e(f"s_add_u32 s{sT2}, s{sT2}, s{sH3}")
    e(f"v_and_b32 v54, 15, v{vL}"); e("v_lshlrev_b32 v52, 10, v54"); e("v_lshl_add_u32 v52, v53, 5, v52"); e("v_lshlrev_b32 v54, 2, v54")
    e(f"s_lshl_b32 s{sT3}, s{sT2}, 14"); e(f"s_lshl_b32 s{sT0}, s{sW}, 8"); e(f"s_add_u32 s{sT3}, s{sT3}, s{sT0}"); e(f"s_add_u32 s{sT3}, s{sT3}, {WS_O+WS_F}")
    e(f"s_lshl_b32 s{sT0}, s{sW}, 11"); e(f"v_add_u32 v61, s{sT0}, v60")
    e(f"v_bfe_u32 v55, v{vL}, 2, 2"); e("v_lshl_add_u32 v63, v53, 3, v55"); e("v_lshlrev_b32 v63, 7, v63")
    e(f"v_bfe_u32 v16, v{vL}, 1, 1"); e(f"s_lshl_b32 s{sT0}, s{sW}, 1"); e(f"v_add_u32 v16, s{sT0}, v16")
    if o['wosw']:
        e("v_and_b32 v55, 2, v55"); e("v_xor_b32 v16, v16, v55"); e("v_and_b32 v55, 1, v53"); e("v_lshlrev_b32 v55, 2, v55"); e("v_xor_b32 v16, v16, v55")
    e("v_lshl_add_u32 v63, v16, 4, v63"); e(f"v_and_b32 v16, 1, v{vL}"); e("v_lshl_add_u32 v63, v16, 3, v63"); e(f"v_add_u32 v63, {L_WO}, v63")
    e(f"s_lshl_b32 s{sT0}, s{sNL}, 2"); e(f"s_add_u32 s{sT0}, s{sT0}, s{sW}"); e(f"s_lshl_b32 s{sT0}, s{sT0}, 15"); e(f"s_lshl_b32 s44, s{sT2}, 7")
    e(f"s_add_u32 s44, s44, s{sT0}"); e(f"s_add_u32 s44, s44, {WS_P}")
    e(f"v_and_b32 v55, 7, v{vL}"); e("v_lshlrev_b32 v55, 12, v55"); e("v_lshl_add_u32 v55, v53, 5, v55")
    e(f"v_bfe_u32 v16, v{vL}, 3, 1"); e("v_lshl_add_u32 v55, v16, 4, v55")
    e(f"v_mov_b32 v109, v{vTAG}"); e(f"v_mov_b32 v111, v{vTAG}")
    e(f"s_lshl_b32 s45, s{sG}, 2"); e(f"s_add_u32 s45, s45, {WS_H}"); e(f"v_lshlrev_b32 v17, 8, v{vL}")
    if o['wt']:
        e(f"s_cmp_eq_u32 s{sROLE}, 14"); e("s_cbranch_scc0 L_v3")
    elif o['wol']: wo_setup(WLATE, 18, 19, 20, 21, 8*WE)
    e("s_branch L_nostat")
    g.lab("L_a4")
    e(f"s_add_u32 s{sT2}, s{sT2}, s{sH3}"); e(f"s_lshl_b32 s{sT3}, s{sT2}, 8"); e(f"s_add_u32 s{sT3}, s{sT3}, {WS_S+WS_F}")
    e(f"v_and_b32 v54, 15, v{vL}"); e("v_lshlrev_b32 v55, 4, v54"); e("v_lshlrev_b32 v54, 2, v54")
    e("s_branch L_nostat")
    g.lab("L_a7")
    e(f"s_lshl_b32 s{sT3}, s2, 12"); e(f"s_add_u32 s{sT3}, s{sT3}, {WS_P}")
    e(f"v_and_b32 v54, 7, v{vL}"); e("v_lshlrev_b32 v54, 2, v54"); e(f"v_lshlrev_b32 v55, 2, v{vL}")
    e(f"s_mul_i32 s21, s{sKVH}, 896"); e("s_lshr_b32 s20, s2, 3"); e("s_lshl_b32 s20, s20, 5"); e("s_add_u32 s21, s21, s20")
    e(f"s_and_b32 s20, s2, {o['nrep']-1}"); e("s_lshl_b32 s20, s20, 8"); e(f"s_add_u32 s20, s20, {WS_H}")
    g.lab("L_nostat")
    e("s_waitcnt vmcnt(0)")
    g.lab("L_v3")
    for k in range(4): e(f"v_mul_f32 v{vACC+k}, v{vACC+k}, v{vF}")
    g.ts("V3")
    e(f"ds_write_b128 v{vORA}, {vr(vACC)}")
    pv(3)
    e(f"s_cmp_lt_u32 s{sW}, 5")
    g.nop(7)
    for k in range(4): e(f"v_mul_f32 v{vACC+4+k}, v{vACC+4+k}, v{vF}")
    e(f"ds_write_b128 v{vORB}, {vr(vACC+4)}")
    if o['wol'] and not o['wt']:
        e(f"s_cmp_gt_u32 s{sW}, 3"); e("s_cbranch_scc1 L_nowo")
        if o.get('sk14', 1): e(f"s_cmp_eq_u32 s{sROLE}, 14"); e("s_cbranch_scc1 L_nowo")
        wo_issue(WLATE, 18, 19, 8*WE)
        g.lab("L_nowo")
        e(f"s_cmp_lt_u32 s{sW}, 5")
    e("s_waitcnt lgkmcnt(0)")
    e("s_barrier")
    g.ts("B4")
    if o.get('stopb4'): e("s_branch L_fin")
    e("s_cbranch_scc1 L_cons")
    e(f"s_cmp_eq_u32 s{sW}, 7"); e("s_cbranch_scc1 L_w7")
    g.c("waves 5,6: sum the 8 partial o, publish")
    for w in range(8): e(f"ds_read_b128 {vr(64+4*w)}, v61 offset:{w*2048}")
    if o['lst']:
        e("s_mov_b64 exec, s[64:65]")
        e(f"buffer_store_dwordx4 v[124:127], v62, {sr(sWS)}, s{sT3} offen")
        e(f"buffer_store_dwordx4 v[124:127], v62, {sr(sWS)}, s{sT2} offen sc1")
        e("s_mov_b64 exec, -1")
    for w in range(1, 8, 2):
        e(f"s_waitcnt lgkmcnt({0 if (o['ts'] or o.get('holdat')) else 7-w})")
        if o['pk']:
            for k in (0, 2): e(f"v_pk_add_f32 {vr(64+4*(w-1)+k,2)}, {vr(64+4*(w-1)+k,2)}, {vr(64+4*w+k,2)}")
            if w > 1:
                for k in (0, 2): e(f"v_pk_add_f32 {vr(64+k,2)}, {vr(64+k,2)}, {vr(64+4*(w-1)+k,2)}")
            continue
        for k in range(4): e(f"v_add_f32 v{64+4*(w-1)+k}, v{64+4*(w-1)+k}, v{64+4*w+k}")
        if w > 1:
            for k in range(4): e(f"v_add_f32 v{64+k}, v{64+k}, v{64+4*(w-1)+k}")
    e("v_cvt_pk_bf16_f32 v96, v64, v65"); e("v_cvt_pk_bf16_f32 v98, v66, v67")
    e(f"buffer_store_dwordx4 v[96:99], v60, {sr(sWS)}, s45 offen {o['opol']}")
    g.ts("opub")
    e(f"buffer_store_dwordx4 v[96:99], v60, {sr(sWS)}, s44 offen sc1")
    e(f"s_cmp_eq_u32 s{sROLE}, 14"); e("s_cbranch_scc1 L_fin")
    if B45: e("s_barrier")
    e("s_barrier")
    e("s_branch L_fin")
    g.lab("L_cons")
    g.c("wave 4: merge weights of the two key halves; waves 0..3: gather o, project, publish partials")
    e(f"s_cmp_eq_u32 s{sROLE}, 14"); e("s_cbranch_scc1 L_fin")
    e(f"s_cmp_lt_u32 s{sW}, 4"); e("s_cbranch_scc1 L_gath")
    if B45: e("s_barrier")
    e("s_mov_b64 exec, 0xffff")
    def sl(): e(f"buffer_load_dwordx4 {vr(160)}, v55, {sr(sWS)}, s{sT3} offen {o.get('ppol2', o['ppol'])}")
    poll("sg", sl, [161, 163], 58, 59, o['sleep1'])
    if o['gate1']: e(f"v_mov_b32 v61, 9"); e(f"ds_write_b32 v62, v61 offset:{L_CNT}")
    e(f"v_mov_b32_dpp v100, v160 row_ror:8 {DPP}")
    e(f"v_mov_b32_dpp v101, v162 row_ror:8 {DPP}")
    e("v_max_f32 v102, v160, v100")
    e("v_sub_f32 v103, v160, v102"); e("v_sub_f32 v100, v100, v102")
    e("v_exp_f32 v103, v103"); e("v_exp_f32 v100, v100"); e("s_nop 0")
    e("v_mul_f32 v103, v103, v162"); e("v_fma_f32 v100, v100, v101, v103")
    e("v_rcp_f32 v100, v100"); e("s_nop 0"); e("v_mul_f32 v103, v103, v100")
    e("s_mov_b64 exec, 0xffff")
    e(f"ds_write_b32 v54, v103 offset:{L_W}")
    e("s_waitcnt lgkmcnt(0)")
    e("s_barrier")
    e("s_branch L_fin")
    g.lab("L_gath")
    def gl():
        for k in range(2):
            e(f"buffer_load_dwordx4 {vr(128+8*k)}, v52, {sr(sWS)}, s{sT3} offen offset:{128*k} {o.get('ppol2', o['ppol'])}")
            e(f"buffer_load_dwordx4 {vr(132+8*k)}, v52, {sr(sWS)}, s{sT3} offen offset:{128*k+16} {o.get('ppol2', o['ppol'])}")
    def wofr():
        for k in range(8):
            e(f"ds_read_b64_tr_b16 {vr(64+4*k,2)}, v63 offset:{k*4096}")
            e(f"ds_read_b64_tr_b16 {vr(66+4*k,2)}, v63 offset:{k*4096+512}")
            if k == 6: e("s_waitcnt lgkmcnt(4)")
    def wofr45():
        e("s_waitcnt vmcnt(4)"); e("s_barrier"); wofr()
    if o.get('pw') is not None: e(f"s_waitcnt vmcnt({o['pw']})")
    if not o['g1p']:
        poll("g1", gl, [129+2*i for i in range(8)], 58, 59, o['sleep1'], first=(wofr45 if B45 else None) if o['wol'] else wofr, gate=o['gate1'])
        for k in range(2):
            e(f"v_mov_b32 v{129+8*k}, v{130+8*k}"); e(f"v_mov_b32 v{130+8*k}, v{132+8*k}"); e(f"v_mov_b32 v{131+8*k}, v{134+8*k}")
            e(f"ds_write_b128 v61, {vr(128+8*k)} offset:{L_B3+1024*k}")
    else:
        def gl2(b):
            for k in range(2):
                e(f"buffer_load_dwordx4 {vr(b+8*k)}, v52, {sr(sWS)}, s{sT3} offen offset:{128*k} sc1")
                e(f"buffer_load_dwordx4 {vr(b+4+8*k)}, v52, {sr(sWS)}, s{sT3} offen offset:{128*k+16} sc1")
        e(f"s_mov_b32 s{sSPIN}, {o['spin']}"); e("s_mov_b64 s[66:67], 0")
        gl2(128); wofr(); e(f"s_sleep {o['g1p']}"); gl2(144)
        g.lab("L_g1")
        e("s_waitcnt vmcnt(4)")
        tagcheck([129+2*i for i in range(8)], 58, 59)
        e("s_cbranch_scc0 L_g1_ok")
        e("s_mov_b64 exec, vcc")
        gl2(128)
        e("s_waitcnt vmcnt(4)")
        tagcheck([145+2*i for i in range(8)], 58, 59)
        e("s_andn2_b64 s[64:65], exec, vcc"); e("s_or_b64 s[66:67], s[66:67], s[64:65]")
        e("s_cmp_eq_u64 vcc, 0"); e("s_cbranch_scc1 L_g1_ok")
        e("s_mov_b64 exec, vcc")
        e(f"s_cmp_eq_u32 s{sSPIN}, {o['spin']-o['fthr']}"); e(f"s_cselect_b32 s{sT0}, {WS_F}, 0"); e(f"s_sub_u32 s{sT3}, s{sT3}, s{sT0}")
        gl2(144)
        e(f"s_sub_u32 s{sSPIN}, s{sSPIN}, 1"); e("s_cbranch_scc0 L_g1")
        g.lab("L_g1_ok")
        e("s_mov_b64 exec, -1")
        for k in range(2):
            for t in range(4): e(f"v_cndmask_b32 v{192+4*k+t}, v{128+8*k+2*t}, v{144+8*k+2*t}, s[66:67]")
            e(f"ds_write_b128 v61, {vr(192+4*k)} offset:{L_B3+1024*k}")
    e(f"s_or_b32 s{sT0}, s{sW}, s{sMEM}"); e("s_cbranch_scc1 L_nohint")
    if o['nrep'] < 64: e(f"s_mov_b64 exec, {hex((1<<o['nrep'])-1)}")
    e(f"buffer_store_dword v{vTAG}, v17, {sr(sWS)}, s45 offen {o.get('hst','sc1')}")
    e("s_mov_b64 exec, -1")
    g.lab("L_nohint")
    g.ts("G1")
    e("s_waitcnt lgkmcnt(0)")
    e("s_barrier")
    g.ts("B5")
    if o['wol'] and not B45:
        e(f"ds_read_b32 v103, v54 offset:{L_W}")
        def rd(k):
            e(f"ds_read_b64_tr_b16 {vr(64+4*k,2)}, v63 offset:{k*4096}")
            e(f"ds_read_b64_tr_b16 {vr(66+4*k,2)}, v63 offset:{k*4096+512}")
            e(f"ds_read_b128 {vr(160+4*k)}, v60 offset:{L_B3+k*1024}")
        for k in range(4): rd(k)
        for k in range(8):
            e(f"s_waitcnt lgkmcnt({0 if 'B5' in o.get('tson',()) else 3*min(3, 7-k)})")
            e(f"v_mfma_f32_16x16x32_bf16 {vr(96)}, {vr(64+4*k)}, {vr(160+4*k)}, {'0' if k==0 else vr(96)}")
            if k+4 < 8: rd(k+4)
    else:
        for k in range(8): e(f"ds_read_b128 {vr(160+4*k)}, v60 offset:{L_B3+k*1024}")
        e(f"ds_read_b32 v103, v54 offset:{L_W}")
        for k in range(8):
            e(f"s_waitcnt lgkmcnt({0 if 'B5' in o.get('tson',()) else 8-k})")
            e(f"v_mfma_f32_16x16x32_bf16 {vr(96)}, {vr(64+4*k)}, {vr(160+4*k)}, {'0' if k==0 else vr(96)}")
    e("s_waitcnt lgkmcnt(0)")
    g.nop(7)
    for k in range(4): e(f"v_mul_f32 v{96+k}, v{96+k}, v103")
    for k in range(4): e(f"v_add_f32_dpp v{104+k}, v{96+k}, v{96+k} row_ror:8 {DPP}")
    e(f"v_cndmask_b32 v108, v104, v106, s[{sM8}:{sM8+1}]"); e(f"v_cndmask_b32 v110, v105, v107, s[{sM8}:{sM8+1}]")
    if o.get('nop'): e("s_mov_b32 s44, 0x4000000")
    e(f"buffer_store_dwordx4 v[108:111], v55, {sr(sWS)}, s44 offen {o.get('pst','sc1')}")
    g.ts("ppub")
    e("s_branch L_fin")
    g.lab("L_w7")
    g.c("wave 7: final sum, gate, store")
    for i in range(4): e(f"s_mov_b64 s[{sMASK+2*i}:{sMASK+2*i+1}], -1")
    e(f"s_mov_b32 s{sSPIN}, {o['spin']}")
    e(f"s_cmp_eq_u32 s{sROLE}, 14"); e("s_cbranch_scc1 L_nob5")
    if B45: e("s_barrier")
    e("s_barrier")
    g.lab("L_nob5")
    e("s_cmp_ge_u32 s2, 224"); e("s_cbranch_scc1 L_fin")
    e("s_mov_b64 exec, 0xffff")
    NP = max(1, o['hp'])
    for k in range(NP):
        e(f"buffer_load_dword v{64+k}, v55, {sr(sWS)}, s20 offen {o.get('hpol','sc1')}")
        if NP > 1: e(f"s_sleep {o['hgap']}")
    g.lab("L_hp")
    for k in range(NP):
        e(f"s_waitcnt vmcnt({NP-1})")
        e(f"v_cmp_ne_u32 vcc, v{64+k}, v{vTAG}")
        if o.get('hk'):
            e(f"s_bcnt1_i32_b64 s{sT0}, vcc"); e(f"s_cmp_le_u32 s{sT0}, {o['hk']}"); e("s_cbranch_scc1 L_hp_ok")
        else:
            e("s_cbranch_vccz L_hp_ok")
        if o['sleep2']: e(f"s_sleep {o['sleep2']}")
        e(f"buffer_load_dword v{64+k}, v55, {sr(sWS)}, s20 offen {o.get('hpol','sc1')}")
    e(f"s_sub_u32 s{sSPIN}, s{sSPIN}, 1"); e("s_cbranch_scc0 L_hp")
    g.lab("L_hp_ok")
    g.ts("H")
    g.lab("L_g2")
    for i in range(4):
        e(f"s_mov_b64 exec, s[{sMASK+2*i}:{sMASK+2*i+1}]")
        e(f"buffer_load_dwordx4 {vr(128+4*i)}, v60, {sr(sWS)}, s{sT3} offen offset:{i*1024} {o.get('dpol','sc1')}")
    e("s_mov_b64 exec, -1")
    e("s_waitcnt vmcnt(0)")
    for i in range(4):
        e(f"v_cmp_ne_u32 vcc, v{129+4*i}, v{vTAG}"); e(f"v_cmp_ne_u32 s[{sMASK+2*i}:{sMASK+2*i+1}], v{131+4*i}, v{vTAG}")
        e(f"s_or_b64 s[{sMASK+2*i}:{sMASK+2*i+1}], s[{sMASK+2*i}:{sMASK+2*i+1}], vcc")
    e(f"s_or_b64 s[{sT0}:{sT1}], s[{sMASK}:{sMASK+1}], s[{sMASK+2}:{sMASK+3}]"); e(f"s_or_b64 vcc, s[{sMASK+4}:{sMASK+5}], s[{sMASK+6}:{sMASK+7}]")
    e(f"s_or_b64 vcc, vcc, s[{sT0}:{sT1}]")
    e("s_cbranch_scc0 L_g2_ok")
    if o.get('sleep3'): e(f"s_sleep {o['sleep3']}")
    e(f"s_sub_u32 s{sSPIN}, s{sSPIN}, 1"); e("s_cbranch_scc0 L_g2")
    g.lab("L_g2_ok")
    g.ts("G2")
    R = [128, 130, 136, 138]
    for r in R: e(f"v_add_f32 v{r}, v{r}, v{r+4}")
    for r in R: e(f"v_add_f32_dpp v{r}, v{r}, v{r} row_ror:8 {DPP}")
    for sw in ("16", "32"):
        for r in R: e(f"v_mov_b32 v{r+1}, v{r}")
        for r in R: e(f"v_permlane{sw}_swap_b32 v{r}, v{r+1}")
        for r in R: e(f"v_add_f32 v{r}, v{r}, v{r+1}")
    e("v_cvt_pk_bf16_f32 v129, v128, v130"); e("v_cvt_pk_bf16_f32 v137, v136, v138")
    for base in (128, 136): e(f"v_lshlrev_b32 v{base}, 16, v{base+1}"); e(f"v_and_b32 v{base+2}, 0xffff0000, v{base+1}")
    for base, gs in ((128, 22), (136, 23)): e(f"v_mul_f32 v{base}, s{gs}, v{base}"); e(f"v_mul_f32 v{base+2}, s{gs}, v{base+2}")
    e("v_cvt_pk_bf16_f32 v129, v128, v130"); e("v_cvt_pk_bf16_f32 v137, v136, v138")
    for base in (128, 136): e(f"v_lshlrev_b32 v{base}, 16, v{base+1}"); e(f"v_and_b32 v{base+2}, 0xffff0000, v{base+1}")
    e("v_add_f32 v128, v128, v136"); e("v_add_f32 v130, v130, v138")
    e("v_cvt_pk_bf16_f32 v128, v128, v130")
    e("s_mov_b64 exec, 0xff")
    e(f"buffer_store_dword v128, v54, {sr(sOUT)}, s21 offen {o.get('outpol','')}")
    e("s_cmp_lg_u32 s2, 0"); e("s_cbranch_scc1 L_fin")
    e("s_mov_b64 exec, 1")
    e(f"buffer_store_dword v{vTAG}, v54, {sr(sWS)}, 0 offen sc1")
    g.lab("L_fin")
    if o.get('holdat'):
        e("s_cmp_eq_u32 s88, 0"); e("s_cbranch_scc1 L_end")
        if o.get('holdbr') is not None: e(f"s_cmp_lg_u32 s{sBR}, {o['holdbr']}"); e("s_cbranch_scc1 L_end")
        g.lab("L_hold")
        e("s_memrealtime s[86:87]"); e("s_waitcnt lgkmcnt(0)"); e("s_sub_u32 s86, s86, s84"); e(f"s_cmp_lt_u32 s86, 3000"); e("s_cbranch_scc1 L_hold")
    if o['ts']:
        if o['ts'] == 2: e(f"s_cmp_lg_u32 s{sW}, 7"); e("s_cbranch_scc1 L_end")
        e("s_mov_b64 exec, -1")
        g.ts("end")
        e("s_waitcnt lgkmcnt(0)")
        for k in range(16): e(f"v_mov_b32 v{128+k}, s{TSREG[k]}" if k < g.nts else f"v_mov_b32 v{128+k}, 0")
        e(f"s_lshl_b32 s{sT0}, s2, 3"); e(f"s_add_u32 s{sT0}, s{sT0}, s{sW}"); e(f"s_lshl_b32 s{sT0}, s{sT0}, 6"); e(f"s_add_u32 s{sT0}, s{sT0}, {WS_TS}")
        e("v_mov_b32 v60, 0"); e("s_mov_b64 exec, 1")
        for k in range(1 if o['ts'] == 2 else 4): e(f"buffer_store_dwordx4 {vr(128+4*k)}, v60, {sr(sWS)}, s{sT0} offen offset:{16*k}")
        print("TS:", ",".join(g.tsn))
    g.lab("L_end")
    e("s_endpgm")
    g.lab("L_w0b")
    g.c("wave 0: q slice, publish, own K loads, gather")
    common2()
    e(f"s_mov_b32 s{sK}, s8"); e(f"s_mov_b32 s{sK+1}, s9")
    if not o.get('xin', 1):
        e(f"s_mov_b32 m0, {L_X}"); e(f"s_movk_i32 s{sT2}, 0x1000")
        for ii in range(4): e(f"buffer_load_dwordx4 v33, {sr(sX)}, 0 offen offset:{ii*1024} lds")
        e(f"s_mov_b32 m0, {L_X+4096}"); e("s_nop 0")
        for ii in range(3): e(f"buffer_load_dwordx4 v33, {sr(sX)}, s{sT2} offen offset:{ii*1024} lds")
        e(f"buffer_load_dword v{vTAG}, v34, {sr(sWS)}, 0 offen sc1")
    if B0 > 28: e("s_barrier")
    e(f"v_bfe_u32 v41, v{vL}, 2, 2")
    e(f"v_lshl_add_u32 v41, v{vB}, 3, v41"); e(f"v_lshlrev_b32 v41, 6, v41")
    e(f"v_lshl_add_u32 v41, v{vA}, 3, v41")
    e(f"v_and_b32 v43, 7, v{vL}"); e(f"v_mul_u32_u24 v42, 896, v43"); e(f"v_lshl_add_u32 v42, v{vB}, 4, v42")
    e(f"v_add_u32 v42, {L_X}, v42")
    e(f"s_lshl_b32 s{sT0}, s{sG}, 14"); e(f"s_lshl_b32 s{sT1}, s{sMEM}, 7"); e(f"s_add_u32 s{sT0}, s{sT0}, s{sT1}")
    e(f"s_add_u32 s{sT0}, s{sT0}, {WS_Q}"); e(f"s_add_u32 s{sT1}, s{sT0}, {WS_F}")
    e(f"v_lshlrev_b32 v43, 11, v43"); e(f"v_lshl_add_u32 v43, v{vB}, 4, v43")
    e(f"s_lshl_b32 s{sT3}, s{sG}, 3"); e(f"s_add_u32 s{sT3}, s{sT3}, s{sB}"); e(f"s_lshl_b32 s{sT3}, s{sT3}, 11"); e(f"s_add_u32 s{sT3}, s{sT3}, {WS_Q+WS_F}")
    e("s_waitcnt vmcnt(0)")
    g.ts("wq")
    e(f"v_and_b32 v{vTAG}, -8, v{vTAG}"); e(f"v_add_u32 v{vTAG}, 8, v{vTAG}")
    e("s_getreg_b32 s44, hwreg(HW_REG_XCC_ID, 0, 3)")
    steps = list(range(14)); first = True
    for ci in range(0, 14, 3):
        ch = steps[ci:ci+3]
        for k, s_ in enumerate(ch):
            a = 64 + 12*k
            for t in range(2):
                e(f"ds_read_b64_tr_b16 {vr(a+4*t,2)}, v41 offset:{L_WQ+s_*2048+t*32}")
                e(f"ds_read_b64_tr_b16 {vr(a+4*t+2,2)}, v41 offset:{L_WQ+s_*2048+256+t*32}")
            e(f"ds_read_b128 {vr(a+8)}, v42 offset:{s_*64}")
        e("s_waitcnt lgkmcnt(0)")
        for k, s_ in enumerate(ch):
            a = 64 + 12*k
            for t in range(2):
                e(f"v_mfma_f32_16x16x32_bf16 {vr(44+4*t)}, {vr(a+4*t)}, {vr(a+8)}, {'0' if first else vr(44+4*t)}")
            first = False
    e(f"v_or_b32 v53, s44, v{vTAG}"); e("v_mov_b32 v55, v53"); e(f"v_and_b32 v40, 8, v{vL}"); e("v_lshl_add_u32 v43, v40, 3, v43")
    e("s_mov_b32 vcc_lo, 0xff00ff00"); e("s_mov_b32 vcc_hi, 0xff00ff00"); e(f"s_mov_b32 s45, s{sT0}"); e("s_nop 0")
    for k in range(4): e(f"v_cndmask_b32 v{44+k}, v{44+k}, v{48+k}, vcc")
    e(f"v_cvt_pk_bf16_f32 v52, v44, v45"); e(f"v_cvt_pk_bf16_f32 v54, v46, v47")
    if o.get('noqst', 0) < 2: e(f"buffer_store_dwordx4 v[52:55], v43, {sr(sWS)}, s{sT1} offen {o['qpol']}")
    if not o['xc']: e(f"buffer_store_dwordx4 v[52:55], v43, {sr(sWS)}, s45 offen sc1")
    g.ts("qpub")
    for n in range(o['q0k']): kload(n)
    def qgather(own):
        e("s_mov_b32 s46, 1")
        if not o.get('noqw'):
            e(f"s_mov_b32 s{sSPIN}, {o['spin']}")
            g.lab("L_qg")
            e(f"buffer_load_dwordx4 v[64:67], v33, {sr(sWS)}, s{sT3} offen {o['ppol']}")
            e(f"buffer_load_dwordx4 v[68:71], v33, {sr(sWS)}, s{sT3} offen offset:1024 {o['ppol']}")
            e("s_waitcnt vmcnt(0)")
            for r in (65, 67, 69, 71): e(f"v_xor_b32 v{r+11}, v{r}, v{vTAG}")
            e("v_max3_u32 v60, v76, v78, v80"); e("v_max_u32 v60, v60, v82")
            e("v_cmp_lt_u32 vcc, 7, v60")
            e("s_cbranch_vccz L_qg_ok")
            e("s_mov_b64 exec, vcc")
            e(f"s_cmp_le_u32 s{sSPIN}, {o['spin']-o['fthr']}"); e(f"s_cselect_b32 s{sT0}, {WS_F}, 0"); e(f"s_xor_b32 s{sT3}, s{sT3}, s{sT0}")
            e(f"s_cmp_lg_u32 s{sSPIN}, {o['spin']-o['fthr']}"); e("s_cbranch_scc1 L_qg_n")
            g.c("slices missing for a long time: write own slice through; from now on rounds alternate between the two copies")
            e("s_mov_b64 exec, -1")
            if own: e(f"buffer_store_dwordx4 v[52:55], v43, {sr(sWS)}, s45 offen sc1")
            else: e("v_mov_b32 v61, 1"); e(f"ds_write_b32 v34, v61 offset:{L_RQ}")
            e("s_mov_b64 exec, vcc")
            g.lab("L_qg_n")
            e(f"s_sub_u32 s{sSPIN}, s{sSPIN}, 1"); e("s_cbranch_scc0 L_qg")
            g.lab("L_qg_ok")
            e("s_mov_b64 exec, -1")
            e("v_min3_u32 v60, v65, v67, v69"); e("v_max3_u32 v61, v65, v67, v69"); e("v_min_u32 v60, v60, v71"); e("v_max_u32 v61, v61, v71")
            e("v_cmp_ne_u32 vcc, v60, v53"); e(f"v_cmp_ne_u32 s[{sT0}:{sT1}], v61, v53"); e(f"s_or_b64 vcc, vcc, s[{sT0}:{sT1}]")
            e("s_cbranch_scc0 L_qg_loc")
            g.c("some member runs on another die: its reads need the written-through copies")
            if own: e(f"buffer_store_dwordx4 v[52:55], v43, {sr(sWS)}, s45 offen sc1")
            e("s_mov_b32 s46, 2")
            g.lab("L_qg_loc")
        if not o['xc']: e("s_mov_b32 s46, 2")
        e(f"v_lshlrev_b32 v60, 3, v{vL}")
        e(f"ds_write2_b32 v60, v64, v66 offset0:{L_QL//4} offset1:{L_QL//4+1}")
        e(f"ds_write2_b32 v60, v68, v70 offset0:{L_QL//4+128} offset1:{L_QL//4+129}")
        e(f"v_or_b32 v61, s46, v{vTAG}" if o['e1'] else "v_mov_b32 v61, s46"); e(f"ds_write_b32 v34, v61 offset:{L_F}")
        g.ts("qgot")
    if not o['qp']: qgather(True)
    e("s_branch L_kq0")

    g.lab("L_codeend")
    g.L += ['.section .rodata,"a"', ".p2align 6", f".amdhsa_kernel {KN}",
            "  .amdhsa_next_free_vgpr 256", "  .amdhsa_next_free_sgpr 102", "  .amdhsa_accum_offset 256",
            "  .amdhsa_group_segment_fixed_size 0", "  .amdhsa_kernarg_size 112", "  .amdhsa_user_sgpr_count 2",
            "  .amdhsa_user_sgpr_kernarg_segment_ptr 1", "  .amdhsa_system_sgpr_workgroup_id_x 1",
            "  .amdhsa_float_denorm_mode_32 3", ".end_amdhsa_kernel"]
    return "\n".join(g.L) + "\n"

if __name__ == "__main__":
    from lint import lint
    from build import build
    out = sys.argv[1]; opts = eval("dict(" + (sys.argv[2] if len(sys.argv) > 2 else "") + ")")
    s = gen(**opts)
    open(out, "w").write(s)
    for p in lint(s): print("LINT:", p)
    build(out)
```

```python
import sys, math, struct
sys.path.insert(0, "gen"); sys.path.insert(0, "tools")
KN = "gated_mix__sliding_block_cached__sliding_block_cached__decode_kernel"
HEADER = open("gated_mix__sliding_block_cached__sliding_block_cached__decode.s.ref").read().split("; Override launch")[0]

WS_Q = 0x10000
WS_S = 0x60000
WS_H = 0x70000
WS_O = 0x80000
WS_F = 0x100000
WS_P = 0x200000
WS_TS = 0x400000
WS_SIZE = 0x800000
L_QL = 0
L_SM = 1024
L_SL = 1088
L_W = 1152
L_F = 1216
L_CNT = 1220
L_RQ = 1228
L_CN2 = 1224
L_B3 = 2048
L_WQ = 10240
L_X = 38912
L_WO = 46080
L_OR = 78848
LDS_BYTES = 95232
TSREG = [84,86,88,90,92,94,96,98,100,8,10,12,14,16,18,20]

DOC = '''; ---------------------------------------------------------------------------------------------
; Workgroup id -> kv head = id&7, member = (id>>3)&15 (batch = member>>1, key half = member&1),
; branch = id>>7. The 16 members of a (branch, kv head) group exchange data through d_ws.
;     then gathers the 512 q columns of its own batch into LDS. All waves stream K meanwhile.
;  4. 14 members each take (head, 64 output columns): o @ wo tile by MFMA, the two key halves
;     merged with their softmax weights, f32 partials published.
; Hand-offs: 8-byte {data, tag} granules, tag = f(word 0 of d_ws at entry); word 0 moves on at the
; ---------------------------------------------------------------------------------------------'''

def f2u(x): return struct.unpack("<I", struct.pack("<f", x))[0]
def vr(a, n=4): return f"v[{a}:{a+n-1}]"
def sr(a, n=4): return f"s[{a}:{a+n-1}]"
DPP = "row_mask:0xf bank_mask:0xf"

class G:
    def __init__(s, **o):
        s.L = []
        s.o = dict(round_s=1, ts=0, pol='nt', spin=1<<16, codepf=1, sleep1=0, sleep2=0, b0at=28, pre=2, fthr=256,
                   xm=0x100, xa=1, xb=0, kv=0, qsl=2, ssl=1, hp=0, hgap=2, skip=(6,7), wosw=1, bx=1, pret=0, g1p=0, wol=1, imm=0, nrep=8, xc=1, tw=-1, qp=0, pw=1, wt=1, tlb=0, cpf2=0, q0k=32, pk=1, gate1=0, vpf=3, spf=0, sdel=0, e1=1, b45=1, lst=1, spol='', ppol='sc1 nt', qpol='', opol='')
        s.o.update(o); s.nts = 0; s.tsn = []
    def e(s, t): s.L.append("  " + t)
    def c(s, t): s.L.append("  ; " + t)
    def lab(s, t): s.L.append(t + ":")
    def nop(s, n):
        while n > 0:
            k = min(n, 16); s.e(f"s_nop {k-1}"); n -= k
    def ts(s, name):
        if s.o.get('holdat') == name:
            s.e("s_memrealtime s[84:85]"); s.e("s_mov_b32 s88, 1")
        if not s.o['ts'] or name not in s.o['tson']: return
        k = s.nts; s.nts += 1
        r = TSREG[k]; s.tsn.append(name)
        s.e(f"s_memrealtime s[{r}:{r+1}]   ; ts {name}")

def gen(**opts):
    g = G(**opts); e = g.e; o = g.o; POL = o['pol']
    sK, sV, sWQ, sWO, sX, sGW, sWS, sOUT = 24, 28, 32, 36, 40, 44, 48, 52
    sW = 56; sR = 57; sT0, sT1, sT2, sT3 = 58, 59, 60, 61
    sKVH, sBR, sMEM, sB, sG = 3, 4, 5, 6, 7
    sMASK = 64; sM8 = 80; sSEL0, sSEL1 = 82, 83; sSPIN = 62; sC = 63
    sROLE = 32
    sH3 = 33; sNL = 34
    vL = 1; vKO = 2; vVO = 3; vTAG = 4; vA = 5; vB = 6; vC = 7
    vQB = 8; vS = 16; vPV = 64; vK = 128
    vT = 40; vM0 = 52; vL0 = 53; vAL = 54; vORA = 56; vORB = 57; vSA = 58; vF = 59
    vACC = 112; vP8 = 120
    BS = 131072
    assert not (o['kv'] and o['wt']), "wt needs kv=0"
    B45 = o['b45'] and o['wol']

    def tagcheck(tags, a, b_):
        if len(tags) == 2:
            e(f"v_cmp_ne_u32 vcc, v{tags[0]}, v{vTAG}"); e(f"v_cmp_ne_u32 s[{sT0}:{sT1}], v{tags[1]}, v{vTAG}")
        else:
            e(f"v_min3_u32 v{a}, v{tags[0]}, v{tags[1]}, v{tags[2]}"); e(f"v_max3_u32 v{b_}, v{tags[0]}, v{tags[1]}, v{tags[2]}")
            i = 3
            while i+1 < len(tags):
                e(f"v_min3_u32 v{a}, v{a}, v{tags[i]}, v{tags[i+1]}"); e(f"v_max3_u32 v{b_}, v{b_}, v{tags[i]}, v{tags[i+1]}"); i += 2
            if i < len(tags):
                e(f"v_min_u32 v{a}, v{a}, v{tags[i]}"); e(f"v_max_u32 v{b_}, v{b_}, v{tags[i]}")
            e(f"v_cmp_ne_u32 vcc, v{a}, v{vTAG}"); e(f"v_cmp_ne_u32 s[{sT0}:{sT1}], v{b_}, v{vTAG}")
        e(f"s_or_b64 vcc, vcc, s[{sT0}:{sT1}]")
    def poll(name, loads, tags, a, b_, sleep=0, first=None, gate=False):
        e(f"s_mov_b32 s{sSPIN}, {o['spin']}")
        if first:
            loads(); first(); e(f"s_branch L_{name}_w")
        g.lab(f"L_{name}")
        loads()
        g.lab(f"L_{name}_w")
        e("s_waitcnt vmcnt(0)")
        tagcheck(tags, a, b_)
        e(f"s_cbranch_scc0 L_{name}_ok")
        e("s_mov_b64 exec, vcc")
        if gate:
            g.lab(f"L_{name}_g")
            e(f"ds_read_b32 v{a}, v62 offset:{L_CNT}"); e("s_waitcnt lgkmcnt(0)"); e(f"v_readfirstlane_b32 s{sT0}, v{a}")
            e(f"s_cmp_eq_u32 s{sT0}, 8"); e(f"s_cbranch_scc1 L_{name}_g")
        if sleep: e(f"s_sleep {sleep}")
        e(f"s_cmp_le_u32 s{sSPIN}, {o['spin']-o['fthr']}"); e(f"s_cselect_b32 s{sT0}, {WS_F}, 0"); e(f"s_xor_b32 s{sT3}, s{sT3}, s{sT0}")
        e(f"s_sub_u32 s{sSPIN}, s{sSPIN}, 1"); e(f"s_cbranch_scc0 L_{name}")
        g.lab(f"L_{name}_ok")
        e("s_mov_b64 exec, -1")
    def srd(d, p, n):
        e(f"s_mov_b32 s{d}, s{p}"); e(f"s_mov_b32 s{d+1}, s{p+1}"); e(f"s_mov_b32 s{d+2}, {n}"); e(f"s_mov_b32 s{d+3}, 0x20000")
    def kreg(n): return vK + 4*(n % 16) if o['kv'] else vK + 4*n
    def vreg(unit): return vK + 64 + 32*(unit % 2) if o['kv'] else vK + 32*unit
    def kload(n):
        u, hf = n//2, n % 2
        if o['imm']:
            e(f"buffer_load_dwordx4 {vr(kreg(n))}, v{vKO}, {sr(sK)}, s{sR if u < 8 else 43} offen offset:{(u&7)*512+hf*256} {POL}")
            return
        e(f"s_xor_b32 s47, s{sR}, {(u&7)*512+hf*256+(u>>3)*BS}")
        e(f"buffer_load_dwordx4 {vr(kreg(n))}, v{vKO}, {sr(sK)}, s47 offen {o.get('kvpol', POL)}")
    def vload(unit, j):
        blk, hf = unit//2, unit % 2
        if o['imm']:
            e(f"buffer_load_dwordx4 {vr(vreg(unit)+4*j)}, v{vVO}, {sr(sV)}, s{sR if blk == 0 else 43} offen offset:{j*512+hf*256} {POL}")
            return
        e(f"s_xor_b32 s47, s{sR}, {j*512+hf*256+blk*BS}")
        e(f"buffer_load_dwordx4 {vr(vreg(unit)+4*j)}, v{vVO}, {sr(sV)}, s47 offen {o.get('kvpol', POL)}")

    g.L.append(HEADER.rstrip("\n"))
    g.L.append(f"; @launch grid=(256,1,1) block=(512,1,1) lds={LDS_BYTES}")
    g.L.append('.amdgcn_target "amdgcn-amd-amdhsa--gfx950"')
    g.L.append(DOC)
    g.L.append(".text"); g.L.append(f".globl {KN}"); g.L.append(".p2align 8"); g.L.append(f".type {KN},@function"); g.lab(KN)
    e("s_cmp_ge_u32 s2, 256"); e("s_cbranch_scc1 L_end")
    if o.get('holdat'): e("s_mov_b32 s88, 0")
    g.ts("start")
    if o['codepf'] == 1:
        g.c("pull the kernel's code into L2: one dword per 128 B line")
        e(f"s_getpc_b64 s[{sM8}:{sM8+1}]")
        g.lab("L_pc")
        e(f"v_lshlrev_b32 v35, 7, v0"); e("v_min_u32 v35, L_codeend-L_pc-4, v35")
        e(f"global_load_dword v36, v35, s[{sM8}:{sM8+1}]")
    e(f"s_lshr_b32 s{sBR}, s2, 7")
    e(f"s_mul_i32 s{sT0}, s{sBR}, 40")
    e(f"s_add_u32 s{sT2}, s0, s{sT0}"); e(f"s_addc_u32 s{sT3}, s1, 0")
    e(f"s_load_dwordx8 s[8:15], s[{sT2}:{sT3}], 8")
    e(f"s_load_dwordx2 s[{sX}:{sX+1}], s[0:1], 0")
    e(f"s_load_dwordx2 s[{sWS}:{sWS+1}], s[0:1], 104")
    e("s_load_dwordx4 s[20:23], s[0:1], 80")
    e(f"v_lshrrev_b32 v{vA}, 6, v0")
    e(f"v_and_b32 v{vL}, 63, v0")
    e(f"v_readfirstlane_b32 s{sW}, v{vA}")
    e(f"s_and_b32 s{sKVH}, s2, 7")
    e(f"s_bfe_u32 s{sMEM}, s2, 0x40003")
    e(f"s_lshr_b32 s{sB}, s{sMEM}, 1")
    assert o['xa'] == 1 and o['xb'] == 0 and o['xm'] == 0x100 and o['bx'] == 1
    e(f"s_lshl_b32 s{sT0}, s{sB}, 3"); e(f"s_or_b32 s{sT0}, s{sT0}, s{sKVH}"); e(f"s_lshl_b32 s{sT0}, s{sT0}, 3")
    e(f"s_and_b32 s{sT1}, s{sMEM}, 1"); e(f"s_or_b32 s{sT0}, s{sT0}, s{sT1}"); e(f"s_or_b32 s{sT0}, s{sT0}, 6"); e(f"s_lshl_b32 s{sT0}, s{sT0}, 4")
    e(f"s_xor_b32 s{sT1}, s{sW}, s{sMEM}"); e(f"s_and_b32 s{sT1}, s{sT1}, 7"); e(f"s_or_b32 s{sT0}, s{sT0}, s{sT1}"); e(f"s_lshl_b32 s{sT0}, s{sT0}, 14")
    e(f"s_and_b32 s{sR}, s{sMEM}, 8"); e(f"s_lshl_b32 s{sR}, s{sR}, 6"); e(f"s_and_b32 s{sT1}, s{sW}, 1"); e(f"s_or_b32 s{sR}, s{sR}, s{sT1}"); e(f"s_lshl_b32 s{sR}, s{sR}, 8")
    e(f"v_bfe_u32 v{vA}, v{vL}, 2, 2"); e(f"v_lshrrev_b32 v{vB}, 4, v{vL}")
    e(f"v_lshl_add_u32 v{vKO}, v{vA}, 6, v{vB}")
    e(f"v_and_b32 v{vA}, 3, v{vL}"); e(f"v_lshl_add_u32 v{vKO}, v{vKO}, 2, v{vA}")
    e(f"v_lshl_add_u32 v{vKO}, v{vKO}, 4, s{sT0}")
    e(f"s_mov_b32 s{sK+2}, 0x8000000"); e(f"s_mov_b32 s{sK+3}, 0x20000")
    e(f"s_mov_b32 s{sWQ+2}, 3670016"); e(f"s_mov_b32 s{sWQ+3}, 0x20000")
    e(f"s_lshl_b32 s{sT2}, s{sKVH}, 10")
    e(f"s_cmp_eq_u32 s{sW}, 0"); e("s_cbranch_scc0 L_notw0")
    g.c("wave 0: wq slice and x into LDS")
    e(f"v_lshrrev_b32 v32, 2, v{vL}"); e(f"v_lshl_add_u32 v32, v32, 9, v{vA}"); e(f"s_lshl_b32 s{sT1}, s{sMEM}, 6"); e(f"s_add_u32 s{sT2}, s{sT2}, s{sT1}")
    e(f"v_lshlrev_b32 v32, 4, v32"); e(f"v_mov_b32 v34, 0"); e(f"v_mov_b32 v35, 0"); e(f"s_mov_b32 m0, {L_WQ}")
    e(f"ds_write_b64 v34, v[34:35] offset:{L_F}")
    e(f"ds_write_b32 v34, v34 offset:{L_CN2}")
    e("s_waitcnt lgkmcnt(0)")
    g.ts("ka")
    e(f"s_mov_b32 s{sWQ}, s12"); e(f"s_mov_b32 s{sWQ+1}, s13")
    if o.get('xin', 1):
        e(f"v_lshlrev_b32 v33, 4, v{vL}")
        e(f"s_mov_b32 s{sWS+2}, {WS_SIZE}"); e(f"s_mov_b32 s{sWS+3}, 0x20000")
        e(f"s_mov_b32 s{sX+2}, 7168"); e(f"s_mov_b32 s{sX+3}, 0x20000")
        e(f"s_mov_b32 m0, {L_X}"); e(f"s_movk_i32 s{sT1}, 0x1000")
        for ii in range(4): e(f"buffer_load_dwordx4 v33, {sr(sX)}, 0 offen offset:{ii*1024} lds")
        e(f"s_mov_b32 m0, {L_X+4096}")
        e(f"buffer_load_dword v{vTAG}, v34, {sr(sWS)}, 0 offen sc1")
        for ii in range(3): e(f"buffer_load_dwordx4 v33, {sr(sX)}, s{sT1} offen offset:{ii*1024} lds")
        e(f"s_mov_b32 m0, {L_WQ}"); e("s_nop 0")
    B0 = o['b0at']
    g.lab("L_wql")
    e(f"buffer_load_dwordx4 v32, {sr(sWQ)}, s{sT2} offen {POL} lds")
    e("s_add_u32 m0, m0, 1024"); e(f"s_add_u32 s{sT2}, s{sT2}, 131072")
    if 0 < B0 < 28:
        e(f"s_cmp_lg_u32 m0, {L_WQ+1024*B0}"); e("s_cbranch_scc1 L_wqn"); e("s_barrier"); g.lab("L_wqn")
    e(f"s_cmp_lt_u32 m0, {L_WQ+1024*28}"); e("s_cbranch_scc1 L_wql")
    if B0 == 28: e("s_barrier")
    e("s_branch L_w0b")
    g.lab("L_notw0")
    assert o['vpf'] == 3
    if o.get('tw', 4) < 0:
        g.c("wave 1: touch this member's 28 rows of column block 3 (the block whose owners would otherwise queue 448 requests on one path)")
        e(f"v_lshlrev_b32 v37, 13, v{vL}")
        e(f"s_mul_i32 s{sT1}, s{sMEM}, {28*8192}"); e(f"s_add_u32 s{sT2}, s{sT2}, s{sT1}"); e(f"s_add_u32 s{sT2}, s{sT2}, 384")
        e(f"s_cmp_gt_u32 s{sW}, 1")
    else:
        g.c("waves 1..4: touch 7 rows x 1 KB each of the group's wq block (rows 28*member ..), so that the strided slice loads meet them in L2")
        e(f"v_lshrrev_b32 v37, 3, v{vL}"); e(f"v_and_b32 v38, 7, v{vL}"); e("v_lshl_add_u32 v37, v37, 6, v38"); e("v_lshlrev_b32 v37, 7, v37")
        TW = o.get('tw', 4)
        e(f"s_mul_i32 s{sT1}, s{sMEM}, {TW}"); e(f"s_add_u32 s{sT1}, s{sT1}, s{sW}"); e(f"s_mul_i32 s{sT1}, s{sT1}, {7*8192}"); e(f"s_add_u32 s{sT2}, s{sT2}, s{sT1}")
        e(f"s_add_u32 s{sT2}, s{sT2}, {((448-112*TW)-7)*8192 & 0xffffffff}")
        e(f"s_cmp_gt_u32 s{sW}, {TW}")
    e("s_waitcnt lgkmcnt(0)")
    g.ts("ka")
    e(f"s_mov_b32 s{sK}, s8"); e(f"s_mov_b32 s{sK+1}, s9")
    e("s_cbranch_scc1 L_novpf")
    e(f"s_mov_b32 s{sWQ}, s12"); e(f"s_mov_b32 s{sWQ+1}, s13")
    e("s_mov_b64 exec, 0xfffffff" if o.get('tw', 4) < 0 else "s_mov_b32 exec_hi, 0xffffff")
    e(f"buffer_load_dword v38, v37, {sr(sWQ)}, s{sT2} offen {POL}")
    e("s_mov_b64 exec, -1")
    g.lab("L_novpf")
    for n in range(o['pre']): kload(n)
    if o['codepf'] == 2:
        g.c("waves 5,6: pull the rest of the kernel's code into L2: one dword per 128 B line")
        e(f"s_sub_u32 s{sT1}, s{sW}, 5"); e(f"s_cmp_gt_u32 s{sT1}, 1"); e("s_cbranch_scc1 L_nopf")
        e(f"s_getpc_b64 s[{sM8}:{sM8+1}]")
        g.lab("L_pc")
        e(f"v_lshlrev_b32 v35, 7, v0"); e(f"v_subrev_u32 v35, {5*8192}, v35"); e("v_min_u32 v35, L_codeend-L_pc-4, v35")
        e(f"global_load_dword v36, v35, s[{sM8}:{sM8+1}]")
        g.lab("L_nopf")
    g.ts("kpre")
    if B0 > 0: e("s_barrier")
    g.ts("b0")
    for n in range(o['pre'], 32): kload(n)
    g.lab("L_kq0")
    if B0 == 0: e("s_barrier")
    def common2():
        e(f"s_lshl_b32 s{sG}, s{sBR}, 3"); e(f"s_add_u32 s{sG}, s{sG}, s{sKVH}")
        e(f"v_lshlrev_b32 v33, 4, v{vL}")
        e(f"s_mov_b32 s{sWS+2}, {WS_SIZE}"); e(f"s_mov_b32 s{sWS+3}, 0x20000")
        e(f"s_mov_b32 s{sX+2}, 7168"); e(f"s_mov_b32 s{sX+3}, 0x20000")
    common2()
    e(f"v_readfirstlane_b32 s{sT0}, v{vKO}"); e(f"v_and_b32 v{vC}, 15, v{vL}"); e(f"v_lshl_add_u32 v{vVO}, v{vB}, 8, v{vC}")
    e(f"s_cmp_lg_u32 s{sW}, 7")
    e(f"v_lshl_add_u32 v{vVO}, v{vVO}, 4, s{sT0}")
    e("s_cbranch_scc1 L_nog7")
    srd(sGW, 20, 896)
    e(f"s_mul_i32 s{sT0}, s{sKVH}, 896")
    e(f"buffer_load_dwordx4 v[16:19], v33, {sr(sX)}, s{sT0} offen")
    e(f"buffer_load_dwordx4 v[20:23], v33, {sr(sGW)}, 0 offen")
    g.lab("L_nog7")
    srd(sV, 10, 0x8000000)
    g.ts("kiss")
    srd(sWO, 14, 3670016); srd(sOUT, 22, 7168)
    g.c("output-projection role of this member (14 = none), constants")
    s0, s1 = o['skip']
    e(f"s_mov_b32 s{sROLE}, s{sMEM}")
    e(f"s_cmp_gt_u32 s{sMEM}, {s1}"); e(f"s_cselect_b32 s{sT0}, 2, 0"); e(f"s_sub_u32 s{sROLE}, s{sROLE}, s{sT0}")
    e(f"s_sub_u32 s{sT0}, s{sMEM}, {s0}"); e(f"s_cmp_lt_u32 s{sT0}, 2"); e(f"s_cselect_b32 s{sROLE}, 14, s{sROLE}")
    e(f"s_cmp_ge_u32 s{sROLE}, 7"); e(f"s_cselect_b32 s{sH3}, 1, 0"); e(f"s_mul_i32 s{sT0}, s{sH3}, 7"); e(f"s_sub_u32 s{sNL}, s{sROLE}, s{sT0}")
    def wo_setup(nper, va, vb, vc, vd, p0=0):
        e(f"s_lshl_b32 s{sT0}, s{sKVH}, 9"); e(f"s_lshl_b32 s{sT1}, s{sH3}, 8"); e(f"s_add_u32 s{sT0}, s{sT0}, s{sT1}"); e(f"s_mul_i32 s{sT1}, s{sW}, {8*nper}"); e(f"s_add_u32 s{sT0}, s{sT0}, s{sT1}")
        if p0: e(f"s_add_u32 s{sT0}, s{sT0}, {8*p0}")
        e(f"s_mul_i32 s{sT0}, s{sT0}, 896"); e(f"s_lshl_b32 s{sT1}, s{sNL}, 7"); e(f"s_add_u32 s35, s{sT0}, s{sT1}")
        e(f"s_cmp_eq_u32 s{sROLE}, 14"); e(f"s_cselect_b32 s35, 0x4000000, s35")
        if o.get('nowo'): e(f"s_mov_b32 s35, 0x4000000")
        e(f"v_lshrrev_b32 v{va}, 3, v{vL}"); e(f"v_mul_u32_u24 v{vb}, 896, v{va}"); e(f"v_and_b32 v{vc}, 7, v{vL}")
        e(f"v_and_b32 v{va}, 2, v{va}"); e(f"v_xor_b32 v{vc}, v{vc}, v{va}"); e(f"v_xor_b32 v{vd}, 4, v{vc}")
        e(f"v_lshl_add_u32 v{va}, v{vc}, 4, v{vb}"); e(f"v_lshl_add_u32 v{vb}, v{vd}, 4, v{vb}")
    def wo_issue(nper, va, vb, p0=0):
        e(f"s_mul_i32 s46, s{sW}, {1024*nper}")
        for ii in range(nper):
            e(f"s_add_u32 m0, s46, {L_WO+(p0+ii)*1024}")
            e(f"s_add_u32 s47, s35, {ii*8*896}")
            e(f"buffer_load_dwordx4 v{vb if ii%2 else va}, {sr(sWO)}, s47 offen {POL} lds")
    WE = {0: 4, 1: 0, 2: 2}[o['wol']]
    WLATE = (32 - 8*WE)//4
    NWO = WE
    if o.get('nodma'): NWO = 0
    elif WE:
        wo_setup(WE, 60, 61, 62, 63); wo_issue(WE, 60, 61)
    for v in range(8):
        pat = (0x11 << (v & 3)) << (8*(v >> 2)); pat |= pat << 16
        e(f"s_mov_b32 s{sMASK+2*v}, 0x{pat:08x}"); e(f"s_mov_b32 s{sMASK+2*v+1}, 0x{pat:08x}")
    e(f"s_mov_b32 s{sSEL0}, 0x05040100"); e(f"s_mov_b32 s{sSEL1}, 0x07060302")
    e(f"s_mov_b32 s{sC}, 0x{f2u(math.log2(math.e)/16):08x}")
    e(f"s_mov_b32 s{sM8}, 0xff00ff00"); e(f"s_mov_b32 s{sM8+1}, 0xff00ff00")
    if o['qp']:
        e(f"s_cmp_lg_u32 s{sW}, {o['qp']}"); e("s_cbranch_scc1 L_notqp")
        e(f"s_lshl_b32 s{sT3}, s{sG}, 3"); e(f"s_add_u32 s{sT3}, s{sT3}, s{sB}"); e(f"s_lshl_b32 s{sT3}, s{sT3}, 11"); e(f"s_add_u32 s{sT3}, s{sT3}, {WS_Q+WS_F}")
        e("s_getreg_b32 s44, hwreg(HW_REG_XCC_ID, 0, 3)")
        e(f"s_waitcnt vmcnt({32 + NWO})")
        e(f"v_and_b32 v{vTAG}, -8, v{vTAG}"); e(f"v_add_u32 v{vTAG}, 8, v{vTAG}"); e(f"v_or_b32 v53, s44, v{vTAG}")
        qgather(False)
        e("s_branch L_b2")
        g.lab("L_notqp")
    if o['e1']:
        e(f"s_cmp_lg_u32 s{sW}, 7"); e("s_cbranch_scc1 L_b2")
        e(f"s_waitcnt vmcnt({NWO})")
    else:
        e(f"s_cmp_eq_u32 s{sW}, 0"); e("s_cbranch_scc1 L_b2")
        e(f"s_waitcnt vmcnt({32 - o['pre'] + NWO})")
        e(f"v_and_b32 v{vTAG}, -8, v{vTAG}"); e(f"v_add_u32 v{vTAG}, 8, v{vTAG}")
        e(f"s_cmp_lg_u32 s{sW}, 7"); e("s_cbranch_scc1 L_b2")
    g.c("wave 7: gate g -> s22, 1-g -> s23 (bf16-rounded like the reference)")
    e(f"v_cmp_gt_u32 vcc, 56, v{vL}"); e("v_mov_b32 v24, 0"); e("s_nop 0")
    for k in range(4): e(f"v_cndmask_b32 v{16+k}, 0, v{16+k}, vcc")
    for k in range(4):
        e(f"v_lshlrev_b32 v25, 16, v{16+k}"); e(f"v_and_b32 v26, 0xffff0000, v{16+k}")
        e(f"v_lshlrev_b32 v27, 16, v{20+k}"); e(f"v_and_b32 v28, 0xffff0000, v{20+k}")
        e("v_mul_f32 v25, v25, v27"); e("v_mul_f32 v26, v26, v28")
        e("v_cvt_pk_bf16_f32 v25, v25, v26")
        e("v_lshlrev_b32 v26, 16, v25"); e("v_and_b32 v25, 0xffff0000, v25")
        e("v_add_f32 v24, v24, v26"); e("v_add_f32 v24, v24, v25")
    for dpp in ("quad_perm:[1,0,3,2]", "quad_perm:[2,3,0,1]", "row_ror:4", "row_ror:8"):
        e("s_nop 1"); e(f"v_add_f32_dpp v24, v24, v24 {dpp} {DPP}")
    for sw in ("16", "32"):
        e("v_mov_b32 v25, v24"); e("s_nop 1"); e(f"v_permlane{sw}_swap_b32 v24, v25"); e("v_add_f32 v24, v24, v25")
    e("v_cvt_pk_bf16_f32 v24, v24, v24"); e("v_and_b32 v24, 0xffff0000, v24")
    e(f"v_mul_f32 v24, 0x{f2u(-math.log2(math.e)):08x}, v24"); e("v_exp_f32 v24, v24"); e("s_nop 0")
    e("v_add_f32 v24, 1.0, v24"); e("v_rcp_f32 v24, v24"); e("s_nop 0")
    e("v_cvt_pk_bf16_f32 v24, v24, v24"); e("v_and_b32 v24, 0xffff0000, v24")
    e("v_sub_f32 v25, 1.0, v24"); e("v_cvt_pk_bf16_f32 v25, v25, v25"); e("v_and_b32 v25, 0xffff0000, v25")
    e("v_readfirstlane_b32 s22, v24"); e("v_readfirstlane_b32 s23, v25")
    g.lab("L_b2")
    e(f"v_bfe_u32 v{vC}, v{vL}, 2, 1"); e(f"v_lshlrev_b32 v{vA}, 9, v{vC}")
    e(f"v_lshl_add_u32 v{vA}, v{vB}, 6, v{vA}")
    e(f"v_and_b32 v60, 3, v{vL}"); e(f"v_lshl_add_u32 v{vA}, v60, 4, v{vA}")
    e(f"s_and_b32 s{sT0}, s{sR}, 0x100"); e(f"v_add_u32 v{vA}, s{sT0}, v{vA}"); e(f"v_xor_b32 v60, 0x100, v{vA}")
    e("v_mov_b32 v62, 0"); e("s_mov_b32 s42, 1")
    if not o.get('noqw'):
        e(f"s_mov_b32 s{sSPIN}, 0x400000")
        if o['qp']:
            e(f"s_cmp_lg_u32 s{sW}, 0"); e("s_cbranch_scc1 L_qwait")
            g.lab("L_q0w")
            e(f"ds_read_b32 v61, v62 offset:{L_F}"); e(f"ds_read_b32 v63, v62 offset:{L_RQ}"); e("s_waitcnt lgkmcnt(0)")
            e("v_readfirstlane_b32 s42, v61"); e(f"v_readfirstlane_b32 s{sT0}, v63")
            e(f"s_and_b32 s{sT1}, s42, 2"); e(f"s_or_b32 s{sT0}, s{sT0}, s{sT1}"); e("s_cbranch_scc1 L_q0s")
            e("s_cmp_lg_u32 s42, 0"); e("s_cbranch_scc1 L_qready")
            e(f"s_sleep {o['qsl']}"); e(f"s_sub_u32 s{sSPIN}, s{sSPIN}, 1"); e("s_cbranch_scc0 L_q0w")
            g.lab("L_q0s")
            e(f"buffer_store_dwordx4 v[52:55], v43, {sr(sWS)}, s45 offen sc1")
            e("s_waitcnt vmcnt(0)")
        g.lab("L_qwait")
        e(f"ds_read_b32 v61, v62 offset:{L_F}"); e("s_waitcnt lgkmcnt(0)"); e(f"v_readfirstlane_b32 s42, v61"); e(f"s_cmp_lg_u32 s42, 0"); e("s_cbranch_scc1 L_qready")
        e(f"s_sleep {o['qsl']}"); e(f"s_sub_u32 s{sSPIN}, s{sSPIN}, 1"); e("s_cbranch_scc0 L_qwait")
        g.lab("L_qready")
        if o['e1']: e(f"v_and_b32 v{vTAG}, -8, v61"); e("s_and_b32 s42, s42, 7")
    if o.get('b2'): e("s_barrier")
    g.ts("B2")
    g.c("q fragments; QK^T, softmax, P.V")
    e(f"ds_read_b128 {vr(vQB)}, v{vA} offset:{L_QL}")
    e(f"ds_read_b128 {vr(vQB+4)}, v60 offset:{L_QL}")
    e("s_waitcnt lgkmcnt(0)")
    def xred(r, t, op):
        for sw in ("16", "32"):
            e(f"v_mov_b32 v{t}, v{r}"); e("s_nop 1"); e(f"v_permlane{sw}_swap_b32 v{r}, v{t}"); e(f"{op} v{r}, v{r}, v{t}")
    def soft(blk):
        if o.get('nocomp'): return
        S = vS + 8*blk
        if o['round_s']:
            for u in range(0, 8, 2): e(f"v_cvt_pk_bf16_f32 v{vP8+u//2}, v{S+u}, v{S+u+1}")
            for u in range(0, 8, 2):
                e(f"v_lshlrev_b32 v{S+u}, 16, v{vP8+u//2}"); e(f"v_and_b32 v{S+u+1}, 0xffff0000, v{vP8+u//2}")
        e(f"v_max3_f32 v{vA}, v{S}, v{S+1}, v{S+2}"); e(f"v_max3_f32 v{vB}, v{S+3}, v{S+4}, v{S+5}")
        e(f"v_max3_f32 v{vA}, v{vA}, v{S+6}, v{S+7}"); e(f"v_max_f32 v{vA}, v{vA}, v{vB}")
        xred(vA, vB, "v_max_f32")
        if blk == 0:
            e(f"v_mul_f32 v{vM0}, s{sC}, v{vA}")
        else:
            e(f"v_mul_f32 v{vA}, s{sC}, v{vA}"); e(f"v_max_f32 v{vA}, v{vA}, v{vM0}")
            e(f"v_sub_f32 v{vAL}, v{vM0}, v{vA}"); e(f"v_mov_b32 v{vM0}, v{vA}"); e(f"v_exp_f32 v{vAL}, v{vAL}")
        for u in range(8): e(f"v_fma_f32 v{S+u}, v{S+u}, s{sC}, -v{vM0}")
        for u in range(8): e(f"v_exp_f32 v{S+u}, v{S+u}")
        e("s_nop 0")
        for t in range(4): e(f"v_cvt_pk_bf16_f32 v{vP8+t}, v{S+2*t}, v{S+2*t+1}")
        for t in range(4): e(f"v_add_f32 v{S+t}, v{S+t}, v{S+t+4}")
        e(f"v_add_f32 v{S}, v{S}, v{S+2}"); e(f"v_add_f32 v{S+1}, v{S+1}, v{S+3}")
        if blk == 0:
            e(f"v_add_f32 v{vL0}, v{S}, v{S+1}")
        else:
            e(f"v_add_f32 v{S}, v{S}, v{S+1}"); e(f"v_fmac_f32 v{S}, v{vL0}, v{vAL}")
            xred(S, S+1, "v_add_f32")
            e(f"ds_write_b32 v{vSA}, v{vM0} offset:{L_SM}"); e(f"ds_write_b32 v{vSA}, v{S} offset:{L_SL}")
            e(f"v_mov_b32 v{S+1}, 1"); e(f"v_mov_b32 v{S+2}, 0"); e("s_mov_b64 exec, 1")
            e(f"ds_add_u32 v{S+2}, v{S+1} offset:{L_CNT}"); e("s_mov_b64 exec, -1")
            e(f"v_readlane_b32 s{sT0}, v{vAL}, 0"); e(f"v_readlane_b32 s{sT1}, v{vAL}, 4")
        for v in range(8):
            for t in range(4):
                e(f"v_cndmask_b32 v{vPV+4*v+t}, 0, v{vP8+t}, s[{sMASK+2*v}:{sMASK+2*v+1}]")
    def pv(unit):
        if o.get('nocomp'): return
        blk, hf = unit//2, unit % 2
        base = vreg(unit); acc = vACC + 4*hf
        def perms(d):
            for t in range(4):
                e(f"v_perm_b32 v{vT+4*(d%3)+t}, v{base+4*(2*t+1)+d//2}, v{base+4*(2*t)+d//2}, s{sSEL1 if d&1 else sSEL0}")
        perms(0)
        for d in range(8):
            if d < 7: perms(d+1)
            else: g.nop(2)
            cin = "0" if (blk == 0 and d == 0) else vr(acc)
            e(f"v_mfma_f32_16x16x32_bf16 {vr(acc)}, {vr(vPV+4*d)}, {vr(vT+4*(d%3))}, {cin}")
    def qkm(bt, dbase, wait):
        e(f"s_waitcnt vmcnt({wait})")
        g.ts(f"K{bt}")
        if o.get('nocomp'): return
        for u in range(4*bt, 4*bt+4):
            d = dbase + 4*(u % 4)
            e(f"v_mfma_f32_16x16x32_bf16 {vr(d)}, {vr(kreg(2*u))}, {vr(vQB)}, 0")
            e(f"v_mfma_f32_16x16x32_bf16 {vr(d)}, {vr(kreg(2*u+1))}, {vr(vQB+4)}, {vr(d)}")
    def postb(bt, dbase):
        if o.get('nocomp'): return
        for step in range(4):
            for u in range(4*bt, 4*bt+4):
                d = dbase + 4*(u % 4); s_ = vS + u
                if step == 0: e(f"v_mov_b32_dpp v{s_}, v{d} quad_perm:[0,0,0,0] {DPP}")
                else: e(f"v_add_f32_dpp v{s_}, v{d+step}, v{s_} quad_perm:[{step},{step},{step},{step}] {DPP}")
    def vunit(u):
        for j in range(8): vload(u, j)
    def addrs():
        e(f"v_lshlrev_b32 v{vC}, 5, v{vC}")
        e(f"s_lshl_b32 s{sT0}, s{sW}, 2"); e(f"v_add_u32 v{vSA}, s{sT0}, v{vC}")
        e(f"v_bfe_u32 v{vC}, v{vL}, 4, 1"); e(f"v_lshlrev_b32 v{vORA}, 10, v{vC}"); e(f"v_lshlrev_b32 v{vC}, 5, v{vC}")
        e(f"v_and_b32 v{vORB}, 15, v{vL}"); e(f"v_lshl_add_u32 v{vORA}, v{vORB}, 5, v{vORA}")
        e(f"v_lshrrev_b32 v{vORB}, 5, v{vL}"); e(f"v_lshl_add_u32 v{vORA}, v{vORB}, 4, v{vORA}")
        e(f"s_and_b32 s{sT1}, s{sR}, 0x100"); e(f"s_lshl_b32 s{sT1}, s{sT1}, 1"); e(f"v_add_u32 v{vORA}, s{sT1}, v{vORA}"); e(f"v_xor_b32 v{vORB}, 0x200, v{vORA}")
        e(f"s_lshl_b32 s{sT0}, s{sW}, 11"); e(f"s_add_u32 s{sT0}, s{sT0}, {L_OR}"); e(f"v_add_u32 v{vORA}, s{sT0}, v{vORA}"); e(f"v_add_u32 v{vORB}, s{sT0}, v{vORB}")
        if o['pret']:
            e(f"s_sub_u32 s{sT0}, s{sW}, 1"); e(f"s_cmp_gt_u32 s{sT0}, 1"); e("s_cbranch_scc1 L_nopre")
            e(f"s_and_b32 s{sT1}, s{sMEM}, 1"); e(f"s_lshl_b32 s{sT1}, s{sT1}, 3"); e(f"s_add_u32 s{sT1}, s{sT1}, s{sB}")
            e(f"s_lshl_b32 s{sT2}, s{sG}, 1"); e(f"s_add_u32 s{sT2}, s{sT2}, s{sT0}")
            e(f"s_lshl_b32 s{sT2}, s{sT2}, 14"); e(f"s_lshl_b32 s{sT1}, s{sT1}, 10"); e(f"s_add_u32 s{sT2}, s{sT2}, s{sT1}"); e(f"s_add_u32 s{sT2}, s{sT2}, {WS_O+WS_F}")
            e(f"v_add_u32 v60, 1, v{vTAG}"); e("v_mov_b32 v61, v60"); e("v_mov_b32 v62, v60"); e("v_mov_b32 v63, v60"); e(f"v_lshlrev_b32 v55, 4, v{vL}")
            e(f"buffer_store_dwordx4 v[60:63], v55, {sr(sWS)}, s{sT2} offen")
            g.lab("L_nopre")
            e("s_nop 1")
    W = NWO
    if o['kv'] == 0:
        qkm(0, 32, 24+W); vunit(0); qkm(1, 48, 24+W); vunit(1)
        postb(0, 32); postb(1, 48); addrs(); soft(0)
        qkm(2, 32, 24+W); vunit(2)
        if o['wt'] == 2:
            e("v_mov_b32 v60, 1"); e("v_mov_b32 v61, 0"); e("s_mov_b64 exec, 1"); e(f"ds_add_u32 v61, v60 offset:{L_CN2}"); e("s_mov_b64 exec, -1")
        postb(2, 32)
        e("s_waitcnt vmcnt(16)"); g.ts("V0"); pv(0)
        qkm(3, 96, 24+W); vunit(3)
        if o['wt'] == 1:
            e("v_mov_b32 v60, 1"); e("v_mov_b32 v61, 0"); e("s_mov_b64 exec, 1"); e(f"ds_add_u32 v61, v60 offset:{L_CN2}"); e("s_mov_b64 exec, -1")
        g.ts("QK")
        e("s_waitcnt vmcnt(16)"); g.ts("V1"); pv(1)
        postb(3, 96); soft(1)
    else:
        K2 = (o['kv'] == 2)
        qkm(0, 32, 24+W)
        if not K2:
            for n in range(16, 24): kload(n)
        qkm(1, 48, (16 if K2 else 24)+W)
        if not K2:
            for n in range(24, 32): kload(n)
        else: g.nop(4)
        postb(0, 32); postb(1, 48); addrs(); soft(0)
        if K2:
            e(f"s_waitcnt vmcnt({8+W})"); pv(0)
            e(f"s_waitcnt vmcnt({W})"); pv(1)
            for n in range(16, 32): kload(n)
            vunit(2); vunit(3)
        else:
            e(f"s_waitcnt vmcnt({24+W})"); pv(0); vunit(2)
            e(f"s_waitcnt vmcnt({24+W})"); pv(1); vunit(3)
        g.ts("QK")
        qkm(2, 32, 24); qkm(3, 96, 16)
        postb(2, 32); postb(3, 96); soft(1)
    e(f"v_mov_b32 v{vAL}, s{sT0}"); e(f"v_mov_b32 v{vA}, s{sT1}"); e(f"s_mov_b32 vcc_lo, 0xffff0000"); e(f"s_mov_b32 vcc_hi, 0xffff0000")
    e(f"v_cndmask_b32 v{vAL}, v{vAL}, v{vA}, vcc")
    for k in range(8): e(f"v_mul_f32 v{vACC+k}, v{vACC+k}, v{vAL}")
    g.ts("P")
    e(f"s_waitcnt vmcnt(8)"); g.ts("V2"); pv(2)
    if o['cpf2']:
        e(f"s_cmp_lg_u32 s{sW}, 3"); e("s_cbranch_scc1 L_nopf2")
        e(f"s_getpc_b64 s[{sT2}:{sT3}]")
        g.lab("L_pc2")
        e(f"v_lshlrev_b32 v60, 7, v{vL}"); e(f"s_mov_b32 s{sT0}, L_codeend-L_pc2-4"); e(f"v_min_u32 v60, s{sT0}, v60")
        e(f"global_load_dword v61, v60, s[{sT2}:{sT3}]")
        e("s_waitcnt vmcnt(0)")
        g.lab("L_nopf2")
    if o['wt']:
        e(f"s_cmp_gt_u32 s{sW}, 3"); e("s_cbranch_scc1 L_nowt")
        e(f"s_cmp_eq_u32 s{sROLE}, 14"); e("s_cbranch_scc1 L_nowt")
        wo_setup(WLATE, 60, 61, 62, 63, 8*WE)
        e("v_mov_b32 v62, 0")
        e("s_waitcnt vmcnt(0)")
        e(f"s_mov_b32 s{sSPIN}, 0x400000")
        g.lab("L_wtw")
        e(f"ds_read_b32 v63, v62 offset:{L_CN2}"); e("s_waitcnt lgkmcnt(0)"); e(f"v_readfirstlane_b32 s{sT0}, v63"); e(f"s_cmp_ge_u32 s{sT0}, {o.get('wtn', 8)}"); e("s_cbranch_scc1 L_wtg")
        e(f"s_sleep {o['ssl']}"); e(f"s_sub_u32 s{sSPIN}, s{sSPIN}, 1"); e("s_cbranch_scc0 L_wtw")
        g.lab("L_wtg")
        wo_issue(WLATE, 60, 61, 8*WE)
        g.lab("L_nowt")
    g.c("workgroup-level softmax factor from the 8 waves (max, sum)")
    e(f"s_lshl_b32 s{sT0}, s{sW}, 2"); e(f"v_add_u32 v{vB}, s{sT0}, v{vC}"); e("v_mov_b32 v62, 0")
    if o.get('nocomp') or o.get('nosw'): e("s_branch L_sready")
    e(f"s_mov_b32 s{sSPIN}, 0x400000")
    g.lab("L_swait")
    e(f"ds_read_b32 v61, v62 offset:{L_CNT}"); e("s_waitcnt lgkmcnt(0)"); e(f"v_readfirstlane_b32 s{sT0}, v61"); e(f"s_cmp_eq_u32 s{sT0}, 8"); e("s_cbranch_scc1 L_sready")
    e(f"s_sleep {o['ssl']}"); e(f"s_sub_u32 s{sSPIN}, s{sSPIN}, 1"); e("s_cbranch_scc0 L_swait")
    g.lab("L_sready")
    e(f"ds_read_b128 {vr(16)}, v{vC} offset:{L_SM}"); e(f"ds_read_b128 {vr(20)}, v{vC} offset:{L_SM+16}")
    e(f"ds_read_b32 v{vF}, v{vB} offset:{L_SM}")
    e(f"ds_read_b128 {vr(24)}, v{vC} offset:{L_SL}"); e(f"ds_read_b128 {vr(28)}, v{vC} offset:{L_SL+16}")
    e("s_waitcnt lgkmcnt(0)")
    e("v_max3_f32 v124, v16, v17, v18"); e("v_max3_f32 v125, v19, v20, v21"); e("v_max3_f32 v124, v124, v22, v23"); e("v_max_f32 v124, v124, v125")
    for w in range(8): e(f"v_sub_f32 v{16+w}, v{16+w}, v124")
    e(f"v_sub_f32 v{vF}, v{vF}, v124")
    for w in range(8): e(f"v_exp_f32 v{16+w}, v{16+w}")
    e(f"v_exp_f32 v{vF}, v{vF}")
    e("v_mul_f32 v126, v24, v16")
    for w in range(1, 8): e(f"v_fmac_f32 v126, v{24+w}, v{16+w}")
    e(f"v_rcp_f32 v16, v126"); e(f"v_mov_b32 v125, v{vTAG}"); e(f"v_mov_b32 v127, v{vTAG}")
    e(f"v_mul_f32 v{vF}, v{vF}, v16")
    e(f"v_lshrrev_b32 v53, 4, v{vL}")
    e(f"v_lshlrev_b32 v60, 4, v{vL}")
    e(f"s_lshl_b32 s{sT2}, s{sG}, 1")
    e(f"s_cmp_lt_u32 s{sW}, 4"); e("s_cbranch_scc1 L_a03")
    e(f"s_cmp_eq_u32 s{sW}, 4"); e("s_cbranch_scc1 L_a4")
    e(f"s_cmp_eq_u32 s{sW}, 7"); e("s_cbranch_scc1 L_a7")
    e(f"s_sub_u32 s{sT0}, s{sW}, 5")
    e(f"s_and_b32 s{sT1}, s{sMEM}, 1"); e(f"s_lshl_b32 s{sT1}, s{sT1}, 3"); e(f"s_add_u32 s{sT1}, s{sT1}, s{sB}")
    e(f"s_add_u32 s{sT2}, s{sT2}, s{sT0}")
    e(f"s_lshl_b32 s44, s{sT2}, 14"); e(f"s_lshl_b32 s45, s{sT1}, 10"); e(f"s_add_u32 s44, s44, s45"); e(f"s_add_u32 s44, s44, {WS_O}"); e(f"s_add_u32 s45, s44, {WS_F}")
    e(f"s_lshl_b32 s{sT2}, s{sT2}, 8"); e(f"s_lshl_b32 s{sT1}, s{sT1}, 4"); e(f"s_add_u32 s{sT2}, s{sT2}, s{sT1}"); e(f"s_add_u32 s{sT2}, s{sT2}, {WS_S}"); e(f"s_add_u32 s{sT3}, s{sT2}, {WS_F}")
    e(f"s_lshl_b32 s{sT1}, s{sT0}, 4"); e(f"s_lshl_b64 exec, 1, s{sT1}")
    e(f"s_cmp_eq_u32 s42, 1"); e(f"s_cselect_b32 s{sT2}, 0x4000000, s{sT2}"); e("s_cselect_b32 s44, 0x4000000, s44")
    if o['lst']:
        e("s_mov_b64 s[64:65], exec")
    else:
        e(f"buffer_store_dwordx4 v[124:127], v62, {sr(sWS)}, s{sT3} offen")
        e(f"buffer_store_dwordx4 v[124:127], v62, {sr(sWS)}, s{sT2} offen sc1")
    e("s_mov_b64 exec, -1")
    e(f"s_lshl_b32 s{sT1}, s{sT0}, 10"); e(f"s_add_u32 s{sT1}, s{sT1}, {L_OR}"); e(f"v_add_u32 v61, s{sT1}, v60")
    e(f"v_mov_b32 v97, v{vTAG}"); e(f"v_mov_b32 v99, v{vTAG}")
    e(f"s_waitcnt vmcnt({0 if o['lst'] else 2})")
    e("s_branch L_v3")
    g.lab("L_a03")
    e(f"s_add_u32 s{sT2}, s{sT2}, s{sH3}")
    e(f"v_and_b32 v54, 15, v{vL}"); e("v_lshlrev_b32 v52, 10, v54"); e("v_lshl_add_u32 v52, v53, 5, v52"); e("v_lshlrev_b32 v54, 2, v54")
    e(f"s_lshl_b32 s{sT3}, s{sT2}, 14"); e(f"s_lshl_b32 s{sT0}, s{sW}, 8"); e(f"s_add_u32 s{sT3}, s{sT3}, s{sT0}"); e(f"s_add_u32 s{sT3}, s{sT3}, {WS_O+WS_F}")
    e(f"s_lshl_b32 s{sT0}, s{sW}, 11"); e(f"v_add_u32 v61, s{sT0}, v60")
    e(f"v_bfe_u32 v55, v{vL}, 2, 2"); e("v_lshl_add_u32 v63, v53, 3, v55"); e("v_lshlrev_b32 v63, 7, v63")
    e(f"v_bfe_u32 v16, v{vL}, 1, 1"); e(f"s_lshl_b32 s{sT0}, s{sW}, 1"); e(f"v_add_u32 v16, s{sT0}, v16")
    if o['wosw']:
        e("v_and_b32 v55, 2, v55"); e("v_xor_b32 v16, v16, v55"); e("v_and_b32 v55, 1, v53"); e("v_lshlrev_b32 v55, 2, v55"); e("v_xor_b32 v16, v16, v55")
    e("v_lshl_add_u32 v63, v16, 4, v63"); e(f"v_and_b32 v16, 1, v{vL}"); e("v_lshl_add_u32 v63, v16, 3, v63"); e(f"v_add_u32 v63, {L_WO}, v63")
    if o.get('psw'):
        e(f"s_lshl_b32 s{sT0}, s{sNL}, 2"); e(f"s_add_u32 s{sT0}, s{sT0}, s{sW}"); e(f"s_lshl_b32 s44, s{sT0}, 15"); e(f"s_add_u32 s44, s44, {WS_P}")
        e(f"s_lshl_b32 s{sT0}, s{sT0}, 3"); e(f"s_and_b32 s{sT0}, s{sT0}, 31"); e(f"s_xor_b32 s{sT0}, s{sT0}, s{sT2}")
        e(f"v_and_b32 v55, 7, v{vL}"); e(f"v_xor_b32 v16, s{sT0}, v55"); e("v_lshlrev_b32 v55, 12, v55"); e("v_lshl_add_u32 v55, v16, 7, v55"); e("v_lshl_add_u32 v55, v53, 5, v55")
    else:
        e(f"s_lshl_b32 s{sT0}, s{sNL}, 2"); e(f"s_add_u32 s{sT0}, s{sT0}, s{sW}"); e(f"s_lshl_b32 s{sT0}, s{sT0}, 15"); e(f"s_lshl_b32 s44, s{sT2}, 7")
        e(f"s_add_u32 s44, s44, s{sT0}"); e(f"s_add_u32 s44, s44, {WS_P}")
        e(f"v_and_b32 v55, 7, v{vL}"); e("v_lshlrev_b32 v55, 12, v55"); e("v_lshl_add_u32 v55, v53, 5, v55")
    e(f"v_bfe_u32 v16, v{vL}, 3, 1"); e("v_lshl_add_u32 v55, v16, 4, v55")
    e(f"v_mov_b32 v109, v{vTAG}"); e(f"v_mov_b32 v111, v{vTAG}")
    e(f"s_lshl_b32 s45, s{sG}, 2"); e(f"s_add_u32 s45, s45, {WS_H}"); e(f"v_lshlrev_b32 v17, 8, v{vL}")
    if o['wt']:
        e(f"s_cmp_eq_u32 s{sROLE}, 14"); e("s_cbranch_scc0 L_v3")
    elif o['wol']: wo_setup(WLATE, 18, 19, 20, 21, 8*WE)
    e("s_branch L_nostat")
    g.lab("L_a4")
    e(f"s_add_u32 s{sT2}, s{sT2}, s{sH3}"); e(f"s_lshl_b32 s{sT3}, s{sT2}, 8"); e(f"s_add_u32 s{sT3}, s{sT3}, {WS_S+WS_F}")
    e(f"v_and_b32 v54, 15, v{vL}"); e("v_lshlrev_b32 v55, 4, v54"); e("v_lshlrev_b32 v54, 2, v54")
    e("s_branch L_nostat")
    g.lab("L_a7")
    e(f"s_lshl_b32 s{sT3}, s2, 12"); e(f"s_add_u32 s{sT3}, s{sT3}, {WS_P}")
    e(f"v_and_b32 v54, 7, v{vL}"); e("v_lshlrev_b32 v54, 2, v54"); e(f"v_lshlrev_b32 v55, 2, v{vL}")
    if o.get('psw'):
        e("s_bitcmp1_b32 s2, 4"); e("s_cselect_b32 s20, s23, s22"); e("s_cselect_b32 s23, s22, s23"); e("s_mov_b32 s22, s20")
    e(f"s_mul_i32 s21, s{sKVH}, 896"); e("s_lshr_b32 s20, s2, 3"); e("s_lshl_b32 s20, s20, 5"); e("s_add_u32 s21, s21, s20")
    e(f"s_and_b32 s20, s2, {o['nrep']-1}"); e("s_lshl_b32 s20, s20, 8"); e(f"s_add_u32 s20, s20, {WS_H}")
    g.lab("L_nostat")
    e("s_waitcnt vmcnt(0)")
    g.lab("L_v3")
    for k in range(4): e(f"v_mul_f32 v{vACC+k}, v{vACC+k}, v{vF}")
    g.ts("V3")
    e(f"ds_write_b128 v{vORA}, {vr(vACC)}")
    pv(3)
    e(f"s_cmp_lt_u32 s{sW}, 5")
    g.nop(7)
    for k in range(4): e(f"v_mul_f32 v{vACC+4+k}, v{vACC+4+k}, v{vF}")
    e(f"ds_write_b128 v{vORB}, {vr(vACC+4)}")
    if o['wol'] and not o['wt']:
        e(f"s_cmp_gt_u32 s{sW}, 3"); e("s_cbranch_scc1 L_nowo")
        if o.get('sk14', 1): e(f"s_cmp_eq_u32 s{sROLE}, 14"); e("s_cbranch_scc1 L_nowo")
        wo_issue(WLATE, 18, 19, 8*WE)
        g.lab("L_nowo")
        e(f"s_cmp_lt_u32 s{sW}, 5")
    e("s_waitcnt lgkmcnt(0)")
    e("s_barrier")
    g.ts("B4")
    if o.get('stopb4'): e("s_branch L_fin")
    e("s_cbranch_scc1 L_cons")
    e(f"s_cmp_eq_u32 s{sW}, 7"); e("s_cbranch_scc1 L_w7")
    g.c("waves 5,6: sum the 8 partial o, publish")
    for w in range(8): e(f"ds_read_b128 {vr(64+4*w)}, v61 offset:{w*2048}")
    if o['lst']:
        e("s_mov_b64 exec, s[64:65]")
        e(f"buffer_store_dwordx4 v[124:127], v62, {sr(sWS)}, s{sT3} offen")
        e(f"buffer_store_dwordx4 v[124:127], v62, {sr(sWS)}, s{sT2} offen sc1")
        e("s_mov_b64 exec, -1")
    for w in range(1, 8, 2):
        e(f"s_waitcnt lgkmcnt({0 if (o['ts'] or o.get('holdat')) else 7-w})")
        if o['pk']:
            for k in (0, 2): e(f"v_pk_add_f32 {vr(64+4*(w-1)+k,2)}, {vr(64+4*(w-1)+k,2)}, {vr(64+4*w+k,2)}")
            if w > 1:
                for k in (0, 2): e(f"v_pk_add_f32 {vr(64+k,2)}, {vr(64+k,2)}, {vr(64+4*(w-1)+k,2)}")
            continue
        for k in range(4): e(f"v_add_f32 v{64+4*(w-1)+k}, v{64+4*(w-1)+k}, v{64+4*w+k}")
        if w > 1:
            for k in range(4): e(f"v_add_f32 v{64+k}, v{64+k}, v{64+4*(w-1)+k}")
    e("v_cvt_pk_bf16_f32 v96, v64, v65"); e("v_cvt_pk_bf16_f32 v98, v66, v67")
    e(f"buffer_store_dwordx4 v[96:99], v60, {sr(sWS)}, s45 offen {o['opol']}")
    g.ts("opub")
    e(f"buffer_store_dwordx4 v[96:99], v60, {sr(sWS)}, s44 offen sc1")
    e(f"s_cmp_eq_u32 s{sROLE}, 14"); e("s_cbranch_scc1 L_fin")
    if B45: e("s_barrier")
    e("s_barrier")
    e("s_branch L_fin")
    g.lab("L_cons")
    g.c("wave 4: merge weights of the two key halves; waves 0..3: gather o, project, publish partials")
    e(f"s_cmp_eq_u32 s{sROLE}, 14"); e("s_cbranch_scc1 L_fin")
    e(f"s_cmp_lt_u32 s{sW}, 4"); e("s_cbranch_scc1 L_gath")
    if B45: e("s_barrier")
    e("s_mov_b64 exec, 0xffff")
    def sl(): e(f"buffer_load_dwordx4 {vr(160)}, v55, {sr(sWS)}, s{sT3} offen {o.get('ppol2', o['ppol'])}")
    poll("sg", sl, [161, 163], 58, 59, o['sleep1'])
    if o['gate1']: e(f"v_mov_b32 v61, 9"); e(f"ds_write_b32 v62, v61 offset:{L_CNT}")
    e(f"v_mov_b32_dpp v100, v160 row_ror:8 {DPP}")
    e(f"v_mov_b32_dpp v101, v162 row_ror:8 {DPP}")
    e("v_max_f32 v102, v160, v100")
    e("v_sub_f32 v103, v160, v102"); e("v_sub_f32 v100, v100, v102")
    e("v_exp_f32 v103, v103"); e("v_exp_f32 v100, v100"); e("s_nop 0")
    e("v_mul_f32 v103, v103, v162"); e("v_fma_f32 v100, v100, v101, v103")
    e("v_rcp_f32 v100, v100"); e("s_nop 0"); e("v_mul_f32 v103, v103, v100")
    e("s_mov_b64 exec, 0xffff")
    e(f"ds_write_b32 v54, v103 offset:{L_W}")
    e("s_waitcnt lgkmcnt(0)")
    e("s_barrier")
    e("s_branch L_fin")
    g.lab("L_gath")
    def gl():
        for k in range(2):
            e(f"buffer_load_dwordx4 {vr(128+8*k)}, v52, {sr(sWS)}, s{sT3} offen offset:{128*k} {o.get('ppol2', o['ppol'])}")
            e(f"buffer_load_dwordx4 {vr(132+8*k)}, v52, {sr(sWS)}, s{sT3} offen offset:{128*k+16} {o.get('ppol2', o['ppol'])}")
    def wofr():
        for k in range(8):
            e(f"ds_read_b64_tr_b16 {vr(64+4*k,2)}, v63 offset:{k*4096}")
            e(f"ds_read_b64_tr_b16 {vr(66+4*k,2)}, v63 offset:{k*4096+512}")
            if k == 6: e("s_waitcnt lgkmcnt(4)")
    def wofr45():
        e("s_waitcnt vmcnt(4)"); e("s_barrier"); wofr()
    if o.get('pw') is not None: e(f"s_waitcnt vmcnt({o['pw']})")
    if not o['g1p']:
        poll("g1", gl, [129+2*i for i in range(8)], 58, 59, o['sleep1'], first=(wofr45 if B45 else None) if o['wol'] else wofr, gate=o['gate1'])
        for k in range(2):
            e(f"v_mov_b32 v{129+8*k}, v{130+8*k}"); e(f"v_mov_b32 v{130+8*k}, v{132+8*k}"); e(f"v_mov_b32 v{131+8*k}, v{134+8*k}")
            e(f"ds_write_b128 v61, {vr(128+8*k)} offset:{L_B3+1024*k}")
    else:
        def gl2(b):
            for k in range(2):
                e(f"buffer_load_dwordx4 {vr(b+8*k)}, v52, {sr(sWS)}, s{sT3} offen offset:{128*k} sc1")
                e(f"buffer_load_dwordx4 {vr(b+4+8*k)}, v52, {sr(sWS)}, s{sT3} offen offset:{128*k+16} sc1")
        e(f"s_mov_b32 s{sSPIN}, {o['spin']}"); e("s_mov_b64 s[66:67], 0")
        gl2(128); wofr(); e(f"s_sleep {o['g1p']}"); gl2(144)
        g.lab("L_g1")
        e("s_waitcnt vmcnt(4)")
        tagcheck([129+2*i for i in range(8)], 58, 59)
        e("s_cbranch_scc0 L_g1_ok")
        e("s_mov_b64 exec, vcc")
        gl2(128)
        e("s_waitcnt vmcnt(4)")
        tagcheck([145+2*i for i in range(8)], 58, 59)
        e("s_andn2_b64 s[64:65], exec, vcc"); e("s_or_b64 s[66:67], s[66:67], s[64:65]")
        e("s_cmp_eq_u64 vcc, 0"); e("s_cbranch_scc1 L_g1_ok")
        e("s_mov_b64 exec, vcc")
        e(f"s_cmp_eq_u32 s{sSPIN}, {o['spin']-o['fthr']}"); e(f"s_cselect_b32 s{sT0}, {WS_F}, 0"); e(f"s_sub_u32 s{sT3}, s{sT3}, s{sT0}")
        gl2(144)
        e(f"s_sub_u32 s{sSPIN}, s{sSPIN}, 1"); e("s_cbranch_scc0 L_g1")
        g.lab("L_g1_ok")
        e("s_mov_b64 exec, -1")
        for k in range(2):
            for t in range(4): e(f"v_cndmask_b32 v{192+4*k+t}, v{128+8*k+2*t}, v{144+8*k+2*t}, s[66:67]")
            e(f"ds_write_b128 v61, {vr(192+4*k)} offset:{L_B3+1024*k}")
    def hint():
        e(f"s_or_b32 s{sT0}, s{sW}, s{sMEM}"); e("s_cbranch_scc1 L_nohint")
        if o['nrep'] < 64: e(f"s_mov_b64 exec, {hex((1<<o['nrep'])-1)}")
        e(f"buffer_store_dword v{vTAG}, v17, {sr(sWS)}, s45 offen {o.get('hst','sc1')}")
        e("s_mov_b64 exec, -1")
        g.lab("L_nohint")
    HAT = o.get('hat', 0)
    if HAT == 0: hint()
    if False: e(f"s_or_b32 s{sT0}, s{sW}, s{sMEM}"); e("s_cbranch_scc1 L_nohint")
    g.ts("G1")
    e("s_waitcnt lgkmcnt(0)")
    e("s_barrier")
    g.ts("B5")
    if HAT == 1: hint()
    if o['wol'] and not B45:
        e(f"ds_read_b32 v103, v54 offset:{L_W}")
        def rd(k):
            e(f"ds_read_b64_tr_b16 {vr(64+4*k,2)}, v63 offset:{k*4096}")
            e(f"ds_read_b64_tr_b16 {vr(66+4*k,2)}, v63 offset:{k*4096+512}")
            e(f"ds_read_b128 {vr(160+4*k)}, v60 offset:{L_B3+k*1024}")
        for k in range(4): rd(k)
        for k in range(8):
            e(f"s_waitcnt lgkmcnt({0 if 'B5' in o.get('tson',()) else 3*min(3, 7-k)})")
            e(f"v_mfma_f32_16x16x32_bf16 {vr(96)}, {vr(64+4*k)}, {vr(160+4*k)}, {'0' if k==0 else vr(96)}")
            if k+4 < 8: rd(k+4)
    else:
        for k in range(8): e(f"ds_read_b128 {vr(160+4*k)}, v60 offset:{L_B3+k*1024}")
        e(f"ds_read_b32 v103, v54 offset:{L_W}")
        for k in range(8):
            e(f"s_waitcnt lgkmcnt({0 if 'B5' in o.get('tson',()) else 8-k})")
            e(f"v_mfma_f32_16x16x32_bf16 {vr(96)}, {vr(64+4*k)}, {vr(160+4*k)}, {'0' if k==0 else vr(96)}")
    e("s_waitcnt lgkmcnt(0)")
    g.nop(7)
    for k in range(4): e(f"v_mul_f32 v{96+k}, v{96+k}, v103")
    for k in range(4): e(f"v_add_f32_dpp v{104+k}, v{96+k}, v{96+k} row_ror:8 {DPP}")
    e(f"v_cndmask_b32 v108, v104, v106, s[{sM8}:{sM8+1}]"); e(f"v_cndmask_b32 v110, v105, v107, s[{sM8}:{sM8+1}]")
    if o.get('nop'): e("s_mov_b32 s44, 0x4000000")
    e(f"buffer_store_dwordx4 v[108:111], v55, {sr(sWS)}, s44 offen {o.get('pst','sc1')}")
    if HAT == 2: hint()
    g.ts("ppub")
    e("s_branch L_fin")
    g.lab("L_w7")
    g.c("wave 7: final sum, gate, store")
    for i in range(4): e(f"s_mov_b64 s[{sMASK+2*i}:{sMASK+2*i+1}], -1")
    e(f"s_mov_b32 s{sSPIN}, {o['spin']}")
    e(f"s_cmp_eq_u32 s{sROLE}, 14"); e("s_cbranch_scc1 L_nob5")
    if B45: e("s_barrier")
    e("s_barrier")
    g.lab("L_nob5")
    e("s_cmp_ge_u32 s2, 224"); e("s_cbranch_scc1 L_fin")
    e("s_mov_b64 exec, 0xffff")
    NP = max(1, o['hp'])
    for k in range(NP):
        e(f"buffer_load_dword v{64+k}, v55, {sr(sWS)}, s20 offen {o.get('hpol','sc1')}")
        if NP > 1: e(f"s_sleep {o['hgap']}")
    g.lab("L_hp")
    for k in range(NP):
        e(f"s_waitcnt vmcnt({NP-1})")
        e(f"v_cmp_ne_u32 vcc, v{64+k}, v{vTAG}")
        if o.get('hk'):
            e(f"s_bcnt1_i32_b64 s{sT0}, vcc"); e(f"s_cmp_le_u32 s{sT0}, {o['hk']}"); e("s_cbranch_scc1 L_hp_ok")
        else:
            e("s_cbranch_vccz L_hp_ok")
        if o['sleep2']: e(f"s_sleep {o['sleep2']}")
        e(f"buffer_load_dword v{64+k}, v55, {sr(sWS)}, s20 offen {o.get('hpol','sc1')}")
    e(f"s_sub_u32 s{sSPIN}, s{sSPIN}, 1"); e("s_cbranch_scc0 L_hp")
    g.lab("L_hp_ok")
    if o.get('hdel'): e(f"s_sleep {o['hdel']}")
    g.ts("H")
    g.lab("L_g2")
    for i in range(4):
        e(f"s_mov_b64 exec, s[{sMASK+2*i}:{sMASK+2*i+1}]")
        e(f"buffer_load_dwordx4 {vr(128+4*i)}, v60, {sr(sWS)}, s{sT3} offen offset:{i*1024} {o.get('dpol','sc1')}")
    e("s_mov_b64 exec, -1")
    e("s_waitcnt vmcnt(0)")
    for i in range(4):
        e(f"v_cmp_ne_u32 vcc, v{129+4*i}, v{vTAG}"); e(f"v_cmp_ne_u32 s[{sMASK+2*i}:{sMASK+2*i+1}], v{131+4*i}, v{vTAG}")
        e(f"s_or_b64 s[{sMASK+2*i}:{sMASK+2*i+1}], s[{sMASK+2*i}:{sMASK+2*i+1}], vcc")
    e(f"s_or_b64 s[{sT0}:{sT1}], s[{sMASK}:{sMASK+1}], s[{sMASK+2}:{sMASK+3}]"); e(f"s_or_b64 vcc, s[{sMASK+4}:{sMASK+5}], s[{sMASK+6}:{sMASK+7}]")
    e(f"s_or_b64 vcc, vcc, s[{sT0}:{sT1}]")
    e("s_cbranch_scc0 L_g2_ok")
    if o.get('sleep3'): e(f"s_sleep {o['sleep3']}")
    e(f"s_sub_u32 s{sSPIN}, s{sSPIN}, 1"); e("s_cbranch_scc0 L_g2")
    g.lab("L_g2_ok")
    g.ts("G2")
    R = [128, 130, 136, 138]
    for r in R: e(f"v_add_f32 v{r}, v{r}, v{r+4}")
    for r in R: e(f"v_add_f32_dpp v{r}, v{r}, v{r} row_ror:8 {DPP}")
    for sw in ("16", "32"):
        for r in R: e(f"v_mov_b32 v{r+1}, v{r}")
        for r in R: e(f"v_permlane{sw}_swap_b32 v{r}, v{r+1}")
        for r in R: e(f"v_add_f32 v{r}, v{r}, v{r+1}")
    e("v_cvt_pk_bf16_f32 v129, v128, v130"); e("v_cvt_pk_bf16_f32 v137, v136, v138")
    for base in (128, 136): e(f"v_lshlrev_b32 v{base}, 16, v{base+1}"); e(f"v_and_b32 v{base+2}, 0xffff0000, v{base+1}")
    for base, gs in ((128, 22), (136, 23)): e(f"v_mul_f32 v{base}, s{gs}, v{base}"); e(f"v_mul_f32 v{base+2}, s{gs}, v{base+2}")
    e("v_cvt_pk_bf16_f32 v129, v128, v130"); e("v_cvt_pk_bf16_f32 v137, v136, v138")
    for base in (128, 136): e(f"v_lshlrev_b32 v{base}, 16, v{base+1}"); e(f"v_and_b32 v{base+2}, 0xffff0000, v{base+1}")
    e("v_add_f32 v128, v128, v136"); e("v_add_f32 v130, v130, v138")
    e("v_cvt_pk_bf16_f32 v128, v128, v130")
    e("s_mov_b64 exec, 0xff")
    e(f"buffer_store_dword v128, v54, {sr(sOUT)}, s21 offen {o.get('outpol','')}")
    e("s_cmp_lg_u32 s2, 0"); e("s_cbranch_scc1 L_fin")
    e("s_mov_b64 exec, 1")
    e(f"buffer_store_dword v{vTAG}, v54, {sr(sWS)}, 0 offen sc1")
    g.lab("L_fin")
    if o.get('holdat'):
        e("s_cmp_eq_u32 s88, 0"); e("s_cbranch_scc1 L_end")
        if o.get('holdbr') is not None: e(f"s_cmp_lg_u32 s{sBR}, {o['holdbr']}"); e("s_cbranch_scc1 L_end")
        g.lab("L_hold")
        e("s_memrealtime s[86:87]"); e("s_waitcnt lgkmcnt(0)"); e("s_sub_u32 s86, s86, s84"); e(f"s_cmp_lt_u32 s86, 3000"); e("s_cbranch_scc1 L_hold")
    if o['ts']:
        if o['ts'] == 2: e(f"s_cmp_lg_u32 s{sW}, 7"); e("s_cbranch_scc1 L_end")
        e("s_mov_b64 exec, -1")
        g.ts("end")
        e("s_waitcnt lgkmcnt(0)")
        for k in range(16): e(f"v_mov_b32 v{128+k}, s{TSREG[k]}" if k < g.nts else f"v_mov_b32 v{128+k}, 0")
        e(f"s_lshl_b32 s{sT0}, s2, 3"); e(f"s_add_u32 s{sT0}, s{sT0}, s{sW}"); e(f"s_lshl_b32 s{sT0}, s{sT0}, 6"); e(f"s_add_u32 s{sT0}, s{sT0}, {WS_TS}")
        e("v_mov_b32 v60, 0"); e("s_mov_b64 exec, 1")
        for k in range(1 if o['ts'] == 2 else 4): e(f"buffer_store_dwordx4 {vr(128+4*k)}, v60, {sr(sWS)}, s{sT0} offen offset:{16*k}")
        print("TS:", ",".join(g.tsn))
    g.lab("L_end")
    e("s_endpgm")
    g.lab("L_w0b")
    g.c("wave 0: q slice, publish, own K loads, gather")
    common2()
    e(f"s_mov_b32 s{sK}, s8"); e(f"s_mov_b32 s{sK+1}, s9")
    if not o.get('xin', 1):
        e(f"s_mov_b32 m0, {L_X}"); e(f"s_movk_i32 s{sT2}, 0x1000")
        for ii in range(4): e(f"buffer_load_dwordx4 v33, {sr(sX)}, 0 offen offset:{ii*1024} lds")
        e(f"s_mov_b32 m0, {L_X+4096}"); e("s_nop 0")
        for ii in range(3): e(f"buffer_load_dwordx4 v33, {sr(sX)}, s{sT2} offen offset:{ii*1024} lds")
        e(f"buffer_load_dword v{vTAG}, v34, {sr(sWS)}, 0 offen sc1")
    if B0 > 28: e("s_barrier")
    e(f"v_bfe_u32 v41, v{vL}, 2, 2")
    e(f"v_lshl_add_u32 v41, v{vB}, 3, v41"); e(f"v_lshlrev_b32 v41, 6, v41")
    e(f"v_lshl_add_u32 v41, v{vA}, 3, v41")
    e(f"v_and_b32 v43, 7, v{vL}"); e(f"v_mul_u32_u24 v42, 896, v43"); e(f"v_lshl_add_u32 v42, v{vB}, 4, v42")
    e(f"v_add_u32 v42, {L_X}, v42")
    e(f"s_lshl_b32 s{sT0}, s{sG}, 14"); e(f"s_lshl_b32 s{sT1}, s{sMEM}, 7"); e(f"s_add_u32 s{sT0}, s{sT0}, s{sT1}")
    e(f"s_add_u32 s{sT0}, s{sT0}, {WS_Q}"); e(f"s_add_u32 s{sT1}, s{sT0}, {WS_F}")
    e(f"v_lshlrev_b32 v43, 11, v43"); e(f"v_lshl_add_u32 v43, v{vB}, 4, v43")
    e(f"s_lshl_b32 s{sT3}, s{sG}, 3"); e(f"s_add_u32 s{sT3}, s{sT3}, s{sB}"); e(f"s_lshl_b32 s{sT3}, s{sT3}, 11"); e(f"s_add_u32 s{sT3}, s{sT3}, {WS_Q+WS_F}")
    e("s_waitcnt vmcnt(0)")
    g.ts("wq")
    e(f"v_and_b32 v{vTAG}, -8, v{vTAG}"); e(f"v_add_u32 v{vTAG}, 8, v{vTAG}")
    e("s_getreg_b32 s44, hwreg(HW_REG_XCC_ID, 0, 3)")
    steps = list(range(14)); first = True
    for ci in range(0, 14, 3):
        ch = steps[ci:ci+3]
        for k, s_ in enumerate(ch):
            a = 64 + 12*k
            for t in range(2):
                e(f"ds_read_b64_tr_b16 {vr(a+4*t,2)}, v41 offset:{L_WQ+s_*2048+t*32}")
                e(f"ds_read_b64_tr_b16 {vr(a+4*t+2,2)}, v41 offset:{L_WQ+s_*2048+256+t*32}")
            e(f"ds_read_b128 {vr(a+8)}, v42 offset:{s_*64}")
        e("s_waitcnt lgkmcnt(0)")
        for k, s_ in enumerate(ch):
            a = 64 + 12*k
            for t in range(2):
                e(f"v_mfma_f32_16x16x32_bf16 {vr(44+4*t)}, {vr(a+4*t)}, {vr(a+8)}, {'0' if first else vr(44+4*t)}")
            first = False
    e(f"v_or_b32 v53, s44, v{vTAG}"); e("v_mov_b32 v55, v53"); e(f"v_and_b32 v40, 8, v{vL}"); e("v_lshl_add_u32 v43, v40, 3, v43")
    e("s_mov_b32 vcc_lo, 0xff00ff00"); e("s_mov_b32 vcc_hi, 0xff00ff00"); e(f"s_mov_b32 s45, s{sT0}"); e("s_nop 0")
    for k in range(4): e(f"v_cndmask_b32 v{44+k}, v{44+k}, v{48+k}, vcc")
    e(f"v_cvt_pk_bf16_f32 v52, v44, v45"); e(f"v_cvt_pk_bf16_f32 v54, v46, v47")
    if o.get('noqst', 0) < 2: e(f"buffer_store_dwordx4 v[52:55], v43, {sr(sWS)}, s{sT1} offen {o['qpol']}")
    if not o['xc']: e(f"buffer_store_dwordx4 v[52:55], v43, {sr(sWS)}, s45 offen sc1")
    g.ts("qpub")
    for n in range(o['q0k']): kload(n)
    def qgather(own):
        e("s_mov_b32 s46, 1")
        if not o.get('noqw'):
            e(f"s_mov_b32 s{sSPIN}, {o['spin']}")
            g.lab("L_qg")
            e(f"buffer_load_dwordx4 v[64:67], v33, {sr(sWS)}, s{sT3} offen {o['ppol']}")
            e(f"buffer_load_dwordx4 v[68:71], v33, {sr(sWS)}, s{sT3} offen offset:1024 {o['ppol']}")
            e("s_waitcnt vmcnt(0)")
            for r in (65, 67, 69, 71): e(f"v_xor_b32 v{r+11}, v{r}, v{vTAG}")
            e("v_max3_u32 v60, v76, v78, v80"); e("v_max_u32 v60, v60, v82")
            e("v_cmp_lt_u32 vcc, 7, v60")
            e("s_cbranch_vccz L_qg_ok")
            e("s_mov_b64 exec, vcc")
            e(f"s_cmp_le_u32 s{sSPIN}, {o['spin']-o['fthr']}"); e(f"s_cselect_b32 s{sT0}, {WS_F}, 0"); e(f"s_xor_b32 s{sT3}, s{sT3}, s{sT0}")
            e(f"s_cmp_lg_u32 s{sSPIN}, {o['spin']-o['fthr']}"); e("s_cbranch_scc1 L_qg_n")
            g.c("slices missing for a long time: write own slice through; from now on rounds alternate between the two copies")
            e("s_mov_b64 exec, -1")
            if own: e(f"buffer_store_dwordx4 v[52:55], v43, {sr(sWS)}, s45 offen sc1")
            else: e("v_mov_b32 v61, 1"); e(f"ds_write_b32 v34, v61 offset:{L_RQ}")
            e("s_mov_b64 exec, vcc")
            g.lab("L_qg_n")
            e(f"s_sub_u32 s{sSPIN}, s{sSPIN}, 1"); e("s_cbranch_scc0 L_qg")
            g.lab("L_qg_ok")
            e("s_mov_b64 exec, -1")
            e("v_min3_u32 v60, v65, v67, v69"); e("v_max3_u32 v61, v65, v67, v69"); e("v_min_u32 v60, v60, v71"); e("v_max_u32 v61, v61, v71")
            e("v_cmp_ne_u32 vcc, v60, v53"); e(f"v_cmp_ne_u32 s[{sT0}:{sT1}], v61, v53"); e(f"s_or_b64 vcc, vcc, s[{sT0}:{sT1}]")
            e("s_cbranch_scc0 L_qg_loc")
            g.c("some member runs on another die: its reads need the written-through copies")
            if own: e(f"buffer_store_dwordx4 v[52:55], v43, {sr(sWS)}, s45 offen sc1")
            e("s_mov_b32 s46, 2")
            g.lab("L_qg_loc")
        if not o['xc']: e("s_mov_b32 s46, 2")
        e(f"v_lshlrev_b32 v60, 3, v{vL}")
        e(f"ds_write2_b32 v60, v64, v66 offset0:{L_QL//4} offset1:{L_QL//4+1}")
        e(f"ds_write2_b32 v60, v68, v70 offset0:{L_QL//4+128} offset1:{L_QL//4+129}")
        e(f"v_or_b32 v61, s46, v{vTAG}" if o['e1'] else "v_mov_b32 v61, s46"); e(f"ds_write_b32 v34, v61 offset:{L_F}")
        g.ts("qgot")
    if not o['qp']: qgather(True)
    e("s_branch L_kq0")

    g.lab("L_codeend")
    g.L += ['.section .rodata,"a"', ".p2align 6", f".amdhsa_kernel {KN}",
            "  .amdhsa_next_free_vgpr 256", "  .amdhsa_next_free_sgpr 102", "  .amdhsa_accum_offset 256",
            "  .amdhsa_group_segment_fixed_size 0", "  .amdhsa_kernarg_size 112", "  .amdhsa_user_sgpr_count 2",
            "  .amdhsa_user_sgpr_kernarg_segment_ptr 1", "  .amdhsa_system_sgpr_workgroup_id_x 1",
            "  .amdhsa_float_denorm_mode_32 3", ".end_amdhsa_kernel"]
    return "\n".join(g.L) + "\n"

if __name__ == "__main__":
    from lint import lint
    from build import build
    out = sys.argv[1]; opts = eval("dict(" + (sys.argv[2] if len(sys.argv) > 2 else "") + ")")
    s = gen(**opts)
    open(out, "w").write(s)
    for p in lint(s): print("LINT:", p)
    build(out)
```

```python
import sys, math, struct
sys.path.insert(0, "gen"); sys.path.insert(0, "tools")
KN = "gated_mix__sliding_block_cached__sliding_block_cached__decode_kernel"
HEADER = open("gated_mix__sliding_block_cached__sliding_block_cached__decode.s.ref").read().split("; Override launch")[0]

WS_Q = 0x10000
WS_S = 0x60000
WS_H = 0x70000
WS_O = 0x80000
WS_F = 0x100000
WS_P = 0x200000
WS_TS = 0x400000
WS_SIZE = 0x800000
L_QL = 0
L_SM = 1024
L_SL = 1088
L_W = 1152
L_F = 1216
L_CNT = 1220
L_B3 = 4096
L_WQ = 8192
L_X = 36864
L_WO = 44032
L_OR = 76800
LDS_BYTES = 93184
TSREG = [84,86,88,90,92,94,96,98,100,8,10,12,14,16,18,20]

def f2u(x): return struct.unpack("<I", struct.pack("<f", x))[0]
def vr(a, n=4): return f"v[{a}:{a+n-1}]"
def sr(a, n=4): return f"s[{a}:{a+n-1}]"
DPP = "row_mask:0xf bank_mask:0xf"

class G:
    def __init__(s, **o):
        s.L = []; s.o = dict(round_s=1, ts=0, pol='nt', spin=1<<16, wo_late=0, codepf=1, order=0, sleep1=0, sleep2=0, b0=1, pre=0, g2m=1, epol='', hint=1, sleeph=0, kv=1, bmap=1, hk=4, pret=0, woy=0, hp=0, q0=0, qsl=2, ssl=3, psw=1, onl=1, uni=1, nob2=1, b0at=36, hthr=0, xm=0x100, xa=1, xb=0, fast=1, fthr=256, qw=1, diag=0, dsleep=0, dxor=0, drow=13, wqpol=None, xpol='')
        s.o.update(o); s.nts = 0; s.tsn = []
    def e(s, t): s.L.append("  " + t)
    def lab(s, t): s.L.append(t + ":")
    def nop(s, n):
        while n > 0:
            k = min(n, 16); s.e(f"s_nop {k-1}"); n -= k
    def ts(s, name):
        if not s.o['ts']: return
        if name in s.o.get('tsoff', ()): return
        if 'tson' in s.o and name not in s.o['tson']: return
        if 'tson' not in s.o and name[0] in 'KV' and name[1:].isdigit(): return
        k = s.nts; s.nts += 1
        r = TSREG[k]; s.tsn.append(name)
        s.e(f"s_memrealtime s[{r}:{r+1}]")

def gen(**opts):
    g = G(**opts); e = g.e; o = g.o; POL = o['pol']
    sK, sV, sWQ, sWO, sX, sGW, sWS, sOUT = 24, 28, 32, 36, 40, 44, 48, 52
    sW = 56; s16k = 57; sT0, sT1, sT2, sT3 = 58, 59, 60, 61
    sKVH, sBR, sMEM, sB, sG = 3, 4, 5, 6, 7
    sMASK = 64; sM8 = 80; sSEL0, sSEL1 = 82, 83; sSPIN = 62; sC = 63
    vL = 1; vKO = 2; vVO = 3; vTAG = 4; vA = 5; vB = 6; vC = 7
    vQB = 8; vS = 16; vD = 32; vPV = 64; vK = 128; vACC = 8
    vGT = 120

    def tagcheck(tags, a, b_):
        if len(tags) == 2:
            e(f"v_cmp_ne_u32 vcc, v{tags[0]}, v{vTAG}"); e(f"v_cmp_ne_u32 s[{sT0}:{sT1}], v{tags[1]}, v{vTAG}")
        else:
            e(f"v_min3_u32 v{a}, v{tags[0]}, v{tags[1]}, v{tags[2]}"); e(f"v_max3_u32 v{b_}, v{tags[0]}, v{tags[1]}, v{tags[2]}")
            i = 3
            while i+1 < len(tags):
                e(f"v_min3_u32 v{a}, v{a}, v{tags[i]}, v{tags[i+1]}"); e(f"v_max3_u32 v{b_}, v{b_}, v{tags[i]}, v{tags[i+1]}"); i += 2
            if i < len(tags):
                e(f"v_min_u32 v{a}, v{a}, v{tags[i]}"); e(f"v_max_u32 v{b_}, v{b_}, v{tags[i]}")
            e(f"v_cmp_ne_u32 vcc, v{a}, v{vTAG}"); e(f"v_cmp_ne_u32 s[{sT0}:{sT1}], v{b_}, v{vTAG}")
        e(f"s_or_b64 vcc, vcc, s[{sT0}:{sT1}]")
    def poll(name, loads, tags, a, b_, sleep=0, fs=False):
        fs = fs and o['fast']
        e(f"s_mov_b32 s{sSPIN}, {o['spin']}")
        if fs: e(f"s_add_u32 s{sT3}, s{sT3}, {WS_F}")
        g.lab(f"L_{name}")
        loads()
        e("s_waitcnt vmcnt(0)")
        tagcheck(tags, a, b_)
        e(f"s_cbranch_scc0 L_{name}_ok")
        e("s_mov_b64 exec, vcc")
        if sleep: e(f"s_sleep {sleep}")
        if fs:
            e(f"s_cmp_eq_u32 s{sSPIN}, {o['spin']-o['fthr']}"); e(f"s_cselect_b32 s{sT0}, {WS_F}, 0"); e(f"s_sub_u32 s{sT3}, s{sT3}, s{sT0}")
        e(f"s_sub_u32 s{sSPIN}, s{sSPIN}, 1"); e(f"s_cbranch_scc0 L_{name}")
        g.lab(f"L_{name}_ok")
        e("s_mov_b64 exec, -1")

    g.L.append(HEADER.rstrip("\n"))
    g.L.append(f"; @launch grid=(256,1,1) block=(512,1,1) lds={LDS_BYTES}")
    g.L.append('.amdgcn_target "amdgcn-amd-amdhsa--gfx950"')
    g.L.append(".text"); g.L.append(f".globl {KN}"); g.L.append(".p2align 8"); g.L.append(f".type {KN},@function"); g.lab(KN)
    e("s_cmp_ge_u32 s2, 256"); e("s_cbranch_scc1 L_end")
    g.ts("start")
    if o.get('hold'): e("s_memrealtime s[84:85]")
    e(f"s_lshr_b32 s{sBR}, s2, 7")
    e(f"s_mul_i32 s{sT0}, s{sBR}, 40")
    e(f"s_add_u32 s{sT2}, s0, s{sT0}"); e(f"s_addc_u32 s{sT3}, s1, 0")
    e(f"s_load_dwordx8 s[8:15], s[{sT2}:{sT3}], 8")
    e("s_load_dwordx2 s[16:17], s[0:1], 0")
    e("s_load_dwordx2 s[18:19], s[0:1], 104")
    e("s_load_dwordx4 s[20:23], s[0:1], 80")
    e(f"v_lshrrev_b32 v{vA}, 6, v0")
    e(f"v_and_b32 v{vL}, 63, v0")
    e(f"v_readfirstlane_b32 s{sW}, v{vA}")
    e(f"s_getpc_b64 s[{sM8}:{sM8+1}]")
    g.lab("L_pc")
    if o['codepf']:
        e(f"v_lshlrev_b32 v35, 7, v0"); e("v_subrev_u32 v35, 8192, v35")
        e(f"s_mov_b32 s{sT0}, L_codeend-L_pc-4")
        e(f"v_cmp_gt_u32 vcc, s{sT0}, v35")
        e(f"s_and_saveexec_b64 s[{sT2}:{sT3}], vcc")
        e("s_cbranch_execz L_nopf")
        e(f"global_load_dword v36, v35, s[{sM8}:{sM8+1}]")
        g.lab("L_nopf")
        e("s_mov_b64 exec, -1")
    e(f"s_and_b32 s{sKVH}, s2, 7")
    e(f"s_bfe_u32 s{sMEM}, s2, 0x40003")
    e(f"s_lshr_b32 s{sB}, s{sMEM}, 1")
    e(f"s_lshl_b32 s{sG}, s{sBR}, 3"); e(f"s_add_u32 s{sG}, s{sG}, s{sKVH}")
    e(f"s_mul_i32 s{sT0}, s{sW}, {o['xa']}"); e(f"s_lshr_b32 s{sT1}, s2, {o.get('xs',3)}"); e(f"s_mul_i32 s{sT1}, s{sT1}, {o['xb']}"); e(f"s_add_u32 s{sT0}, s{sT0}, s{sT1}")
    e(f"s_lshl_b32 s{sT1}, s{sT0}, 8"); e(f"s_and_b32 s{sT1}, s{sT1}, 0xf00"); e(f"s_lshl_b32 s{sT0}, s{sT0}, 10"); e(f"s_and_b32 s{sT0}, s{sT0}, 0x4000")
    e(f"s_or_b32 s{sT0}, s{sT0}, s{sT1}"); e(f"s_and_b32 s{s16k}, s{sT0}, {o['xm']}")
    e(f"s_lshl_b32 s{sT0}, s{sB}, 24"); e(f"s_lshl_b32 s{sT1}, s{sKVH}, 21"); e(f"s_add_u32 s{sT0}, s{sT0}, s{sT1}")
    e(f"s_and_b32 s{sT1}, s{sMEM}, 1"); e(f"s_lshl_b32 s{sT1}, s{sT1}, 18"); e(f"s_add_u32 s{sT0}, s{sT0}, s{sT1}")
    if o.get('wxr'):
        e(f"s_lshr_b32 s{sT1}, s2, {o['wxr'][0]}"); e(f"s_mul_i32 s{sT1}, s{sT1}, {o['wxr'][1]}"); e(f"s_xor_b32 s{sT1}, s{sT1}, s{sW}"); e(f"s_and_b32 s{sT1}, s{sT1}, 7"); e(f"s_lshl_b32 s{sT1}, s{sT1}, 15")
    else:
        e(f"s_lshl_b32 s{sT1}, s{sW}, {14 if o['bmap'] else 15}")
    e(f"s_add_u32 s{sT0}, s{sT0}, s{sT1}")
    e(f"s_add_u32 s{sT0}, s{sT0}, {3072*512}")
    e(f"v_bfe_u32 v{vA}, v{vL}, 2, 2"); e(f"v_lshlrev_b32 v{vA}, 12, v{vA}")
    e(f"v_lshrrev_b32 v{vB}, 4, v{vL}")
    e(f"v_lshl_add_u32 v{vKO}, v{vB}, 6, v{vA}")
    e(f"v_and_b32 v{vA}, 3, v{vL}"); e(f"v_lshl_add_u32 v{vKO}, v{vA}, 4, v{vKO}")
    e(f"v_add_u32 v{vKO}, s{sT0}, v{vKO}")
    e(f"v_and_b32 v{vC}, 15, v{vL}"); e(f"v_lshlrev_b32 v{vC}, 4, v{vC}")
    e(f"v_lshl_add_u32 v{vVO}, v{vB}, 12, v{vC}")
    e(f"v_add_u32 v{vVO}, s{sT0}, v{vVO}")
    e(f"v_lshlrev_b32 v33, 4, v{vL}")
    e(f"v_mov_b32 v34, 0")
    def srd(d, p, n):
        e(f"s_mov_b32 s{d}, s{p}"); e(f"s_mov_b32 s{d+1}, s{p+1}"); e(f"s_mov_b32 s{d+2}, {n}"); e(f"s_mov_b32 s{d+3}, 0x20000")
    BS = 131072 if o['bmap'] else 16384
    def kreg(n): return vK + 4*(n % 16) if o['kv'] else vK + 4*n
    def vreg(unit): return vK + 64 + 32*(unit % 2) if o['kv'] else vK + 32*unit
    def kload(n):
        u, hf = n//2, n % 2
        if o.get('kd') and n >= o['kd']: e(f"s_waitcnt vmcnt({o['kd']-1})")
        e(f"s_xor_b32 s47, s{s16k}, {(u&7)*512+hf*256+(u>>3)*BS}")
        e(f"buffer_load_dwordx4 {vr(kreg(n))}, v{vKO}, {sr(sK)}, s47 offen {POL}")
    def vload(unit, j):
        blk, hf = unit//2, unit % 2
        if o.get('vd'): e(f"s_waitcnt vmcnt({o['vd']-1})")
        e(f"s_xor_b32 s47, s{s16k}, {j*512+hf*256+blk*BS}")
        e(f"buffer_load_dwordx4 {vr(vreg(unit)+4*j)}, v{vVO}, {sr(sV)}, s47 offen {POL}")
    e(f"s_mov_b32 s{sK+2}, 0x8000000"); e(f"s_mov_b32 s{sK+3}, 0x20000")
    e(f"s_mov_b32 s{sWS+2}, {WS_SIZE}"); e(f"s_mov_b32 s{sWS+3}, 0x20000")
    e(f"s_mov_b32 s{sX+2}, 7168"); e(f"s_mov_b32 s{sX+3}, 0x20000")
    e(f"s_cmp_eq_u32 s{sW}, 0")
    e("s_waitcnt lgkmcnt(0)")
    e(f"s_mov_b32 s{sK}, s8"); e(f"s_mov_b32 s{sK+1}, s9")
    e(f"s_mov_b32 s{sWS}, s18"); e(f"s_mov_b32 s{sWS+1}, s19")
    e(f"s_mov_b32 s{sX}, s16"); e(f"s_mov_b32 s{sX+1}, s17")
    e("s_cbranch_scc0 L_notw0")
    srd(sWQ, 12, 3670016)
    e(f"v_lshrrev_b32 v32, 2, v{vL}"); e(f"v_lshlrev_b32 v32, 13, v32"); e(f"v_lshl_add_u32 v32, v{vA}, 4, v32")
    e(f"s_lshl_b32 s{sT0}, s{sKVH}, 10"); e(f"s_lshl_b32 s{sT1}, s{sMEM}, 6"); e(f"s_add_u32 s{sT0}, s{sT0}, s{sT1}")
    e(f"v_add_u32 v32, s{sT0}, v32")
    if o['dsleep']:
        e(f"s_sleep {o['dsleep']}"); g.ts("slept")
    if o['dxor']: e(f"v_xor_b32 v32, {o['dxor']}, v32")
    if o.get('wqfull'):
        e(f"v_lshrrev_b32 v32, 3, v{vL}"); e(f"v_lshlrev_b32 v32, 13, v32"); e(f"v_and_b32 v44, 7, v{vL}"); e("v_lshl_add_u32 v32, v44, 4, v32")
        e(f"s_lshl_b32 s{sT0}, s{sKVH}, 10"); e(f"s_lshr_b32 s{sT1}, s{sMEM}, 1"); e(f"s_lshl_b32 s{sT1}, s{sT1}, 7"); e(f"s_add_u32 s{sT0}, s{sT0}, s{sT1}")
        e(f"s_and_b32 s{sT1}, s{sMEM}, 1"); e(f"s_mul_i32 s{sT1}, s{sT1}, {224*8192}"); e(f"s_add_u32 s{sT0}, s{sT0}, s{sT1}"); e(f"v_add_u32 v32, s{sT0}, v32")
    if o['nob2']:
        e(f"ds_write_b32 v34, v34 offset:{L_F}"); e(f"ds_write_b32 v34, v34 offset:{L_CNT}"); e("s_waitcnt lgkmcnt(0)")
    ndma = [0]
    def b0chk():
        if o['b0'] and ndma[0] == o['b0at']: e("s_barrier")
        ndma[0] += 1
    for ii in range(o.get('dn', 28)):
        b0chk()
        if o.get('wqrot'):
            if ii == 0:
                ra, rb = o['wqrot']
                e(f"s_lshr_b32 s44, s{sMEM}, 1"); e(f"s_mul_i32 s44, s44, {ra}"); e(f"s_mul_i32 s45, s{sG}, {rb}"); e("s_add_u32 s44, s44, s45")
                e("s_mul_hi_u32 s45, s44, 0x9249250"); e("s_mul_i32 s45, s45, 28"); e("s_sub_u32 s44, s44, s45")
            e(f"s_lshl_b32 s{sT2}, s44, 10"); e(f"s_add_u32 m0, s{sT2}, {L_WQ}"); e(f"s_lshl_b32 s{sT2}, s44, 17")
            e("s_add_u32 s44, s44, 1"); e("s_cmp_eq_u32 s44, 28"); e("s_cselect_b32 s44, 0, s44")
        else:
            e(f"s_mov_b32 m0, {L_WQ+ii*1024}")
            e(f"s_mov_b32 s{sT2}, {ii*(65536 if o.get('wqfull') else 131072)}")
        if o.get('dgap'): e(f"s_sleep {o['dgap']}")
        e(f"buffer_load_dwordx4 v32, {sr(sWQ)}, s{sT2} offen {POL if o['wqpol'] is None else o['wqpol']} lds")
    for ii in range(7):
        b0chk()
        e(f"s_mov_b32 m0, {L_X+ii*1024}")
        e(f"s_mov_b32 s{sT2}, {ii*1024}")
        if o['diag'] != 3: e(f"buffer_load_dwordx4 v33, {sr(sX)}, s{sT2} offen {o['xpol']} lds")
    e(f"buffer_load_dword v{vTAG}, v34, {sr(sWS)}, 0 offen {o['epol']}")
    if o['b0'] and o['b0at'] >= 35: e("s_barrier")
    e(f"v_bfe_u32 v41, v{vL}, 2, 2")
    e(f"v_lshl_add_u32 v41, v{vB}, 3, v41"); e(f"v_lshlrev_b32 v41, 6, v41")
    e(f"v_lshl_add_u32 v41, v{vA}, 3, v41")
    e(f"v_and_b32 v43, 7, v{vL}"); e(f"v_mul_u32_u24 v42, 896, v43"); e(f"v_lshl_add_u32 v42, v{vB}, 4, v42")
    e(f"v_add_u32 v42, {L_X}, v42")
    e(f"s_lshl_b32 s{sT0}, s{sG}, 14"); e(f"s_lshl_b32 s{sT1}, s{sMEM}, 7"); e(f"s_add_u32 s{sT0}, s{sT0}, s{sT1}")
    e(f"s_add_u32 s{sT0}, s{sT0}, {WS_Q}")
    e(f"v_lshlrev_b32 v43, 11, v43"); e(f"v_lshl_add_u32 v43, v{vB}, 4, v43")
    e("s_waitcnt vmcnt(0)")
    g.ts("wq")
    if o['diag']: e("s_branch L_fin")
    e(f"v_add_u32 v{vTAG}, 1, v{vTAG}")
    steps = list(range(14)); first = True
    for ci in range(0, 14, 3):
        ch = steps[ci:ci+3]
        for k, s_ in enumerate(ch):
            a = 64 + 12*k
            for t in range(2):
                e(f"ds_read_b64_tr_b16 {vr(a+4*t,2)}, v41 offset:{L_WQ+s_*2048+t*32}")
                e(f"ds_read_b64_tr_b16 {vr(a+4*t+2,2)}, v41 offset:{L_WQ+s_*2048+256+t*32}")
            e(f"ds_read_b128 {vr(a+8)}, v42 offset:{s_*64}")
        e("s_waitcnt lgkmcnt(0)")
        for k, s_ in enumerate(ch):
            a = 64 + 12*k
            for t in range(2):
                e(f"v_mfma_f32_16x16x32_bf16 {vr(44+4*t)}, {vr(a+4*t)}, {vr(a+8)}, {'0' if first else vr(44+4*t)}")
            first = False
    for r in (53, 55, 57, 59): e(f"v_mov_b32 v{r}, v{vTAG}")
    g.nop(4)
    e(f"v_cvt_pk_bf16_f32 v52, v44, v45"); e(f"v_cvt_pk_bf16_f32 v54, v46, v47")
    e(f"v_cvt_pk_bf16_f32 v56, v48, v49"); e(f"v_cvt_pk_bf16_f32 v58, v50, v51")
    e("s_mov_b32 exec_lo, 0x00ff00ff"); e("s_mov_b32 exec_hi, 0x00ff00ff")
    if o['fast']:
        e(f"s_add_u32 s{sT1}, s{sT0}, {WS_F}")
        e(f"buffer_store_dwordx4 v[52:55], v43, {sr(sWS)}, s{sT1} offen")
        e(f"buffer_store_dwordx4 v[56:59], v43, {sr(sWS)}, s{sT1} offen offset:64")
    e(f"buffer_store_dwordx4 v[52:55], v43, {sr(sWS)}, s{sT0} offen sc1")
    e(f"buffer_store_dwordx4 v[56:59], v43, {sr(sWS)}, s{sT0} offen offset:64 sc1")
    e("s_mov_b64 exec, -1")
    g.ts("qpub")
    def qgather():
        e(f"s_lshl_b32 s{sT0}, s{sG}, 3"); e(f"s_add_u32 s{sT0}, s{sT0}, s{sB}"); e(f"s_lshl_b32 s{sT0}, s{sT0}, 11")
        e(f"s_add_u32 s{sT3}, s{sT0}, {WS_Q}")
        def ql():
            e(f"buffer_load_dwordx4 v[52:55], v33, {sr(sWS)}, s{sT3} offen sc1")
            e(f"buffer_load_dwordx4 v[56:59], v33, {sr(sWS)}, s{sT3} offen offset:1024 sc1")
        if not o.get('noqw'): poll("qg", ql, [53, 55, 57, 59], 60, 61, fs=True)
        e(f"v_lshlrev_b32 v60, 3, v{vL}")
        e(f"ds_write2_b32 v60, v52, v54 offset0:{L_QL//4} offset1:{L_QL//4+1}")
        e(f"ds_write2_b32 v60, v56, v58 offset0:{L_QL//4+128} offset1:{L_QL//4+129}")
        e("v_mov_b32 v61, 1"); e("v_mov_b32 v62, 0"); e(f"ds_write_b32 v62, v61 offset:{L_F}")
        g.ts("qgot")
    if o['q0']: qgather()
    e("s_branch L_kissue")
    g.lab("L_notw0")
    e(f"buffer_load_dword v{vTAG}, v34, {sr(sWS)}, 0 offen {o['epol']}")
    for n in range(o['pre']): kload(n)
    if o['b0']: e("s_barrier")
    if o['diag'] in (1, 3): e("s_branch L_fin")
    if o['diag'] == 2:
        for n in range(32): kload(n)
        e("s_waitcnt vmcnt(0)"); e("s_branch L_fin")
    e(f"s_cmp_lg_u32 s{sW}, 7"); e("s_cbranch_scc1 L_kissue2")
    srd(sGW, 20, 896)
    e(f"s_mul_i32 s{sT0}, s{sKVH}, 896")
    e(f"buffer_load_dwordx4 v[16:19], v33, {sr(sX)}, s{sT0} offen")
    e(f"buffer_load_dwordx4 v[20:23], v33, {sr(sGW)}, 0 offen")
    e("s_branch L_kissue2")
    g.lab("L_kissue")
    for n in range(o['pre']): kload(n)
    g.lab("L_kissue2")
    if o['kv']:
        for n in range(o['pre'], 16): kload(n)
        srd(sV, 10, 0x8000000)
        for u in range(2):
            for j in range(8): vload(u, j)
    else:
        for n in range(o['pre'], 32): kload(n)
    srd(sV, 10, 0x8000000); srd(sWO, 14, 3670016); srd(sOUT, 22, 7168)
    def wo_dma(va, vb):
        e(f"s_lshr_b32 s{sT0}, s{sMEM}, 2"); e(f"s_lshl_b32 s{sT0}, s{sT0}, 7"); e(f"s_lshl_b32 s{sT1}, s{sKVH}, 9"); e(f"s_add_u32 s{sT0}, s{sT0}, s{sT1}")
        e(f"s_mul_i32 s{sT0}, s{sT0}, 896"); e(f"s_and_b32 s{sT1}, s{sMEM}, 3"); e(f"s_mul_i32 s{sT1}, s{sT1}, 224"); e(f"s_add_u32 s{sT0}, s{sT0}, s{sT1}")
        e(f"s_cmp_eq_u32 s{sW}, 0"); e(f"s_cselect_b32 s{sT0}, 0x4000000, s{sT0}")
        if o.get('nowo'): e(f"s_mov_b32 s{sT0}, 0x4000000")
        if o.get('woal'): e(f"s_and_b32 s{sT0}, s{sT0}, 0xffffff80")
        e(f"s_add_u32 s{sT2}, s{sW}, 7"); e(f"s_and_b32 s{sT2}, s{sT2}, 7")
        e(f"s_lshl_b32 s{sT1}, s{sT2}, 12"); e(f"s_lshl_b32 s{sT2}, s{sT2}, 8")
        for ii in range(4):
            e(f"v_add_u32 v{va}, s{sT2}, v{vL}")
            if ii: e(f"v_add_u32 v{va}, {64*ii}, v{va}")
            e(f"v_mul_u32_u24 v{vb}, 4682, v{va}"); e(f"v_lshrrev_b32 v{vb}, 16, v{vb}")
            e(f"v_mul_u32_u24 v{vb}, 672, v{vb}"); e(f"v_lshl_add_u32 v{vb}, v{va}, 4, v{vb}")
            e(f"s_add_u32 m0, s{sT1}, {L_WO+ii*1024}"); e("s_nop 0")
            e(f"buffer_load_dwordx4 v{vb}, {sr(sWO)}, s{sT0} offen {POL} lds")
    g.ts("kiss")
    NWO = 4
    if o['woy']: o['wo_late'] = 1
    if not o['wo_late']: wo_dma(60, 61)
    for v in range(8):
        pat = (0x11 << (v & 3)) << (8*(v >> 2)); pat |= pat << 16
        e(f"s_mov_b32 s{sMASK+2*v}, 0x{pat:08x}"); e(f"s_mov_b32 s{sMASK+2*v+1}, 0x{pat:08x}")
    e(f"s_mov_b32 s{sSEL0}, 0x05040100"); e(f"s_mov_b32 s{sSEL1}, 0x07060302")
    e(f"s_mov_b32 s{sC}, 0x{f2u(math.log2(math.e)/16):08x}")
    e(f"s_mov_b32 s{sM8}, 0xff00ff00"); e(f"s_mov_b32 s{sM8+1}, 0xff00ff00")
    e(f"s_cmp_eq_u32 s{sW}, 0"); e("s_cbranch_scc1 " + ("L_qgather" if o['qw'] == 0 else "L_b2"))
    nyoung = 32 - o['pre'] + (0 if o['wo_late'] else NWO)
    e(f"s_waitcnt vmcnt({nyoung})")
    e(f"v_add_u32 v{vTAG}, 1, v{vTAG}")
    if o['qw'] and not o['q0']: e(f"s_cmp_eq_u32 s{sW}, {o['qw']}"); e("s_cbranch_scc1 L_qgather")
    e(f"s_cmp_lg_u32 s{sW}, 7"); e("s_cbranch_scc1 L_b2")
    e(f"v_cmp_gt_u32 vcc, 56, v{vL}"); e("v_mov_b32 v24, 0"); e("s_nop 0")
    for k in range(4): e(f"v_cndmask_b32 v{16+k}, 0, v{16+k}, vcc")
    for k in range(4):
        e(f"v_lshlrev_b32 v25, 16, v{16+k}"); e(f"v_and_b32 v26, 0xffff0000, v{16+k}")
        e(f"v_lshlrev_b32 v27, 16, v{20+k}"); e(f"v_and_b32 v28, 0xffff0000, v{20+k}")
        e("v_mul_f32 v25, v25, v27"); e("v_mul_f32 v26, v26, v28")
        e("v_cvt_pk_bf16_f32 v25, v25, v26")
        e("v_lshlrev_b32 v26, 16, v25"); e("v_and_b32 v25, 0xffff0000, v25")
        e("v_add_f32 v24, v24, v26"); e("v_add_f32 v24, v24, v25")
    for dpp in ("quad_perm:[1,0,3,2]", "quad_perm:[2,3,0,1]", "row_ror:4", "row_ror:8"):
        e("s_nop 1"); e(f"v_add_f32_dpp v24, v24, v24 {dpp} {DPP}")
    for sw in ("16", "32"):
        e("v_mov_b32 v25, v24"); e("s_nop 1"); e(f"v_permlane{sw}_swap_b32 v24, v25"); e("v_add_f32 v24, v24, v25")
    e("v_cvt_pk_bf16_f32 v24, v24, v24"); e("v_and_b32 v24, 0xffff0000, v24")
    e(f"v_mul_f32 v24, 0x{f2u(-math.log2(math.e)):08x}, v24"); e("v_exp_f32 v24, v24"); e("s_nop 0")
    e("v_add_f32 v24, 1.0, v24"); e("v_rcp_f32 v24, v24"); e("s_nop 0")
    e("v_cvt_pk_bf16_f32 v24, v24, v24"); e("v_and_b32 v24, 0xffff0000, v24")
    e("v_sub_f32 v25, 1.0, v24"); e("v_cvt_pk_bf16_f32 v25, v25, v25"); e("v_and_b32 v25, 0xffff0000, v25")
    e("v_readfirstlane_b32 s22, v24"); e("v_readfirstlane_b32 s23, v25")
    e("s_branch L_b2")
    g.lab("L_qgather")
    if not o['q0']: qgather()
    g.lab("L_b2")
    e(f"v_bfe_u32 v{vC}, v{vL}, 2, 1"); e(f"v_lshlrev_b32 v{vA}, 9, v{vC}")
    e(f"v_lshl_add_u32 v{vA}, v{vB}, 6, v{vA}")
    e(f"v_and_b32 v60, 3, v{vL}"); e(f"v_lshl_add_u32 v{vA}, v60, 4, v{vA}")
    e(f"s_and_b32 s{sT0}, s{s16k}, 0x100"); e(f"v_add_u32 v{vA}, s{sT0}, v{vA}"); e(f"v_xor_b32 v60, 0x100, v{vA}")
    if o['nob2']:
        e("v_mov_b32 v62, 0")
        if o.get('noqw'): e("s_branch L_qready")
        g.lab("L_qwait")
        e(f"ds_read_b32 v61, v62 offset:{L_F}"); e("s_waitcnt lgkmcnt(0)"); e("v_readfirstlane_b32 s58, v61"); e("s_cmp_eq_u32 s58, 1"); e("s_cbranch_scc1 L_qready")
        e(f"s_sleep {o['qsl']}"); e("s_branch L_qwait")
        g.lab("L_qready")
    else:
        e("s_waitcnt lgkmcnt(0)")
        e("s_barrier")
    g.ts("B2")
    e(f"ds_read_b128 {vr(vQB)}, v{vA} offset:{L_QL}")
    e(f"ds_read_b128 {vr(vQB+4)}, v60 offset:{L_QL}")
    def postn(us):
        for step in range(4):
            for u in us:
                d = vD + 16*((u//4) % 2) + 4*(u % 4); s_ = vS + u
                if step == 0: e(f"v_mov_b32_dpp v{s_}, v{d} quad_perm:[0,0,0,0] {DPP}")
                else: e(f"v_add_f32_dpp v{s_}, v{d+step}, v{s_} quad_perm:[{step},{step},{step},{step}] {DPP}")
    e("s_waitcnt lgkmcnt(0)")
    young = 0 if o['wo_late'] else NWO
    vT = 40; vM0 = 52; vL0 = 53; vAL = 54; vORA = 56; vORB = 57; vSA = 58; vF = 59
    def qk(bt):
        e(f"s_waitcnt vmcnt({31-(8*bt+7)+young})")
        g.ts(f"K{bt}")
        for u in range(4*bt, 4*bt+4):
            d = vD + 16*(bt % 2) + 4*(u % 4)
            e(f"v_mfma_f32_16x16x32_bf16 {vr(d)}, {vr(kreg(2*u))}, {vr(vQB)}, 0")
            e(f"v_mfma_f32_16x16x32_bf16 {vr(d)}, {vr(kreg(2*u+1))}, {vr(vQB+4)}, {vr(d)}")
    def vunit(u):
        nonlocal young
        for j in range(8): vload(u, j)
        young += 8
    def xred(r, t, op):
        for sw in ("16", "32"):
            e(f"v_mov_b32 v{t}, v{r}"); e("s_nop 1"); e(f"v_permlane{sw}_swap_b32 v{r}, v{t}"); e(f"{op} v{r}, v{r}, v{t}")
    vACC = 112
    vP8 = 120
    def soft(blk):
        S = vS + 8*blk
        if o['round_s']:
            for u in range(0, 8, 2): e(f"v_cvt_pk_bf16_f32 v{vP8+u//2}, v{S+u}, v{S+u+1}")
            for u in range(0, 8, 2):
                e(f"v_lshlrev_b32 v{S+u}, 16, v{vP8+u//2}"); e(f"v_and_b32 v{S+u+1}, 0xffff0000, v{vP8+u//2}")
        e(f"v_max3_f32 v{vA}, v{S}, v{S+1}, v{S+2}"); e(f"v_max3_f32 v{vB}, v{S+3}, v{S+4}, v{S+5}")
        e(f"v_max3_f32 v{vA}, v{vA}, v{S+6}, v{S+7}"); e(f"v_max_f32 v{vA}, v{vA}, v{vB}")
        xred(vA, vB, "v_max_f32")
        if blk == 0:
            e(f"v_mul_f32 v{vM0}, s{sC}, v{vA}")
        else:
            e(f"v_mul_f32 v{vA}, s{sC}, v{vA}"); e(f"v_max_f32 v{vA}, v{vA}, v{vM0}")
            e(f"v_sub_f32 v{vAL}, v{vM0}, v{vA}"); e(f"v_mov_b32 v{vM0}, v{vA}"); e(f"v_exp_f32 v{vAL}, v{vAL}")
        for u in range(8): e(f"v_fma_f32 v{S+u}, v{S+u}, s{sC}, -v{vM0}")
        for u in range(8): e(f"v_exp_f32 v{S+u}, v{S+u}")
        e("s_nop 0")
        for t in range(4): e(f"v_cvt_pk_bf16_f32 v{vP8+t}, v{S+2*t}, v{S+2*t+1}")
        for t in range(4): e(f"v_add_f32 v{S+t}, v{S+t}, v{S+t+4}")
        e(f"v_add_f32 v{S}, v{S}, v{S+2}"); e(f"v_add_f32 v{S+1}, v{S+1}, v{S+3}")
        if blk == 0:
            e(f"v_add_f32 v{vL0}, v{S}, v{S+1}")
        else:
            e(f"v_add_f32 v{S}, v{S}, v{S+1}"); e(f"v_fmac_f32 v{S}, v{vL0}, v{vAL}")
            xred(S, S+1, "v_add_f32")
            e(f"ds_write_b32 v{vSA}, v{vM0} offset:{L_SM}"); e(f"ds_write_b32 v{vSA}, v{S} offset:{L_SL}")
            e(f"v_mov_b32 v{S+1}, 1"); e(f"v_mov_b32 v{S+2}, 0"); e("s_mov_b64 exec, 1")
            e(f"ds_add_u32 v{S+2}, v{S+1} offset:{L_CNT}"); e("s_mov_b64 exec, -1")
            e(f"v_readlane_b32 s{sT0}, v{vAL}, 0"); e(f"v_readlane_b32 s{sT1}, v{vAL}, 4")
        for v in range(8):
            for t in range(4):
                e(f"v_cndmask_b32 v{vPV+4*v+t}, 0, v{vP8+t}, s[{sMASK+2*v}:{sMASK+2*v+1}]")
    def pv(unit, late=0):
        blk, hf = unit//2, unit % 2
        base = vreg(unit)
        acc = vACC + 4*hf
        def perms(d):
            for t in range(4):
                e(f"v_perm_b32 v{vT+4*(d%3)+t}, v{base+4*(2*t+1)+d//2}, v{base+4*(2*t)+d//2}, s{sSEL1 if d&1 else sSEL0}")
        perms(0)
        for d in range(8):
            if d < 7: perms(d+1)
            else: g.nop(2)
            cin = "0" if (blk == 0 and d == 0) else vr(acc)
            e(f"v_mfma_f32_16x16x32_bf16 {vr(acc)}, {vr(vPV+4*d)}, {vr(vT+4*(d%3))}, {cin}")
    def qkm(bt, dbase, wait):
        e(f"s_waitcnt vmcnt({wait})")
        g.ts(f"K{bt}")
        for u in range(4*bt, 4*bt+4):
            d = dbase + 4*(u % 4)
            e(f"v_mfma_f32_16x16x32_bf16 {vr(d)}, {vr(kreg(2*u))}, {vr(vQB)}, 0")
            e(f"v_mfma_f32_16x16x32_bf16 {vr(d)}, {vr(kreg(2*u+1))}, {vr(vQB+4)}, {vr(d)}")
    def postb(bt, dbase):
        for step in range(4):
            for u in range(4*bt, 4*bt+4):
                d = dbase + 4*(u % 4); s_ = vS + u
                if step == 0: e(f"v_mov_b32_dpp v{s_}, v{d} quad_perm:[0,0,0,0] {DPP}")
                else: e(f"v_add_f32_dpp v{s_}, v{d+step}, v{s_} quad_perm:[{step},{step},{step},{step}] {DPP}")
    if o['kv']:
        late = 0
        W = young
        K2 = (o['kv'] == 2)
        qkm(0, 32, 24+W)
        if not K2:
            for n in range(16, 24): kload(n)
        qkm(1, 48, (16 if K2 else 24)+W)
        if not K2:
            for n in range(24, 32): kload(n)
        else: g.nop(4)
        postb(0, 32); postb(1, 48)
        e(f"v_lshlrev_b32 v{vC}, 5, v{vC}")
        e(f"s_lshl_b32 s{sT0}, s{sW}, 2"); e(f"v_add_u32 v{vSA}, s{sT0}, v{vC}")
        e(f"v_bfe_u32 v{vC}, v{vL}, 4, 1"); e(f"v_lshlrev_b32 v{vORA}, 10, v{vC}"); e(f"v_lshlrev_b32 v{vC}, 5, v{vC}")
        e(f"v_and_b32 v{vORB}, 15, v{vL}"); e(f"v_lshl_add_u32 v{vORA}, v{vORB}, 5, v{vORA}")
        e(f"v_lshrrev_b32 v{vORB}, 5, v{vL}"); e(f"v_lshl_add_u32 v{vORA}, v{vORB}, 4, v{vORA}")
        e(f"s_and_b32 s{sT1}, s{s16k}, 0x100"); e(f"s_lshl_b32 s{sT1}, s{sT1}, 1"); e(f"v_add_u32 v{vORA}, s{sT1}, v{vORA}"); e(f"v_xor_b32 v{vORB}, 0x200, v{vORA}")
        e(f"s_lshl_b32 s{sT0}, s{sW}, 11"); e(f"s_add_u32 s{sT0}, s{sT0}, {L_OR}"); e(f"v_add_u32 v{vORA}, s{sT0}, v{vORA}"); e(f"v_add_u32 v{vORB}, s{sT0}, v{vORB}")
        soft(0)
        if K2:
            e(f"s_waitcnt vmcnt({8+W})"); g.ts("V0"); pv(0)
            e(f"s_waitcnt vmcnt({W})"); g.ts("V1"); pv(1)
            for n in range(16, 32): kload(n)
            for u in (2, 3):
                for j in range(8): vload(u, j)
        else:
            e(f"s_waitcnt vmcnt({24+W})"); g.ts("V0"); pv(0)
            for j in range(8): vload(2, j)
            e(f"s_waitcnt vmcnt({24+W})"); g.ts("V1"); pv(1)
            for j in range(8): vload(3, j)
        g.ts("QK")
        qkm(2, 32, 24)
        qkm(3, 96, 16)
        postb(2, 32); postb(3, 96)
        soft(1)
    else:
        qk(0); vunit(0); qk(1); vunit(1)
        postn([0,1,2,3]); postn([4,5,6,7])
        e(f"v_lshlrev_b32 v{vC}, 5, v{vC}")
        e(f"s_lshl_b32 s{sT0}, s{sW}, 2"); e(f"v_add_u32 v{vSA}, s{sT0}, v{vC}")
        e(f"v_bfe_u32 v{vC}, v{vL}, 4, 1"); e(f"v_lshlrev_b32 v{vORA}, 10, v{vC}"); e(f"v_lshlrev_b32 v{vC}, 5, v{vC}")
        e(f"v_and_b32 v{vORB}, 15, v{vL}"); e(f"v_lshl_add_u32 v{vORA}, v{vORB}, 5, v{vORA}")
        e(f"v_lshrrev_b32 v{vORB}, 5, v{vL}"); e(f"v_lshl_add_u32 v{vORA}, v{vORB}, 4, v{vORA}")
        e(f"s_and_b32 s{sT1}, s{s16k}, 0x100"); e(f"s_lshl_b32 s{sT1}, s{sT1}, 1"); e(f"v_add_u32 v{vORA}, s{sT1}, v{vORA}"); e(f"v_xor_b32 v{vORB}, 0x200, v{vORA}")
        e(f"s_lshl_b32 s{sT0}, s{sW}, 11"); e(f"s_add_u32 s{sT0}, s{sT0}, {L_OR}"); e(f"v_add_u32 v{vORA}, s{sT0}, v{vORA}"); e(f"v_add_u32 v{vORB}, s{sT0}, v{vORB}")
        soft(0)
        qk(2); vunit(2)
        postn([8,9,10,11])
        if o['woy']:
            e(f"s_lshr_b32 s{sT0}, s{sMEM}, 2"); e(f"s_lshl_b32 s{sT0}, s{sT0}, 7"); e(f"s_lshl_b32 s{sT1}, s{sKVH}, 9"); e(f"s_add_u32 s{sT0}, s{sT0}, s{sT1}")
            e(f"s_mul_i32 s{sT0}, s{sT0}, 896"); e(f"s_and_b32 s{sT1}, s{sMEM}, 3"); e(f"s_mul_i32 s{sT1}, s{sT1}, 224"); e(f"s_add_u32 s44, s{sT0}, s{sT1}")
            e(f"s_and_b32 s{sT2}, s{sW}, 3"); e(f"s_mul_i32 s{sT2}, s{sT2}, 448"); e(f"s_mul_i32 s45, s{sT2}, 16"); e(f"s_add_u32 s45, s45, {L_WO}")
            e(f"s_cmp_lt_u32 s{sW}, 4"); e("s_cselect_b32 s44, 0x4000000, s44"); e(f"s_cselect_b32 s45, {L_WO+28672}, s45"); e("s_cselect_b32 s46, 0, 1024")
            for ii in range(7):
                e(f"v_add_u32 v39, s{sT2}, v{vL}")
                if ii: e(f"v_add_u32 v39, {64*ii}, v39")
                e(f"v_mul_u32_u24 v{32+ii}, 4682, v39"); e(f"v_lshrrev_b32 v{32+ii}, 16, v{32+ii}")
                e(f"v_mul_u32_u24 v{32+ii}, 672, v{32+ii}"); e(f"v_lshl_add_u32 v{32+ii}, v39, 4, v{32+ii}")
        e(f"s_waitcnt vmcnt(16)"); g.ts("V0"); pv(0)
        e(f"s_waitcnt vmcnt({young})")
        g.ts("K3")
        for u in range(12, 16):
            d = 96 + 4*(u % 4)
            e(f"v_mfma_f32_16x16x32_bf16 {vr(d)}, {vr(vK+8*u)}, {vr(vQB)}, 0")
            e(f"v_mfma_f32_16x16x32_bf16 {vr(d)}, {vr(vK+8*u+4)}, {vr(vQB+4)}, {vr(d)}")
        vunit(3)
        late = 0
        if o['woy']:
            for ii in range(7):
                e("s_mov_b32 m0, s45"); e("s_add_u32 s45, s45, s46")
                e(f"buffer_load_dwordx4 v{32+ii}, {sr(sWO)}, s44 offen {POL} lds")
            late = 7
        elif o['wo_late']:
            wo_dma(60, 61); late = NWO
        g.ts("QK")
        e(f"s_waitcnt vmcnt({16+late})"); g.ts("V1"); pv(1)
        for step in range(4):
            for u in range(12, 16):
                d = 96 + 4*(u % 4); s_ = vS + u
                if step == 0: e(f"v_mov_b32_dpp v{s_}, v{d} quad_perm:[0,0,0,0] {DPP}")
                else: e(f"v_add_f32_dpp v{s_}, v{d+step}, v{s_} quad_perm:[{step},{step},{step},{step}] {DPP}")
        soft(1)
    e(f"v_mov_b32 v{vAL}, s{sT0}"); e(f"v_mov_b32 v{vA}, s{sT1}"); e(f"s_mov_b32 vcc_lo, 0xffff0000"); e(f"s_mov_b32 vcc_hi, 0xffff0000")
    e(f"v_cndmask_b32 v{vAL}, v{vAL}, v{vA}, vcc")
    for k in range(8): e(f"v_mul_f32 v{vACC+k}, v{vACC+k}, v{vAL}")
    g.ts("P")
    e(f"s_waitcnt vmcnt({8+late})"); g.ts("V2"); pv(2)
    e(f"s_lshl_b32 s{sT0}, s{sW}, 2"); e(f"v_add_u32 v{vB}, s{sT0}, v{vC}"); e("v_mov_b32 v62, 0")
    if o.get('nosw'): e("s_branch L_sready")
    g.lab("L_swait")
    e(f"ds_read_b32 v61, v62 offset:{L_CNT}"); e("s_waitcnt lgkmcnt(0)"); e(f"v_readfirstlane_b32 s{sT0}, v61"); e(f"s_cmp_eq_u32 s{sT0}, 8"); e("s_cbranch_scc1 L_sready")
    e(f"s_sleep {o['ssl']}"); e("s_branch L_swait")
    g.lab("L_sready")
    e(f"ds_read_b128 {vr(16)}, v{vC} offset:{L_SM}"); e(f"ds_read_b128 {vr(20)}, v{vC} offset:{L_SM+16}")
    e(f"ds_read_b32 v{vF}, v{vB} offset:{L_SM}")
    e(f"ds_read_b128 {vr(24)}, v{vC} offset:{L_SL}"); e(f"ds_read_b128 {vr(28)}, v{vC} offset:{L_SL+16}")
    e("s_waitcnt lgkmcnt(0)")
    e("v_max3_f32 v124, v16, v17, v18"); e("v_max3_f32 v125, v19, v20, v21"); e("v_max3_f32 v124, v124, v22, v23"); e("v_max_f32 v124, v124, v125")
    for w in range(8): e(f"v_sub_f32 v{16+w}, v{16+w}, v124")
    e(f"v_sub_f32 v{vF}, v{vF}, v124")
    for w in range(8): e(f"v_exp_f32 v{16+w}, v{16+w}")
    e(f"v_exp_f32 v{vF}, v{vF}")
    e("v_mul_f32 v126, v24, v16")
    for w in range(1, 8): e(f"v_fmac_f32 v126, v{24+w}, v{16+w}")
    e(f"v_rcp_f32 v16, v126"); e(f"v_mov_b32 v125, v{vTAG}"); e(f"v_mov_b32 v127, v{vTAG}")
    e(f"v_mul_f32 v{vF}, v{vF}, v16")
    e(f"s_sub_u32 s{sT0}, s{sW}, 5"); e(f"s_cmp_gt_u32 s{sT0}, 1"); e("s_cbranch_scc1 L_nostat")
    e(f"s_and_b32 s{sT1}, s{sMEM}, 1"); e(f"s_lshl_b32 s{sT1}, s{sT1}, 3"); e(f"s_add_u32 s{sT1}, s{sT1}, s{sB}")
    e(f"s_lshl_b32 s{sT2}, s{sG}, 1"); e(f"s_add_u32 s{sT2}, s{sT2}, s{sT0}")
    e(f"s_lshl_b32 s44, s{sT2}, 14"); e(f"s_lshl_b32 s45, s{sT1}, 9"); e(f"s_add_u32 s44, s44, s45"); e(f"s_add_u32 s44, s44, {WS_O}"); e(f"s_add_u32 s45, s44, {WS_F}")
    e(f"s_lshl_b32 s{sT2}, s{sT2}, 8"); e(f"s_lshl_b32 s{sT1}, s{sT1}, 4"); e(f"s_add_u32 s{sT2}, s{sT2}, s{sT1}"); e(f"s_add_u32 s{sT2}, s{sT2}, {WS_S}"); e(f"s_add_u32 s{sT3}, s{sT2}, {WS_F}")
    e(f"s_lshl_b32 s{sT1}, s{sT0}, 4"); e(f"s_lshl_b64 exec, 1, s{sT1}")
    e(f"buffer_store_dwordx4 v[124:127], v62, {sr(sWS)}, s{sT3} offen")
    e(f"buffer_store_dwordx4 v[124:127], v62, {sr(sWS)}, s{sT2} offen sc1")
    e("s_mov_b64 exec, -1")
    e(f"s_lshl_b32 s{sT1}, s{sT0}, 10"); e(f"s_add_u32 s{sT1}, s{sT1}, {L_OR}"); e(f"v_lshlrev_b32 v60, 4, v{vL}"); e(f"v_add_u32 v60, s{sT1}, v60")
    e(f"v_lshrrev_b32 v61, 5, v{vL}"); e("v_lshlrev_b32 v61, 13, v61"); e(f"v_and_b32 v63, 31, v{vL}"); e("v_lshl_add_u32 v61, v63, 4, v61")
    if o['pret']:
        e(f"v_add_u32 v16, 1, v{vTAG}"); e("v_mov_b32 v17, v16"); e("v_mov_b32 v18, v16"); e("v_mov_b32 v19, v16")
        e(f"buffer_store_dwordx4 v[16:19], v61, {sr(sWS)}, s45 offen")
    e(f"s_waitcnt vmcnt({2+o['pret']+late})")
    e("s_branch L_v3")
    g.lab("L_nostat")
    e(f"s_waitcnt vmcnt({late})")
    g.lab("L_v3")
    for k in range(4): e(f"v_mul_f32 v{vACC+k}, v{vACC+k}, v{vF}")
    g.ts("V3")
    e(f"ds_write_b128 v{vORA}, {vr(vACC)}")
    pv(3)
    e(f"v_lshrrev_b32 v53, 4, v{vL}")
    e(f"s_lshr_b32 s{sT2}, s{sMEM}, 2")
    g.nop(6)
    for k in range(4): e(f"v_mul_f32 v{vACC+4+k}, v{vACC+4+k}, v{vF}")
    e(f"ds_write_b128 v{vORB}, {vr(vACC+4)}")
    e("s_waitcnt lgkmcnt(0)")
    e("s_barrier")
    g.ts("B4")
    if o.get('stopb4'): e("s_branch L_fin")
    e(f"s_cmp_lt_u32 s{sW}, 4"); e("s_cbranch_scc1 L_gath")
    e(f"s_cmp_eq_u32 s{sW}, 4"); e("s_cbranch_scc1 L_stat")
    e(f"s_cmp_eq_u32 s{sW}, 7"); e("s_cbranch_scc1 L_w7")
    for w in range(8): e(f"ds_read_b128 {vr(64+4*w)}, v60 offset:{w*2048}")
    e(f"v_mov_b32 v97, v{vTAG}"); e(f"v_mov_b32 v99, v{vTAG}")
    for w in range(1, 8):
        if w % 2 == 1: e(f"s_waitcnt lgkmcnt({0 if o['ts'] else 7-w})")
        if w in (1, 3, 5, 7):
            for k in range(4): e(f"v_add_f32 v{64+4*(w-1)+k}, v{64+4*(w-1)+k}, v{64+4*w+k}")
        if w == 3:
            for k in range(4): e(f"v_add_f32 v{64+k}, v{64+k}, v{72+k}")
        if w == 5:
            for k in range(4): e(f"v_add_f32 v{64+k}, v{64+k}, v{80+k}")
    for k in range(4): e(f"v_add_f32 v{64+k}, v{64+k}, v{88+k}")
    e("v_cvt_pk_bf16_f32 v96, v64, v65"); e("v_cvt_pk_bf16_f32 v98, v66, v67")
    e(f"buffer_store_dwordx4 v[96:99], v61, {sr(sWS)}, s45 offen")
    g.ts("opub")
    e(f"buffer_store_dwordx4 v[96:99], v61, {sr(sWS)}, s44 offen sc1")
    if o['woy']: e(f"s_waitcnt vmcnt({4+o['pret']})")
    e("s_branch L_wofrag")
    g.lab("L_stat")
    e(f"s_lshr_b32 s{sT2}, s{sT2}, 1"); e(f"s_lshl_b32 s{sT3}, s{sG}, 1"); e(f"s_add_u32 s{sT3}, s{sT3}, s{sT2}")
    e(f"s_lshl_b32 s{sT3}, s{sT3}, 8"); e(f"s_add_u32 s{sT3}, s{sT3}, {WS_S}")
    e(f"v_and_b32 v54, 15, v{vL}"); e("v_lshlrev_b32 v55, 4, v54")
    e("s_mov_b64 exec, 0xffff")
    def sl(): e(f"buffer_load_dwordx4 {vr(160)}, v55, {sr(sWS)}, s{sT3} offen sc1")
    poll("sg", sl, [161, 163], 58, 59, o['sleep1'], fs=True)
    g.ts("SG")
    if o['ts']: e(f"s_sub_u32 s46, {o['spin']}, s{sSPIN}")
    e(f"v_mov_b32_dpp v100, v160 row_ror:8 {DPP}")
    e(f"v_mov_b32_dpp v101, v162 row_ror:8 {DPP}")
    e("v_max_f32 v102, v160, v100")
    e("v_sub_f32 v103, v160, v102"); e("v_sub_f32 v100, v100, v102")
    e("v_exp_f32 v103, v103"); e("v_exp_f32 v100, v100"); e("s_nop 0")
    e("v_mul_f32 v103, v103, v162"); e("v_fma_f32 v100, v100, v101, v103")
    e("v_rcp_f32 v100, v100"); e("v_lshlrev_b32 v54, 2, v54"); e("v_mul_f32 v103, v103, v100")
    e("s_mov_b64 exec, 0xffff")
    e(f"ds_write_b32 v54, v103 offset:{L_W}")
    e("s_mov_b64 exec, -1")
    e("s_branch L_wofrag")
    g.lab("L_gath")
    e(f"v_and_b32 v52, 15, v{vL}"); e("v_lshlrev_b32 v52, 9, v52"); e("v_lshl_add_u32 v52, v53, 5, v52")
    e(f"s_lshl_b32 s{sT3}, s{sG}, 2"); e(f"s_add_u32 s{sT3}, s{sT3}, s{sT2}"); e(f"s_lshl_b32 s{sT3}, s{sT3}, 13")
    e(f"s_lshl_b32 s{sT2}, s{sW}, 7"); e(f"s_add_u32 s{sT3}, s{sT3}, s{sT2}"); e(f"s_add_u32 s{sT3}, s{sT3}, {WS_O}")
    e(f"s_lshl_b32 s{sT2}, s{sW}, 10"); e(f"v_lshlrev_b32 v54, 4, v{vL}"); e(f"v_add_u32 v54, s{sT2}, v54")
    def gl():
        e(f"buffer_load_dwordx4 {vr(128)}, v52, {sr(sWS)}, s{sT3} offen sc1")
        e(f"buffer_load_dwordx4 {vr(132)}, v52, {sr(sWS)}, s{sT3} offen offset:16 sc1")
    g.ts("g1s")
    poll("g1", gl, [129, 131, 133, 135], 58, 59, o['sleep1'], fs=True)
    if o['ts']: e(f"s_sub_u32 s46, {o['spin']}, s{sSPIN}")
    e("v_mov_b32 v129, v130"); e("v_mov_b32 v130, v132"); e("v_mov_b32 v131, v134")
    e(f"ds_write_b128 v54, {vr(128)} offset:{L_B3}")
    if o['hint']:
        e(f"s_or_b32 s{sT0}, s{sW}, s{sMEM}"); e("s_cbranch_scc1 L_nohint")
        e(f"s_lshl_b32 s{sT0}, s{sG}, 2"); e(f"s_add_u32 s{sT0}, s{sT0}, {WS_H}"); e(f"v_lshlrev_b32 v54, 8, v{vL}")
        if not o['hp']: e("s_mov_b64 exec, 0xffff")
        e(f"buffer_store_dword v{vTAG}, v54, {sr(sWS)}, s{sT0} offen sc1")
        e("s_mov_b64 exec, -1")
        g.lab("L_nohint")
    g.ts("G1")
    e("s_branch L_wofrag")
    g.lab("L_w7")
    e("s_waitcnt vmcnt(0)")
    g.lab("L_wofrag")
    e(f"v_bfe_u32 v55, v{vL}, 2, 2"); e("v_lshl_add_u32 v55, v53, 3, v55"); e("v_mul_u32_u24 v55, 224, v55")
    e(f"v_and_b32 v56, 3, v{vL}"); e("v_lshl_add_u32 v55, v56, 3, v55")
    e(f"s_lshl_b32 s{sT1}, s{sW}, 5"); e(f"s_add_u32 s{sT1}, s{sT1}, {L_WO}"); e(f"v_add_u32 v55, s{sT1}, v55")
    def wofr():
        for k in range(4):
            e(f"ds_read_b64_tr_b16 {vr(80+4*k,2)}, v55 offset:{k*32*224}")
            e(f"ds_read_b64_tr_b16 {vr(82+4*k,2)}, v55 offset:{k*32*224+4*224}")
    if not o['wo_late']: wofr()
    e(f"s_and_b32 s{sT1}, s{sMEM}, 3"); e(f"s_mul_i32 s{sT1}, s{sT1}, 7"); e(f"s_add_u32 s{sT1}, s{sT1}, s{sW}")
    if o['psw']:
        e(f"s_lshl_b32 s{sT2}, s{sG}, 2"); e(f"s_lshr_b32 s{sT0}, s{sMEM}, 2"); e(f"s_add_u32 s{sT2}, s{sT2}, s{sT0}")
        e(f"s_lshl_b32 s{sT0}, s{sT1}, 3"); e(f"s_and_b32 s{sT0}, s{sT0}, 63"); e(f"s_xor_b32 s{sT0}, s{sT0}, s{sT2}")
        e(f"v_and_b32 v57, 7, v{vL}"); e(f"v_xor_b32 v56, s{sT0}, v57"); e("v_lshlrev_b32 v57, 13, v57"); e("v_lshl_add_u32 v57, v56, 7, v57")
        e("v_lshl_add_u32 v57, v53, 5, v57")
        e(f"s_lshl_b32 s{sT2}, s{sT1}, 16"); e(f"s_add_u32 s{sT2}, s{sT2}, {WS_P}")
    else:
        e(f"s_lshl_b32 s{sT1}, s{sT1}, 16"); e(f"s_lshl_b32 s{sT2}, s{sG}, 2"); e(f"s_lshr_b32 s{sT0}, s{sMEM}, 2"); e(f"s_add_u32 s{sT2}, s{sT2}, s{sT0}")
        e(f"s_lshl_b32 s{sT2}, s{sT2}, 7"); e(f"s_add_u32 s{sT2}, s{sT2}, s{sT1}"); e(f"s_add_u32 s{sT2}, s{sT2}, {WS_P}")
        e(f"v_and_b32 v57, 7, v{vL}"); e("v_lshlrev_b32 v57, 13, v57"); e("v_lshl_add_u32 v57, v53, 5, v57")
    e(f"v_bfe_u32 v56, v{vL}, 3, 1"); e("v_lshl_add_u32 v57, v56, 4, v57")
    e(f"v_lshlrev_b32 v58, 4, v{vL}"); e(f"v_and_b32 v59, 15, v{vL}"); e("v_lshlrev_b32 v59, 2, v59")
    e("s_waitcnt vmcnt(0) lgkmcnt(0)" if (o['wo_late'] and not o['woy']) else "s_waitcnt lgkmcnt(0)")
    e("s_barrier")
    g.ts("B5")
    e(f"s_cmp_eq_u32 s{sW}, 7"); e("s_cbranch_scc1 L_red")
    for k in range(4): e(f"ds_read_b128 {vr(164+4*k)}, v58 offset:{L_B3+k*1024}")
    e(f"ds_read_b32 v103, v59 offset:{L_W}")
    if o['wo_late']: wofr()
    e(f"v_mov_b32 v109, v{vTAG}"); e(f"v_mov_b32 v111, v{vTAG}")
    e("s_waitcnt lgkmcnt(0)")
    for k in range(4):
        e(f"v_mfma_f32_16x16x32_bf16 {vr(96)}, {vr(80+4*k)}, {vr(164+4*k)}, {'0' if k==0 else vr(96)}")
    g.nop(8)
    for k in range(4): e(f"v_mul_f32 v{96+k}, v{96+k}, v103")
    for k in range(4): e(f"v_add_f32_dpp v{104+k}, v{96+k}, v{96+k} row_ror:8 {DPP}")
    e(f"v_cndmask_b32 v108, v104, v106, s[{sM8}:{sM8+1}]"); e(f"v_cndmask_b32 v110, v105, v107, s[{sM8}:{sM8+1}]")
    e(f"buffer_store_dwordx4 v[108:111], v57, {sr(sWS)}, s{sT2} offen sc1")
    g.ts("ppub")
    if o['ts'] and 'pack' in o.get('tson', ()):
        e("s_waitcnt vmcnt(0)"); g.ts("pack")
    e("s_branch L_fin")
    g.lab("L_red")
    e("s_cmp_ge_u32 s2, 224"); e("s_cbranch_scc1 L_fin")
    e(f"s_lshl_b32 s{sT3}, s2, 13"); e(f"s_add_u32 s{sT3}, s{sT3}, {WS_P}"); e(f"s_add_u32 s{sT2}, s{sT3}, 4096")
    e(f"v_and_b32 v60, 7, v{vL}"); e("v_lshlrev_b32 v60, 2, v60")
    e(f"s_mul_i32 s21, s{sKVH}, 896"); e("s_lshr_b32 s20, s2, 3"); e("s_lshl_b32 s20, s20, 5"); e("s_add_u32 s21, s21, s20")
    def rl():
        for i in range(8):
            e(f"buffer_load_dwordx4 {vr(128+4*i)}, v58, {sr(sWS)}, s{sT3 if i<4 else sT2} offen offset:{(i%4)*1024} sc1")
    if o['hp']: e("s_and_b32 s20, s2, 63"); e("s_lshl_b32 s20, s20, 8")
    else: e(f"s_lshl_b32 s20, s{sMEM}, 8")
    e(f"s_add_u32 s20, s20, {WS_H}")
    if o['psw']:
        e("s_bfe_u32 s44, s2, 0x40002"); e(f"v_xor_b32 v61, s44, v{vL}"); e("v_lshlrev_b32 v61, 2, v61")
        e("s_bitcmp1_b32 s2, 5"); e("s_cselect_b32 s44, s23, s22"); e("s_cselect_b32 s23, s22, s23"); e("s_mov_b32 s22, s44")
    else:
        e(f"v_lshlrev_b32 v61, 2, v{vL}")
    e(f"v_add_u32 v63, 1, v{vTAG}")
    for i in range(16): e(f"v_mov_b32 v{129+2*i}, v63")
    for i in range(8): e(f"s_mov_b64 s[{sMASK+2*i}:{sMASK+2*i+1}], -1")
    e("s_mov_b32 s44, 0")
    e(f"s_mov_b32 s{sSPIN}, {o['spin']}")
    def data_issue():
        for i in range(8):
            e(f"s_bitcmp1_b32 s44, {2*i}"); e(f"s_cselect_b32 exec_lo, s{sMASK+2*i}, 0")
            e(f"s_bitcmp1_b32 s44, {2*i+1}"); e(f"s_cselect_b32 exec_hi, s{sMASK+2*i+1}, 0")
            e(f"buffer_load_dwordx4 {vr(128+4*i)}, v58, {sr(sWS)}, s{sT3 if i<4 else sT2} offen offset:{(i%4)*1024} sc1")
    def data_issue_all():
        for i in range(8):
            e(f"s_mov_b64 exec, s[{sMASK+2*i}:{sMASK+2*i+1}]")
            e(f"buffer_load_dwordx4 {vr(128+4*i)}, v58, {sr(sWS)}, s{sT3 if i<4 else sT2} offen offset:{(i%4)*1024} sc1")
    def data_check():
        for i in range(8):
            e(f"v_cmp_ne_u32 vcc, v{129+4*i}, v{vTAG}"); e(f"v_cmp_ne_u32 s[{sMASK+2*i}:{sMASK+2*i+1}], v{131+4*i}, v{vTAG}")
            e(f"s_or_b64 s[{sMASK+2*i}:{sMASK+2*i+1}], s[{sMASK+2*i}:{sMASK+2*i+1}], vcc")
        for i in range(0, 8, 2): e(f"s_or_b64 s[{sT0}:{sT1}], s[{sMASK+2*i}:{sMASK+2*i+1}], s[{sMASK+2*i+2}:{sMASK+2*i+3}]" if i == 0 else f"s_or_b64 vcc, s[{sMASK+2*i}:{sMASK+2*i+1}], s[{sMASK+2*i+2}:{sMASK+2*i+3}]\n  s_or_b64 s[{sT0}:{sT1}], s[{sT0}:{sT1}], vcc")
    g.lab("L_g2")
    data_issue()
    e("s_mov_b64 exec, 0xffff")
    e(f"buffer_load_dword v62, v61, {sr(sWS)}, s20 offen sc1")
    e("s_mov_b64 exec, -1")
    e("s_waitcnt vmcnt(0)")
    data_check()
    e("s_cbranch_scc0 L_g2_ok")
    e(f"v_cmp_eq_u32 vcc, v62, v{vTAG}")
    e("s_and_b32 s44, vcc_lo, 0xffff"); e(f"s_bcnt1_i32_b32 s45, s44"); e(f"s_cmp_ge_u32 s45, {16-o['hk']}")
    if o['hp']: e("s_cbranch_scc1 L_hpb")
    if o['sleep2']: e(f"s_sleep {o['sleep2']}")
    e(f"s_sub_u32 s{sSPIN}, s{sSPIN}, 1"); e("s_cbranch_scc0 L_g2")
    e("s_branch L_g2_ok")
    if o['hp']:
        NP = o['hp']
        g.lab("L_hpb")
        e("s_cmp_eq_u32 s45, 16"); e("s_cbranch_scc1 L_g2c")
        if o.get('hfetch', 1): data_issue()
        e("s_mov_b64 exec, 0xffff")
        for k in range(NP):
            e(f"buffer_load_dword v{64+k}, v61, {sr(sWS)}, s20 offen sc1"); e(f"s_sleep {o.get('hgap',2)}")
        g.lab("L_hp")
        for k in range(NP):
            e(f"s_waitcnt vmcnt({NP-1})")
            e(f"v_cmp_ne_u32 vcc, v{64+k}, v{vTAG}")
            e("s_cbranch_vccz L_hp_ok")
            e(f"buffer_load_dword v{64+k}, v61, {sr(sWS)}, s20 offen sc1")
        e(f"s_sub_u32 s{sSPIN}, s{sSPIN}, 1"); e("s_cbranch_scc0 L_hp")
        g.lab("L_hp_ok")
        e("s_mov_b64 exec, -1")
        if o.get('hfetch', 1): data_check()
        g.ts("H")
        g.lab("L_g2c")
        data_issue_all()
        e("s_mov_b64 exec, -1")
        e("s_waitcnt vmcnt(0)")
        data_check()
        e("s_cbranch_scc0 L_g2_ok")
        e(f"s_sub_u32 s{sSPIN}, s{sSPIN}, 1"); e("s_cbranch_scc0 L_g2c")
    g.lab("L_g2_ok")
    g.ts("G2")
    for base in (128, 144):
        e(f"v_add_f32 v{base}, v{base}, v{base+4}"); e(f"v_add_f32 v{base+2}, v{base+2}, v{base+6}")
        e(f"v_add_f32 v{base+8}, v{base+8}, v{base+12}"); e(f"v_add_f32 v{base+10}, v{base+10}, v{base+14}")
    R = [128, 130, 144, 146]
    for r in R: e(f"v_add_f32 v{r}, v{r}, v{r+8}")
    for r in R: e(f"v_add_f32_dpp v{r}, v{r}, v{r} row_ror:8 {DPP}")
    for sw in ("16", "32"):
        for r in R: e(f"v_mov_b32 v{r+1}, v{r}")
        for r in R: e(f"v_permlane{sw}_swap_b32 v{r}, v{r+1}")
        for r in R: e(f"v_add_f32 v{r}, v{r}, v{r+1}")
    for base, gs in ((128, 22), (144, 23)):
        e(f"v_cvt_pk_bf16_f32 v{base+1}, v{base}, v{base+2}")
        e(f"v_lshlrev_b32 v{base}, 16, v{base+1}"); e(f"v_and_b32 v{base+2}, 0xffff0000, v{base+1}")
        e(f"v_mul_f32 v{base}, s{gs}, v{base}"); e(f"v_mul_f32 v{base+2}, s{gs}, v{base+2}")
        e(f"v_cvt_pk_bf16_f32 v{base+1}, v{base}, v{base+2}")
        e(f"v_lshlrev_b32 v{base}, 16, v{base+1}"); e(f"v_and_b32 v{base+2}, 0xffff0000, v{base+1}")
    e("v_add_f32 v128, v128, v144"); e("v_add_f32 v130, v130, v146")
    e("v_cvt_pk_bf16_f32 v128, v128, v130")
    e("s_mov_b64 exec, 0xff")
    e(f"buffer_store_dword v128, v60, {sr(sOUT)}, s21 offen")
    e("s_cmp_lg_u32 s2, 0"); e("s_cbranch_scc1 L_fin")
    e("s_mov_b64 exec, 1")
    e(f"buffer_store_dword v{vTAG}, v60, {sr(sWS)}, 0 offen sc1")
    g.lab("L_fin")
    if o.get('hold'):
        g.lab("L_hold")
        e("s_memrealtime s[86:87]"); e("s_waitcnt lgkmcnt(0)"); e("s_sub_u32 s86, s86, s84"); e(f"s_cmp_lt_u32 s86, {o['hold']}"); e("s_cbranch_scc1 L_hold")
    if o['ts']:
        e("s_mov_b64 exec, -1")
        g.ts("end")
        e("s_waitcnt lgkmcnt(0)")
        for k in range(16): e(f"v_mov_b32 v{128+k}, s{TSREG[k]}" if k < g.nts else f"v_mov_b32 v{128+k}, 0")
        e("s_mul_i32 s46, s46, 100"); e(f"s_add_u32 s46, s46, s{TSREG[0]}"); e("v_mov_b32 v143, s46")
        e(f"s_lshl_b32 s{sT0}, s2, 3"); e(f"s_add_u32 s{sT0}, s{sT0}, s{sW}"); e(f"s_lshl_b32 s{sT0}, s{sT0}, 6"); e(f"s_add_u32 s{sT0}, s{sT0}, {WS_TS}")
        e("v_mov_b32 v60, 0"); e("s_mov_b64 exec, 1")
        for k in range(4): e(f"buffer_store_dwordx4 {vr(128+4*k)}, v60, {sr(sWS)}, s{sT0} offen offset:{16*k}")
        print("TS:", ",".join(g.tsn))
        if o.get('dbg'):
            e(f"s_cmp_lg_u32 s{sW}, 7"); e("s_cbranch_scc1 L_end"); e("s_cmp_ge_u32 s2, 224"); e("s_cbranch_scc1 L_end")
            e("s_sleep 64")
            e("s_load_dwordx2 s[24:25], s[0:1], 96"); e("s_waitcnt lgkmcnt(0)")
            e("s_mov_b32 s26, 256"); e("s_mov_b32 s27, 0x20000")
            for k in range(min(g.nts, 8)):
                e(f"s_sub_u32 s{sT0}, s{TSREG[k]}, s{TSREG[0]}"); e(f"s_cmp_gt_u32 s{sT0}, 100000"); e(f"s_cbranch_scc1 L_dbg{k}")
                e(f"v_mov_b32 v128, s{TSREG[k]}"); e(f"v_sub_u32 v129, 0, v128")
                e(f"buffer_atomic_umax v128, v60, s[24:27], 0 offen offset:{8*k} sc1")
                e(f"buffer_atomic_umax v129, v60, s[24:27], 0 offen offset:{8*k+4} sc1")
                g.lab(f"L_dbg{k}")
    g.lab("L_end")
    e("s_endpgm")
    g.lab("L_codeend")
    g.L += ['.section .rodata,"a"', ".p2align 6", f".amdhsa_kernel {KN}",
            "  .amdhsa_next_free_vgpr 256", "  .amdhsa_next_free_sgpr 102", "  .amdhsa_accum_offset 256",
            "  .amdhsa_group_segment_fixed_size 0", "  .amdhsa_kernarg_size 112", "  .amdhsa_user_sgpr_count 2",
            "  .amdhsa_user_sgpr_kernarg_segment_ptr 1", "  .amdhsa_system_sgpr_workgroup_id_x 1",
            "  .amdhsa_float_denorm_mode_32 3", ".end_amdhsa_kernel"]
    return "\n".join(g.L) + "\n"

if __name__ == "__main__":
    from lint import lint
    from build import build
    out = sys.argv[1]; opts = eval("dict(" + (sys.argv[2] if len(sys.argv) > 2 else "") + ")")
    s = gen(**opts)
    open(out, "w").write(s)
    for p in lint(s): print("LINT:", p)
    build(out)
```
